```python
import torch

def _softmax(x, axis=-1):
    return torch.softmax(x, dim=axis)
def _gelu(x):
    return torch.nn.functional.gelu(x, approximate="tanh")
def _silu(x):
    return torch.nn.functional.silu(x)
def _sigmoid(x):
    return torch.sigmoid(x)
def _layernorm(x, axis=-1, eps=1e-5):
    m = x.mean(dim=axis, keepdim=True)
    v = x.var(dim=axis, keepdim=True, unbiased=False)
    return (x - m) / torch.sqrt(v + eps)
def _scatter_add(tgt, idx, src, axis=0):
    return tgt.clone().index_add_(axis, idx, src)
def _segment_sum(src, seg, n):
    out = torch.zeros((n,) + src.shape[1:], dtype=src.dtype)
    return out.index_add_(0, seg, src)
def _pad(x, pw):
    flat = tuple(v for pair in reversed(pw) for v in pair)
    return torch.nn.functional.pad(x, flat)

kernel_name = 'sequential_preLN__ssm_conv_h3__glu_gated_reglu__prompt'

def setup_inputs():

    _w = (lambda a: (lambda t: t.to(torch.bfloat16) if t.is_floating_point() else t)(torch.as_tensor(a)))
    def _A_setup():
        B, S, D = 1, 2048, 640
        ks = 4
        return {
            "q": _w((lambda *s: torch.randn(*s, dtype=torch.bfloat16) * 0.05)(B, S, D)),
            "k": _w((lambda *s: torch.randn(*s, dtype=torch.bfloat16) * 0.2)(B, S, D)),
            "v": _w((lambda *s: torch.randn(*s, dtype=torch.bfloat16) * 0.2)(B, S, D)),
            "shift_k": _w((lambda *s: torch.randn(*s, dtype=torch.bfloat16) * 0.2)(D, ks) * 0.5),
            "ssm_k": _w((lambda *s: torch.randn(*s, dtype=torch.bfloat16) * 0.4)(D, S) * (1.0 / S ** 0.5)),
            "ssm_D": _w((lambda *s: torch.randn(*s, dtype=torch.bfloat16) * 0.2)(D)),
        }
    _A_in = _A_setup()

    def _B_setup():
        B, S, D, F = 1, 2048, 640, 1728
        return {
            "x": _w((lambda *s: torch.randn(*s, dtype=torch.bfloat16) * 0.05)(B, S, D)),
            "W_gate": _w((lambda *s: torch.randn(*s, dtype=torch.bfloat16) * 0.2)(D, F) * (2.0 / D) ** 0.5),
            "W_up": _w((lambda *s: torch.randn(*s, dtype=torch.bfloat16) * 0.2)(D, F) * (2.0 / D) ** 0.5),
            "W_down": _w((lambda *s: torch.randn(*s, dtype=torch.bfloat16) * 0.2)(F, D) * (1.0 / F) ** 0.5),
        }
    _B_in = _B_setup()

    return {
        "A_q": _A_in["q"],
        "A_k": _A_in["k"],
        "A_v": _A_in["v"],
        "A_shift_k": _A_in["shift_k"],
        "A_ssm_k": _A_in["ssm_k"],
        "A_ssm_D": _A_in["ssm_D"],
        "B_x": _B_in["x"],
        "B_W_gate": _B_in["W_gate"],
        "B_W_up": _B_in["W_up"],
        "B_W_down": _B_in["W_down"],
    }

def reference(A_q, A_k, A_v, A_shift_k, A_ssm_k, A_ssm_D, B_x, B_W_gate, B_W_up, B_W_down):
    def _A_ref(q, k, v, shift_k, ssm_k, ssm_D):
        B, S, D = q.shape
        ks = shift_k.shape[-1]
        k_pad = _pad(k, ((0, 0), (ks - 1, 0), (0, 0)))
        k_shift = torch.zeros_like(k)
        for t in range(ks):
            k_shift = k_shift + k_pad[:, t:t + S, :] * shift_k[:, ks - 1 - t][None, None, :]
        kv = k_shift * v
        L = 2 * S
        kv_pad = _pad(kv, ((0, 0), (0, S), (0, 0)))
        kf_pad = _pad(ssm_k, ((0, 0), (0, S)))
        kv_f = (lambda x, axes=(-2,-1): torch.fft.rfft2(x.float(), dim=axes))(kv_pad[:, None, :, :], axes=(1, 2))
        kf_f = (lambda x, axes=(-2,-1): torch.fft.rfft2(x.float(), dim=axes))(kf_pad[:, None, :], axes=(1, 2))
        kf_f = (lambda x, *d: x.permute(*d))(kf_f, 1, 2, 0)
        y_f = kv_f * kf_f[None, :, :, :]
        y = (lambda x, s, axes=(-2,-1): torch.fft.irfft2(x, s=s, dim=axes).to(torch.bfloat16))(y_f, (1, L), axes=(1, 2))[:, 0, :S, :]
        y = y + kv * ssm_D[None, None, :]
        return q * y

    def _B_ref(x, W_gate, W_up, W_down):
        gate = torch.einsum("bsd,df->bsf", x, W_gate)
        up = torch.einsum("bsd,df->bsf", x, W_up)
        gate = gate * (lambda x, dt: x.to(dt))(gate > 0, gate.dtype)
        h = gate * up
        return torch.einsum("bsf,fd->bsd", h, W_down)

    x = A_q
    h = x + _A_ref(_layernorm(x, axis=-1), A_k, A_v, A_shift_k, A_ssm_k, A_ssm_D)
    h2 = h + _B_ref(_layernorm(h, axis=-1), B_W_gate, B_W_up, B_W_down)
    return h2
```

```python
import re

class Reg:
    def __init__(self, kind, idx, n=1):
        self.kind, self.idx, self.n = kind, idx, n
    def __str__(self):
        if self.n == 1:
            return f"{self.kind}{self.idx}"
        return f"{self.kind}[{self.idx}:{self.idx+self.n-1}]"
    __repr__ = __str__
    def __getitem__(self, k):
        if isinstance(k, slice):
            a = k.start or 0
            b = self.n if k.stop is None else k.stop
            assert 0 <= a < b <= self.n, (self, k)
            return Reg(self.kind, self.idx + a, b - a)
        assert 0 <= k < self.n, (self, k)
        return Reg(self.kind, self.idx + k, 1)
    def sub(self, a, n):
        return self[a:a+n]
    def neg(self):
        return "-" + str(self)

def V(i, n=1): return Reg('v', i, n)
def A(i, n=1): return Reg('a', i, n)
def S(i, n=1): return Reg('s', i, n)

class Alloc:
    def __init__(self, kind, lo, hi):
        self.kind, self.lo, self.hi = kind, lo, hi
        self.free = [True] * (hi + 1)
        self.top = lo
    def get(self, n=1, align=None):
        if align is None:
            align = 1 if n == 1 else (2 if self.kind != 's' else (2 if n == 2 else 4))
        i = self.lo
        while True:
            i = (i + align - 1) // align * align
            assert i + n - 1 <= self.hi, f"out of {self.kind} registers (want {n})"
            if all(self.free[i:i+n]):
                for j in range(i, i+n): self.free[j] = False
                self.top = max(self.top, i + n)
                return Reg(self.kind, i, n)
            i += 1
    def put(self, r):
        for j in range(r.idx, r.idx + r.n):
            assert not self.free[j]
            self.free[j] = True
    def take(self, r):
        for j in range(r.idx, r.idx + r.n):
            assert self.free[j], r
            self.free[j] = False
        self.top = max(self.top, r.idx + r.n)
        return r

_RE_REG = re.compile(r'^-?(?:abs\()?\|?([vas])(?:(\d+)|\[(\d+):(\d+)\])\|?\)?$')
def regs_of(op):
    op = str(op).strip()
    if op in ('vcc',): return {('s', 106), ('s', 107)}
    if op == 'vcc_lo': return {('s', 106)}
    if op == 'vcc_hi': return {('s', 107)}
    if op == 'exec': return {('s', 126), ('s', 127)}
    if op == 'm0': return {('s', 124)}
    m = _RE_REG.match(op)
    if not m: return set()
    k = m.group(1)
    if m.group(2) is not None:
        return {(k, int(m.group(2)))}
    return {(k, i) for i in range(int(m.group(3)), int(m.group(4)) + 1)}

TRANS = ('v_exp_f32', 'v_log_f32', 'v_rcp_f32', 'v_rsq_f32', 'v_sqrt_f32', 'v_sin_f32', 'v_cos_f32', 'v_rcp_iflag_f32')
EXEC = {('s', 126), ('s', 127)}
VCC = {('s', 106), ('s', 107)}
M0 = {('s', 124)}

class Inst:
    __slots__ = ('mn', 'ops', 'mods', 'cls', 'wr', 'rd', 'srcA', 'srcC', 'dst', 'dpp', 'ws', 'target', 'lanesel', 'sdata', 'text', 'constrd')
    def __init__(self, mn, ops, mods):
        self.mn, self.ops, self.mods = mn, [str(o) for o in ops], mods
        self.ws = 1
        self.target = None
        self.srcA = set(); self.srcC = set(); self.lanesel = set(); self.sdata = set(); self.constrd = set()
        self.dpp = any(t in mods for t in ('row_', 'quad_perm', 'wave_', 'dpp'))
        o = self.ops
        R = [regs_of(x) for x in o]
        U = lambda l: set().union(*l) if l else set()
        wr, rd = set(), set()
        if mn.startswith('v_mfma'):
            self.cls = 'mfma'
            wr = R[0]; self.srcA = R[1] | R[2]; self.srcC = R[3]; rd = self.srcA | self.srcC
        elif mn.startswith('v_'):
            self.cls = 'valu'
            if mn.startswith('v_cmp'):
                wr = R[0]; rd = U(R[1:])
                assert not mn.startswith('v_cmpx')
            elif mn.startswith('v_permlane') and 'swap' in mn:
                wr = R[0] | R[1]; rd = set(wr)
            elif mn in ('v_add_co_u32', 'v_sub_co_u32', 'v_subrev_co_u32'):
                wr = R[0] | R[1]; rd = U(R[2:])
            elif mn in ('v_addc_co_u32', 'v_subb_co_u32'):
                wr = R[0] | R[1]; rd = U(R[2:])
            elif mn in ('v_fmac_f32', 'v_dot2c_f32_bf16', 'v_pk_fmac_f16'):
                wr = R[0]; rd = U(R)
            elif mn in ('v_readlane_b32',):
                wr = R[0]; rd = U(R[1:]); self.lanesel = R[2]
            elif mn in ('v_writelane_b32',):
                wr = R[0]; rd = U(R); self.lanesel = R[2]
            elif mn == 'v_nop':
                pass
            else:
                wr = R[0]; rd = U(R[1:])
                if self.dpp: rd |= R[0]
            self.constrd = {r for r in rd if r[0] == 's'}
        elif mn.startswith('ds_'):
            self.cls = 'ds'
            if mn.startswith('ds_read') or mn.startswith('ds_bpermute') or mn.startswith('ds_permute') or mn.startswith('ds_swizzle'):
                wr = R[0]; rd = U(R[1:])
            else:
                rd = U(R)
        elif mn.startswith('buffer_') or mn.startswith('global_'):
            self.cls = 'vmem'
            lds = ' lds' in (' ' + mods)
            if 'load' in mn:
                if lds:
                    rd = U(R) | M0
                else:
                    wr = R[0]; rd = U(R[1:])
            elif 'atomic' in mn:
                rd = U(R)
                if 'sc0' in mods: wr = R[0] if mn.startswith('buffer_') else R[0]
            elif 'store' in mn:
                rd = U(R)
                if 'x3' in mn or 'x4' in mn:
                    self.sdata = R[0] if mn.startswith('buffer_') else R[1]
            else:
                pass
        elif mn.startswith('s_load') or mn in ('s_memtime', 's_memrealtime'):
            self.cls = 'smem'
            wr = R[0]; rd = U(R[1:])
        elif mn.startswith('s_'):
            self.cls = 'salu'
            if mn == 's_nop':
                self.ws = int(o[0]) + 1
            elif mn.startswith('s_cmp') or mn.startswith('s_bitcmp') or mn in ('s_waitcnt', 's_barrier', 's_endpgm', 's_sleep', 's_setprio', 's_setreg_b32', 's_setreg_imm32_b32'):
                rd = U(R)
            elif mn.startswith('s_cbranch') or mn == 's_branch':
                self.target = o[0]
            elif 'saveexec' in mn:
                wr = R[0] | EXEC; rd = U(R[1:]) | EXEC
            elif mn in ('s_addk_i32', 's_mulk_i32', 's_cmov_b32'):
                wr = R[0]; rd = U(R)
            else:
                wr = R[0]; rd = U(R[1:])
        else:
            raise ValueError(mn)
        self.wr, self.rd = wr, rd
        self.text = mn + (' ' + ', '.join(o) if o else '') + (' ' + mods if mods else '')

def need_ws(p, c):
    n = 0
    if p.cls == 'valu':
        pv = {r for r in p.wr if r[0] != 's'}
        ps = {r for r in p.wr if r[0] == 's'}
        isdot = p.mn.startswith('v_dot')
        if pv:
            if c.cls == 'mfma' and pv & c.rd: n = max(n, 3 if isdot else 2)
            if c.cls == 'valu':
                if c.mn in ('v_readlane_b32', 'v_readfirstlane_b32') and pv & c.rd: n = max(n, 1)
                if (c.dpp or c.mn.startswith('v_permlane')) and pv & c.rd: n = max(n, 2)
                if p.mn in TRANS and pv & c.rd: n = max(n, 1)
            if isdot and pv & (c.rd | c.wr):
                if c.mn == p.mn:
                    ab = regs_of(c.ops[1]) | regs_of(c.ops[2])
                    if pv & ab: n = max(n, 3)
                else:
                    n = max(n, 3)
        if ps:
            if c.cls == 'vmem' and ps & c.rd: n = max(n, 5)
            if c.cls == 'valu':
                if ps & c.lanesel: n = max(n, 4)
                if ps & c.constrd: n = max(n, 2)
            if c.cls in ('salu', 'smem') and ps & c.rd: n = max(n, 1)
    elif p.cls == 'mfma':
        big = '32x32' in p.mn
        if c.cls == 'mfma':
            if p.wr & c.srcC and not (p.wr == c.srcC and p.mn == c.mn): n = max(n, 10 if big else 6)
            if p.wr & c.srcA: n = max(n, 12 if big else 8)
            if p.wr & c.wr and not (p.wr & c.srcC): n = max(n, 12 if big else 8)
        elif c.cls in ('valu', 'vmem', 'ds'):
            if p.wr & (c.rd | c.wr): n = max(n, 12 if big else 8)
            if c.cls == 'valu' and p.srcC & c.wr: n = max(n, 7 if big else 3)
    elif p.cls == 'salu':
        if p.wr & M0 and c.cls == 'vmem' and c.rd & M0: n = max(n, 1)
        if p.wr & M0 and c.cls == 'ds' and 'addtid' in c.mn: n = max(n, 1)
    elif p.cls == 'vmem':
        if p.sdata and p.sdata & c.wr:
            n = max(n, 2 if c.cls in ('valu', 'mfma') else 1)
    return n

class Label:
    def __init__(self, name): self.name = name

class WState:
    def __init__(self):
        self.vm = []; self.lg = []
        self.vmseq = 0; self.lgseq = 0
    def copy(self):
        w = WState(); w.vm = list(self.vm); w.lg = list(self.lg); w.vmseq = self.vmseq; w.lgseq = self.lgseq
        return w

class Asm:
    def __init__(self):
        self.items = []
        self.w = WState()
        self.saved = {}
        self.alive = True
        self.nlab = 0
        self.autowait = True
        self.gtok = 0
        self.spin = set()
    def newlabel(self, p='L'):
        self.nlab += 1
        return f"{p}_{self.nlab}"
    def comment(self, t):
        self.items.append('; ' + t)
    def _emit_wait(self, vm=None, lg=None):
        parts = []
        if vm is not None:
            vm = min(vm, 63)
            if len(self.w.vm) > vm:
                parts.append(f"vmcnt({vm})")
                self.w.vm = self.w.vm[len(self.w.vm) - vm:] if vm else []
        if lg is not None:
            lg = min(lg, 15)
            if any(e[1] == 'smem' for e in self.w.lg): lg = 0
            if len(self.w.lg) > lg:
                parts.append(f"lgkmcnt({lg})")
                self.w.lg = self.w.lg[len(self.w.lg) - lg:] if lg else []
        if parts:
            self.items.append(Inst('s_waitcnt', [], ' '.join(parts)))
    def wait(self, vm=None, lg=None):
        self._emit_wait(vm, lg)
    def wait_vm_tok(self, tok):
        hit = [i for i, e in enumerate(self.w.vm) if tok in e[2]]
        if hit: self._emit_wait(vm=len(self.w.vm) - 1 - hit[-1])
    def wait_lg_tok(self, tok):
        hit = [i for i, e in enumerate(self.w.lg) if tok in e[2]]
        if hit: self._emit_wait(lg=len(self.w.lg) - 1 - hit[-1])
    def __call__(self, mn, *ops, mods=''):
        assert self.alive, "emitting dead code"
        ins = Inst(mn, ops, mods)
        if self.autowait:
            touch = ins.rd | ins.wr
            vmn = None; lgn = None
            for i, e in enumerate(self.w.vm):
                if e[0] & touch:
                    if ins.cls == 'vmem' and not (e[0] & ins.rd): continue
                    vmn = len(self.w.vm) - 1 - i
            for i, e in enumerate(self.w.lg):
                if e[0] & touch:
                    if ins.cls == 'ds' and e[1] == 'ds' and not (e[0] & ins.rd): continue
                    lgn = len(self.w.lg) - 1 - i
            if vmn is not None or lgn is not None:
                self._emit_wait(vmn, lgn)
        self.items.append(ins)
        tok = None
        if ins.cls == 'vmem':
            self.gtok += 1; tok = self.gtok
            self.w.vm.append((frozenset(ins.wr), 'vm', frozenset([tok])))
        elif ins.cls == 'ds':
            self.gtok += 1; tok = self.gtok
            self.w.lg.append((frozenset(ins.wr), 'ds', frozenset([tok])))
        elif ins.cls == 'smem':
            self.gtok += 1; tok = self.gtok
            self.w.lg.append((frozenset(ins.wr), 'smem', frozenset([tok])))
        elif mn == 's_waitcnt':
            raise ValueError("use wait()")
        if ins.target is not None:
            if ins.target in self.saved and self.saved[ins.target] == 'placed':
                assert not self.w.lg, "backward branch with LDS/SMEM ops outstanding"
                assert ins.target in self.spin or not any(e[0] for e in self.w.vm), "backward branch with loads outstanding"
            else:
                self.saved.setdefault(ins.target, []).append(self.w.copy())
            if mn == 's_branch': self.alive = False
        if mn == 's_endpgm': self.alive = False
        return tok
    def label(self, name, loop=False):
        states = self.saved.get(name, [])
        assert states != 'placed'
        if self.alive: states = states + [self.w]
        assert states, f"label {name} unreachable"
        if loop:
            assert self.alive
            assert not self.w.lg and not any(e[0] for e in self.w.vm), "loop head with loads outstanding"
        def merge(lists):
            n = max(len(l) for l in lists)
            out = []
            for i in range(n):
                regs = set(); kind = None; toks = set()
                for l in lists:
                    j = len(l) - n + i
                    if j >= 0:
                        regs |= l[j][0]; toks |= l[j][2]
                        if kind is None or l[j][1] == 'smem': kind = l[j][1]
                out.append((frozenset(regs), kind, frozenset(toks)))
            return out
        w = WState()
        same_vm = all(s.vm == states[0].vm for s in states)
        same_lg = all(s.lg == states[0].lg for s in states)
        w.vm = list(states[0].vm) if same_vm else merge([s.vm for s in states])
        w.lg = list(states[0].lg) if same_lg else merge([s.lg for s in states])
        w.vmseq = max(s.vmseq for s in states); w.lgseq = max(s.lgseq for s in states)
        self.w = w
        self.saved[name] = 'placed'
        self.items.append(Label(name))
        self.alive = True
    def spin_head(self, name):
        self.label(name)
        self.spin.add(name)
        self.items.append(Inst('s_waitcnt', [], 'vmcnt(0)'))
        self.w.vm = []
    def reset(self):
        self.w = WState(); self.alive = True

    def finalize(self):
        items = self.items
        out = []
        labpos = {}
        branches = {}
        for it in items:
            if isinstance(it, Inst) and it.target is not None:
                branches.setdefault(it.target, []).append(it)
        prevmap = {}
        seq = []
        MAXW = 13
        def preds(idx, lst):
            res = []
            j = idx - 1
            while j >= 0:
                it = lst[j]
                if isinstance(it, Label):
                    for b in branches.get(it.name, []):
                        if id(b) in pos: res.append(pos[id(b)])
                        else: res.append(('orig', origpos[id(b)]))
                elif isinstance(it, Inst):
                    if it.mn not in ('s_branch', 's_endpgm'): res.append(j)
                    break
                j -= 1
            return res
        origpos = {id(it): i for i, it in enumerate(items)}
        pos = {}
        def walk(lst, idx, dist, c, isorig):
            need = 0
            stack = [(isorig, idx, dist)]
            seen = set()
            while stack:
                o, i, d = stack.pop()
                if (o, i, d) in seen: continue
                seen.add((o, i, d))
                L = items if o else out
                p = L[i]
                need = max(need, need_ws(p, c) - d)
                d2 = d + p.ws
                if d2 >= MAXW: continue
                j = i - 1
                while j >= 0:
                    it = L[j]
                    if isinstance(it, Label):
                        for b in branches.get(it.name, []):
                            if id(b) in pos: stack.append((False, pos[id(b)], d2))
                            else: stack.append((True, origpos[id(b)], d2))
                    elif isinstance(it, Inst):
                        if it.mn not in ('s_branch', 's_endpgm'): stack.append((o, j, d2))
                        break
                    j -= 1
            return need
        for it in items:
            if isinstance(it, Inst):
                need = 0
                j = len(out) - 1
                while j >= 0:
                    q = out[j]
                    if isinstance(q, Label):
                        for b in branches.get(q.name, []):
                            if id(b) in pos: need = max(need, walk(out, pos[id(b)], 0, it, False))
                            else: need = max(need, walk(items, origpos[id(b)], 0, it, True))
                    elif isinstance(q, Inst):
                        if q.mn not in ('s_branch', 's_endpgm'): need = max(need, walk(out, j, 0, it, False))
                        break
                    j -= 1
                if need > 0:
                    out.append(Inst('s_nop', [need - 1], ''))
                pos[id(it)] = len(out)
            out.append(it)
        txt = []
        for it in out:
            if isinstance(it, Inst): txt.append('  ' + it.text)
            elif isinstance(it, Label): txt.append(it.name + ':')
            else: txt.append(it)
        return '\n'.join(txt) + '\n'
```

```python
import sys
from asmlib import *

NAME = "sequential_preLN__ssm_conv_h3__glu_gated_reglu__prompt"
S_, D_, F_ = 2048, 640, 1728
KVT, XT, HT = 0x0, 0x280000, 0x500000
ST, CS = 0x780000, 0x790000
WP1, WP2, HH = 0x800000, 0xD00000, 0x1000000
XX = 0x1900000
WS_SIZE = 0x1E00000
STAMPS = 0x1840000
import os
STAMP = int(os.environ.get('STAMP', '0'))
OOB = 0x7f000000

P_Q, P_K, P_V, P_SK, P_SSMK, P_SSMD, P_BX, P_WG = [S(16 + 2*i, 2) for i in range(8)]
P_WU, P_WD, P_OUT, P_DBG = [S(32 + 2*i, 2) for i in range(4)]
P_WS = S(40, 2)

def load_args(a):
    a('s_load_dwordx16', S(16, 16), S(0, 2), 0)
    a('s_load_dwordx8', S(32, 8), S(0, 2), 64)
    a('s_load_dwordx2', P_WS, S(0, 2), 96)

def srd(a, dst, ptr, size):
    a('s_mov_b32', dst[0], ptr[0])
    a('s_and_b32', dst[1], ptr[1], '0xffff')
    a('s_mov_b32', dst[2], hex(size))
    a('s_mov_b32', dst[3], '0x20000')

def wave_id(a, sdst, vtmp):
    a('v_lshrrev_b32', vtmp, 6, V(0))
    a('v_readfirstlane_b32', sdst, vtmp)

MFMA = 'v_mfma_f32_16x16x32_bf16'

def stamp(a, i):
    if STAMP:
        a('s_memrealtime', S(70 + 2*i, 2))
        a.wait(lg=0)

def stamp_flush(a, kidx, n, sw, RWS):
    if not STAMP: return
    stamp(a, n - 1)
    a('s_mov_b64', 'exec', 1)
    a('s_lshl_b32', S(68), S(2), 2)
    a('s_add_u32', S(68), S(68), sw)
    a('s_lshl_b32', S(68), S(68), 6)
    a('s_add_u32', S(68), S(68), hex(STAMPS + kidx*0x10000))
    a('v_mov_b32', V(1), 0)
    for i in range(n):
        a('v_mov_b32', V(2), S(70 + 2*i))
        a('buffer_store_dword', V(2), V(1), RWS, S(68), mods=f'offen offset:{4*i}')

def kernel_a(a):
    va = Alloc('v', 1, 255)
    stamp(a, 0)
    load_args(a)
    sw, st0, st1, st2 = S(3), S(4), S(5), S(6)
    selLO, selHI = S(8), S(9)
    RQ, RK, RV, RSK, RWS = S(44, 4), S(48, 4), S(52, 4), S(56, 4), S(60, 4)
    lane, t0, t1, t2 = va.get(), va.get(), va.get(), va.get()
    a('s_cmp_ge_u32', S(2), 224)
    a('s_cbranch_scc1', 'A_end')
    wave_id(a, sw, t0)
    a('v_and_b32', lane, 63, V(0))
    srd(a, RQ, P_Q, S_*D_*2)
    stamp(a, 6)
    srd(a, RWS, P_WS, WS_SIZE)
    a('s_cmp_ge_u32', S(2), 160)
    a('s_cbranch_scc1', 'A_stats')
    srd(a, RK, P_K, S_*D_*2)
    srd(a, RV, P_V, S_*D_*2)
    srd(a, RSK, P_SK, D_*8)
    a('s_lshr_b32', st0, S(2), 4)
    a('s_and_b32', st1, S(2), 15)
    a('s_lshl_b32', st1, st1, 7)
    a('s_lshl_b32', st2, sw, 5)
    a('s_add_u32', st1, st1, st2)
    g, c, voff, vneg, vsk = va.get(), va.get(), va.get(), va.get(), va.get()
    a('v_and_b32', c, 7, lane)
    a('v_bfe_u32', t0, lane, 3, 1)
    a('v_bfe_u32', t1, lane, 4, 1)
    a('v_lshl_or_b32', t2, t0, 1, t1)
    a('v_bfe_u32', t1, lane, 5, 1)
    a('v_lshl_or_b32', g, t1, 2, t2)
    a('v_lshl_add_u32', t2, g, 2, st1)
    a('v_mul_u32_u24', voff, 1280, t2)
    a('s_lshl_b32', st2, st0, 7)
    a('v_lshl_add_u32', t2, c, 4, st2)
    a('v_add_u32', voff, voff, t2)
    a('v_subrev_u32', vneg, 3840, voff)
    a('v_lshlrev_b32', vsk, 2, t2)
    K = [va.get(4) for _ in range(7)]
    Vv = [va.get(4) for _ in range(4)]
    X = [va.get(4) for _ in range(4)]
    SK = va.get(16)
    for i in range(4):
        a('buffer_load_dwordx4', SK.sub(4*i, 4), vsk, RSK, 0, mods=f'offen offset:{16*i}')
    for i in range(7):
        if i < 3: a('buffer_load_dwordx4', K[i], vneg, RK, 0, mods=f'offen offset:{1280*i}')
        else: a('buffer_load_dwordx4', K[i], voff, RK, 0, mods=f'offen offset:{1280*(i-3)}')
    for i in range(4):
        a('buffer_load_dwordx4', Vv[i], voff, RV, 0, mods=f'offen offset:{1280*i}')
    for i in range(4):
        a('buffer_load_dwordx4', X[i], voff, RQ, 0, mods=f'offen offset:{1280*i}')
    a('s_mov_b32', selLO, '0x05040100')
    a('s_mov_b32', selHI, '0x07060302')
    vox, vok = va.get(), va.get()
    a('v_bfe_u32', t1, lane, 4, 1)
    a('v_lshlrev_b32', t1, 2, t1)
    a('v_lshl_add_u32', t1, c, 3, t1)
    a('s_lshl_b32', st2, st0, 6)
    a('v_add_u32', t1, st2, t1)
    a('v_lshlrev_b32', t1, 12, t1)
    a('v_bfe_u32', t2, lane, 5, 1)
    a('v_lshl_or_b32', t2, t2, 1, t0)
    a('v_lshl_add_u32', t2, t2, 3, st1)
    a('v_lshl_add_u32', vox, t2, 1, t1)
    a('v_sub_u32', t2, 2040, t2)
    a('v_lshl_add_u32', vok, t2, 1, t1)
    QK = [va.get(4) for _ in range(4)]
    QX = [va.get(4) for _ in range(4)]
    P = [[va.get() for _ in range(7)] for _ in range(8)]
    KS = [[va.get() for _ in range(4)] for _ in range(8)]
    stamp(a, 1)
    if STAMP: a.wait(vm=8)
    stamp(a, 2)
    for ch in range(8):
        d, hi = ch >> 1, ch & 1
        for t in range(1, 7):
            a('v_perm_b32', P[ch][t], K[t-1][d], K[t][d], selHI if hi else selLO)
    for ch in range(8):
        for e in range(4):
            a('v_dot2_f32_bf16', KS[ch][e], P[ch][e+3], SK[2*ch], 0)
        for e in range(4):
            a('v_dot2_f32_bf16', KS[ch][e], P[ch][e+1], SK[2*ch+1], KS[ch][e])
    for ch in range(8):
        d, hi = ch >> 1, ch & 1
        for e in range(4):
            if hi: a('v_and_b32', P[ch][e], '0xffff0000', Vv[e][d])
            else: a('v_lshlrev_b32', P[ch][e], 16, Vv[e][d])
        for e in range(4):
            a('v_mul_f32', KS[ch][e], KS[ch][e], P[ch][e])
        q = QK[ch & 3]
        o = 2 if ch < 4 else 0
        a('v_cvt_pk_bf16_f32', q[o], KS[ch][3], KS[ch][2])
        a('v_cvt_pk_bf16_f32', q[o+1], KS[ch][1], KS[ch][0])
    for cp in range(4):
        a('v_permlane16_swap_b32', QK[cp][2], QK[cp][0])
        a('v_permlane16_swap_b32', QK[cp][3], QK[cp][1])
        a('s_mov_b32', st2, hex(KVT + 4096*cp))
        a('buffer_store_dwordx4', QK[cp], vok, RWS, st2, mods='offen')
    stamp(a, 3)
    for ch in range(8):
        d, hi = ch >> 1, ch & 1
        q = QX[ch & 3]
        o = 0 if ch < 4 else 2
        sel = selHI if hi else selLO
        a('v_perm_b32', q[o], X[1][d], X[0][d], sel)
        a('v_perm_b32', q[o+1], X[3][d], X[2][d], sel)
    for cp in range(4):
        a('v_permlane16_swap_b32', QX[cp][0], QX[cp][2])
        a('v_permlane16_swap_b32', QX[cp][1], QX[cp][3])
        a('s_mov_b32', st2, hex(XT + 4096*cp))
        a('buffer_store_dwordx4', QX[cp], vox, RWS, st2, mods='offen')
    stamp(a, 4)
    if STAMP: a.wait(vm=0)
    stamp(a, 5)
    stamp_flush(a, 0, 8, sw, RWS)
    a('s_endpgm')

    a.label('A_stats')
    va = Alloc('v', 8, 255)
    row, voff = va.get(), va.get()
    a('s_sub_u32', st0, S(2), 160)
    a('s_lshl_b32', st0, st0, 5)
    a('s_lshl_b32', st1, sw, 3)
    a('s_add_u32', st0, st0, st1)
    a('v_lshrrev_b32', t0, 4, lane)
    a('v_add_u32', row, st0, t0)
    a('v_mul_u32_u24', voff, 1280, row)
    a('v_and_b32', t1, 15, lane)
    a('v_lshl_add_u32', voff, t1, 4, voff)
    a('s_mov_b32', st1, 5120)
    XR = [[va.get(4) for _ in range(5)] for _ in range(2)]
    for p in range(2):
        for i in range(5):
            a('buffer_load_dwordx4', XR[p][i], voff, RQ, st1 if p else 0, mods=f'offen offset:{256*i}')
    ones = S(10)
    a('s_mov_b32', ones, '0x3f803f80')
    s1 = [va.get() for _ in range(2)]
    s2 = [va.get() for _ in range(2)]
    for p in range(2):
        for i in range(5):
            for d in range(4):
                first = (i == 0 and d == 0)
                a('v_dot2_f32_bf16', s1[p], XR[p][i][d], ones, 0 if first else s1[p])
                a('v_dot2_f32_bf16', s2[p], XR[p][i][d], XR[p][i][d], 0 if first else s2[p])
    for sh in (8, 4, 2, 1):
        for r in s1 + s2:
            a('v_add_f32', r, r, r, mods=f'row_ror:{sh} row_mask:0xf bank_mask:0xf')
    ra = [va.get() for _ in range(2)]
    rb = [va.get() for _ in range(2)]
    for p in range(2):
        ln_stats(a, s1[p], s2[p], t2)
        a('v_rcp_f32', ra[p], s2[p])
        a('v_mul_f32', rb[p], s1[p].neg(), ra[p])
    a('v_lshlrev_b32', row, 2, row)
    a('v_cmp_eq_u32', 'vcc', 0, t1)
    a('s_and_saveexec_b64', S(12, 2), 'vcc')
    a('s_mov_b32', st1, hex(ST))
    a('s_mov_b32', st2, hex(ST + 8192))
    for p in range(2):
        a('buffer_store_dword', ra[p], row, RWS, st1, mods=f'offen offset:{16*p}')
        a('buffer_store_dword', rb[p], row, RWS, st2, mods=f'offen offset:{16*p}')
    for i in range(1, 5): stamp(a, i)
    if STAMP: a.wait(vm=0)
    stamp(a, 5)
    stamp_flush(a, 0, 8, sw, RWS)
    a.label('A_end')
    a('s_endpgm')

def rbf(a, r):
    a('v_cvt_pk_bf16_f32', r, r, r)
    a('v_and_b32', r, '0xffff0000', r)

def ln_stats(a, s1, s2, t):
    a('v_mul_f32', s1, '0x3acccccd', s1)
    a('v_mul_f32', t, s1, s1)
    a('v_mul_f32', s2, '0x3acccccd', s2)
    a('v_sub_f32', s2, s2, t)
    a('v_max_f32', s2, 0, s2)
    rbf(a, s1)
    rbf(a, s2)
    a('v_add_f32', s2, '0x3727c5ac', s2)
    rbf(a, s2)
    a('v_sqrt_f32', s2, s2)
    rbf(a, s2)

CONV_LDS = 13312
def kernel_b(a):
    va = Alloc('v', 1, 255)
    stamp(a, 0)
    load_args(a)
    sw, st0, st1, st2, sch, sbase = S(3), S(4), S(5), S(6), S(7), S(8)
    RSS, RWS = S(44, 4), S(60, 4)
    lane, t0, t1, t2 = va.get(), va.get(), va.get(), va.get()
    a('s_cmp_ge_u32', S(2), 244)
    a('s_cbranch_scc1', 'B_end')
    wave_id(a, sw, t0)
    a('v_and_b32', lane, 63, V(0))
    srd(a, RWS, P_WS, WS_SIZE)
    stamp(a, 6)
    a('s_cmp_ge_u32', S(2), 160)
    a('s_cbranch_scc1', 'B_pack')
    srd(a, RSS, P_SSMK, D_*S_*2)
    a('s_lshl_b32', sch, S(2), 2)
    a('s_add_u32', sch, sch, sw)
    a('s_lshl_b32', st0, sch, 12)
    a('s_mul_i32', sbase, sw, CONV_LDS)
    l16, l16a, l16b = va.get(), va.get(), va.get()
    a('v_lshlrev_b32', l16, 4, lane)
    a('v_add_u32', l16a, 2, l16)
    a('v_add_u32', l16b, 4, l16)
    a('s_add_u32', 'm0', sbase, 32)
    for i in range(4):
        a('buffer_load_dwordx4', l16a, RSS, st0, mods=f'offen offset:{1024*i} lds')
    a('s_add_u32', 'm0', sbase, 4160 + 32)
    for i in range(4):
        a('buffer_load_dwordx4', l16b, RSS, st0, mods=f'offen offset:{1024*i} lds')
    a('s_add_u32', 'm0', sbase, 8320)
    a('s_add_u32', st1, st0, hex(KVT))
    for i in range(4):
        tok_dma = a('buffer_load_dwordx4', l16, RWS, st1, mods=f'offen offset:{1024*i} lds')
    sk01, sD = S(10), S(11)
    a('s_load_dword', sk01, P_SSMK, st0)
    a('s_lshl_b32', st1, sch, 1)
    a('s_and_b32', st1, st1, '0xfffc')
    a('s_load_dword', sD, P_SSMD, st1)
    li, lh, vx, vst = va.get(), va.get(), va.get(), va.get()
    a('v_and_b32', li, 15, lane)
    a('v_lshrrev_b32', lh, 4, lane)
    a('v_lshlrev_b32', t0, 5, li)
    a('v_lshl_add_u32', vx, lh, 3, t0)
    a('v_lshlrev_b32', vst, 1, vx)
    XS = [va.get(2) for _ in range(8)]
    SA = [va.get(4) for _ in range(8)]
    SB = [va.get(4) for _ in range(8)]
    a('s_add_u32', st1, st0, hex(XT))
    for t in range(8):
        a('buffer_load_dwordx2', XS[t], vx, RWS, st1, mods=f'offen offset:{512*t}')
    for half in range(2):
        a('s_mov_b32', st1, hex(ST + 4096*half))
        a('s_mov_b32', st2, hex(ST + 8192 + 4096*half))
        for t in range(4):
            a('buffer_load_dwordx4', SA[4*half+t], vst, RWS, st1, mods=f'offen offset:{1024*t}')
            a('buffer_load_dwordx4', SB[4*half+t], vst, RWS, st2, mods=f'offen offset:{1024*t}')
    if STAMP:
        a('s_memrealtime', S(70 + 2*7, 2))
    a('v_lshlrev_b32', t0, 2, lane)
    a('v_add_u32', t1, 4160 - 32, t0)
    a('v_cmp_gt_u32', 'vcc', 8, lane)
    a('v_cndmask_b32', t1, t1, t0, 'vcc')
    a('v_add_u32', t0, 8320 + 4096, t0)
    a('v_cmp_gt_u32', 'vcc', 16, lane)
    a('v_cndmask_b32', t1, t0, t1, 'vcc')
    a('v_add_u32', t1, sbase, t1)
    a('s_lshl_b32', st1, sk01, 16)
    a('v_mov_b32', t0, st1)
    a('v_cmp_eq_u32', 'vcc', 7, lane)
    a('v_cndmask_b32', t2, 0, t0, 'vcc')
    a('v_mov_b32', t0, sk01)
    a('v_cmp_eq_u32', 'vcc', 15, lane)
    a('v_cndmask_b32', t2, t2, t0, 'vcc')
    a('ds_write_b32', t1, t2)
    z2 = va.get(2)
    a('v_mov_b32', z2[0], 0)
    a('v_mov_b32', z2[1], 0)
    a('v_lshl_add_u32', t0, lane, 3, sbase)
    a('ds_write_b64', t0, z2, mods=f'offset:{8320+4096}')
    AD = va.get(4)
    a('s_bitcmp1_b32', sch, 0)
    a('s_cselect_b32', st1, 16, 0)
    a('s_lshr_b32', sD, sD, st1)
    a('s_and_b32', sD, sD, '0xffff')
    a('v_lshlrev_b32', t0, 3, lh)
    a('v_add_u32', t0, t0, li)
    a('v_sub_u32', t0, 15, t0)
    a('v_and_b32', t1, 1, t0)
    a('v_lshlrev_b32', t1, 4, t1)
    a('v_lshlrev_b32', t1, t1, sD)
    a('v_ashrrev_i32', t0, 1, t0)
    for d in range(4):
        a('v_cmp_eq_u32', 'vcc', d, t0)
        a('v_cndmask_b32', AD[d], 0, t1, 'vcc')
    vA = [va.get() for _ in range(4)]
    vB = va.get()
    a('v_lshl_add_u32', t0, lh, 3, li)
    a('v_lshrrev_b32', t0, 1, t0)
    a('v_lshl_add_u32', t0, t0, 2, sbase)
    a('v_and_b32', t1, 1, li)
    a('v_mul_u32_u24', t1, 4160, t1)
    a('v_add_u32', vA[0], t0, t1)
    for p in range(1, 4):
        a('v_add_u32', vA[p], 1024*p, vA[0])
    a('v_lshlrev_b32', t0, 5, li)
    a('v_sub_u32', t0, 8320 + 480, t0)
    a('v_lshl_add_u32', t0, lh, 4, t0)
    a('v_add_u32', vB, sbase, t0)
    vout = va.get()
    a('v_and_b32', t0, 1, lh)
    a('v_lshlrev_b32', t0, 9, t0)
    a('v_lshl_add_u32', t0, li, 5, t0)
    a('v_lshrrev_b32', t1, 1, lh)
    a('v_lshl_add_u32', vout, t1, 4, t0)
    FA = [[A(64*s + 4*i, 4) for i in range(8)] for s in range(2)]
    FB = [[A(64*s + 32 + 4*i, 4) for i in range(8)] for s in range(2)]
    ACC = [va.get(4) for _ in range(8)]
    def reads(rho):
        s = rho & 1
        L = []
        for i in range(8):
            L.append(('ds_read_b128', FB[s][i], vB, f'offset:{3584 - 512*i + 64*rho}'))
            o = 128*(i & 1) + 16*rho
            L.append(('ds_read2_b32', FA[s][i][0:2], vA[i >> 1], f'offset0:{o} offset1:{o+1}'))
            L.append(('ds_read2_b32', FA[s][i][2:4], vA[i >> 1], f'offset0:{o+2} offset1:{o+3}'))
        return L
    stamp(a, 1)
    a.wait_vm_tok(tok_dma)
    a.wait(lg=0)
    stamp(a, 2)
    for r in reads(0):
        a(r[0], r[1], r[2], mods=r[3])
    for rho in range(8):
        s = rho & 1
        nxt = reads(rho + 1) if rho < 7 else []
        mf = []
        for n in range(8):
            if rho == 0: mf.append((ACC[n], AD, FB[s][n], 0))
            for aa in range(n + 1):
                dl = n - aa
                if max(aa, dl) == n or True:
                    pass
        order = sorted([(aa, dl) for aa in range(8) for dl in range(8) if aa + dl <= 7], key=lambda p: (max(p), p[0] + p[1]))
        mf = []
        inited = set()
        for (aa, dl) in order:
            if rho == 0 and dl not in inited and aa == 0:
                pass
        if rho == 0:
            seq = []
            done_init = set()
            for (aa, dl) in order:
                t = aa + dl
                if t not in done_init:
                    seq.append((ACC[t], FA[s][aa], FB[s][dl], 0))
                    done_init.add(t)
                else:
                    seq.append((ACC[t], FA[s][aa], FB[s][dl], ACC[t]))
            for t in range(8):
                seq.append((ACC[t], AD, FB[s][t], ACC[t]))
        else:
            seq = [(ACC[aa+dl], FA[s][aa], FB[s][dl], ACC[aa+dl]) for (aa, dl) in order]
        k = 0
        for n, m in enumerate(seq):
            a(MFMA, *m)
            if n >= 4 and k < len(nxt):
                r = nxt[k]; k += 1
                a(r[0], r[1], r[2], mods=r[3])
        assert k == len(nxt)
    stamp(a, 3)
    XF = va.get(4)
    XN = va.get(4)
    O = [va.get(4) for _ in range(2)]
    a('s_add_u32', st1, st0, hex(HT))
    for p in range(4):
        q = O[p & 1]
        for e in range(2):
            t = 2*p + e
            a('v_lshlrev_b32', XF[0], 16, XS[t][0])
            a('v_and_b32', XF[1], '0xffff0000', XS[t][0])
            a('v_lshlrev_b32', XF[2], 16, XS[t][1])
            a('v_and_b32', XF[3], '0xffff0000', XS[t][1])
            a('v_pk_fma_f32', XN[0:2], XF[0:2], SA[t][0:2], SB[t][0:2])
            a('v_pk_fma_f32', XN[2:4], XF[2:4], SA[t][2:4], SB[t][2:4])
            a('v_pk_fma_f32', XN[0:2], XN[0:2], ACC[t][0:2], XF[0:2])
            a('v_pk_fma_f32', XN[2:4], XN[2:4], ACC[t][2:4], XF[2:4])
            a('v_cvt_pk_bf16_f32', q[2*e], XN[0], XN[1])
            a('v_cvt_pk_bf16_f32', q[2*e+1], XN[2], XN[3])
        a('v_permlane16_swap_b32', q[0], q[2])
        a('v_permlane16_swap_b32', q[1], q[3])
        a('buffer_store_dwordx4', q, vout, RWS, st1, mods=f'offen offset:{1024*p}')
    stamp(a, 4)
    if STAMP: a.wait(vm=0)
    stamp(a, 5)
    stamp_flush(a, 1, 9, sw, RWS)
    a('s_endpgm')

    a.label('B_pack')
    va = Alloc('v', 8, 255)
    RW = S(44, 4)
    task, stride, ssrc, sdst, sdstep, snk, scs = S(7), S(8), S(10), S(11), S(12), S(13), S(14)
    a('s_sub_u32', task, S(2), 160)
    a('s_mov_b32', RW[3], '0x20000')
    a('s_cmp_ge_u32', task, 54)
    a('s_cbranch_scc1', 'B_pack_d')
    a('s_cmp_ge_u32', task, 27)
    a('s_cselect_b32', RW[0], P_WU[0], P_WG[0])
    a('s_cselect_b32', RW[1], P_WU[1], P_WG[1])
    a('s_cselect_b32', st0, 27, 0)
    a('s_cselect_b32', st1, 1024, 0)
    a('s_cselect_b32', scs, F_*4, 0)
    a('s_and_b32', RW[1], RW[1], '0xffff')
    a('s_mov_b32', RW[2], hex(D_*F_*2))
    a('s_sub_u32', st0, task, st0)
    a('s_mov_b32', stride, F_*2)
    a('s_lshl_b32', ssrc, st0, 7)
    a('s_lshl_b32', st0, st0, 2)
    a('s_add_u32', st0, st0, sw)
    a('s_mul_i32', sdst, st0, 40960)
    a('s_add_u32', sdst, sdst, st1)
    a('s_add_u32', sdst, sdst, hex(WP1))
    a('s_mov_b32', sdstep, 2048)
    a('s_mov_b32', snk, 20)
    a('s_lshl_b32', st0, st0, 6)
    a('s_add_u32', scs, scs, st0)
    a('s_add_u32', scs, scs, hex(CS))
    a('s_branch', 'B_pack_go')
    a.label('B_pack_d')
    a('s_mov_b32', RW[0], P_WD[0])
    a('s_and_b32', RW[1], P_WD[1], '0xffff')
    a('s_mov_b32', RW[2], hex(D_*F_*2))
    a('s_sub_u32', st0, task, 54)
    a('s_mul_i32', st1, st0, 26)
    a('s_lshr_b32', st1, st1, 8)
    a('s_mul_i32', st2, st1, 10)
    a('s_sub_u32', st0, st0, st2)
    a('s_mov_b32', stride, D_*2)
    a('s_mul_i32', ssrc, st1, 576*1280)
    a('s_lshl_b32', st2, st0, 7)
    a('s_add_u32', ssrc, ssrc, st2)
    a('s_lshl_b32', st0, st0, 2)
    a('s_add_u32', st0, st0, sw)
    a('s_mul_i32', sdst, st0, 55296)
    a('s_mul_i32', st1, st1, 18*1024)
    a('s_add_u32', sdst, sdst, st1)
    a('s_add_u32', sdst, sdst, hex(WP2))
    a('s_mov_b32', sdstep, 1024)
    a('s_mov_b32', snk, 18)
    a('s_mov_b32', scs, hex(OOB))
    a.label('B_pack_go')
    stamp(a, 7)
    vsrc = [va.get(), va.get()]
    a('v_lshrrev_b32', t0, 3, lane)
    a('v_mul_lo_u32', t0, t0, stride)
    a('v_and_b32', t1, 1, lane)
    a('v_lshl_add_u32', t0, t1, 4, t0)
    a('v_bfe_u32', t1, lane, 1, 2)
    a('v_bfe_u32', t2, lane, 4, 1)
    a('v_xor_b32', t1, t1, t2)
    a('v_lshl_add_u32', vsrc[0], t1, 5, t0)
    a('v_xor_b32', t1, 2, t1)
    a('v_lshl_add_u32', vsrc[1], t1, 5, t0)
    s8 = S(15)
    a('s_lshl_b32', s8, stride, 3)
    a('s_lshl_b32', st2, stride, 5)
    a('s_mul_i32', st0, sw, st2)
    a('s_add_u32', ssrc, ssrc, st0)
    a('s_lshl_b32', st1, sw, 12)
    a('s_mul_i32', st2, s8, 13)
    for i in range(5):
        if i == 4:
            a('s_add_u32', st0, sw, 16)
            a('s_cmp_lt_u32', st0, snk)
            a('s_cselect_b32', ssrc, ssrc, hex(OOB))
        for p in range(4):
            a('s_add_u32', 'm0', st1, 16384*i + 1024*p)
            a('buffer_load_dwordx4', vsrc[p & 1], RW, ssrc, mods='offen lds')
            a('s_add_u32', ssrc, ssrc, s8 if p < 3 else st2)
    vrd = [va.get(), va.get()]
    l16 = va.get()
    a('v_lshlrev_b32', l16, 4, lane)
    a('v_lshrrev_b32', t0, 4, lane)
    a('v_bfe_u32', t1, lane, 2, 2)
    a('v_lshl_add_u32', t2, t0, 3, t1)
    a('v_lshlrev_b32', t2, 7, t2)
    a('v_and_b32', t0, 1, t0)
    a('v_lshrrev_b32', t1, 1, t1)
    a('v_lshl_or_b32', t0, t0, 1, t1)
    a('v_xor_b32', t0, sw, t0)
    a('v_lshl_add_u32', t2, t0, 5, t2)
    a('v_and_b32', t0, 3, lane)
    a('v_lshl_add_u32', vrd[0], t0, 3, t2)
    a('v_add_u32', vrd[1], 65536, vrd[0])
    ONES = va.get(4)
    for d in range(4):
        a('v_mov_b32', ONES[d], '0x3f803f80')
    FR = [va.get(4) for _ in range(20)]
    CSA = va.get(4)
    stamp(a, 1)
    a.wait(vm=0)
    stamp(a, 2)
    a('s_barrier')
    stamp(a, 3)
    def rd(ks):
        for hf in range(2):
            a('ds_read_b64_tr_b16', FR[ks][2*hf:2*hf+2], vrd[ks >> 4], mods=f'offset:{(ks & 15)*4096 + 512*hf}')
    for ks in range(6): rd(ks)
    for ks in range(20):
        if ks == 18:
            a('s_cmp_lt_u32', snk, 20)
            a('s_cbranch_scc1', 'B_pend')
        if ks + 6 < 20: rd(ks + 6)
        a('buffer_store_dwordx4', FR[ks], l16, RWS, sdst, mods='offen')
        a('s_add_u32', sdst, sdst, sdstep)
        a(MFMA, CSA, FR[ks], ONES, 0 if ks == 0 else CSA)
    a('v_and_b32', t0, 15, lane)
    a('v_cmp_eq_u32', 'vcc', 0, t0)
    a('s_and_saveexec_b64', S(64, 2), 'vcc')
    a('buffer_store_dwordx4', CSA, lane, RWS, scs, mods='offen')
    a.label('B_pend')
    stamp(a, 4)
    if STAMP: a.wait(vm=0)
    stamp(a, 5)
    stamp_flush(a, 1, 9, sw, RWS)
    a.label('B_end')
    a('s_endpgm')

KERNELS = [
    ('ka_kernel', kernel_a, 224, 0, 256, 256),
    ('kb_kernel', kernel_b, 244, 81920, 512, 256),
]

def build(kernels):
    hdr = ["; generated by gen/gen.py"]
    for (n, f, g, lds, nv, acc) in kernels:
        hdr.append(f"; @launch kernel={n} grid=({g},1,1) block=(256,1,1) lds={lds}")
    out = '\n'.join(hdr) + '\n.amdgcn_target "amdgcn-amd-amdhsa--gfx950"\n.text\n'
    for (n, f, g, lds, nv, acc) in kernels:
        a = Asm()
        f(a)
        out += f".globl {n}\n.p2align 8\n.type {n},@function\n{n}:\n" + a.finalize()
    out += '.section .rodata,"a"\n'
    for (n, f, g, lds, nv, acc) in kernels:
        out += f""".p2align 6
.amdhsa_kernel {n}
  .amdhsa_next_free_vgpr {nv}
  .amdhsa_next_free_sgpr 102
  .amdhsa_accum_offset {acc}
  .amdhsa_group_segment_fixed_size 0
  .amdhsa_kernarg_size 104
  .amdhsa_user_sgpr_count 2
  .amdhsa_user_sgpr_kernarg_segment_ptr 1
  .amdhsa_system_sgpr_workgroup_id_x 1
.end_amdhsa_kernel
"""
    return out

if __name__ == '__main__':
    path = sys.argv[1] if len(sys.argv) > 1 else f'cdna_kernels/{NAME}.s'
    open(path, 'w').write(build(KERNELS))
```

```python
import sys, os
os.environ['STAMP'] = '1'
from gen import *
MODE = os.environ.get('MODE', 'M')
SWZ = int(os.environ.get('SWZ', '0'))
NWG = int(os.environ.get('NWG', '256'))
def kernel_mb(a):
    stamp(a, 0)
    load_args(a)
    sw = S(3); RWS = S(60, 4); RQ = S(44, 4)
    a('s_cmp_ge_u32', S(2), NWG)
    a('s_cbranch_scc1', 'M_end')
    wave_id(a, sw, V(2))
    srd(a, RWS, P_WS, WS_SIZE)
    srd(a, RQ, P_K, 0 if 'Z' in MODE else S_*D_*2)
    lane, l16, t0, t1, t2 = V(1), V(5), V(2), V(3), V(4)
    a('v_and_b32', lane, 63, V(0))
    a('v_lshlrev_b32', l16, 4, lane)
    for i in range(16):
        a('s_mov_b32', S(4), 1024*i)
        a('buffer_load_dwordx4', A(4*i, 4), l16, RQ, S(4), mods='offen')
    for i in range(8):
        a('s_mov_b32', S(4), 1024*i + 16384)
        a('buffer_load_dwordx4', V(144 + 4*i, 4), l16, RQ, S(4), mods='offen')
    a('s_lshl_b32', S(5), sw, 14)
    for i in range(16):
        a('s_add_u32', 'm0', S(5), 1024*i)
        a('s_add_u32', S(4), S(5), 1024*i)
        a('buffer_load_dwordx4', l16, RQ, S(4), mods='offen lds')
    q, r = V(212), V(213)
    a('v_lshrrev_b32', q, 4, lane)
    a('v_bfe_u32', r, lane, 2, 2)
    if SWZ == 0:
        a('v_and_b32', t0, 1, q)
    elif SWZ == 1:
        a('v_lshrrev_b32', t0, 1, q)
        a('v_xor_b32', t0, t0, q)
        a('v_and_b32', t0, 1, t0)
    else:
        a('v_lshrrev_b32', t0, 1, q)
    a('v_lshl_or_b32', t0, t0, 2, r)
    a('v_lshl_add_u32', t1, q, 3, r)
    a('v_lshlrev_b32', t1, 8, t1)
    a('v_and_b32', t2, 3, lane)
    a('v_lshl_add_u32', t1, t2, 3, t1)
    for mu in range(8):
        a('v_xor_b32', V(176 + mu), mu, t0)
        a('v_lshl_add_u32', V(176 + mu), V(176 + mu), 5, t1)
    a.wait(vm=0)
    a('s_barrier')
    a('s_mov_b32', S(10), 0)
    a('s_nop', 0)
    a.items.append('.p2align 6')
    a.label('R', loop=True)
    a('s_memtime', S(12, 2))
    a('s_memrealtime', S(8, 2))
    a.wait(lg=0)
    if 'W' in MODE:
        a('s_cmp_eq_u32', sw, 3)
        a('s_cbranch_scc1', 'skip')
    if 'B' in MODE:
        for ks in range(16):
            for mu in range(4):
                for n in range(2):
                    acc = V(16 + 64*n + 16*mu, 16)
                    a('v_mfma_f32_32x32x16_bf16', acc, A(16*(ks & 3) + 4*n + 8*(ks >> 3), 4), V(144 + 4*mu + 16*(ks & 1), 4), acc)
    if 'S' in MODE:
        for ks in range(8):
            for mu in range(8):
                B = V(144 + 4*mu, 4)
                pm = (mu + 7) & 7
                P = V(144 + 4*pm, 4)
                for n in range(4):
                    acc = V(16 + 32*n + 4*mu, 4)
                    a(MFMA, acc, A(16*(ks & 3) + 4*n, 4), B, acc)
                    if n in (1, 2):
                        hf = n - 1
                        a('ds_read_b64_tr_b16', P[2*hf:2*hf+2], V(176 + pm), mods=f'offset:{ks*8192 + 1024*hf}')
    for ks in range(8):
        for mu in range(8):
            B = V(144 + 4*mu, 4)
            if 'M' in MODE:
                for n in range(4):
                    acc = V(16 + 32*n + 4*mu, 4)
                    Aop = A(16*(ks & 3) + 4*n, 4) if 'V' not in MODE else V(184 + 4*n, 4)
                    a(MFMA, acc, Aop, B, acc)
            if 'L' in MODE:
                for hf in range(2):
                    a('ds_read_b64_tr_b16', B[2*hf:2*hf+2], V(176 + mu), mods=f'offset:{ks*8192 + 1024*hf}')
    if 'W' in MODE: a.label('skip')
    a.wait(lg=0)
    a('s_memtime', S(14, 2))
    a('s_memrealtime', S(6, 2))
    a.wait(lg=0)
    a('s_sub_u32', S(14), S(14), S(12))
    a('s_sub_u32', S(6), S(6), S(8))
    a('s_add_u32', S(10), S(10), 1)
    for k in range(1, 5):
        a('s_cmp_eq_u32', S(10), k)
        a('s_cselect_b32', S(70 + 4*k - 2), S(14), S(70 + 4*k - 2))
        a('s_cselect_b32', S(70 + 4*k), S(6), S(70 + 4*k))
    a('s_cmp_lt_u32', S(10), 4)
    a('s_cbranch_scc1', 'R')
    a('s_mov_b64', 'exec', 1)
    a('s_cmp_eq_u32', S(2), 5)
    a('s_cbranch_scc0', 'M_end')
    RD = S(48, 4)
    srd(a, RD, P_DBG, 256)
    a('s_lshl_b32', S(4), sw, 5)
    a('v_mov_b32', V(1), 0)
    for i in range(8):
        a('v_mov_b32', V(2), S(72 + 2*i))
        a('buffer_store_dword', V(2), V(1), RD, S(4), mods=f'offen offset:{4*i}')
    a.label('M_end')
    a('s_endpgm')
open(sys.argv[1], 'w').write(build([('mb_kernel', kernel_mb, 256, 163840, 512, 256)]))
```

```python
from gen import *

FL = 0x1800000
def flag(i): return FL + 128*i
F_G1, F_GS, F_W1, F_WD, F_C2, F_C3 = 0, 16, 32, 86, 128, 384
NFLAG = 512
SPIN = 20000

sw = S(3)
st0, st1, st2 = S(4), S(5), S(6)
ROUT, RWS = S(56, 4), S(60, 4)
sP0, sP1, sInc = S(42), S(43), S(15)
sB, sC, sU, sHT, sLds, sWd, sWdT, sTail = [S(16 + i) for i in range(8)]
sHH = [S(24 + i) for i in range(4)]
sHHst, sStat, sCS, sOut, sC3, sRedR = [S(28 + i) for i in range(6)]
sRedW = [S(8), S(9), S(10)]
sCnt, sPoll = S(11), S(12)
MSK = [S(64, 2), S(66, 2), S(68, 2)]

lane, t0, t1, t2 = V(1), V(2), V(3), V(4)
l16, vdma, vhh, vst, vres, vout, vstw, vq16 = [V(5 + i) for i in range(8)]
RS2 = V(13)
ACC = [[V(16 + 32*n + 4*mu, 4) for mu in range(8)] for n in range(4)]
BF = [V(144 + 4*i, 4) for i in range(8)]
VRD = [V(176 + i) for i in range(8)]
CSR = [V(184 + 4*n, 4) for n in range(4)]
MEAN = V(200, 8)
ONES = V(208, 4)
SX = [V(212 + i) for i in range(8)]
RES = [V(168, 2), V(170, 2), V(172, 2), V(174, 2), V(14, 2)]
ACC2 = [[V(176 + 20*j + 4*nu, 4) for nu in range(5)] for j in range(4)]
HR = 8
HF = [[V(16 + 16*s + 4*j, 4) for j in range(4)] for s in range(HR)]
def WD(f):
    if f < 48: return A(64 + 4*f, 4)
    if f < 64: return A(4*(f - 48), 4)
    return V(144 + 4*(f - 64), 4)

def bc_of_wg(a):
    a('s_and_b32', st0, S(2), 7)
    a('s_lshr_b32', st1, S(2), 3)
    a('s_lshr_b32', sB, st0, 1)
    a('s_lshl_b32', sB, sB, 2)
    a('s_lshr_b32', st2, st1, 3)
    a('s_add_u32', sB, sB, st2)
    a('s_and_b32', sC, st0, 1)
    a('s_lshl_b32', sC, sC, 3)
    a('s_and_b32', st1, st1, 7)
    a('s_add_u32', sC, sC, st1)
    a('s_mul_i32', sU, sC, 27)
    a('s_lshr_b32', sU, sU, 2)
    a('s_lshl_b32', st0, sw, 1)
    a('s_add_u32', sU, sU, st0)

def w1_setup(a):
    a('s_mul_i32', sP0, sU, 40960)
    a('s_add_u32', sP0, sP0, hex(WP1))
    a('s_cmp_eq_u32', sw, 3)
    a('s_mov_b32', st0, 40960)
    a('s_mov_b32', sInc, 2048)
    a('s_cmov_b32', st0, 2048)
    a('s_cmov_b32', sInc, 4096)
    a('s_add_u32', sP1, sP0, st0)
    a('s_lshl_b32', sCS, sU, 6)
    a('s_add_u32', sCS, sCS, hex(CS))
    a('v_and_b32', vq16, 48, lane)

def w1_load(a, p, h, mods=''):
    ptr = sP1 if p & 1 else sP0
    if p == 20 and h == 0:
        a('s_cmp_eq_u32', sw, 3)
        a('s_cselect_b32', sP0, hex(OOB), sP0)
        a('s_cselect_b32', sP1, hex(OOB), sP1)
    a('buffer_load_dwordx4', A(8*(p & 31) + 4*h, 4), l16, RWS, ptr, mods=f'offen offset:{1024*h}' + mods)
    if h == 1:
        a('s_add_u32', ptr, ptr, sInc)

def gemm_setup(a):
    srd(a, ROUT, P_OUT, S_*D_*2)
    a('s_lshl_b32', sHT, sw, 15)
    a('s_lshl_b32', st0, sB, 8)
    a('s_add_u32', sHT, sHT, st0)
    a('s_add_u32', sHT, sHT, hex(HT))
    a('s_lshl_b32', sLds, sw, 11)
    half, cbk = S(13), S(14)
    a('s_and_b32', half, sC, 1)
    a('s_lshr_b32', cbk, sC, 1)
    a('s_mul_i32', st0, cbk, 5*55296)
    a('s_mul_i32', st1, sw, 14*1024)
    a('s_add_u32', sWd, st0, st1)
    a('s_add_u32', sWd, sWd, hex(WP2))
    a('s_cmp_eq_u32', sw, 3)
    a('s_cselect_b32', sTail, hex(OOB), 0)
    a('s_add_u32', sWdT, sWd, sTail)
    a('s_lshl_b32', st0, sB, 3)
    a('s_lshl_b32', st2, half, 2)
    a('s_add_u32', st0, st0, st2)
    a('s_add_u32', st1, st1, hex(HH))
    for j in range(4):
        a('s_add_u32', st2, sw, j)
        a('s_and_b32', st2, st2, 3)
        if j:
            a('s_mul_i32', sRedW[j-1], st2, 15360)
            a('s_add_u32', sRedW[j-1], sRedW[j-1], 5120*(j-1))
        a('s_add_u32', st2, st2, st0)
        a('s_mul_i32', st2, st2, 55296)
        a('s_add_u32', sHH[j], st2, st1)
    a('s_mul_i32', sRedR, sw, 15360)
    a('s_add_u32', st0, st0, sw)
    a('s_mul_i32', sOut, st0, 16*1280)
    a('s_mul_i32', st1, cbk, 160)
    a('s_add_u32', sOut, sOut, st1)
    a('s_mul_i32', sHHst, sB, 8*55296)
    a('s_lshl_b32', st1, sU, 9)
    a('s_add_u32', sHHst, sHHst, st1)
    a('s_add_u32', sHHst, sHHst, hex(HH))
    a('s_cmp_eq_u32', cbk, 0)
    a('s_cselect_b32', sStat, 3*8192, 0)
    a('s_lshl_b32', sC3, sB, 7)
    a('s_add_u32', sC3, sC3, hex(flag(F_C3)))
    q, r, m = SX[0], SX[1], SX[2]
    a('v_lshrrev_b32', q, 4, lane)
    a('v_bfe_u32', r, lane, 2, 2)
    a('v_and_b32', m, 15, lane)
    a('s_and_b32', st1, sw, 1)
    a('s_lshl_b32', st1, st1, 2)
    a('v_or_b32', t0, st1, q)
    a('v_bfe_u32', t1, lane, 1, 3)
    a('v_xor_b32', t0, t0, t1)
    a('v_lshlrev_b32', t0, 5, t0)
    a('v_and_b32', t1, 1, lane)
    a('v_lshl_add_u32', t0, t1, 4, t0)
    a('v_lshl_add_u32', vdma, q, 12, t0)
    a('v_and_b32', t0, 1, q)
    a('v_lshl_or_b32', t0, t0, 2, r)
    a('v_lshl_add_u32', t1, q, 3, r)
    a('v_lshlrev_b32', t1, 8, t1)
    a('v_and_b32', t2, 3, lane)
    a('v_lshl_add_u32', t1, t2, 3, t1)
    for mu in range(8):
        a('v_xor_b32', VRD[mu], mu, t0)
        a('v_lshl_add_u32', VRD[mu], VRD[mu], 5, t1)
    a('v_lshrrev_b32', t0, 1, q)
    a('v_lshl_or_b32', t0, t0, 2, r)
    a('s_lshl_b32', st1, half, 2)
    a('s_add_u32', st1, st1, sw)
    a('v_xor_b32', t0, st1, t0)
    a('v_lshlrev_b32', t0, 5, t0)
    a('v_lshl_add_u32', t0, t2, 3, t0)
    a('v_lshl_add_u32', t1, q, 2, r)
    a('v_lshl_add_u32', t0, t1, 8, t0)
    a('s_mul_i32', st2, cbk, 80*256)
    a('v_add_u32', vres, st2, t0)
    a('v_lshl_add_u32', vst, m, 5, sStat)
    a('s_lshl_b32', st1, st1, 2)
    a('v_add_u32', RS2, st1, vst)
    a('v_lshrrev_b32', t0, 2, m)
    a('v_cmp_eq_u32', 'vcc', t0, q)
    a('s_add_u32', st1, sStat, 2048)
    a('v_lshl_add_u32', t0, lane, 5, st1)
    a('v_cndmask_b32', vstw, t0, vst, 'vcc')
    for i in range(3):
        a('v_cmp_eq_u32', MSK[i], i + 1, t2)
    a('v_and_b32', t0, 1, q)
    a('v_mul_u32_u24', t1, 55296, t0)
    a('v_lshrrev_b32', t2, 1, q)
    a('v_lshl_add_u32', t1, t2, 8, t1)
    a('v_lshl_add_u32', vhh, m, 4, t1)
    a('v_mul_u32_u24', t1, 1280, m)
    a('v_lshl_add_u32', t1, t0, 5, t1)
    a('v_lshl_add_u32', vout, t2, 4, t1)
    for d in range(4):
        a('v_mov_b32', ONES[d], '0x3f803f80')

def cs_loads(a, mods=''):
    for n in range(4):
        a('s_add_u32', st0, sCS, (n & 1)*F_*4)
        a('buffer_load_dwordx4', CSR[n], vq16, RWS, st0, mods=f'offen offset:{64*(n >> 1)}' + mods)

def ht_dma(a, mods=''):
    toks = []
    for ks in range(20):
        a('s_add_u32', 'm0', sLds, 8192*ks)
        a('s_add_u32', st0, sHT, 131072*ks)
        a('s_add_u32', st1, sHT, 131072*ks + 16384 - 1024)
        a('buffer_load_dwordx4', vdma, RWS, st0, mods='offen' + mods + ' lds')
        toks.append(a('buffer_load_dwordx4', vdma, RWS, st1, mods='offen offset:1024' + mods + ' lds'))
    return toks

def wd_load(a, f, mods=''):
    i, nu = divmod(f, 5)
    a('s_add_u32', st0, sWdT if i >= 12 else sWd, nu*55296 + (i & ~3)*1024)
    a('buffer_load_dwordx4', WD(f), l16, RWS, st0, mods=f'offen offset:{(i & 3)*1024}' + mods)

def epi_ops(n0, mu, unit):
    G, U = ACC[n0][mu], ACC[n0+1][mu]
    Q = ACC[n0+1][mu & ~1]
    mp = MEAN[(mu & ~1):(mu & ~1) + 2]
    s = mu & 1
    md = f'op_sel:[0,{s},0] op_sel_hi:[1,{s},1]'
    L = []
    for h in range(2):
        L.append(('v_pk_fma_f32', (G[2*h:2*h+2], CSR[n0][2*h:2*h+2], mp, G[2*h:2*h+2]), md))
    for h in range(2):
        L.append(('v_pk_fma_f32', (U[2*h:2*h+2], CSR[n0+1][2*h:2*h+2], mp, U[2*h:2*h+2]), md))
    for e in range(4):
        L.append(('v_max_f32', (G[e], 0, G[e]), ''))
    for h in range(2):
        L.append(('v_pk_mul_f32', (G[2*h:2*h+2], G[2*h:2*h+2], U[2*h:2*h+2]), ''))
    for h in range(2):
        L.append(('v_cvt_pk_bf16_f32', (Q[2*s+h], G[2*h], G[2*h+1]), ''))
    if s:
        L.append(('v_permlane16_swap_b32', (Q[0], Q[2]), ''))
        L.append(('v_permlane16_swap_b32', (Q[1], Q[3]), ''))
        L.append(('s_add_u32', (st1, sHHst, (mu - 1)*55296), ''))
        L.append(('buffer_store_dwordx4', (Q, vhh, RWS, st1), f'offen offset:{512*unit} sc1'))
    return L

def stat_ops(mu):
    s1, s2, t = SX[(mu & 1)*3], SX[(mu & 1)*3 + 1], SX[(mu & 1)*3 + 2]
    D2 = ACC[3][mu]
    rec = []
    class R:
        def __call__(self, mn, *ops, mods=''): rec.append((mn, ops, mods))
    r = R()
    r('v_cndmask_b32', s2, D2[0], D2[1], MSK[0])
    r('v_cndmask_b32', s2, s2, D2[2], MSK[1])
    r('v_cndmask_b32', s2, s2, D2[3], MSK[2])
    r('v_mov_b32', s1, ACC[2][mu][0])
    ln_stats(r, s1, s2, t)
    r('v_rcp_f32', s2, s2)
    r('v_xor_b32', s1, '0x80000000', s1)
    r('v_mul_f32', s2, s2, s2)
    r('ds_write_b32', vstw, s1, mods=f'offset:{4*mu}')
    r('ds_write_b32', vstw, s2, mods=f'offset:{512 + 4*mu}')
    return rec

def gemm1_wave(a, special, toks, LD=''):
    W = lambda p, h: A(8*(p & 31) + 4*h, 4)
    steps = []
    if not special:
        def mf(ks, mu): return [(ACC[n][mu], W(2*ks + (n >> 1), n & 1)) for n in range(4)]
        for ks in range(18):
            for mu in range(8): steps.append((ks, mu, mf(ks, mu)))
        for mu in range(8):
            for ks in (18, 19): steps.append((ks, mu, mf(ks, mu)))
    else:
        un = lambda ks, mu: [(ACC[n][mu], W(ks, n)) for n in range(2)]
        stt = lambda mu: [(ACC[2][mu], ONES), (ACC[3][mu], None)]
        for ks in range(8):
            for mu in range(8): steps.append((ks, mu, un(ks, mu) + stt(mu)))
        for ks in range(8, 20):
            for mu in range(8): steps.append((ks, mu, stt(mu)))
        for ks in range(8, 16):
            for mu in range(8): steps.append((ks, mu, un(ks, mu)))
        for mu in range(8):
            for ks in range(16, 20): steps.append((ks, mu, un(ks, mu)))
    base = [0]*8
    def bread(s, halves=(0, 1)):
        ks, mu, _ = steps[s]
        c = len(halves)
        if base[mu] != ks >> 3:
            d = ((ks >> 3) - base[mu])*65536
            a('v_add_u32', VRD[mu], hex(d & 0xffffffff), VRD[mu])
            base[mu] = ks >> 3
            c += 1
        for hf in halves:
            a('ds_read_b64_tr_b16', BF[s & 7][2*hf:2*hf+2], VRD[mu], mods=f'offset:{(ks & 7)*8192 + 1024*hf}')
        return c
    side = []
    I = lambda mn, ops, mods: (lambda: a(mn, *ops, mods=mods))
    if not special:
        for ks in range(16, 20):
            for k in range(4):
                side.append((32*(ks - 15) + 96 + 4*k, 2, (lambda p=2*ks + (k >> 1), h=k & 1: w1_load(a, p, h, LD))))
        for f in range(48):
            side.append((32*(5 + f//4) + 2 + 8*(f & 3), 2, (lambda f=f: wd_load(a, f, LD))))
        for f in range(48, 56):
            side.append((32*(17 + (f - 48)//4) + 5 + (f & 3), 2, (lambda f=f: wd_load(a, f, LD))))
        for mu in range(8):
            for unit in range(2):
                for op in epi_ops(2*unit, mu, unit):
                    side.append((576 + 8*(mu + 1) + 2, 1, I(*op)))
        late = list(range(56, 70))
    else:
        for f in range(24, 48):
            side.append((160 + 8*(f - 24), 2, (lambda f=f: wd_load(a, f, LD))))
        for f in range(48, 64):
            side.append((352 + 6*(f - 48), 2, (lambda f=f: wd_load(a, f, LD))))
        for mu in range(8):
            for op in stat_ops(mu):
                side.append((432 + 2*mu + 4, 1, I(*op)))
        for f in range(16):
            side.append((448 + 16*(f//2 + 1) + 4*(f & 1), 2, (lambda f=f: wd_load(a, f, LD))))
        for mu in range(8):
            for op in epi_ops(0, mu, 0):
                side.append((576 + 8*(mu + 1) + 2, 1, I(*op)))
        late = list(range(16, 24)) + list(range(64, 70))
    side.sort(key=lambda x: x[0])
    bars = {32: 4, 128: 11, 224: 19}
    a.wait_vm_tok(toks[1])
    a('s_barrier')
    stamp(a, 10)
    for s in range(8): bread(s)
    n = 0
    seen = set()
    for s, (ks, mu, mfs) in enumerate(steps):
        B = BF[s & 7]
        for k, (acc, Aop) in enumerate(mfs):
            if n in bars:
                a.wait_vm_tok(toks[bars[n]])
                a('s_barrier')
            if n == 576: stamp(a, 11)
            if n == 576:
                assert not any(e[0] < 576 and e[1] == 1 for e in side), "statistics not finished"
                a.wait(lg=0)
                a('s_barrier')
                a('ds_read_b128', MEAN[0:4], vst)
                a('ds_read_b128', MEAN[4:8], vst, mods='offset:16')
                a('ds_read_b32', RS2, RS2, mods='offset:512')
            a(MFMA, acc, B if Aop is None else Aop, B, acc if acc.idx in seen else 0)
            seen.add(acc.idx)
            n += 1
            room = 3
            if k < 2 and 1 <= s and s + 7 < len(steps):
                room -= bread(s + 7, (k,))
            while side and side[0][0] <= n and side[0][1] <= room:
                e = side.pop(0); e[2](); room -= e[1]
    assert n == 640
    for nu in range(5):
        a('ds_read_b64_tr_b16', RES[nu], vres, mods=f'offset:{4096*nu}')
    for f in late[:8]: wd_load(a, f, LD)
    for e in side: e[2]()
    for f in late[8:]: wd_load(a, f, LD)

def publish_poll(a, sflag, target, name):
    a.wait(vm=0, lg=0)
    a('s_barrier')
    a('s_cmp_lg_u32', sw, 0)
    a('s_cbranch_scc1', name + '_skip')
    a('s_mov_b64', 'exec', 1)
    a('v_mov_b32', t0, 1)
    a('buffer_atomic_add', t0, 'off', RWS, sflag, mods='sc1')
    a('s_mov_b32', sCnt, SPIN)
    a('buffer_load_dword', t1, 'off', RWS, sflag, mods='sc1')
    a.spin_head(name + '_spin')
    a('v_readfirstlane_b32', sPoll, t1)
    a('s_cmp_ge_u32', sPoll, target)
    a('s_cbranch_scc1', name + '_done')
    a('buffer_load_dword', t1, 'off', RWS, sflag, mods='sc1')
    a('s_sub_u32', sCnt, sCnt, 1)
    a('s_cbranch_scc0', name + '_spin')
    a.wait(vm=0)
    a.label(name + '_done')
    a('s_mov_b64', 'exec', -1)
    a.label(name + '_skip')
    a('s_barrier')

def gemm2(a, LD=''):
    def hload(i, j):
        if i == 12: a('s_add_u32', sHH[j], sHH[j], sTail)
        a('s_add_u32', st0, sHH[j], (i & ~3)*1024)
        a('buffer_load_dwordx4', HF[i % HR][j], l16, RWS, st0, mods=f'offen offset:{(i & 3)*1024}' + LD)
    for i in range(HR):
        for j in range(4): hload(i, j)
    vw = [t0, t1, t2]
    for j in range(3):
        a('v_add_u32', vw[j], sRedW[j], l16)
    a('v_add_u32', vst, sRedR, l16)
    pend = []
    for i in range(14):
        for j in ([0, 1, 2, 3] if i < 13 else [1, 2, 3, 0]):
            for nu in range(5):
                a(MFMA, ACC2[j][nu], WD(5*i + nu), HF[i % HR][j], ACC2[j][nu] if i else 0)
                if pend and nu >= 1:
                    pend.pop(0)()
                    if nu == 4: pend.pop(0)()
            if i + HR < 14: hload(i + HR, j)
            if i == 13 and j:
                pend = [(lambda j=j, nu=nu: a('ds_write_b128', vw[j-1], ACC2[j][nu], mods=f'offset:{1024*nu}')) for nu in range(5)]
    assert not pend
    a.wait(lg=0)
    a('s_barrier')
    RD = [V(16 + 4*k, 4) for k in range(15)]
    for nu in range(5):
        for j in range(3):
            a('ds_read_b128', RD[3*nu + j], vst, mods=f'offset:{5120*j + 1024*nu}')
    X = V(80, 4)
    Q = [V(84, 4), V(88, 4), V(92, 2)]
    vo2 = V(94)
    a('v_and_b32', t0, 15, lane)
    a('v_mul_u32_u24', t0, 1280, t0)
    a('v_lshrrev_b32', t1, 1, vq16)
    a('v_add_u32', vo2, t0, t1)
    rp = V(12, 2)
    for nu in range(5):
        C = ACC2[0][nu]
        for j in range(3):
            for h in range(2):
                a('v_pk_add_f32', C[2*h:2*h+2], C[2*h:2*h+2], RD[3*nu + j][2*h:2*h+2])
        a('v_lshlrev_b32', X[0], 16, RES[nu][0])
        a('v_and_b32', X[1], '0xffff0000', RES[nu][0])
        a('v_lshlrev_b32', X[2], 16, RES[nu][1])
        a('v_and_b32', X[3], '0xffff0000', RES[nu][1])
        for h in range(2):
            a('v_pk_fma_f32', C[2*h:2*h+2], C[2*h:2*h+2], rp, X[2*h:2*h+2], mods='op_sel:[0,1,0] op_sel_hi:[1,1,1]')
        q = Q[nu >> 1]
        for h in range(2):
            a('v_cvt_pk_bf16_f32', q[2*(nu & 1) + h], C[2*h], C[2*h+1])
        if nu & 1:
            a('v_permlane16_swap_b32', q[0], q[2])
            a('v_permlane16_swap_b32', q[1], q[3])
            a('buffer_store_dwordx4', q, vout, ROUT, sOut, mods=f'offen offset:{64*(nu >> 1)}')
    a('buffer_store_dwordx2', Q[2], vo2, ROUT, sOut, mods='offen offset:128')

def gemm_phases(a, LD=''):
    toks = ht_dma(a, LD)
    stamp(a, 1)
    a('s_cmp_eq_u32', sw, 3)
    a('s_cbranch_scc1', 'G1_w3')
    gemm1_wave(a, False, toks, LD)
    a('s_branch', 'G1_join')
    a.label('G1_w3')
    gemm1_wave(a, True, toks, LD)
    a.label('G1_join')
    stamp(a, 2)
    publish_poll(a, sC3, 16, 'C3')
    stamp(a, 3)
    gemm2(a, LD)
    stamp(a, 4)

def kernel_cd(a):
    stamp(a, 0)
    load_args(a)
    a('s_cmp_ge_u32', S(2), 256)
    a('s_cbranch_scc1', 'CD_end')
    wave_id(a, sw, t0)
    a('v_and_b32', lane, 63, V(0))
    a('v_lshlrev_b32', l16, 4, lane)
    srd(a, RWS, P_WS, WS_SIZE)
    bc_of_wg(a)
    w1_setup(a)
    for p in range(32):
        for h in range(2): w1_load(a, p, h)
    gemm_setup(a)
    cs_loads(a)
    a.wait(vm=20)
    gemm_phases(a)
    if STAMP: a.wait(vm=0)
    stamp_flush(a, 2, 14, sw, RWS)
    a.label('CD_end')
    a('s_endpgm')

def kernel_a0(a):
    a('s_cmp_lg_u32', S(2), 224)
    a('s_cbranch_scc1', 'A_main')
    load_args(a)
    srd(a, RWS, P_WS, WS_SIZE)
    a('v_lshlrev_b32', V(1), 7, V(0))
    a('v_mov_b32', V(2), 0)
    a('s_mov_b32', st0, hex(FL))
    a('s_mov_b32', st1, hex(FL + 256*128))
    a('buffer_store_dword', V(2), V(1), RWS, st0, mods='offen')
    a('buffer_store_dword', V(2), V(1), RWS, st1, mods='offen')
    a('s_endpgm')
    a.label('A_main')
    kernel_a(a)

if __name__ == '__main__':
    K = [('ka_kernel', kernel_a0, 225, 0, 256, 256),
         ('kb_kernel', kernel_b, 244, 81920, 512, 256),
         ('kcd_kernel', kernel_cd, 256, 163840, 512, 256)]
    open(sys.argv[1], 'w').write(build(K))
```

```python
from gemm import *

LD = os.environ.get('LDM', '')
LD1 = os.environ.get('LD1', ' sc1')
GOFIRST = int(os.environ.get('GOFIRST', '0'))
RDBG = S(64, 4)
vgo, vfl, vtg = V(9), V(10), V(11)
CODE_BYTES = int(os.environ.get('CODE_BYTES', '49152'))

def spin_until(a, name, vaddr, soff, R, vval, target, first=True):
    off = 'offen ' if vaddr != 'off' else ''
    a('s_mov_b32', sCnt, SPIN)
    if first:
        a('buffer_load_dword', vval, vaddr, R, soff, mods=off + 'sc1')
    a.spin_head(name + '_spin')
    a('v_cmp_gt_u32', 'vcc', target, vval)
    a('s_cmp_eq_u64', 'vcc', 0)
    a('s_cbranch_scc1', name + '_done')
    a('buffer_load_dword', vval, vaddr, R, soff, mods=off + 'sc1')
    a('s_sub_u32', sCnt, sCnt, 1)
    a('s_cbranch_scc0', name + '_spin')
    a.wait(vm=0)
    a.label(name + '_done')

def go_load(a):
    a('buffer_load_dword', vgo, 'off', RDBG, 0, mods='sc1')

def sync(a, name, go=False, pub=None, poll=None):
    a.wait(vm=0, lg=0)
    a('s_barrier')
    a('s_cmp_lg_u32', sw, 0)
    a('s_cbranch_scc1', name + '_skip')
    if go:
        a('s_mov_b64', 'exec', 1)
        spin_until(a, name + '_go', 'off', 0, RDBG, vgo, 1, first=False)
    if pub:
        a('s_mov_b64', 'exec', hex((1 << pub[0]) - 1))
        a('v_mov_b32', t0, 1)
        a('buffer_atomic_add', t0, pub[1], RWS, pub[2], mods=('offen ' if pub[1] != 'off' else '') + 'sc1')
    if poll:
        a('s_mov_b64', 'exec', hex((1 << poll[0]) - 1))
        spin_until(a, name, poll[1], poll[2], RWS, t1, poll[3])
    a('s_mov_b64', 'exec', -1)
    a.label(name + '_skip')
    if poll: a('s_barrier')

def wflag_setup(a):
    a('s_lshr_b32', st0, sU, 2)
    a('s_add_u32', st1, sU, 1)
    a('s_cmp_eq_u32', sw, 3)
    a('s_cmov_b32', st1, sU)
    a('s_lshr_b32', st1, st1, 2)
    a('s_sub_u32', st1, st1, st0)
    a('v_and_b32', t0, 1, lane)
    a('v_mul_u32_u24', t0, st1, t0)
    a('v_bfe_u32', t1, lane, 1, 1)
    a('v_mul_u32_u24', t1, 27, t1)
    a('v_add3_u32', t0, t0, t1, st0)
    a('v_add_u32', t0, F_W1, t0)
    a('s_and_b32', st0, S(2), 15)
    a('s_add_u32', st0, st0, F_GS)
    a('v_mov_b32', t1, st0)
    a('v_cmp_eq_u32', 'vcc', 4, lane)
    a('v_cndmask_b32', t0, t0, t1, 'vcc')
    a('v_lshlrev_b32', vfl, 7, t0)
    a('v_cndmask_b32', vtg, 1, 32, 'vcc')

sFL = S(100)

def code_prefetch(a):
    a('s_getpc_b64', S(68, 2))
    a.label('PCREF')
    a('v_lshlrev_b32', t0, 7, lane)
    a('s_lshl_b32', st0, sw, 13)
    a('v_add_u32', t0, st0, t0)
    n = (CODE_BYTES + 32767)//32768
    for i in range(n):
        if i:
            a('v_add_u32', t0, 32768, t0)
        a('v_min_u32', t1, 'CODE_END-PCREF-4', t0)
        a('global_load_dword', V(14 + i), t1, S(68, 2))

def phase_a(a, RK, RV, RSK, RSS):
    va = Alloc('v', 16, 255)
    selLO, selHI = S(13), S(14)
    srow = S(12)
    a('s_lshr_b32', st0, S(2), 4)
    a('s_and_b32', srow, S(2), 15)
    a('s_lshl_b32', srow, srow, 7)
    a('s_lshl_b32', st2, sw, 5)
    a('s_add_u32', srow, srow, st2)
    g, c, voff, vneg, vsk, b3 = [va.get() for _ in range(6)]
    a('v_and_b32', c, 7, lane)
    a('v_bfe_u32', b3, lane, 3, 1)
    a('v_bfe_u32', t1, lane, 4, 1)
    a('v_lshl_or_b32', t2, b3, 1, t1)
    a('v_bfe_u32', t1, lane, 5, 1)
    a('v_lshl_or_b32', g, t1, 2, t2)
    a('v_lshl_add_u32', t2, g, 2, srow)
    a('v_mul_u32_u24', voff, 1280, t2)
    a('s_lshl_b32', st2, st0, 7)
    a('v_lshl_add_u32', t2, c, 4, st2)
    a('v_add_u32', voff, voff, t2)
    a('v_subrev_u32', vneg, 3840, voff)
    a('v_lshlrev_b32', vsk, 2, t2)
    K = [va.get(4) for _ in range(7)]
    Vv = [va.get(4) for _ in range(4)]
    SK = va.get(16)
    for i in range(7):
        if i < 3: a('buffer_load_dwordx4', K[i], vneg, RK, 0, mods=f'offen offset:{1280*i}')
        else: a('buffer_load_dwordx4', K[i], voff, RK, 0, mods=f'offen offset:{1280*(i-3)}')
    for i in range(4):
        a('buffer_load_dwordx4', SK.sub(4*i, 4), vsk, RSK, 0, mods=f'offen offset:{16*i}')
    for i in range(4):
        tokv = a('buffer_load_dwordx4', Vv[i], voff, RV, 0, mods=f'offen offset:{1280*i}')
    a('s_mov_b32', selLO, '0x05040100')
    a('s_mov_b32', selHI, '0x07060302')
    vok = va.get()
    a('v_bfe_u32', t1, lane, 4, 1)
    a('v_lshlrev_b32', t1, 2, t1)
    a('v_lshl_add_u32', t1, c, 3, t1)
    a('s_lshl_b32', st2, st0, 6)
    a('v_add_u32', t1, st2, t1)
    a('v_lshlrev_b32', t1, 12, t1)
    a('v_bfe_u32', t2, lane, 5, 1)
    a('v_lshl_or_b32', t2, t2, 1, b3)
    a('v_lshl_add_u32', t2, t2, 3, srow)
    a('v_sub_u32', t2, 2040, t2)
    a('v_lshl_add_u32', vok, t2, 1, t1)
    QK = [va.get(4) for _ in range(4)]
    P = [[va.get() for _ in range(7)] for _ in range(8)]
    KS = [[va.get() for _ in range(4)] for _ in range(8)]
    def compute(mid):
        for ch in range(8):
            d, hi = ch >> 1, ch & 1
            for t in range(1, 7):
                a('v_perm_b32', P[ch][t], K[t-1][d], K[t][d], selHI if hi else selLO)
        for ch in range(8):
            for e in range(4):
                a('v_dot2_f32_bf16', KS[ch][e], P[ch][e+3], SK[2*ch], 0)
            for e in range(4):
                a('v_dot2_f32_bf16', KS[ch][e], P[ch][e+1], SK[2*ch+1], KS[ch][e])
        a.wait_vm_tok(tokv)
        mid()
        for ch in range(8):
            d, hi = ch >> 1, ch & 1
            for e in range(4):
                if hi: a('v_and_b32', P[ch][e], '0xffff0000', Vv[e][d])
                else: a('v_lshlrev_b32', P[ch][e], 16, Vv[e][d])
            for e in range(4):
                a('v_mul_f32', KS[ch][e], KS[ch][e], P[ch][e])
            q = QK[ch & 3]
            o = 2 if ch < 4 else 0
            a('v_cvt_pk_bf16_f32', q[o], KS[ch][3], KS[ch][2])
            a('v_cvt_pk_bf16_f32', q[o+1], KS[ch][1], KS[ch][0])
        for cp in range(4):
            a('v_permlane16_swap_b32', QK[cp][2], QK[cp][0])
            a('v_permlane16_swap_b32', QK[cp][3], QK[cp][1])
            a('s_mov_b32', st2, hex(KVT + 4096*cp))
            a('buffer_store_dwordx4', QK[cp], vok, RWS, st2, mods='offen sc1')
    return compute

def conv_wg(a):
    RK, RV, RSK, RSS = S(44, 4), S(48, 4), S(52, 4), S(56, 4)
    sch, sbase, sk01, sD = S(7), S(8), S(9), S(10)
    srd(a, RK, P_K, S_*D_*2)
    srd(a, RV, P_V, S_*D_*2)
    srd(a, RSK, P_SK, D_*8)
    compute = phase_a(a, RK, RV, RSK, RSS)
    stamp(a, 1)
    srd(a, RSS, P_SSMK, D_*S_*2)
    a('s_lshl_b32', sch, S(2), 2)
    a('s_add_u32', sch, sch, sw)
    a('s_lshl_b32', st0, sch, 12)
    a('s_load_dword', sk01, P_SSMK, st0)
    a('s_lshl_b32', st1, sch, 1)
    a('s_and_b32', st1, st1, '0xfffc')
    a('s_load_dword', sD, P_SSMD, st1)
    a('s_mul_i32', sbase, sw, CONV_LDS)
    code_prefetch(a)
    bc_of_wg(a)
    w1_setup(a)
    wflag_setup(a)
    FB = [[V(16 + 64*s + 4*i, 4) for i in range(8)] for s in range(2)]
    FA = [[V(48 + 64*s + 4*i, 4) for i in range(8)] for s in range(2)]
    CA = [V(144 + 4*t, 4) for t in range(8)]
    XR = [V(212 + 4*t, 4) for t in range(8)]
    AD = V(244, 4)
    vA = [V(248 + i) for i in range(4)]
    vB, vx, vo = V(252), V(253), V(254)
    li, lh = V(6), V(7)
    a('v_and_b32', li, 15, lane)
    a('v_lshrrev_b32', lh, 4, lane)
    a('v_mul_u32_u24', vx, 40960, li)
    a('v_add_u32', vx, vq16, vx)
    a('v_lshlrev_b32', t0, 2, lane)
    a('v_add_u32', t1, 4160 - 32, t0)
    a('v_cmp_gt_u32', 'vcc', 8, lane)
    a('v_cndmask_b32', t1, t1, t0, 'vcc')
    a('v_add_u32', t0, 8320 + 4096, t0)
    a('v_cmp_gt_u32', 'vcc', 16, lane)
    a('v_cndmask_b32', t1, t0, t1, 'vcc')
    a('v_add_u32', t1, sbase, t1)
    a('s_lshl_b32', st1, sk01, 16)
    a('v_mov_b32', t0, st1)
    a('v_cmp_eq_u32', 'vcc', 7, lane)
    a('v_cndmask_b32', t2, 0, t0, 'vcc')
    a('v_mov_b32', t0, sk01)
    a('v_cmp_eq_u32', 'vcc', 15, lane)
    a('v_cndmask_b32', t2, t2, t0, 'vcc')
    a('ds_write_b32', t1, t2)
    z2 = AD[0:2]
    a('v_mov_b32', z2[0], 0)
    a('v_mov_b32', z2[1], 0)
    a('v_lshl_add_u32', t0, lane, 3, sbase)
    a('ds_write_b64', t0, z2, mods=f'offset:{8320+4096}')
    a('s_bitcmp1_b32', sch, 0)
    a('s_cselect_b32', st1, 16, 0)
    a('s_lshr_b32', sD, sD, st1)
    a('s_and_b32', sD, sD, '0xffff')
    a('v_lshlrev_b32', t0, 3, lh)
    a('v_add_u32', t0, t0, li)
    a('v_sub_u32', t0, 15, t0)
    a('v_and_b32', t1, 1, t0)
    a('v_lshlrev_b32', t1, 4, t1)
    a('v_lshlrev_b32', t1, t1, sD)
    a('v_ashrrev_i32', t0, 1, t0)
    a.wait(lg=0)
    for d in range(4):
        a('v_cmp_eq_u32', 'vcc', d, t0)
        a('v_cndmask_b32', AD[d], 0, t1, 'vcc')
    a('v_lshl_add_u32', t0, lh, 3, li)
    a('v_lshrrev_b32', t0, 1, t0)
    a('v_lshl_add_u32', t0, t0, 2, sbase)
    a('v_and_b32', t1, 1, li)
    a('v_mul_u32_u24', t1, 4160, t1)
    a('v_add_u32', vA[0], t0, t1)
    for p in range(1, 4):
        a('v_add_u32', vA[p], 1024*p, vA[0])
    a('v_lshlrev_b32', t0, 5, li)
    a('v_sub_u32', t0, 8320 + 480, t0)
    a('v_lshl_add_u32', t0, lh, 4, t0)
    a('v_add_u32', vB, sbase, t0)
    a('v_and_b32', t0, 1, lh)
    a('v_lshlrev_b32', t0, 9, t0)
    a('v_lshl_add_u32', t0, li, 5, t0)
    a('v_lshrrev_b32', t1, 1, lh)
    a('v_lshl_add_u32', vo, t1, 4, t0)
    l16a, l16b = V(8), V(13)
    a('v_add_u32', l16a, 2, l16)
    a('v_add_u32', l16b, 4, l16)
    def mid():
        stamp(a, 2)
        a('s_lshl_b32', st0, sch, 12)
        a('s_add_u32', 'm0', sbase, 32)
        for i in range(4):
            a('buffer_load_dwordx4', l16a, RSS, st0, mods=f'offen offset:{1024*i} lds')
        a('s_add_u32', 'm0', sbase, 4160 + 32)
        for i in range(4):
            a('buffer_load_dwordx4', l16b, RSS, st0, mods=f'offen offset:{1024*i} lds')
        go_load(a)
    compute(mid)
    stamp(a, 3)
    a('s_lshr_b32', st0, S(2), 4)
    a('s_lshl_b32', st0, st0, 7)
    a('s_add_u32', S(12), st0, hex(flag(F_G1)))
    def rdA(rho):
        s = rho & 1
        L = []
        for i in range(8):
            o = 128*(i & 1) + 16*rho
            L.append(('ds_read2_b32', FA[s][i][0:2], vA[i >> 1], f'offset0:{o} offset1:{o+1}'))
            L.append(('ds_read2_b32', FA[s][i][2:4], vA[i >> 1], f'offset0:{o+2} offset1:{o+3}'))
        return L
    def rdB(rho):
        return [('ds_read_b128', FB[rho & 1][i], vB, f'offset:{3584 - 512*i + 64*rho}') for i in range(8)]
    def reads(rho):
        A_, B_ = rdA(rho), rdB(rho)
        L = []
        for i in range(8): L += [B_[i], A_[2*i], A_[2*i+1]]
        return L
    a.wait(vm=0)
    stamp(a, 4)
    for r in rdA(0): a(r[0], r[1], r[2], mods=r[3])
    sync(a, 'G1', go=True, pub=(1, 'off', S(12)), poll=(1, 'off', S(12), 16))
    stamp(a, 5)
    a('s_add_u32', 'm0', sbase, 8320)
    a('s_lshl_b32', st0, sch, 12)
    a('s_add_u32', st1, st0, hex(KVT))
    for i in range(4):
        a('buffer_load_dwordx4', l16, RWS, st1, mods=f'offen offset:{1024*i}' + LD1 + ' lds')
    a('buffer_load_dword', vgo, vfl, RWS, sFL, mods='offen sc1')
    a.wait(vm=1)
    stamp(a, 6)
    for r in rdB(0): a(r[0], r[1], r[2], mods=r[3])
    side = []
    sx = S(12)
    for t in range(8):
        def xl(t=t):
            a('s_add_u32', st0, sx, 655360*t)
            a('buffer_load_dwordx4', XR[t], vx, RWS, st0, mods='offen' + LD1)
        side.append(xl)
    for n in range(4):
        def cl_(n=n):
            a('s_add_u32', st0, sCS, (n & 1)*F_*4)
            a('buffer_load_dwordx4', CSR[n], vq16, RWS, st0, mods=f'offen offset:{64*(n >> 1)}' + LD)
        side.append(cl_)
    for p in range(32):
        for h in range(2): side.append(lambda p=p, h=h: w1_load(a, p, h, LD))
    order = sorted([(aa, dl) for aa in range(8) for dl in range(8) if aa + dl <= 7], key=lambda p: (max(p), p[0] + p[1]))
    R0 = int(os.environ.get('R0', '2'))
    for rho in range(8):
        s = rho & 1
        nxt = reads(rho + 1) if rho < 7 else []
        if rho == R0:
            a('s_mov_b64', 'exec', 31)
            a.wait(lg=0)
            spin_until(a, 'WF', vfl, sFL, RWS, vgo, vtg, first=False)
            a('s_mov_b64', 'exec', -1)
            a('s_lshl_b32', sx, sch, 6)
            a('s_add_u32', sx, sx, hex(XX))
        seq = []
        init = set()
        for (aa, dl) in order:
            t = aa + dl
            seq.append((CA[t], FA[s][aa], FB[s][dl], CA[t] if (rho or t in init) else 0))
            init.add(t)
        if rho == 0:
            seq += [(CA[t], AD, FB[s][t], CA[t]) for t in range(8)]
        k = 0
        for n, m in enumerate(seq):
            a(MFMA, *m)
            if n >= 4 and k < len(nxt):
                r = nxt[k]; k += 1
                a(r[0], r[1], r[2], mods=r[3])
            if rho >= R0 and side and (n % 2 == 0):
                side.pop(0)()
        assert k == len(nxt)
    assert not side
    stamp(a, 7)
    XF, XN = V(16, 4), V(20, 4)
    O = [V(24, 4), V(28, 4)]
    a('s_lshl_b32', st0, sch, 12)
    a('s_add_u32', st1, st0, hex(HT))
    for p in range(4):
        q = O[p & 1]
        for e in range(2):
            t = 2*p + e
            for h in range(2):
                a('v_lshlrev_b32', XF[2*h], 16, XR[t][h])
                a('v_and_b32', XF[2*h+1], '0xffff0000', XR[t][h])
                a('v_lshlrev_b32', XN[2*h], 16, XR[t][2+h])
                a('v_and_b32', XN[2*h+1], '0xffff0000', XR[t][2+h])
            for h in range(2):
                a('v_pk_fma_f32', XN[2*h:2*h+2], XN[2*h:2*h+2], CA[t][2*h:2*h+2], XF[2*h:2*h+2])
            for h in range(2):
                a('v_cvt_pk_bf16_f32', q[2*e+h], XN[2*h], XN[2*h+1])
        a('v_permlane16_swap_b32', q[0], q[2])
        a('v_permlane16_swap_b32', q[1], q[3])
        a('buffer_store_dwordx4', q, vo, RWS, st1, mods=f'offen offset:{1024*p} sc1')
    stamp(a, 8)
    gemm_setup(a)
    a('s_lshr_b32', st0, S(2), 4)
    a('s_lshl_b32', st0, st0, 7)
    a('s_add_u32', S(7), st0, hex(flag(F_C2)))
    a('v_lshlrev_b32', t2, 11, lane)
    sync(a, 'C2p', pub=(16, t2, S(7)))

def pack_issue(a, RW, stride, ssrc, snk):
    vsrc = [V(16), V(17)]
    a('v_lshrrev_b32', t0, 3, lane)
    a('v_mul_lo_u32', t0, t0, stride)
    a('v_and_b32', t1, 1, lane)
    a('v_lshl_add_u32', t0, t1, 4, t0)
    a('v_bfe_u32', t1, lane, 1, 2)
    a('v_bfe_u32', t2, lane, 4, 1)
    a('v_xor_b32', t1, t1, t2)
    a('v_lshl_add_u32', vsrc[0], t1, 5, t0)
    a('v_xor_b32', t1, 2, t1)
    a('v_lshl_add_u32', vsrc[1], t1, 5, t0)
    s8 = S(34)
    a('s_lshl_b32', s8, stride, 3)
    a('s_lshl_b32', st2, stride, 5)
    a('s_mul_i32', st0, sw, st2)
    a('s_add_u32', ssrc, ssrc, st0)
    a('s_lshl_b32', st1, sw, 12)
    a('s_mul_i32', st2, s8, 13)
    for i in range(5):
        if i == 4:
            a('s_add_u32', st0, sw, 16)
            a('s_cmp_lt_u32', st0, snk)
            a('s_cselect_b32', ssrc, ssrc, hex(OOB))
        for p in range(4):
            a('s_add_u32', 'm0', st1, 16384*i + 1024*p)
            a('buffer_load_dwordx4', vsrc[p & 1], RW, ssrc, mods='offen lds')
            a('s_add_u32', ssrc, ssrc, s8 if p < 3 else st2)

def pack_finish(a, sdst, sdstep, snk, scs):
    vrd = [V(16), V(17)]
    a('v_lshrrev_b32', t0, 4, lane)
    a('v_bfe_u32', t1, lane, 2, 2)
    a('v_lshl_add_u32', t2, t0, 3, t1)
    a('v_lshlrev_b32', t2, 7, t2)
    a('v_and_b32', t0, 1, t0)
    a('v_lshrrev_b32', t1, 1, t1)
    a('v_lshl_or_b32', t0, t0, 1, t1)
    a('v_xor_b32', t0, sw, t0)
    a('v_lshl_add_u32', t2, t0, 5, t2)
    a('v_and_b32', t0, 3, lane)
    a('v_lshl_add_u32', vrd[0], t0, 3, t2)
    a('v_add_u32', vrd[1], 65536, vrd[0])
    ON = V(20, 4)
    for d in range(4):
        a('v_mov_b32', ON[d], '0x3f803f80')
    FR = [V(32 + 4*i, 4) for i in range(20)]
    CSA = V(24, 4)
    a.wait(vm=0)
    a('s_barrier')
    def rd(ks):
        for hf in range(2):
            a('ds_read_b64_tr_b16', FR[ks][2*hf:2*hf+2], vrd[ks >> 4], mods=f'offset:{(ks & 15)*4096 + 512*hf}')
    for ks in range(6): rd(ks)
    for ks in range(20):
        if ks == 18:
            a('s_cmp_lt_u32', snk, 20)
            a('s_cbranch_scc1', 'P_end')
        if ks + 6 < 20: rd(ks + 6)
        a('buffer_store_dwordx4', FR[ks], l16, RWS, sdst, mods='offen sc1')
        a('s_add_u32', sdst, sdst, sdstep)
        a(MFMA, CSA, FR[ks], ON, 0 if ks == 0 else CSA)
    a('v_and_b32', t0, 15, lane)
    a('v_cmp_eq_u32', 'vcc', 0, t0)
    a('s_and_saveexec_b64', S(68, 2), 'vcc')
    a('buffer_store_dwordx4', CSA, lane, RWS, scs, mods='offen sc1')
    a('s_mov_b64', 'exec', -1)
    a.label('P_end')

def x_task(a, RQ, n, mid):
    va = Alloc('v', 112, 255)
    voff, vs = va.get(), va.get()
    stb = S(34)
    a('s_lshl_b32', stb, n, 2)
    a('s_add_u32', stb, stb, sw)
    a('s_mul_i32', st0, stb, 16*1280)
    a('v_lshrrev_b32', t0, 4, lane)
    a('v_mul_u32_u24', voff, 5120, t0)
    a('v_and_b32', t1, 15, lane)
    a('v_lshl_add_u32', voff, t1, 4, voff)
    a('v_lshlrev_b32', vs, 9, t1)
    a('v_add_u32', vs, vq16, vs)
    X = [[va.get(4) for e in range(4)] for p in range(5)]
    for p in range(5):
        if p: a('s_add_u32', st0, st0, 256)
        for e in range(4):
            a('buffer_load_dwordx4', X[p][e], voff, RQ, st0, mods=f'offen offset:{1280*e}')
    ones, selLO, selHI = S(68), S(13), S(14)
    a('s_mov_b32', ones, '0x3f803f80')
    a('s_mov_b32', selLO, '0x05040100')
    a('s_mov_b32', selHI, '0x07060302')
    s1, s2 = va.get(4), va.get(4)
    for p in range(5):
        if p == 4:
            a.wait(vm=0)
            mid()
        for d in range(4):
            for e in range(4):
                first = (p == 0 and d == 0)
                a('v_dot2_f32_bf16', s1[e], X[p][e][d], ones, 0 if first else s1[e])
                a('v_dot2_f32_bf16', s2[e], X[p][e][d], X[p][e][d], 0 if first else s2[e])
    for sh in (8, 4, 2, 1):
        for r in [s1[e] for e in range(4)] + [s2[e] for e in range(4)]:
            a('v_add_f32', r, r, r, mods=f'row_ror:{sh} row_mask:0xf bank_mask:0xf')
    for e in range(4):
        ln_stats(a, s1[e], s2[e], t2)
        a('v_rcp_f32', s2[e], s2[e])
        a('v_mul_f32', s1[e], s1[e].neg(), s2[e])
    Fq = [va.get(4) for _ in range(2)]
    O = [va.get(4) for _ in range(4)]
    a('s_mul_i32', st0, stb, 40960)
    a('s_add_u32', st0, st0, hex(XX))
    k = 0
    for p in range(5):
        if p: a('s_add_u32', st0, st0, 8192)
        for d in range(4):
            for hi in range(2):
                F, q = Fq[k & 1], O[k & 3]; k += 1
                for e in range(4):
                    if hi: a('v_and_b32', F[e], '0xffff0000', X[p][e][d])
                    else: a('v_lshlrev_b32', F[e], 16, X[p][e][d])
                for h in range(2):
                    a('v_perm_b32', q[h], X[p][2*h+1][d], X[p][2*h][d], selHI if hi else selLO)
                for h in range(2):
                    a('v_pk_fma_f32', F[2*h:2*h+2], F[2*h:2*h+2], s2[2*h:2*h+2], s1[2*h:2*h+2])
                for h in range(2):
                    a('v_cvt_pk_bf16_f32', q[2+h], F[2*h], F[2*h+1])
                a('buffer_store_dwordx4', q, vs, RWS, st0, mods=f'offen offset:{64*(2*d + hi)} sc1')

def helper_wg(a):
    RW, RQ = S(44, 4), S(48, 4)
    n, stride, ssrc, sdst, sdstep, snk, scs, sfl = S(7), S(8), S(10), S(52), S(53), S(54), S(55), S(9)
    a('s_sub_u32', n, S(2), 160)
    a('s_mov_b32', RW[3], '0x20000')
    a('s_mov_b32', RW[2], hex(D_*F_*2))
    a('s_cmp_ge_u32', n, 54)
    a('s_cbranch_scc1', 'H_x')
    a('s_cmp_ge_u32', n, 27)
    a('s_cselect_b32', RW[0], P_WU[0], P_WG[0])
    a('s_cselect_b32', RW[1], P_WU[1], P_WG[1])
    a('s_cselect_b32', st0, 27, 0)
    a('s_cselect_b32', st1, 1024, 0)
    a('s_cselect_b32', scs, F_*4, 0)
    a('s_and_b32', RW[1], RW[1], '0xffff')
    a('s_sub_u32', st0, n, st0)
    a('s_mov_b32', stride, F_*2)
    a('s_lshl_b32', ssrc, st0, 7)
    a('s_lshl_b32', st0, st0, 2)
    a('s_add_u32', st0, st0, sw)
    a('s_mul_i32', sdst, st0, 40960)
    a('s_add_u32', sdst, sdst, st1)
    a('s_add_u32', sdst, sdst, hex(WP1))
    a('s_mov_b32', sdstep, 2048)
    a('s_mov_b32', snk, 20)
    a('s_lshl_b32', st0, st0, 6)
    a('s_add_u32', scs, scs, st0)
    a('s_add_u32', scs, scs, hex(CS))
    a('s_lshl_b32', sfl, n, 7)
    a('s_add_u32', sfl, sfl, hex(flag(F_W1)))
    pack_issue(a, RW, stride, ssrc, snk)
    go_load(a)
    code_prefetch2(a)
    a('s_branch', 'H_pack')
    a.label('H_x')
    a('s_cmp_ge_u32', n, 86)
    a('s_cbranch_scc1', 'H_idle')
    srd(a, RQ, P_Q, S_*D_*2)
    a('s_mov_b32', RW[0], P_WD[0])
    a('s_and_b32', RW[1], P_WD[1], '0xffff')
    a('s_sub_u32', n, n, 54)
    a('s_mul_i32', st1, n, 26)
    a('s_lshr_b32', st1, st1, 8)
    a('s_mul_i32', st2, st1, 10)
    a('s_sub_u32', st0, n, st2)
    a('s_mov_b32', stride, D_*2)
    a('s_mul_i32', ssrc, st1, 576*1280)
    a('s_lshl_b32', st2, st0, 7)
    a('s_add_u32', ssrc, ssrc, st2)
    a('s_lshl_b32', st0, st0, 2)
    a('s_add_u32', st0, st0, sw)
    a('s_mul_i32', sdst, st0, 55296)
    a('s_mul_i32', st1, st1, 18*1024)
    a('s_add_u32', sdst, sdst, st1)
    a('s_add_u32', sdst, sdst, hex(WP2))
    a('s_mov_b32', sdstep, 1024)
    a('s_mov_b32', snk, 18)
    a('s_mov_b32', scs, hex(OOB))
    a('s_cmp_ge_u32', n, 30)
    a('s_cmov_b32', ssrc, hex(OOB))
    a('s_cmov_b32', sdst, hex(OOB))
    a('s_lshl_b32', sfl, n, 7)
    a('s_add_u32', sfl, sfl, hex(flag(F_WD)))
    def mid():
        stamp(a, 2)
        go_load(a)
    x_task(a, RQ, n, mid)
    stamp(a, 3)
    a('v_lshlrev_b32', t2, 7, lane)
    a('s_mov_b32', S(34), hex(flag(F_GS)))
    sync(a, 'GSp', go=True, pub=(16, t2, S(34)))
    stamp(a, 4)
    pack_issue(a, RW, stride, ssrc, snk)
    a.label('H_pack')
    stamp(a, 5)
    pack_finish(a, sdst, sdstep, snk, scs)
    stamp(a, 6)
    sync(a, 'Wp', go=True, pub=(1, 'off', sfl))
    a('s_branch', 'H_pre')
    a.label('H_idle')
    a('s_cmp_lg_u32', S(2), 255)
    a('s_cbranch_scc1', 'H_idle2')
    a('v_lshlrev_b32', t0, 7, V(0))
    a('v_mov_b32', t1, 0)
    a('s_add_u32', st1, sFL, 256*128)
    a('buffer_store_dword', t1, t0, RWS, sFL, mods='offen sc1')
    a('buffer_store_dword', t1, t0, RWS, st1, mods='offen sc1')
    a.wait(vm=0)
    a('s_barrier')
    a('v_mov_b32', t1, 1)
    a('s_mov_b64', 'exec', 1)
    a('buffer_store_dword', t1, 'off', RDBG, 0, mods='sc1')
    a('s_mov_b64', 'exec', -1)
    a.label('H_idle2')
    go_load(a)
    sync(a, 'Hi', go=True)
    a.label('H_pre')
    a('s_barrier')
    stamp(a, 7)
    bc_of_wg(a)
    w1_setup(a)
    wflag_setup(a)
    a('s_mov_b64', 'exec', 15)
    spin_until(a, 'HWF', vfl, sFL, RWS, vgo, vtg)
    a('s_mov_b64', 'exec', -1)
    cs_loads(a, LD)
    for p in range(32):
        for h in range(2): w1_load(a, p, h, LD)
    stamp(a, 8)
    gemm_setup(a)

def code_prefetch2(a):
    pass

def kernel(a):
    stamp(a, 0)
    if STAMP:
        for i in range(1, 15): a('s_mov_b32', S(70 + 2*i), S(70))
    load_args(a)
    a('s_cmp_ge_u32', S(2), 256)
    a('s_cbranch_scc1', 'K_end')
    wave_id(a, sw, t0)
    a('v_and_b32', lane, 63, V(0))
    a('v_lshlrev_b32', l16, 4, lane)
    a('v_and_b32', vq16, 48, lane)
    a('s_mov_b32', sFL, hex(FL))
    srd(a, RWS, P_WS, WS_SIZE)
    srd(a, RDBG, P_DBG, 256)
    a('s_cmp_ge_u32', S(2), 160)
    a('s_cbranch_scc1', 'K_helper')
    conv_wg(a)
    a('s_branch', 'K_gemm')
    a.label('K_helper')
    helper_wg(a)
    a.label('K_gemm')
    a('s_lshl_b32', st0, sB, 11)
    a('s_add_u32', st0, st0, 128*F_C2)
    a('v_lshl_add_u32', t2, lane, 7, st0)
    a('s_lshr_b32', st0, sC, 1)
    a('s_mul_i32', st0, st0, 5)
    a('s_lshr_b32', st1, st0, 2)
    a('s_add_u32', st0, st0, 4)
    a('s_lshr_b32', st0, st0, 2)
    a('s_sub_u32', st0, st0, st1)
    a('v_subrev_u32', t0, 10, lane)
    a('v_and_b32', t1, 1, t0)
    a('v_mul_u32_u24', t1, st0, t1)
    a('v_bfe_u32', t0, t0, 1, 2)
    a('v_mul_u32_u24', t0, 10, t0)
    a('v_add3_u32', t0, t0, t1, st1)
    a('v_add_u32', t0, F_WD, t0)
    a('v_lshlrev_b32', t0, 7, t0)
    a('v_cmp_gt_u32', 'vcc', 10, lane)
    a('v_cndmask_b32', t2, t0, t2, 'vcc')
    a('v_cndmask_b32', SX[7], 1, 16, 'vcc')
    a('s_cmp_lg_u32', sw, 0)
    a('s_cbranch_scc1', 'C2_skip')
    a('s_mov_b64', 'exec', '0xffff')
    spin_until(a, 'C2', t2, sFL, RWS, t1, SX[7])
    a('s_mov_b64', 'exec', -1)
    a.label('C2_skip')
    a.wait(lg=0)
    a('s_barrier')
    stamp(a, 9)
    toks = ht_dma(a, LD)
    a('s_cmp_eq_u32', sw, 3)
    a('s_cbranch_scc1', 'G1_w3')
    gemm1_wave(a, False, toks, LD)
    a('s_branch', 'G1_join')
    a.label('G1_w3')
    gemm1_wave(a, True, toks, LD)
    a.label('G1_join')
    stamp(a, 12)
    sync(a, 'C3', pub=(1, 'off', sC3), poll=(1, 'off', sC3, 16))
    stamp(a, 13)
    gemm2(a, LD)
    if STAMP: a.wait(vm=0)
    stamp_flush(a, 0, 15, sw, RWS)
    a.label('K_end')
    a('s_endpgm')
    a.items.append('CODE_END:')

if __name__ == '__main__':
    single = int(os.environ.get('SINGLE', '1'))
    txt = build([(NAME + '_kernel', kernel, 256, 163840, 512, 256)])
    if single:
        txt = txt.replace(f'@launch kernel={NAME}_kernel grid', '@launch grid')
    open(sys.argv[1], 'w').write(txt)
```

```python
import sys
from asmlib import *

NAME = "sequential_preLN__ssm_conv_h3__glu_gated_reglu__prompt"
S_, D_, F_ = 2048, 640, 1728
KVT, XT, HT = 0x0, 0x280000, 0x500000
ST, CS = 0x780000, 0x790000
WP1, WP2, HH = 0x800000, 0xD00000, 0x1000000
XX = 0x1900000
WS_SIZE = 0x1E00000
STAMPS = 0x1840000
import os
STAMP = int(os.environ.get('STAMP', '0'))
OOB = 0x7f000000

P_Q, P_K, P_V, P_SK, P_SSMK, P_SSMD, P_BX, P_WG = [S(16 + 2*i, 2) for i in range(8)]
P_WU, P_WD, P_OUT, P_DBG = [S(32 + 2*i, 2) for i in range(4)]
P_WS = S(40, 2)

def load_args(a):
    a('s_load_dwordx16', S(16, 16), S(0, 2), 0)
    a('s_load_dwordx8', S(32, 8), S(0, 2), 64)
    a('s_load_dwordx2', P_WS, S(0, 2), 96)

def srd(a, dst, ptr, size):
    a('s_mov_b32', dst[0], ptr[0])
    a('s_and_b32', dst[1], ptr[1], '0xffff')
    a('s_mov_b32', dst[2], hex(size))
    a('s_mov_b32', dst[3], '0x20000')

def wave_id(a, sdst, vtmp):
    a('v_lshrrev_b32', vtmp, 6, V(0))
    a('v_readfirstlane_b32', sdst, vtmp)

MFMA = 'v_mfma_f32_16x16x32_bf16'

def stamp(a, i):
    if STAMP:
        a('s_memrealtime', S(70 + 2*i, 2))
        a.wait(lg=0)

def stamp_flush(a, kidx, n, sw, RWS):
    if not STAMP: return
    stamp(a, n - 1)
    a('s_mov_b64', 'exec', 1)
    if os.environ.get('DBGST'):
        a('s_cmp_lg_u32', S(2), int(os.environ['DBGST']))
        a('s_cbranch_scc1', 'DBG_skip')
        a('s_cmp_lg_u32', sw, 0)
        a('s_cbranch_scc1', 'DBG_skip')
        a('s_load_dwordx2', S(68, 2), S(0, 2), 88)
        srd(a, S(64, 4), S(68, 2), 256)
        for i in range(1, n):
            a('s_sub_u32', S(68), S(70 + 2*i), S(70))
            a('v_mov_b32', V(2), S(68))
            a('buffer_store_dword', V(2), 'off', S(64, 4), 0, mods=f'offset:{4*i}')
        a.label('DBG_skip')
        return
    a('s_lshl_b32', S(68), S(2), 2)
    a('s_add_u32', S(68), S(68), sw)
    a('s_lshl_b32', S(68), S(68), 6)
    a('s_add_u32', S(68), S(68), hex(STAMPS + kidx*0x10000))
    a('v_mov_b32', V(1), 0)
    for i in range(n):
        a('v_mov_b32', V(2), S(70 + 2*i))
        a('buffer_store_dword', V(2), V(1), RWS, S(68), mods=f'offen offset:{4*i}')

def kernel_a(a):
    va = Alloc('v', 1, 255)
    stamp(a, 0)
    load_args(a)
    sw, st0, st1, st2 = S(3), S(4), S(5), S(6)
    selLO, selHI = S(8), S(9)
    RQ, RK, RV, RSK, RWS = S(44, 4), S(48, 4), S(52, 4), S(56, 4), S(60, 4)
    lane, t0, t1, t2 = va.get(), va.get(), va.get(), va.get()
    a('s_cmp_ge_u32', S(2), 224)
    a('s_cbranch_scc1', 'A_end')
    wave_id(a, sw, t0)
    a('v_and_b32', lane, 63, V(0))
    srd(a, RQ, P_Q, S_*D_*2)
    stamp(a, 6)
    srd(a, RWS, P_WS, WS_SIZE)
    a('s_cmp_ge_u32', S(2), 160)
    a('s_cbranch_scc1', 'A_stats')
    srd(a, RK, P_K, S_*D_*2)
    srd(a, RV, P_V, S_*D_*2)
    srd(a, RSK, P_SK, D_*8)
    a('s_lshr_b32', st0, S(2), 4)
    a('s_and_b32', st1, S(2), 15)
    a('s_lshl_b32', st1, st1, 7)
    a('s_lshl_b32', st2, sw, 5)
    a('s_add_u32', st1, st1, st2)
    g, c, voff, vneg, vsk = va.get(), va.get(), va.get(), va.get(), va.get()
    a('v_and_b32', c, 7, lane)
    a('v_bfe_u32', t0, lane, 3, 1)
    a('v_bfe_u32', t1, lane, 4, 1)
    a('v_lshl_or_b32', t2, t0, 1, t1)
    a('v_bfe_u32', t1, lane, 5, 1)
    a('v_lshl_or_b32', g, t1, 2, t2)
    a('v_lshl_add_u32', t2, g, 2, st1)
    a('v_mul_u32_u24', voff, 1280, t2)
    a('s_lshl_b32', st2, st0, 7)
    a('v_lshl_add_u32', t2, c, 4, st2)
    a('v_add_u32', voff, voff, t2)
    a('v_subrev_u32', vneg, 3840, voff)
    a('v_lshlrev_b32', vsk, 2, t2)
    K = [va.get(4) for _ in range(7)]
    Vv = [va.get(4) for _ in range(4)]
    X = [va.get(4) for _ in range(4)]
    SK = va.get(16)
    for i in range(4):
        a('buffer_load_dwordx4', SK.sub(4*i, 4), vsk, RSK, 0, mods=f'offen offset:{16*i}')
    for i in range(7):
        if i < 3: a('buffer_load_dwordx4', K[i], vneg, RK, 0, mods=f'offen offset:{1280*i}')
        else: a('buffer_load_dwordx4', K[i], voff, RK, 0, mods=f'offen offset:{1280*(i-3)}')
    for i in range(4):
        a('buffer_load_dwordx4', Vv[i], voff, RV, 0, mods=f'offen offset:{1280*i}')
    for i in range(4):
        a('buffer_load_dwordx4', X[i], voff, RQ, 0, mods=f'offen offset:{1280*i}')
    a('s_mov_b32', selLO, '0x05040100')
    a('s_mov_b32', selHI, '0x07060302')
    vox, vok = va.get(), va.get()
    a('v_bfe_u32', t1, lane, 4, 1)
    a('v_lshlrev_b32', t1, 2, t1)
    a('v_lshl_add_u32', t1, c, 3, t1)
    a('s_lshl_b32', st2, st0, 6)
    a('v_add_u32', t1, st2, t1)
    a('v_lshlrev_b32', t1, 12, t1)
    a('v_bfe_u32', t2, lane, 5, 1)
    a('v_lshl_or_b32', t2, t2, 1, t0)
    a('v_lshl_add_u32', t2, t2, 3, st1)
    a('v_lshl_add_u32', vox, t2, 1, t1)
    a('v_sub_u32', t2, 2040, t2)
    a('v_lshl_add_u32', vok, t2, 1, t1)
    QK = [va.get(4) for _ in range(4)]
    QX = [va.get(4) for _ in range(4)]
    P = [[va.get() for _ in range(7)] for _ in range(8)]
    KS = [[va.get() for _ in range(4)] for _ in range(8)]
    stamp(a, 1)
    if STAMP: a.wait(vm=8)
    stamp(a, 2)
    for ch in range(8):
        d, hi = ch >> 1, ch & 1
        for t in range(1, 7):
            a('v_perm_b32', P[ch][t], K[t-1][d], K[t][d], selHI if hi else selLO)
    for ch in range(8):
        for e in range(4):
            a('v_dot2_f32_bf16', KS[ch][e], P[ch][e+3], SK[2*ch], 0)
        for e in range(4):
            a('v_dot2_f32_bf16', KS[ch][e], P[ch][e+1], SK[2*ch+1], KS[ch][e])
    for ch in range(8):
        d, hi = ch >> 1, ch & 1
        for e in range(4):
            if hi: a('v_and_b32', P[ch][e], '0xffff0000', Vv[e][d])
            else: a('v_lshlrev_b32', P[ch][e], 16, Vv[e][d])
        for e in range(4):
            a('v_mul_f32', KS[ch][e], KS[ch][e], P[ch][e])
        q = QK[ch & 3]
        o = 2 if ch < 4 else 0
        a('v_cvt_pk_bf16_f32', q[o], KS[ch][3], KS[ch][2])
        a('v_cvt_pk_bf16_f32', q[o+1], KS[ch][1], KS[ch][0])
    for cp in range(4):
        a('v_permlane16_swap_b32', QK[cp][2], QK[cp][0])
        a('v_permlane16_swap_b32', QK[cp][3], QK[cp][1])
        a('s_mov_b32', st2, hex(KVT + 4096*cp))
        a('buffer_store_dwordx4', QK[cp], vok, RWS, st2, mods='offen')
    stamp(a, 3)
    for ch in range(8):
        d, hi = ch >> 1, ch & 1
        q = QX[ch & 3]
        o = 0 if ch < 4 else 2
        sel = selHI if hi else selLO
        a('v_perm_b32', q[o], X[1][d], X[0][d], sel)
        a('v_perm_b32', q[o+1], X[3][d], X[2][d], sel)
    for cp in range(4):
        a('v_permlane16_swap_b32', QX[cp][0], QX[cp][2])
        a('v_permlane16_swap_b32', QX[cp][1], QX[cp][3])
        a('s_mov_b32', st2, hex(XT + 4096*cp))
        a('buffer_store_dwordx4', QX[cp], vox, RWS, st2, mods='offen')
    stamp(a, 4)
    if STAMP: a.wait(vm=0)
    stamp(a, 5)
    stamp_flush(a, 0, 8, sw, RWS)
    a('s_endpgm')

    a.label('A_stats')
    va = Alloc('v', 8, 255)
    row, voff = va.get(), va.get()
    a('s_sub_u32', st0, S(2), 160)
    a('s_lshl_b32', st0, st0, 5)
    a('s_lshl_b32', st1, sw, 3)
    a('s_add_u32', st0, st0, st1)
    a('v_lshrrev_b32', t0, 4, lane)
    a('v_add_u32', row, st0, t0)
    a('v_mul_u32_u24', voff, 1280, row)
    a('v_and_b32', t1, 15, lane)
    a('v_lshl_add_u32', voff, t1, 4, voff)
    a('s_mov_b32', st1, 5120)
    XR = [[va.get(4) for _ in range(5)] for _ in range(2)]
    for p in range(2):
        for i in range(5):
            a('buffer_load_dwordx4', XR[p][i], voff, RQ, st1 if p else 0, mods=f'offen offset:{256*i}')
    ones = S(10)
    a('s_mov_b32', ones, '0x3f803f80')
    s1 = [va.get() for _ in range(2)]
    s2 = [va.get() for _ in range(2)]
    for p in range(2):
        for i in range(5):
            for d in range(4):
                first = (i == 0 and d == 0)
                a('v_dot2_f32_bf16', s1[p], XR[p][i][d], ones, 0 if first else s1[p])
                a('v_dot2_f32_bf16', s2[p], XR[p][i][d], XR[p][i][d], 0 if first else s2[p])
    for sh in (8, 4, 2, 1):
        for r in s1 + s2:
            a('v_add_f32', r, r, r, mods=f'row_ror:{sh} row_mask:0xf bank_mask:0xf')
    ra = [va.get() for _ in range(2)]
    rb = [va.get() for _ in range(2)]
    for p in range(2):
        ln_stats(a, s1[p], s2[p], t2)
        a('v_rcp_f32', ra[p], s2[p])
        a('v_mul_f32', rb[p], s1[p].neg(), ra[p])
    a('v_lshlrev_b32', row, 2, row)
    a('v_cmp_eq_u32', 'vcc', 0, t1)
    a('s_and_saveexec_b64', S(12, 2), 'vcc')
    a('s_mov_b32', st1, hex(ST))
    a('s_mov_b32', st2, hex(ST + 8192))
    for p in range(2):
        a('buffer_store_dword', ra[p], row, RWS, st1, mods=f'offen offset:{16*p}')
        a('buffer_store_dword', rb[p], row, RWS, st2, mods=f'offen offset:{16*p}')
    for i in range(1, 5): stamp(a, i)
    if STAMP: a.wait(vm=0)
    stamp(a, 5)
    stamp_flush(a, 0, 8, sw, RWS)
    a.label('A_end')
    a('s_endpgm')

def rbf(a, r):
    a('v_cvt_pk_bf16_f32', r, r, r)
    a('v_and_b32', r, '0xffff0000', r)

def ln_stats(a, s1, s2, t):
    a('v_mul_f32', s1, '0x3acccccd', s1)
    a('v_mul_f32', t, s1, s1)
    a('v_mul_f32', s2, '0x3acccccd', s2)
    a('v_sub_f32', s2, s2, t)
    a('v_max_f32', s2, 0, s2)
    rbf(a, s1)
    rbf(a, s2)
    a('v_add_f32', s2, '0x3727c5ac', s2)
    rbf(a, s2)
    a('v_sqrt_f32', s2, s2)
    rbf(a, s2)

CONV_LDS = 13312
def kernel_b(a):
    va = Alloc('v', 1, 255)
    stamp(a, 0)
    load_args(a)
    sw, st0, st1, st2, sch, sbase = S(3), S(4), S(5), S(6), S(7), S(8)
    RSS, RWS = S(44, 4), S(60, 4)
    lane, t0, t1, t2 = va.get(), va.get(), va.get(), va.get()
    a('s_cmp_ge_u32', S(2), 244)
    a('s_cbranch_scc1', 'B_end')
    wave_id(a, sw, t0)
    a('v_and_b32', lane, 63, V(0))
    srd(a, RWS, P_WS, WS_SIZE)
    stamp(a, 6)
    a('s_cmp_ge_u32', S(2), 160)
    a('s_cbranch_scc1', 'B_pack')
    srd(a, RSS, P_SSMK, D_*S_*2)
    a('s_lshl_b32', sch, S(2), 2)
    a('s_add_u32', sch, sch, sw)
    a('s_lshl_b32', st0, sch, 12)
    a('s_mul_i32', sbase, sw, CONV_LDS)
    l16, l16a, l16b = va.get(), va.get(), va.get()
    a('v_lshlrev_b32', l16, 4, lane)
    a('v_add_u32', l16a, 2, l16)
    a('v_add_u32', l16b, 4, l16)
    a('s_add_u32', 'm0', sbase, 32)
    for i in range(4):
        a('buffer_load_dwordx4', l16a, RSS, st0, mods=f'offen offset:{1024*i} lds')
    a('s_add_u32', 'm0', sbase, 4160 + 32)
    for i in range(4):
        a('buffer_load_dwordx4', l16b, RSS, st0, mods=f'offen offset:{1024*i} lds')
    a('s_add_u32', 'm0', sbase, 8320)
    a('s_add_u32', st1, st0, hex(KVT))
    for i in range(4):
        tok_dma = a('buffer_load_dwordx4', l16, RWS, st1, mods=f'offen offset:{1024*i} lds')
    sk01, sD = S(10), S(11)
    a('s_load_dword', sk01, P_SSMK, st0)
    a('s_lshl_b32', st1, sch, 1)
    a('s_and_b32', st1, st1, '0xfffc')
    a('s_load_dword', sD, P_SSMD, st1)
    li, lh, vx, vst = va.get(), va.get(), va.get(), va.get()
    a('v_and_b32', li, 15, lane)
    a('v_lshrrev_b32', lh, 4, lane)
    a('v_lshlrev_b32', t0, 5, li)
    a('v_lshl_add_u32', vx, lh, 3, t0)
    a('v_lshlrev_b32', vst, 1, vx)
    XS = [va.get(2) for _ in range(8)]
    SA = [va.get(4) for _ in range(8)]
    SB = [va.get(4) for _ in range(8)]
    a('s_add_u32', st1, st0, hex(XT))
    for t in range(8):
        a('buffer_load_dwordx2', XS[t], vx, RWS, st1, mods=f'offen offset:{512*t}')
    for half in range(2):
        a('s_mov_b32', st1, hex(ST + 4096*half))
        a('s_mov_b32', st2, hex(ST + 8192 + 4096*half))
        for t in range(4):
            a('buffer_load_dwordx4', SA[4*half+t], vst, RWS, st1, mods=f'offen offset:{1024*t}')
            a('buffer_load_dwordx4', SB[4*half+t], vst, RWS, st2, mods=f'offen offset:{1024*t}')
    if STAMP:
        a('s_memrealtime', S(70 + 2*7, 2))
    a('v_lshlrev_b32', t0, 2, lane)
    a('v_add_u32', t1, 4160 - 32, t0)
    a('v_cmp_gt_u32', 'vcc', 8, lane)
    a('v_cndmask_b32', t1, t1, t0, 'vcc')
    a('v_add_u32', t0, 8320 + 4096, t0)
    a('v_cmp_gt_u32', 'vcc', 16, lane)
    a('v_cndmask_b32', t1, t0, t1, 'vcc')
    a('v_add_u32', t1, sbase, t1)
    a('s_lshl_b32', st1, sk01, 16)
    a('v_mov_b32', t0, st1)
    a('v_cmp_eq_u32', 'vcc', 7, lane)
    a('v_cndmask_b32', t2, 0, t0, 'vcc')
    a('v_mov_b32', t0, sk01)
    a('v_cmp_eq_u32', 'vcc', 15, lane)
    a('v_cndmask_b32', t2, t2, t0, 'vcc')
    a('ds_write_b32', t1, t2)
    z2 = va.get(2)
    a('v_mov_b32', z2[0], 0)
    a('v_mov_b32', z2[1], 0)
    a('v_lshl_add_u32', t0, lane, 3, sbase)
    a('ds_write_b64', t0, z2, mods=f'offset:{8320+4096}')
    AD = va.get(4)
    a('s_bitcmp1_b32', sch, 0)
    a('s_cselect_b32', st1, 16, 0)
    a('s_lshr_b32', sD, sD, st1)
    a('s_and_b32', sD, sD, '0xffff')
    a('v_lshlrev_b32', t0, 3, lh)
    a('v_add_u32', t0, t0, li)
    a('v_sub_u32', t0, 15, t0)
    a('v_and_b32', t1, 1, t0)
    a('v_lshlrev_b32', t1, 4, t1)
    a('v_lshlrev_b32', t1, t1, sD)
    a('v_ashrrev_i32', t0, 1, t0)
    for d in range(4):
        a('v_cmp_eq_u32', 'vcc', d, t0)
        a('v_cndmask_b32', AD[d], 0, t1, 'vcc')
    vA = [va.get() for _ in range(4)]
    vB = va.get()
    a('v_lshl_add_u32', t0, lh, 3, li)
    a('v_lshrrev_b32', t0, 1, t0)
    a('v_lshl_add_u32', t0, t0, 2, sbase)
    a('v_and_b32', t1, 1, li)
    a('v_mul_u32_u24', t1, 4160, t1)
    a('v_add_u32', vA[0], t0, t1)
    for p in range(1, 4):
        a('v_add_u32', vA[p], 1024*p, vA[0])
    a('v_lshlrev_b32', t0, 5, li)
    a('v_sub_u32', t0, 8320 + 480, t0)
    a('v_lshl_add_u32', t0, lh, 4, t0)
    a('v_add_u32', vB, sbase, t0)
    vout = va.get()
    a('v_and_b32', t0, 1, lh)
    a('v_lshlrev_b32', t0, 9, t0)
    a('v_lshl_add_u32', t0, li, 5, t0)
    a('v_lshrrev_b32', t1, 1, lh)
    a('v_lshl_add_u32', vout, t1, 4, t0)
    FA = [[A(64*s + 4*i, 4) for i in range(8)] for s in range(2)]
    FB = [[A(64*s + 32 + 4*i, 4) for i in range(8)] for s in range(2)]
    ACC = [va.get(4) for _ in range(8)]
    def reads(rho):
        s = rho & 1
        L = []
        for i in range(8):
            L.append(('ds_read_b128', FB[s][i], vB, f'offset:{3584 - 512*i + 64*rho}'))
            o = 128*(i & 1) + 16*rho
            L.append(('ds_read2_b32', FA[s][i][0:2], vA[i >> 1], f'offset0:{o} offset1:{o+1}'))
            L.append(('ds_read2_b32', FA[s][i][2:4], vA[i >> 1], f'offset0:{o+2} offset1:{o+3}'))
        return L
    stamp(a, 1)
    a.wait_vm_tok(tok_dma)
    a.wait(lg=0)
    stamp(a, 2)
    for r in reads(0):
        a(r[0], r[1], r[2], mods=r[3])
    for rho in range(8):
        s = rho & 1
        nxt = reads(rho + 1) if rho < 7 else []
        mf = []
        for n in range(8):
            if rho == 0: mf.append((ACC[n], AD, FB[s][n], 0))
            for aa in range(n + 1):
                dl = n - aa
                if max(aa, dl) == n or True:
                    pass
        order = sorted([(aa, dl) for aa in range(8) for dl in range(8) if aa + dl <= 7], key=lambda p: (max(p), p[0] + p[1]))
        mf = []
        inited = set()
        for (aa, dl) in order:
            if rho == 0 and dl not in inited and aa == 0:
                pass
        if rho == 0:
            seq = []
            done_init = set()
            for (aa, dl) in order:
                t = aa + dl
                if t not in done_init:
                    seq.append((ACC[t], FA[s][aa], FB[s][dl], 0))
                    done_init.add(t)
                else:
                    seq.append((ACC[t], FA[s][aa], FB[s][dl], ACC[t]))
            for t in range(8):
                seq.append((ACC[t], AD, FB[s][t], ACC[t]))
        else:
            seq = [(ACC[aa+dl], FA[s][aa], FB[s][dl], ACC[aa+dl]) for (aa, dl) in order]
        k = 0
        for n, m in enumerate(seq):
            a(MFMA, *m)
            if n >= 4 and k < len(nxt):
                r = nxt[k]; k += 1
                a(r[0], r[1], r[2], mods=r[3])
        assert k == len(nxt)
    stamp(a, 3)
    XF = va.get(4)
    XN = va.get(4)
    O = [va.get(4) for _ in range(2)]
    a('s_add_u32', st1, st0, hex(HT))
    for p in range(4):
        q = O[p & 1]
        for e in range(2):
            t = 2*p + e
            a('v_lshlrev_b32', XF[0], 16, XS[t][0])
            a('v_and_b32', XF[1], '0xffff0000', XS[t][0])
            a('v_lshlrev_b32', XF[2], 16, XS[t][1])
            a('v_and_b32', XF[3], '0xffff0000', XS[t][1])
            a('v_pk_fma_f32', XN[0:2], XF[0:2], SA[t][0:2], SB[t][0:2])
            a('v_pk_fma_f32', XN[2:4], XF[2:4], SA[t][2:4], SB[t][2:4])
            a('v_pk_fma_f32', XN[0:2], XN[0:2], ACC[t][0:2], XF[0:2])
            a('v_pk_fma_f32', XN[2:4], XN[2:4], ACC[t][2:4], XF[2:4])
            a('v_cvt_pk_bf16_f32', q[2*e], XN[0], XN[1])
            a('v_cvt_pk_bf16_f32', q[2*e+1], XN[2], XN[3])
        a('v_permlane16_swap_b32', q[0], q[2])
        a('v_permlane16_swap_b32', q[1], q[3])
        a('buffer_store_dwordx4', q, vout, RWS, st1, mods=f'offen offset:{1024*p}')
    stamp(a, 4)
    if STAMP: a.wait(vm=0)
    stamp(a, 5)
    stamp_flush(a, 1, 9, sw, RWS)
    a('s_endpgm')

    a.label('B_pack')
    va = Alloc('v', 8, 255)
    RW = S(44, 4)
    task, stride, ssrc, sdst, sdstep, snk, scs = S(7), S(8), S(10), S(11), S(12), S(13), S(14)
    a('s_sub_u32', task, S(2), 160)
    a('s_mov_b32', RW[3], '0x20000')
    a('s_cmp_ge_u32', task, 54)
    a('s_cbranch_scc1', 'B_pack_d')
    a('s_cmp_ge_u32', task, 27)
    a('s_cselect_b32', RW[0], P_WU[0], P_WG[0])
    a('s_cselect_b32', RW[1], P_WU[1], P_WG[1])
    a('s_cselect_b32', st0, 27, 0)
    a('s_cselect_b32', st1, 1024, 0)
    a('s_cselect_b32', scs, F_*4, 0)
    a('s_and_b32', RW[1], RW[1], '0xffff')
    a('s_mov_b32', RW[2], hex(D_*F_*2))
    a('s_sub_u32', st0, task, st0)
    a('s_mov_b32', stride, F_*2)
    a('s_lshl_b32', ssrc, st0, 7)
    a('s_lshl_b32', st0, st0, 2)
    a('s_add_u32', st0, st0, sw)
    a('s_mul_i32', sdst, st0, 40960)
    a('s_add_u32', sdst, sdst, st1)
    a('s_add_u32', sdst, sdst, hex(WP1))
    a('s_mov_b32', sdstep, 2048)
    a('s_mov_b32', snk, 20)
    a('s_lshl_b32', st0, st0, 6)
    a('s_add_u32', scs, scs, st0)
    a('s_add_u32', scs, scs, hex(CS))
    a('s_branch', 'B_pack_go')
    a.label('B_pack_d')
    a('s_mov_b32', RW[0], P_WD[0])
    a('s_and_b32', RW[1], P_WD[1], '0xffff')
    a('s_mov_b32', RW[2], hex(D_*F_*2))
    a('s_sub_u32', st0, task, 54)
    a('s_mul_i32', st1, st0, 26)
    a('s_lshr_b32', st1, st1, 8)
    a('s_mul_i32', st2, st1, 10)
    a('s_sub_u32', st0, st0, st2)
    a('s_mov_b32', stride, D_*2)
    a('s_mul_i32', ssrc, st1, 576*1280)
    a('s_lshl_b32', st2, st0, 7)
    a('s_add_u32', ssrc, ssrc, st2)
    a('s_lshl_b32', st0, st0, 2)
    a('s_add_u32', st0, st0, sw)
    a('s_mul_i32', sdst, st0, 55296)
    a('s_mul_i32', st1, st1, 18*1024)
    a('s_add_u32', sdst, sdst, st1)
    a('s_add_u32', sdst, sdst, hex(WP2))
    a('s_mov_b32', sdstep, 1024)
    a('s_mov_b32', snk, 18)
    a('s_mov_b32', scs, hex(OOB))
    a.label('B_pack_go')
    stamp(a, 7)
    vsrc = [va.get(), va.get()]
    a('v_lshrrev_b32', t0, 3, lane)
    a('v_mul_lo_u32', t0, t0, stride)
    a('v_and_b32', t1, 1, lane)
    a('v_lshl_add_u32', t0, t1, 4, t0)
    a('v_bfe_u32', t1, lane, 1, 2)
    a('v_bfe_u32', t2, lane, 4, 1)
    a('v_xor_b32', t1, t1, t2)
    a('v_lshl_add_u32', vsrc[0], t1, 5, t0)
    a('v_xor_b32', t1, 2, t1)
    a('v_lshl_add_u32', vsrc[1], t1, 5, t0)
    s8 = S(15)
    a('s_lshl_b32', s8, stride, 3)
    a('s_lshl_b32', st2, stride, 5)
    a('s_mul_i32', st0, sw, st2)
    a('s_add_u32', ssrc, ssrc, st0)
    a('s_lshl_b32', st1, sw, 12)
    a('s_mul_i32', st2, s8, 13)
    for i in range(5):
        if i == 4:
            a('s_add_u32', st0, sw, 16)
            a('s_cmp_lt_u32', st0, snk)
            a('s_cselect_b32', ssrc, ssrc, hex(OOB))
        for p in range(4):
            a('s_add_u32', 'm0', st1, 16384*i + 1024*p)
            a('buffer_load_dwordx4', vsrc[p & 1], RW, ssrc, mods='offen lds')
            a('s_add_u32', ssrc, ssrc, s8 if p < 3 else st2)
    vrd = [va.get(), va.get()]
    l16 = va.get()
    a('v_lshlrev_b32', l16, 4, lane)
    a('v_lshrrev_b32', t0, 4, lane)
    a('v_bfe_u32', t1, lane, 2, 2)
    a('v_lshl_add_u32', t2, t0, 3, t1)
    a('v_lshlrev_b32', t2, 7, t2)
    a('v_and_b32', t0, 1, t0)
    a('v_lshrrev_b32', t1, 1, t1)
    a('v_lshl_or_b32', t0, t0, 1, t1)
    a('v_xor_b32', t0, sw, t0)
    a('v_lshl_add_u32', t2, t0, 5, t2)
    a('v_and_b32', t0, 3, lane)
    a('v_lshl_add_u32', vrd[0], t0, 3, t2)
    a('v_add_u32', vrd[1], 65536, vrd[0])
    ONES = va.get(4)
    for d in range(4):
        a('v_mov_b32', ONES[d], '0x3f803f80')
    FR = [va.get(4) for _ in range(20)]
    CSA = va.get(4)
    stamp(a, 1)
    a.wait(vm=0)
    stamp(a, 2)
    a('s_barrier')
    stamp(a, 3)
    def rd(ks):
        for hf in range(2):
            a('ds_read_b64_tr_b16', FR[ks][2*hf:2*hf+2], vrd[ks >> 4], mods=f'offset:{(ks & 15)*4096 + 512*hf}')
    for ks in range(6): rd(ks)
    for ks in range(20):
        if ks == 18:
            a('s_cmp_lt_u32', snk, 20)
            a('s_cbranch_scc1', 'B_pend')
        if ks + 6 < 20: rd(ks + 6)
        a('buffer_store_dwordx4', FR[ks], l16, RWS, sdst, mods='offen')
        a('s_add_u32', sdst, sdst, sdstep)
        a(MFMA, CSA, FR[ks], ONES, 0 if ks == 0 else CSA)
    a('v_and_b32', t0, 15, lane)
    a('v_cmp_eq_u32', 'vcc', 0, t0)
    a('s_and_saveexec_b64', S(64, 2), 'vcc')
    a('buffer_store_dwordx4', CSA, lane, RWS, scs, mods='offen')
    a.label('B_pend')
    stamp(a, 4)
    if STAMP: a.wait(vm=0)
    stamp(a, 5)
    stamp_flush(a, 1, 9, sw, RWS)
    a.label('B_end')
    a('s_endpgm')

KERNELS = [
    ('ka_kernel', kernel_a, 224, 0, 256, 256),
    ('kb_kernel', kernel_b, 244, 81920, 512, 256),
]

def build(kernels):
    hdr = ["; generated by gen/gen.py"]
    for (n, f, g, lds, nv, acc) in kernels:
        hdr.append(f"; @launch kernel={n} grid=({g},1,1) block=(256,1,1) lds={lds}")
    out = '\n'.join(hdr) + '\n.amdgcn_target "amdgcn-amd-amdhsa--gfx950"\n.text\n'
    for (n, f, g, lds, nv, acc) in kernels:
        a = Asm()
        f(a)
        out += f".globl {n}\n.p2align 8\n.type {n},@function\n{n}:\n" + a.finalize()
    out += '.section .rodata,"a"\n'
    for (n, f, g, lds, nv, acc) in kernels:
        out += f""".p2align 6
.amdhsa_kernel {n}
  .amdhsa_next_free_vgpr {nv}
  .amdhsa_next_free_sgpr 102
  .amdhsa_accum_offset {acc}
  .amdhsa_group_segment_fixed_size 0
  .amdhsa_kernarg_size 104
  .amdhsa_user_sgpr_count 2
  .amdhsa_user_sgpr_kernarg_segment_ptr 1
  .amdhsa_system_sgpr_workgroup_id_x 1
.end_amdhsa_kernel
"""
    return out

if __name__ == '__main__':
    path = sys.argv[1] if len(sys.argv) > 1 else f'cdna_kernels/{NAME}.s'
    open(path, 'w').write(build(KERNELS))
```

```python
from gen import *

E = lambda k, d: int(os.environ.get(k, str(d)))
LD = os.environ.get('LDM', '')
LD1 = os.environ.get('LD1', ' sc1')
NT_ = os.environ.get('NTI', ' nt')
KS = 8
FL = 0x1800000
FLA, FLH, FLP, FLC, FL3, EPOCH = FL, FL + 0x8000, FL + 0x10000, FL + 0x14000, FL + 0x18000, FL + 0x20000
FLD, FLG = FL + 0x5000, 0x1900000
HSTR, PSTR = 40*128, 24*128
SQ, AB = ST, 0x7A0000
SPIN = 20000
WROW = F_*2
TS = 224*256
KSB = 224*1024

sw = S(3)
st0, st1, st2 = S(4), S(5), S(6)
ROUT, RWS = S(56, 4), S(60, 4)
sB, sC, sUb, sHT, sLds, sStat, sOut, sC3 = [S(16 + i) for i in range(8)]
sHH = [S(24 + i) for i in range(4)]
sRot, sSQl, sSQs, sU3, sCS0, sCS3 = [S(28 + i) for i in range(6)]
sA = [S(8), S(9)]
sEarly, sCnt, sW1, sEp, sMe, sTag, sTag2 = S(10), S(11), S(42), S(43), S(38), S(100), S(100, 2)
sWn = [S(44 + i) for i in range(5)]

lane, t0, t1, t2 = V(1), V(2), V(3), V(4)
l16, vdma, vh01, vh23, vh2x, vst, vres, vq16 = [V(5 + i) for i in range(8)]
vfl, vfv, vtg = V(249), V(254), V(255)
def W1(ks, n):
    if 4 <= ks < 8: return V(144 + 16*(ks - 4) + 4*n, 4)
    return A(16*(ks if ks < 4 else ks - 4) + 4*n, 4)
vW0, vW3 = V(6), V(7)

def spin(a, name, load, bad, first=True):
    a.wait(lg=0)
    a('s_mov_b32', sCnt, SPIN)
    if first: load()
    a.spin_head(name + '_spin')
    bad()
    a('s_cbranch_vccz', name + '_done')
    load()
    a('s_sub_u32', sCnt, sCnt, 1)
    a('s_cbranch_scc0', name + '_spin')
    a.wait(vm=0)
    a.label(name + '_done')

class Flags:
    def __init__(self, a, name, vval, vaddr, soff, off=0, tmp=None):
        self.a, self.name, self.vval, self.vaddr, self.soff, self.off, self.tmp = a, name, vval, vaddr, soff, off, tmp
    def load(self):
        mn = {1: 'buffer_load_dword', 2: 'buffer_load_dwordx2', 4: 'buffer_load_dwordx4'}[self.vval.n]
        self.tok = self.a(mn, self.vval, self.vaddr, RWS, self.soff, mods=f'offen offset:{self.off} sc1')
    def bad(self):
        a, v = self.a, self.vval
        if v.n == 1:
            a('v_cmp_ne_u32', 'vcc', sTag, v)
            return
        if v.n == 4: a('v_cmp_ne_u64', self.tmp, sTag2, v[2:4])
        a('v_cmp_ne_u64', 'vcc', sTag2, v[0:2])
        if v.n == 4: a('s_or_b64', 'vcc', 'vcc', self.tmp)
    def check(self):
        a = self.a
        a.wait_vm_tok(self.tok)
        self.bad()
        a('s_cbranch_vccz', self.name + '_ok')
        spin(a, self.name, self.load, self.bad)
        a.label(self.name + '_ok')
    def wait(self):
        spin(self.a, self.name, self.load, self.bad)

def publish(a, soff, off):
    return a('buffer_store_dword', vtg, 'off', RWS, soff, mods=f'offset:{off} sc1')

def publish_rep(a, name, base, stride, idx):
    a('s_cmp_lg_u32', sw, 0)
    a('s_cbranch_scc1', name)
    a('s_lshr_b32', st0, idx, 2)
    a('s_lshl_b32', st0, st0, 7)
    a('s_and_b32', st1, idx, 3)
    a('s_lshl_b32', st1, st1, 2)
    a('s_add_u32', st0, st0, st1)
    a('s_add_u32', st0, st0, hex(base))
    a('v_mul_u32_u24', t0, stride, lane)
    a('s_mov_b64', 'exec', 15)
    a('buffer_store_dword', vtg, t0, RWS, st0, mods='offen sc1')
    a('s_mov_b64', 'exec', -1)
    a.label(name)

def rep_base(a, dst, base, stride):
    a('s_and_b32', dst, S(2), 3)
    a('s_mul_i32', dst, dst, stride)
    a('s_add_u32', dst, dst, hex(base))

def tag_setup(a):
    a('s_mul_i32', sTag, sEp, '0x9e3779b1')
    a('s_add_u32', sTag, sTag, '0x7f4a7c15')
    a('s_mov_b32', sTag2[1], sTag)
    a('v_mov_b32', vtg, sTag)

def code_prefetch(a, nm):
    a('s_getpc_b64', S(68, 2))
    a.label(nm)
    a('v_lshlrev_b32', t0, 7, V(0))
    for i in range(2):
        if i: a('v_add_u32', t0, 32768, t0)
        a('v_min_u32', t1, f'CODE_END-{nm}-4', t0)
        a('global_load_dword', V(14 + i), t1, S(68, 2))

def role_setup(a):
    a('s_bfe_u32', sB, S(2), (1 << 16) | 2)
    a('s_lshl_b32', sB, sB, 3)
    a('s_lshr_b32', st1, S(2), 5)
    a('s_add_u32', sB, sB, st1)
    a('s_and_b32', sC, S(2), 3)
    a('s_lshl_b32', sC, sC, 2)
    a('s_bfe_u32', st1, S(2), (2 << 16) | 3)
    a('s_add_u32', sC, sC, st1)
    a('s_mul_i32', sUb, sw, 13)
    a('s_add_u32', sUb, sUb, 3)
    a('s_lshr_b32', sUb, sUb, 2)
    a('s_lshr_b32', sU3, sw, 1)
    a('s_mul_i32', sU3, sU3, 10)
    a('s_add_u32', sU3, sU3, 3)
    a('s_mul_i32', sW1, sC, 14336)
    a('s_add_u32', sW1, sW1, hex(WP1))
    a('v_lshl_add_u32', vW0, sUb, 10, l16)
    a('v_lshl_add_u32', vW3, sU3, 10, l16)

def w1_load(a, ks, n):
    if n == 0: a('s_add_u32', st0, sW1, hex(KSB*ks))
    return a('buffer_load_dwordx4', W1(ks, n), vW3 if n == 3 else vW0, RWS, st0, mods=f'offen offset:{1024*(n % 3)}' + LD)

def wd_warm(a, sb, va, vb):
    def f0():
        a('s_lshr_b32', sb, sC, 3)
        a('s_lshl_b32', sb, sb, 2)
        a('s_and_b32', st1, sC, 3)
        a('s_add_u32', sb, sb, st1)
    def f1():
        a('s_mul_i32', sb, sb, 5*TS)
        a('s_and_b32', st1, sB, 7)
        a('s_mul_i32', st1, st1, 56*128)
        a('s_add_u32', sb, sb, st1)
    def f2():
        a('v_min_u32', va, 55, lane)
        a('v_min_u32', vb, 13, lane)
    def f3():
        a('v_lshlrev_b32', va, 7, va)
        a('v_lshlrev_b32', vb, 7, vb)
    def f4():
        a('s_mul_i32', st1, sw, TS)
        a('s_add_u32', st1, st1, sb)
        a('s_add_u32', st1, st1, hex(WP2))
        a('buffer_load_dword', V(253), va, RWS, st1, mods='offen')
    def f5():
        a('s_mul_i32', st1, sw, 14*128)
        a('s_add_u32', st1, st1, sb)
        a('s_add_u32', st1, st1, hex(WP2 + 4*TS))
        a('buffer_load_dword', V(253), vb, RWS, st1, mods='offen')
    return [f0, f1, f2, f3, f4, f5] if E('WARM', 1) else []

def pack_flag_addr(a, vaddr):
    a('v_min_u32', vaddr, 39, lane)
    a('v_lshrrev_b32', t0, 1, vaddr)
    a('v_and_b32', vaddr, 1, vaddr)
    a('v_lshlrev_b32', vaddr, 3, vaddr)
    a('v_lshl_add_u32', vaddr, t0, 7, vaddr)

def conv_wg(a):
    RK, RV, RSK, RSS, RQ = S(44, 4), S(48, 4), S(52, 4), S(56, 4), S(64, 4)
    sch, sbase, sk01, sD = S(7), S(8), S(9), S(10)
    selLO, selHI, srow = S(13), S(14), S(12)
    va = Alloc('v', 16, 207)
    a('s_lshr_b32', st0, S(2), 4)
    a('s_and_b32', srow, S(2), 15)
    a('s_lshl_b32', srow, srow, 7)
    a('s_lshl_b32', st2, sw, 5)
    a('s_add_u32', srow, srow, st2)
    g, c, voff, vneg, vsk, b3, vok = [va.get() for _ in range(7)]
    vox = V(224)
    a('v_and_b32', c, 7, lane)
    a('v_bfe_u32', b3, lane, 3, 1)
    a('v_bfe_u32', t1, lane, 4, 1)
    a('v_lshl_or_b32', t2, b3, 1, t1)
    a('v_bfe_u32', t0, lane, 5, 1)
    a('v_lshl_or_b32', g, t0, 2, t2)
    a('v_lshlrev_b32', t1, 2, t1)
    a('v_lshl_add_u32', t1, c, 3, t1)
    a('s_lshl_b32', st2, st0, 6)
    a('v_add_u32', t1, st2, t1)
    a('v_lshlrev_b32', t1, 12, t1)
    a('v_lshl_or_b32', t2, t0, 1, b3)
    a('v_lshl_add_u32', t2, t2, 3, srow)
    a('v_lshl_add_u32', vox, t2, 1, t1)
    a('v_sub_u32', t2, 2040, t2)
    a('v_lshl_add_u32', vok, t2, 1, t1)
    a('v_lshl_add_u32', t2, g, 2, srow)
    a('v_mul_u32_u24', voff, 1280, t2)
    a('s_lshl_b32', st2, st0, 7)
    a('v_lshl_add_u32', t2, c, 4, st2)
    a('v_add_u32', voff, voff, t2)
    a('v_subrev_u32', vneg, 3840, voff)
    a('v_lshlrev_b32', vsk, 2, t2)
    srd(a, RK, P_K, S_*D_*2)
    K = [va.get(4) for _ in range(7)]
    Vv = [va.get(4) for _ in range(4)]
    X = [V(144 + 4*i, 4) for i in range(4)]
    SK = va.get(16)
    for i in range(7):
        if i < 3: tk = a('buffer_load_dwordx4', K[i], vneg, RK, 0, mods=f'offen offset:{1280*i}' + NT_)
        else: tk = a('buffer_load_dwordx4', K[i], voff, RK, 0, mods=f'offen offset:{1280*(i-3)}' + NT_)
    srd(a, RSK, P_SK, D_*8)
    for i in range(4):
        a('buffer_load_dwordx4', SK.sub(4*i, 4), vsk, RSK, 0, mods=f'offen offset:{16*i}')
    srd(a, RV, P_V, S_*D_*2)
    for i in range(4):
        a('buffer_load_dwordx4', Vv[i], voff, RV, 0, mods=f'offen offset:{1280*i}' + NT_)
    srd(a, RWS, P_WS, WS_SIZE)
    a('s_mov_b32', sEp, hex(EPOCH))
    a('s_load_dword', sEp, P_WS, sEp)
    srd(a, RQ, P_Q, S_*D_*2)
    srd(a, RSS, P_SSMK, D_*S_*2)
    a('s_lshl_b32', sch, S(2), 2)
    a('s_add_u32', sch, sch, sw)
    a('s_lshl_b32', st0, sch, 12)
    a('s_load_dword', sk01, P_SSMK, st0)
    a('s_lshl_b32', st1, sch, 1)
    a('s_and_b32', st1, st1, '0xfffc')
    a('s_load_dword', sD, P_SSMD, st1)
    a('s_mul_i32', sbase, sw, CONV_LDS)
    a('s_mov_b32', selLO, '0x05040100')
    a('s_mov_b32', selHI, '0x07060302')
    role_setup(a)
    a('s_lshl_b32', sMe, S(2), 7)
    a('s_lshl_b32', st0, sw, 2)
    a('s_add_u32', sMe, sMe, st0)
    a('s_add_u32', sMe, sMe, hex(FLA))
    FB = [[V(16 + 64*s + 4*i, 4) for i in range(8)] for s in range(2)]
    FA = [[V(48 + 64*s + 4*i, 4) for i in range(8)] for s in range(2)]
    CA = [V(176 + 4*t, 4) for t in range(8)]
    ABR = [V(144 + 4*t, 4) for t in range(8)]
    XR = [V(228 + 2*t, 2) for t in range(8)]
    AD = V(208, 4)
    vA = [V(212 + i) for i in range(4)]
    vB, vx, vo, li, lh, l16a, l16b, vg1 = [V(216 + i) for i in range(8)]
    vfa, vfp, vu = V(244), V(245), V(246)
    a('v_and_b32', li, 15, lane)
    a('v_lshrrev_b32', lh, 4, lane)
    a('v_lshlrev_b32', vx, 5, li)
    a('v_lshl_add_u32', vx, lh, 3, vx)
    a('v_lshlrev_b32', vfl, 2, lane)
    a('v_lshrrev_b32', t0, 2, lane)
    a('v_lshlrev_b32', t0, 7, t0)
    a('v_and_b32', t1, 3, lane)
    a('v_lshl_add_u32', vfa, t1, 2, t0)
    a('s_and_b32', S(15), S(2), '0xf0')
    a('s_lshl_b32', S(15), S(15), 7)
    a('s_add_u32', S(15), S(15), hex(FLA))
    a('v_add_u32', t1, 4160 - 32, vfl)
    a('v_cmp_gt_u32', 'vcc', 8, lane)
    a('v_cndmask_b32', t1, t1, vfl, 'vcc')
    a('v_add_u32', t0, 8320 + 4096, vfl)
    a('v_cmp_gt_u32', 'vcc', 16, lane)
    a('v_cndmask_b32', t1, t0, t1, 'vcc')
    a('v_add_u32', t1, sbase, t1)
    a('s_lshl_b32', st1, sk01, 16)
    a('v_mov_b32', t0, st1)
    a('v_cmp_eq_u32', 'vcc', 7, lane)
    a('v_cndmask_b32', t2, 0, t0, 'vcc')
    a('ds_write_b32', t1, t2)
    z2 = AD[0:2]
    a('v_mov_b32', z2[0], 0)
    a('v_mov_b32', z2[1], 0)
    a('v_lshl_add_u32', t0, lane, 3, sbase)
    a('ds_write_b64', t0, z2, mods=f'offset:{8320+4096}')
    a('s_bitcmp1_b32', sch, 0)
    a('s_cselect_b32', st1, 16, 0)
    a('s_lshr_b32', sD, sD, st1)
    a('s_and_b32', sD, sD, '0xffff')
    a('v_lshlrev_b32', t0, 3, lh)
    a('v_add_u32', t0, t0, li)
    a('v_sub_u32', t0, 15, t0)
    a('v_and_b32', t1, 1, t0)
    a('v_lshlrev_b32', t1, 4, t1)
    a('v_lshlrev_b32', t1, t1, sD)
    a('v_ashrrev_i32', t0, 1, t0)
    a.wait(lg=0)
    for d in range(4):
        a('v_cmp_eq_u32', 'vcc', d, t0)
        a('v_cndmask_b32', AD[d], 0, t1, 'vcc')
    a('v_lshl_add_u32', t0, lh, 3, li)
    a('v_lshrrev_b32', t0, 1, t0)
    a('v_lshl_add_u32', t0, t0, 2, sbase)
    a('v_and_b32', t1, 1, li)
    a('v_mul_u32_u24', t1, 4164, t1)
    a('v_add_u32', vA[0], t0, t1)
    for p in range(1, 4):
        a('v_add_u32', vA[p], 1024*p, vA[0])
    a('v_lshlrev_b32', t0, 5, li)
    a('v_sub_u32', t0, 8320 + 480, t0)
    a('v_lshl_add_u32', t0, lh, 4, t0)
    a('v_add_u32', vB, sbase, t0)
    a('v_and_b32', t0, 1, lh)
    a('v_lshlrev_b32', t0, 9, t0)
    a('v_lshl_add_u32', t0, li, 5, t0)
    a('v_lshrrev_b32', t1, 1, lh)
    a('v_lshl_add_u32', vo, t1, 4, t0)
    a('v_add_u32', vu, sbase, l16)
    sPF, sKF = S(68), S(69)
    rep_base(a, sPF, FLP, PSTR)
    a('s_and_b32', st0, S(2), '0xf0')
    a('s_lshl_b32', st0, st0, 9)
    a('s_bfe_u32', st1, S(2), (2 << 16) | 2)
    a('s_lshl_b32', st1, st1, 7)
    a('s_add_u32', st0, st0, st1)
    a('s_and_b32', st1, S(2), 3)
    a('s_lshl_b32', st1, st1, 2)
    a('s_add_u32', st0, st0, st1)
    a('s_add_u32', sKF, st0, hex(FLG))
    a('s_lshl_b32', S(48), S(2), 9)
    a('s_add_u32', S(48), S(48), hex(FLG))
    a('v_and_b32', l16a, '0x1ff', vfa)
    a('v_lshlrev_b32', l16b, 9, lane)
    pack_flag_addr(a, vfp)
    tag_setup(a)
    stamp(a, 1)
    a.wait_vm_tok(tk)
    a('s_lshl_b32', st0, sch, 12)
    a('s_add_u32', 'm0', sbase, 4160 + 32)
    for i in range(4):
        tssm = a('buffer_load_dwordx4', l16, RSS, st0, mods=f'offen offset:{1024*i}' + NT_ + ' lds')
    QK = [va.get(4) for _ in range(4)]
    P = [[va.get() for _ in range(7)] for _ in range(8)]
    KSv = [[va.get() for _ in range(4)] for _ in range(8)]
    for ch in range(8):
        d, hi = ch >> 1, ch & 1
        for t in range(1, 7):
            a('v_perm_b32', P[ch][t], K[t-1][d], K[t][d], selHI if hi else selLO)
    for ch in range(8):
        for e in range(4):
            a('v_dot2_f32_bf16', KSv[ch][e], P[ch][e+3], SK[2*ch], 0)
        for e in range(4):
            a('v_dot2_f32_bf16', KSv[ch][e], P[ch][e+1], SK[2*ch+1], KSv[ch][e])
    stamp(a, 2)
    for ch in range(8):
        d, hi = ch >> 1, ch & 1
        for e in range(4):
            if hi: a('v_and_b32', P[ch][e], '0xffff0000', Vv[e][d])
            else: a('v_lshlrev_b32', P[ch][e], 16, Vv[e][d])
        for e in range(4):
            a('v_mul_f32', KSv[ch][e], KSv[ch][e], P[ch][e])
        q = QK[ch & 3]
        o = 2 if ch < 4 else 0
        a('v_cvt_pk_bf16_f32', q[o], KSv[ch][3], KSv[ch][2])
        a('v_cvt_pk_bf16_f32', q[o+1], KSv[ch][1], KSv[ch][0])
    for cp in range(4):
        a('v_permlane16_swap_b32', QK[cp][2], QK[cp][0])
        a('v_permlane16_swap_b32', QK[cp][3], QK[cp][1])
        a('s_mov_b32', st2, hex(KVT + 4096*cp))
        tkv = a('buffer_store_dwordx4', QK[cp], vok, RWS, st2, mods='offen sc1')
    stamp(a, 3)
    def xload():
        for i in range(4):
            a('buffer_load_dwordx4', X[i], voff, RQ, 0, mods=f'offen offset:{1280*i}' + NT_)
    if E('XPOS', 0) == 0: xload()
    def rdA(rho):
        s = rho & 1
        L = []
        for i in range(8):
            o = 128*(i & 1) + 16*rho
            L.append(('ds_read2_b32', FA[s][i][0:2], vA[i >> 1], f'offset0:{o} offset1:{o+1}'))
            L.append(('ds_read2_b32', FA[s][i][2:4], vA[i >> 1], f'offset0:{o+2} offset1:{o+3}'))
        return L
    def rdB(rho):
        return [('ds_read_b128', FB[rho & 1][i], vB, f'offset:{3584 - 512*i + 64*rho}') for i in range(8)]
    def reads(rho):
        A_, B_ = rdA(rho), rdB(rho)
        L = []
        for i in range(8): L += [B_[i], A_[2*i], A_[2*i+1]]
        return L
    SH = [V(80 + 4*i, 4) for i in range(4)]
    SN = [V(96 + i) for i in range(4)]
    a.wait_vm_tok(tssm)
    for i in range(4):
        a('ds_read_b128', SH[i], vu, mods=f'offset:{4160 + 32 + 1024*i}')
        a('ds_read_b32', SN[i], vu, mods=f'offset:{4160 + 48 + 1024*i}')
    for i in range(4):
        for d in range(4):
            a('v_alignbit_b32', SH[i][d], SH[i][d+1] if d < 3 else SN[i], SH[i][d], 16)
        a('ds_write_b128', vu, SH[i], mods=f'offset:{32 + 1024*i}')
    a.wait_vm_tok(tkv)
    a('s_barrier')
    stamp(a, 4)
    a('s_cmp_lg_u32', sw, 0)
    a('s_cbranch_scc1', 'G1_skip')
    a('s_mov_b64', 'exec', '0xffff')
    a('buffer_store_dword', vtg, l16b, RWS, sKF, mods='offen sc1')
    a('s_mov_b64', 'exec', -1)
    Flags(a, 'G1', vg1, l16a, S(48)).wait()
    a.label('G1_skip')
    a.wait(lg=0)
    for r in rdA(0): a(r[0], r[1], r[2], mods=r[3])
    a('s_barrier')
    stamp(a, 5)
    a('s_add_u32', 'm0', sbase, 8320)
    a('s_lshl_b32', st0, sch, 12)
    for i in range(4):
        tu = a('buffer_load_dwordx4', l16, RWS, st0, mods=f'offen offset:{1024*i}' + LD1 + ' lds')
    if E('XPOS', 0) == 1: xload()
    a.wait_vm_tok(tu)
    stamp(a, 6)
    for r in rdB(0): a(r[0], r[1], r[2], mods=r[3])
    sx, sht = S(12), S(13)
    a('s_mov_b32', S(48), selLO)
    a('s_lshl_b32', st0, sch, 12)
    a('s_add_u32', sx, st0, hex(XT))
    a('s_add_u32', sht, st0, hex(HT))
    side = []
    w_at, x_at, s_at, wg, fl = E('W_AT', 80), E('X_AT', 210), E('S_AT', 190), E('WGAP', 3), E('FLAT', 50)
    FP = Flags(a, 'P1', V(250, 2), vfp, sPF)
    FX = Flags(a, 'GX', vg1, vfa, S(15), 16)
    FS = Flags(a, 'GS', V(252), V(225), sPF, 20*128)
    FD = Flags(a, 'PD', V(250, 2), vfp, sKF)
    m_at = E('M_AT', 250)
    side.append((m_at - fl, 1, lambda: a('s_add_u32', sKF, sPF, hex((FLD - FLP) & 0xffffffff))))
    side.append((m_at - fl, 1, FD.load))
    side.append((m_at, 2, FD.check))
    for k, f in enumerate(wd_warm(a, S(49), l16b, vu)): side.append((m_at + 2*k, 2, f))
    QX = [V(160 + 4*i, 4) for i in range(4)]
    xt_at = E('XT_AT', 20)
    TX = {}
    for ch in range(8):
        d, hi = ch >> 1, ch & 1
        q = QX[ch & 3]
        o = 0 if ch < 4 else 2
        sel = selHI if hi else S(48)
        side.append((xt_at, 1, lambda q=q, o=o, d=d, sel=sel: a('v_perm_b32', q[o], X[1][d], X[0][d], sel)))
        side.append((xt_at, 1, lambda q=q, o=o, d=d, sel=sel: a('v_perm_b32', q[o+1], X[3][d], X[2][d], sel)))
    for cp in range(4):
        side.append((xt_at, 2, lambda cp=cp: a('v_permlane16_swap_b32', QX[cp][0], QX[cp][2])))
        side.append((xt_at, 2, lambda cp=cp: a('v_permlane16_swap_b32', QX[cp][1], QX[cp][3])))
    for cp in range(4):
        def xs(cp=cp):
            a('s_mov_b32', st2, hex(XT + 4096*cp))
            TX[0] = a('buffer_store_dwordx4', QX[cp], vox, RWS, st2, mods='offen sc1')
        side.append((xt_at, 2, xs))
    def xpub():
        a.wait_vm_tok(TX[0])
        publish(a, sMe, 16)
    side.append((xt_at + E('XPUB', 80), 2, xpub))
    side.append((w_at - fl, 1, FP.load))
    side.append((w_at, 2, FP.check))
    side.append((x_at - fl, 1, FX.load))
    side.append((x_at, 2, FX.check))
    for t in range(8):
        side.append((x_at, 1, lambda t=t: a('buffer_load_dwordx2', XR[t], vx, RWS, sx, mods=f'offen offset:{512*t}' + LD1)))
    side.append((s_at - fl, 1, lambda: a('v_and_b32', V(225), '0x1ff', vfa)))
    side.append((s_at - fl, 1, FS.load))
    side.append((s_at - fl, 2, lambda: (a('s_mov_b32', S(46), hex(AB)), a('s_mov_b32', S(47), hex(AB + 4096)))))
    side.append((s_at - fl, 1, lambda: a('v_lshlrev_b32', l16a, 1, vx)))
    side.append((s_at, 2, FS.check))
    for t in range(8):
        side.append((s_at, 1, lambda t=t: a('buffer_load_dwordx4', ABR[t], l16a, RWS, S(46 + (t >> 2)), mods=f'offen offset:{1024*(t & 3)}' + LD)))
    at = w_at
    for ks in [0, 1, 2, 3] + list(range(8, 20)):
        for n in range(4):
            for q in (x_at, s_at):
                if q <= at < q + 10: at = q + 10
            side.append((at, 1 + (n == 0), lambda ks=ks, n=n: w1_load(a, ks, n)))
            at += wg
    assert w_at + fl <= m_at
    side.sort(key=lambda x: x[0])
    order = sorted([(aa, dl) for aa in range(8) for dl in range(8) if aa + dl <= 7], key=lambda p: (max(p), p[0] + p[1]))
    idx = 0
    for rho in range(8):
        s = rho & 1
        nxt = reads(rho + 1) if rho < 7 else []
        seq = []
        init = set()
        for (aa, dl) in order:
            t = aa + dl
            seq.append((CA[t], FA[s][aa], FB[s][dl], CA[t] if (rho or t in init) else 0))
            init.add(t)
        if rho == 0:
            seq += [(CA[t], AD, FB[s][t], CA[t]) for t in range(8)]
        k = 0
        for n, m in enumerate(seq):
            a(MFMA, *m)
            idx += 1
            room = 2
            if n >= 4 and k < len(nxt) and (n % 3 != 2 or len(seq) - n <= len(nxt) - k):
                r = nxt[k]; k += 1
                a(r[0], r[1], r[2], mods=r[3])
                room = 1
            while side and side[0][0] <= idx and side[0][1] <= room:
                e = side.pop(0); e[2](); room -= e[1]
        assert k == len(nxt)
    if E('CST', 0): stamp(a, 7)
    for e in side: e[2]()
    if not E('CST', 0): stamp(a, 7)
    XF, XN, XP = V(16, 4), V(20, 4), V(32, 4)
    O = [V(24, 4), V(28, 4)]
    one, pl, ph = V(36), S(14), S(15)
    a('v_mov_b32', one, '0x3f803f80')
    a('s_mov_b32', pl, '0x05040100')
    a('s_mov_b32', ph, '0x05040302')
    for p in range(4):
        q = O[p & 1]
        for e in range(2):
            t = 2*p + e
            for h in range(2):
                a('v_perm_b32', XP[2*h], one, XR[t][h], pl)
                a('v_perm_b32', XP[2*h+1], one, XR[t][h], ph)
            for h in range(2):
                a('v_lshlrev_b32', XF[2*h], 16, XR[t][h])
                a('v_and_b32', XF[2*h+1], '0xffff0000', XR[t][h])
            for k in range(4):
                a('v_dot2_f32_bf16', XN[k], XP[k], ABR[t][k], 0)
            for h in range(2):
                a('v_pk_fma_f32', XN[2*h:2*h+2], XN[2*h:2*h+2], CA[t][2*h:2*h+2], XF[2*h:2*h+2])
            for h in range(2):
                a('v_cvt_pk_bf16_f32', q[2*e+h], XN[2*h], XN[2*h+1])
        a('v_permlane16_swap_b32', q[0], q[2])
        a('v_permlane16_swap_b32', q[1], q[3])
        tht = a('buffer_store_dwordx4', q, vo, RWS, sht, mods=f'offen offset:{1024*p} sc1')
    stamp(a, 8)
    for ks in range(4, 8):
        for n in range(4): w1_load(a, ks, n)
    return tht

PITCH = 3488
MOFF = 8*PITCH + 16
WDL0 = 57344
def pack_task(a, n):
    RG, RU, RW = S(44, 4), S(48, 4), S(52, 4)
    ssrc, sl = S(10), S(12)
    srd(a, RG, P_WG, D_*F_*2)
    srd(a, RU, P_WU, D_*F_*2)
    a('s_lshl_b32', st0, n, 2)
    a('s_add_u32', st0, st0, sw)
    a('s_mul_i32', ssrc, st0, 2*WROW)
    a('s_mul_i32', sl, sw, 2*PITCH)
    for i in range(4):
        if i == 3: a('s_mov_b64', 'exec', '0xffffff')
        for M in range(2):
            for r in range(2):
                a('s_add_u32', 'm0', sl, MOFF*M + PITCH*r)
                a('s_add_u32', st0, ssrc, WROW*r)
                tw = a('buffer_load_dwordx4', l16, RU if M else RG, st0, mods=f'offen offset:{1024*i}' + NT_ + ' lds')
    a('s_mov_b64', 'exec', -1)
    srd(a, RW, P_WD, D_*F_*2)
    scb, scp = S(13), S(14)
    a('s_mul_i32', scp, n, 205)
    a('s_lshr_b32', scp, scp, 11)
    a('s_mul_i32', st0, scp, 10)
    a('s_sub_u32', scb, n, st0)
    vsrc = [V(16), V(17)]
    a('v_lshrrev_b32', t0, 3, lane)
    a('v_mul_u32_u24', t0, 1280, t0)
    a('v_and_b32', t1, 1, lane)
    a('v_lshl_add_u32', t0, t1, 4, t0)
    a('v_bfe_u32', t1, lane, 1, 2)
    a('v_bfe_u32', t2, lane, 4, 1)
    a('v_xor_b32', t1, t1, t2)
    a('s_and_b32', st0, sw, 1)
    a('s_lshl_b32', st0, st0, 1)
    a('v_xor_b32', t1, st0, t1)
    a('v_lshl_add_u32', vsrc[0], t1, 5, t0)
    a('v_xor_b32', t1, 2, t1)
    a('v_lshl_add_u32', vsrc[1], t1, 5, t0)
    a('s_mul_i32', ssrc, scp, 216*1280)
    a('s_lshl_b32', st0, scb, 7)
    a('s_add_u32', ssrc, ssrc, st0)
    a('s_mul_i32', st0, sw, 56*1280)
    a('s_add_u32', ssrc, ssrc, st0)
    a('s_lshr_b32', st0, sw, 1)
    a('s_mul_i32', st0, st0, 4*1280)
    a('s_sub_u32', ssrc, ssrc, st0)
    a('s_mul_i32', sl, sw, 7*1024)
    a('s_mov_b32', S(15), ssrc)
    def wdl():
        for g in range(7):
            a('s_add_u32', 'm0', sl, WDL0 + 1024*g)
            a('s_add_u32', st0, S(15), 8*g*1280)
            td = a('buffer_load_dwordx4', vsrc[g & 1], RW, st0, mods='offen' + NT_ + ' lds')
        return td
    if E('WDPOS', 1) == 0: td = wdl()
    if not E('PF0', 1): code_prefetch(a, 'PCp')
    stamp(a, 1)
    vr, vr2, vd, vd2, pv = V(18), V(19), V(20), V(21), V(22)
    a('v_bfe_u32', t0, lane, 2, 2)
    a('v_mul_u32_u24', t0, PITCH, t0)
    a('v_bfe_u32', t1, lane, 1, 1)
    a('v_mul_u32_u24', t1, MOFF, t1)
    a('v_add_u32', t0, t0, t1)
    a('v_and_b32', t1, 1, lane)
    a('v_lshl_add_u32', t0, t1, 3, t0)
    a('v_add_u32', t0, vq16, t0)
    a('s_mul_i32', st0, sw, 864)
    a('v_add_u32', vr, st0, t0)
    a('v_lshrrev_b32', t1, 5, lane)
    a('v_lshlrev_b32', t1, 3, t1)
    a('v_sub_u32', vr2, vr, t1)
    a('v_and_b32', t0, 15, lane)
    a('v_lshlrev_b32', t0, 4, t0)
    a('v_lshl_add_u32', vd, vq16, 6, t0)
    a('v_and_b32', t0, 8, lane)
    a('v_cmp_ne_u32', 'vcc', 0, t0)
    a('v_mov_b32', t1, '0x3f803f80')
    a('v_cndmask_b32', pv, 0, t1, 'vcc')
    MK = [S(68, 2), S(64, 2)]
    a('s_mov_b32', MK[0][0], '0xf0f00000')
    a('s_mov_b32', MK[0][1], 0)
    a('s_mov_b32', MK[1][0], 0)
    a('s_mov_b32', MK[1][1], '0xf0f00000')
    sdst = S(10)
    a('s_lshr_b32', st0, n, 2)
    a('s_mul_i32', sdst, st0, KSB)
    a('s_and_b32', st0, n, 3)
    a('s_lshl_b32', st0, st0, 8)
    a('s_add_u32', sdst, sdst, st0)
    a('s_mul_i32', st0, sw, 56*1024)
    a('s_add_u32', sdst, sdst, st0)
    a('s_add_u32', sdst, sdst, hex(WP1))
    tag_setup(a)
    FR = [V(32 + 4*i, 4) for i in range(14)]
    a.wait_vm_tok(tw)
    a('s_barrier')
    stamp(a, 2)
    for i in range(14):
        cl_ = (4*i)//14
        for hf in range(2):
            a('ds_read_b64_tr_b16', FR[i][2*hf:2*hf+2], vr2 if i in (3, 10) else vr, mods=f'offset:{64*i - 8*cl_ + 4*PITCH*hf}')
    for i in range(14):
        if i in (3, 6, 10, 13):
            for d in range(4): a('v_cndmask_b32', FR[i][d], FR[i][d], pv, MK[i in (6, 13)])
        if i: a('s_add_u32', sdst, sdst, 4096)
        ts = a('buffer_store_dwordx4', FR[i], vd, RWS, sdst, mods='offen sc1')
    if E('WDPOS', 1) == 1: td = wdl()
    stamp(a, 3)
    a('v_lshrrev_b32', t0, 4, lane)
    a('v_bfe_u32', t1, lane, 2, 2)
    a('v_lshl_add_u32', t2, t0, 3, t1)
    a('v_lshlrev_b32', t2, 7, t2)
    a('v_and_b32', t0, 1, t0)
    a('v_lshrrev_b32', t1, 1, t1)
    a('v_lshl_or_b32', t0, t0, 1, t1)
    a('v_xor_b32', t0, sw, t0)
    a('v_lshl_add_u32', t2, t0, 5, t2)
    a('v_and_b32', t0, 3, lane)
    a('v_lshl_add_u32', t2, t0, 3, t2)
    a('v_add_u32', vr, WDL0, t2)
    a('s_lshl_b32', st0, scb, 2)
    a('s_add_u32', st0, st0, sw)
    a('s_mul_i32', sdst, st0, TS)
    a('s_mul_i32', st1, scp, 7*1024)
    a('s_add_u32', sdst, sdst, st1)
    a('s_add_u32', sdst, sdst, hex(WP2))
    a('s_add_u32', sl, sdst, 4096)
    a('s_mov_b32', MK[0][0], '0xffff0000')
    a('s_mov_b32', MK[1][1], '0xffff0000')
    FD = [V(96 + 4*i, 4) for i in range(7)]
    a.wait_vm_tok(ts)
    a('s_barrier')
    publish_rep(a, 'PK_pub1', FLP, PSTR, n)
    stamp(a, 4)
    a.wait_vm_tok(td)
    a('s_barrier')
    for ks in range(7):
        for hf in range(2):
            a('ds_read_b64_tr_b16', FD[ks][2*hf:2*hf+2], vr, mods=f'offset:{ks*4096 + 512*hf}')
    for ks in range(7):
        if ks in (3, 6):
            for d in (2, 3): a('v_cndmask_b32', FD[ks][d], FD[ks][d], 0, MK[ks == 6])
        tp = a('buffer_store_dwordx4', FD[ks], l16, RWS, sl if ks >= 4 else sdst, mods=f'offen offset:{1024*(ks & 3)} sc1')
    a.wait_vm_tok(tp)
    a('s_barrier')
    publish_rep(a, 'PK_pub2', FLD, PSTR, n)

def stat_task(a, n):
    RQ = S(52, 4)
    srd(a, RQ, P_Q, S_*D_*2)
    voff = V(16)
    a('s_lshl_b32', st0, n, 2)
    a('s_add_u32', S(10), st0, sw)
    a('s_mul_i32', st0, S(10), 32*1280)
    a('v_lshrrev_b32', t0, 4, lane)
    a('v_mul_u32_u24', voff, 1280, t0)
    a('v_and_b32', t1, 15, lane)
    a('v_lshl_add_u32', voff, t1, 4, voff)
    X = [[V(48 + 20*p + 4*i, 4) for i in range(5)] for p in range(8)]
    for p in range(8):
        if p: a('s_add_u32', st0, st0, 5120)
        for i in range(5):
            a('buffer_load_dwordx4', X[p][i], voff, RQ, st0, mods=f'offen offset:{256*i}' + NT_)
    if not E('PF0', 1): code_prefetch(a, 'PCs')
    stamp(a, 1)
    tag_setup(a)
    ones = S(12)
    a('s_mov_b32', ones, '0x3f803f80')
    s1 = [V(20 + p) for p in range(8)]
    s2 = [V(28 + p) for p in range(8)]
    for p in range(0, 8, 2):
        for i in range(5):
            for d in range(4):
                first = (i == 0 and d == 0)
                for pp in (p, p + 1):
                    a('v_dot2_f32_bf16', s1[pp], X[pp][i][d], ones, 0 if first else s1[pp])
                    a('v_dot2_f32_bf16', s2[pp], X[pp][i][d], X[pp][i][d], 0 if first else s2[pp])
    stamp(a, 2)
    for sh in (8, 4, 2, 1):
        for r in s1 + s2:
            a('v_add_f32', r, r, r, mods=f'row_ror:{sh} row_mask:0xf bank_mask:0xf')
    for p in range(1, 8):
        a('s_mov_b32', S(68), hex(0x01010101 << p))
        a('s_mov_b32', S(69), S(68))
        a('v_cndmask_b32', s1[0], s1[0], s1[p], S(68, 2))
        a('v_cndmask_b32', s2[0], s2[0], s2[p], S(68, 2))
    ln_stats(a, s1[0], s2[0], t2)
    a('v_rcp_f32', s2[0], s2[0])
    a('v_mul_f32', s1[0], s1[0].neg(), s2[0])
    a('v_cvt_pk_bf16_f32', s2[0], s2[0], s1[0])
    a('v_lshrrev_b32', t0, 4, lane)
    a('v_and_b32', t1, 7, lane)
    a('v_lshl_add_u32', t1, t1, 2, t0)
    a('v_lshlrev_b32', t1, 2, t1)
    a('s_lshl_b32', st0, S(10), 7)
    a('s_add_u32', st0, st0, hex(AB))
    a('buffer_store_dword', s2[0], t1, RWS, st0, mods='offen sc1')
    stamp(a, 4)
    a.wait(vm=0)
    a('s_barrier')
    publish_rep(a, 'ST_pub', FLP, PSTR, S(7))

def helper_wg(a):
    n = S(7)
    srd(a, RWS, P_WS, WS_SIZE)
    a('s_mov_b32', sEp, hex(EPOCH))
    a('s_load_dword', sEp, P_WS, sEp)
    a('s_sub_u32', n, S(2), 160)
    a('s_cmp_ge_u32', n, 80)
    a('s_cbranch_scc1', 'H_s')
    pack_task(a, n)
    a('s_branch', 'H_pre')
    a.label('H_s')
    a('s_sub_u32', S(9), n, 80)
    stat_task(a, S(9))
    a.label('H_pre')
    role_setup(a)
    rep_base(a, S(44), FLP, PSTR)
    pack_flag_addr(a, t2)
    stamp(a, 5)
    a('s_cmp_lg_u32', sw, 0)
    a('s_cbranch_scc1', 'HP_skip')
    Flags(a, 'HP', V(16, 2), t2, S(44)).wait()
    a.label('HP_skip')
    a('s_barrier')
    stamp(a, 6)
    for ks in range(20):
        for k in range(4): w1_load(a, ks, k)
    a('s_add_u32', S(44), S(44), hex((FLD - FLP) & 0xffffffff))
    Flags(a, 'HD', V(16, 2), t2, S(44)).wait()
    for f in wd_warm(a, S(49), V(24), V(25)): f()
    stamp(a, 7)
    a('s_cmp_lg_u32', sB, 5)
    a('s_cbranch_scc1', 'H_end')
    ON = V(208, 4)
    CSA = [V(212 + 4*k, 4) for k in range(4)]
    for d in range(4): a('v_mov_b32', ON[d], '0x3f803f80')
    for ks in range(20):
        for k in range(4):
            a(MFMA, CSA[k], W1(ks, k), ON, CSA[k] if ks else 0)
    cs_bases(a)
    a('v_and_b32', t0, 15, lane)
    a('v_cmp_eq_u32', 'vcc', 0, t0)
    a('s_and_saveexec_b64', S(68, 2), 'vcc')
    for k in range(4):
        a('buffer_store_dwordx4', CSA[k], vq16, RWS, sCS3 if k == 3 else sCS0, mods=f'offen offset:{64*(k % 3)} sc1')
    a('s_mov_b64', 'exec', -1)
    a('s_lshl_b32', st0, sC, 7)
    a('s_lshl_b32', st1, sw, 2)
    a('s_add_u32', st0, st0, st1)
    a('s_add_u32', st0, st0, hex(FLC))
    a.wait(vm=0)
    publish(a, st0, 0)
    a.label('H_end')
    stamp(a, 8)

def cs_bases(a):
    a('s_mul_i32', st0, sC, 14*64)
    a('s_add_u32', st0, st0, hex(CS))
    a('s_lshl_b32', sCS0, sUb, 6)
    a('s_add_u32', sCS0, sCS0, st0)
    a('s_lshl_b32', sCS3, sU3, 6)
    a('s_add_u32', sCS3, sCS3, st0)
```

```python
from mk4a import *

vdma2, RS2, vout = V(13), V(13), V(248)
ACC = [[V(16 + 32*n + 4*j, 4) for j in range(8)] for n in range(3)]
ACC.append({j: V(112 + 4*((j >> 2)*2 + (j & 1)), 4) for j in (0, 1, 4, 5)})
CSR = [V(128 + 4*n, 4) for n in range(4)]
BF = [V(208 + 4*i, 4) for i in range(8)]
VRD = [V(240 + i) for i in range(8)]
MEAN = V(176, 8)
vsr = [vst, V(184), V(185), V(186)]
vsw = [V(187), V(188)]
MT = [V(189), V(190)]
SQF = [V(192 + 4*i, 4) for i in range(3)]
SQA = V(204, 4)
vsq, vsqs, vf3 = V(250), V(251), V(253)
SQL = V(184, 8)
RES = [V(144, 2), V(146, 2), V(148, 2), V(150, 2), V(14, 2)]
ACC2 = [[V(208 + 4*nu, 4) for nu in range(5)], [V(228 + 4*nu, 4) for nu in range(5)],
        [V(176 + 4*nu, 4) for nu in range(5)], [V(196, 4), V(200, 4), V(204, 4), V(128, 4), V(132, 4)]]
MSK = [S(50, 2), S(52, 2), S(54, 2)]
WDL = [(W1(ks, n), ('p1', ks)) for ks in range(4) for n in range(4)]
WDL += [(V(152 + 4*f, 4), ('p1', 4 + (f >= 2))) for f in range(6)]
WDL += [(W1(ks, 3), (1, 0, ks)) for ks in range(KS, 20)]
WDL += [(W1(ks, n), (1, 2, ks)) for ks in range(KS, 20) for n in range(3)]
def WD(f): return WDL[f][0]
sMV, sDump, sF3, sClr = S(34, 2), S(12), S(49), S(39)
HF0 = [ACC[n][j] for j in (0, 1) for n in range(4)] + [ACC[n][j] for j in (2, 3) for n in range(3)]
HF1 = [ACC[n][j] for j in (4, 5) for n in range(4)] + [ACC[n][j] for j in (6, 7) for n in range(3)]
HF = HF0 + HF1

def gemm_setup(a):
    srd(a, ROUT, P_OUT, S_*D_*2)
    cs_bases(a)
    a('s_lshl_b32', sHT, sw, 15)
    a('s_lshl_b32', st0, sB, 8)
    a('s_add_u32', sHT, sHT, st0)
    a('s_add_u32', sHT, sHT, hex(HT))
    a('s_lshl_b32', sLds, sw, 11)
    half, cbk, mu = S(13), S(14), S(15)
    a('s_bfe_u32', half, sC, (1 << 16) | 2)
    a('s_lshr_b32', cbk, sC, 3)
    a('s_lshl_b32', cbk, cbk, 2)
    a('s_and_b32', st0, sC, 3)
    a('s_add_u32', cbk, cbk, st0)
    a('s_and_b32', st0, sw, 1)
    a('s_lshl_b32', sRot, st0, 1)
    a('s_lshr_b32', st1, sw, 1)
    a('s_or_b32', sRot, sRot, st1)
    a('s_lshl_b32', mu, st1, 2)
    a('s_add_u32', mu, mu, st0)
    a('s_lshl_b32', st0, half, 1)
    a('s_add_u32', mu, mu, st0)
    a('s_mul_i32', st0, cbk, 5*TS)
    a('s_mul_i32', st1, sw, 14*1024)
    a('s_add_u32', st0, st0, st1)
    for nu in range(5):
        a('s_add_u32', sWn[nu], st0, hex(WP2 + nu*TS))
    a('s_lshl_b32', st0, sB, 3)
    a('s_lshl_b32', st2, half, 1)
    a('s_add_u32', st2, st2, st0)
    a('s_mul_i32', st2, st2, TS)
    a('s_add_u32', st2, st2, st1)
    for j in range(4):
        a('s_add_u32', sHH[j], st2, hex(HH + ((j & 1) + 4*(j >> 1))*TS))
    a('s_and_b32', st1, sRot, 2)
    a('s_mul_i32', st2, sC, 14*256)
    a('s_add_u32', st2, st2, hex(HH))
    for k in range(2):
        if k: a('s_xor_b32', st1, st1, 2)
        a('s_add_u32', sA[k], st0, st1)
        a('s_mul_i32', sA[k], sA[k], TS)
        a('s_add_u32', sA[k], sA[k], st2)
    a('s_add_u32', st1, st0, mu)
    a('s_mul_i32', sOut, st1, 16*1280)
    a('s_mul_i32', st2, cbk, 160)
    a('s_add_u32', sOut, sOut, st2)
    a('s_lshl_b32', sSQl, st1, 9)
    a('s_add_u32', sSQl, sSQl, hex(SQ))
    a('s_add_u32', st1, st0, cbk)
    a('s_lshl_b32', sSQs, st1, 9)
    a('s_lshl_b32', st1, half, 2)
    a('s_add_u32', st1, st1, sw)
    a('s_lshl_b32', st1, st1, 2)
    a('s_add_u32', sSQs, sSQs, st1)
    a('s_add_u32', sSQs, sSQs, hex(SQ))
    a('s_cmp_eq_u32', cbk, 0)
    a('s_cselect_b32', sStat, 3*8192, 0)
    a('s_lshl_b32', sC3, sC, 7)
    a('s_lshl_b32', sF3, sB, 11)
    a('s_add_u32', sF3, sF3, hex(FL3))
    a('s_lshl_b32', st1, sw, 2)
    a('s_add_u32', sMe, sC3, st1)
    a('s_add_u32', sMe, sMe, sF3)
    a('s_add_u32', sC3, sC3, hex(FLC))
    a('s_lshl_b32', st1, sw, 1)
    a('s_add_u32', st1, st1, st0)
    a('s_mul_i32', sClr, st1, TS)
    a('s_mul_i32', st1, sC, 14*256)
    a('s_add_u32', sClr, sClr, st1)
    a('s_add_u32', sClr, sClr, hex(HH))
    a('s_add_u32', sDump, sStat, 1024)
    a('s_cmp_ge_u32', sw, 2)
    a('s_cselect_b32', sMV[1], '0xffff0000', 0)
    a('s_mov_b32', sMV[0], 0)
    q, r, m, x = V(208), V(209), V(210), V(211)
    a('v_lshrrev_b32', q, 4, lane)
    a('v_bfe_u32', r, lane, 2, 2)
    a('v_and_b32', m, 15, lane)
    a('s_and_b32', st1, sw, 1)
    a('s_lshl_b32', st1, st1, 2)
    a('v_or_b32', t0, st1, q)
    a('v_bfe_u32', t1, lane, 1, 3)
    a('v_xor_b32', t0, t0, t1)
    a('v_lshlrev_b32', t0, 5, t0)
    a('v_and_b32', t1, 1, lane)
    a('v_lshl_add_u32', t0, t1, 4, t0)
    a('v_lshl_add_u32', vdma, q, 12, t0)
    a('v_add_u32', vdma2, 16384 - 1024, vdma)
    a('v_and_b32', t0, 1, q)
    a('v_lshl_or_b32', t0, t0, 2, r)
    a('v_lshl_add_u32', t1, q, 3, r)
    a('v_lshlrev_b32', t1, 8, t1)
    a('v_and_b32', t2, 3, lane)
    a('v_lshl_add_u32', t1, t2, 3, t1)
    a('v_xor_b32', x, cbk, t0)
    a('v_lshl_add_u32', vsq, x, 5, t1)
    a('s_lshl_b32', st0, sw, 14)
    a('s_add_u32', st0, st0, 11*8192)
    a('s_mul_i32', st1, sw, 3*8192)
    a('s_cmp_eq_u32', half, 0)
    a('s_cselect_b32', st0, st1, st0)
    a('v_add_u32', vsq, st0, vsq)
    a('v_xor_b32', t0, sRot, t0)
    for j in range(8):
        a('v_xor_b32', VRD[j], j, t0)
        a('v_lshl_add_u32', VRD[j], VRD[j], 5, t1)
    for i in range(3):
        a('v_cmp_eq_u32', MSK[i], i + 1, t2)
    a('v_lshlrev_b32', t0, 5, m)
    a('v_cmp_eq_u32', 'vcc', r, q)
    a('v_mov_b32', t1, hex(OOB))
    a('v_cndmask_b32', vsqs, t1, t0, 'vcc')
    a('v_lshrrev_b32', t0, 1, q)
    a('v_lshl_or_b32', t0, t0, 2, r)
    a('v_xor_b32', t0, mu, t0)
    a('v_lshlrev_b32', t0, 5, t0)
    a('v_lshl_add_u32', t0, t2, 3, t0)
    a('v_lshl_add_u32', t1, q, 2, r)
    a('v_lshl_add_u32', t0, t1, 8, t0)
    a('s_mul_i32', st2, cbk, 80*256)
    a('v_add_u32', vres, st2, t0)
    a('s_lshl_b32', st0, sRot, 2)
    a('s_add_u32', st0, st0, sStat)
    a('v_lshl_add_u32', vst, m, 5, st0)
    a('s_and_b32', st0, sRot, 1)
    a('v_and_b32', t0, 1, q)
    a('v_lshrrev_b32', t2, 1, q)
    a('v_xor_b32', x, st0, t0)
    a('v_mul_u32_u24', x, TS, x)
    a('v_lshl_add_u32', x, m, 4, x)
    a('v_add_u32', t1, sUb, t2)
    a('v_lshl_add_u32', vh01, t1, 8, x)
    a('s_add_u32', st1, sUb, 2)
    a('s_sub_u32', st2, sU3, st1)
    a('v_mul_lo_u32', t1, st2, t2)
    a('v_add_u32', t1, st1, t1)
    a('v_lshl_add_u32', vh23, t1, 8, x)
    a('v_xor_b32', x, st0, t2)
    a('v_mul_u32_u24', x, TS, x)
    a('v_lshl_add_u32', x, m, 4, x)
    a('v_lshl_add_u32', x, t0, 3, x)
    a('s_lshl_b32', st1, st1, 8)
    a('v_add_u32', vh2x, st1, x)
    a('v_mul_u32_u24', t1, 1280, m)
    a('v_lshl_add_u32', t1, t0, 5, t1)
    a('v_lshl_add_u32', vout, t2, 4, t1)
    a('v_and_b32', t1, 3, lane)
    a('v_lshlrev_b32', vfl, 2, t1)
    a('v_lshrrev_b32', t0, 2, lane)
    a('v_lshl_add_u32', vf3, t0, 7, vfl)

def late_setup_ops():
    L = []
    for k in range(1, 4): L.append(('v_xor_b32', (vsr[k], 4*k, vst), ''))
    L.append(('v_lshl_add_u32', (MT[0], lane, 2, sDump), ''))
    L.append(('v_cndmask_b32', (vsw[0], MT[0], vst, sMV), ''))
    L.append(('v_cndmask_b32', (vsw[1], MT[0], vsr[1], sMV), ''))
    return L

def pair_ops(X, Y, cX, cY, jX, jY, Q, pk):
    L = []
    for Z, c, j in ((X, cX, jX), (Y, cY, jY)):
        if pk:
            s = j & 1
            for h in range(2):
                L.append((1, 'v_pk_fma_f32', (Z[2*h:2*h+2], c[2*h:2*h+2], MEAN[j-s:j-s+2], Z[2*h:2*h+2]), f'op_sel:[0,{s},0] op_sel_hi:[1,{s},1]'))
        else:
            for e in range(4): L.append((1, 'v_fmac_f32', (Z[e], c[e], MEAN[j]), ''))
    for e in range(4): L.append((2, 'v_permlane32_swap_b32', (X[e], Y[e]), ''))
    for e in range(4): L.append((1, 'v_max_f32', (X[e], 0, X[e]), ''))
    if pk:
        for h in range(2): L.append((1, 'v_pk_mul_f32', (X[2*h:2*h+2], X[2*h:2*h+2], Y[2*h:2*h+2]), ''))
    else:
        for e in range(4): L.append((1, 'v_mul_f32', (X[e], X[e], Y[e]), ''))
    for h in range(2): L.append((1, 'v_cvt_pk_bf16_f32', (Q[h], X[2*h], X[2*h+1]), ''))
    return L

def epi_ops(P, jb, pk=False):
    j0, j1 = 4*P + jb, 4*P + jb + 1
    L = []
    sbase = sA[jb >> 1]
    if P:
        L.append((1, 's_add_u32', (sbase, sbase, 4*TS), ''))
    groups = [(0, vh01)] + ([(2, vh23)] if jb == 0 else [])
    for n, va in groups:
        Q = ACC[n+1][j0]
        L += pair_ops(ACC[n][j0], ACC[n+1][j0], CSR[n], CSR[n+1], j0, j0, Q[0:2], pk)
        L += pair_ops(ACC[n][j1], ACC[n+1][j1], CSR[n], CSR[n+1], j1, j1, Q[2:4], pk)
        L.append((2, 'v_permlane16_swap_b32', (Q[0], Q[2]), ''))
        L.append((2, 'v_permlane16_swap_b32', (Q[1], Q[3]), ''))
        L.append((1, 'buffer_store_dwordx4', (Q, va, RWS, sbase), 'offen sc1'))
    if jb:
        Q = ACC[2][j1]
        L += pair_ops(ACC[2][j0], ACC[2][j1], CSR[2], CSR[2], j0, j1, Q[0:2], pk)
        L.append((1, 'buffer_store_dwordx2', (Q[0:2], vh2x, RWS, sbase), 'offen sc1'))
    return L

class Sched:
    def __init__(self, a):
        self.a = a; self.q = [[], []]; self.n = 0; self.mem = []; self.last = -100; self.step = 3
    def add(self, qi, at, cost, fn): self.q[qi].append((at, cost, fn))
    def op(self, qi, at, cost, mn, ops, mods, tok=None):
        def f():
            t = self.a(mn, *ops, mods=mods)
            if tok: tok[0][tok[1]] = t
        self.add(qi, at, cost, f)
    def load(self, avail, need, fn): self.mem.append((need, avail, fn))
    def issue(self):
        for k, e in enumerate(self.mem):
            if e[1] <= self.n:
                self.mem.pop(k); e[2](); self.last = self.n
                return True
        return False
    def fill(self, room):
        if room > 0 and self.n - self.last >= self.step and self.issue(): room -= 1
        go = True
        while go and room > 0:
            go = False
            for q in (self.q[1], self.q[0]):
                if q and q[0][0] <= self.n and q[0][1] <= room:
                    e = q.pop(0); e[2](); room -= e[1]; go = True
                    break
    def left(self): return [len(q) for q in self.q] + [len(self.mem)]
    def sort(self):
        for q in self.q: q.sort(key=lambda e: e[0])
        self.mem.sort(key=lambda e: e[0])
    def burst(self, every):
        c = 0
        while self.q[1]: self.q[1].pop(0)[2]()
        while self.q[0]:
            e = self.q[0].pop(0); e[2](); c += e[1]
            if c >= every:
                self.issue(); c = 0

class Ptr:
    def __init__(self, s): self.s, self.k = s, 0
    def at(self, a, i):
        if i >> 2 != self.k:
            a('s_add_u32', self.s, self.s, hex((4096*((i >> 2) - self.k)) & 0xffffffff))
            self.k = i >> 2
        return (i & 3)*1024

BFQ = [V(136, 4), V(140, 4)]
vck = V(252)

def gemms(a):
    T = {}
    dt = {}
    slow = []
    PW = [Ptr(s) for s in sWn]
    PH = [Ptr(s) for s in sHH]
    def wd_load(f):
        i, nu = divmod(f, 5)
        o = PW[nu].at(a, i)
        a('buffer_load_dwordx4', WD(f), l16, RWS, sWn[nu], mods=f'offen offset:{o}' + LD)
    def hload(i, j):
        o = PH[j].at(a, i)
        a('buffer_load_dwordx4', HF[2*i + (j & 1)], l16, RWS, sHH[j], mods=f'offen offset:{o}' + LD)
    def guarded(name, bad, reload):
        bad()
        a('s_cbranch_vccnz', name + '_slow')
        a.label(name + '_back')
        slow.append((name, bad, reload))
    def hcheck(i, ph):
        F0, F1 = HF[2*i], HF[2*i + 1]
        def bad():
            a('v_max3_u32', vck, F0[0], F0[2], F1[0])
            a('v_max_u32', vck, vck, F1[2])
            a('v_cmp_eq_u32', 'vcc', -1, vck)
        ks_ = [PH[2*ph + jj].k for jj in range(2)]
        def reload():
            for jj in range(2):
                a('s_add_u32', st0, sHH[2*ph + jj], hex((4096*((i >> 2) - ks_[jj])) & 0xffffffff))
                a('buffer_load_dwordx4', HF[2*i + jj], l16, RWS, st0, mods=f'offen offset:{(i & 3)*1024} sc1')
        guarded(f'HC{ph}_{i}', bad, reload)
    def dma(ks):
        a('s_add_u32', 'm0', sLds, 8192*ks)
        a('buffer_load_dwordx4', vdma, RWS, sHT, mods='offen' + LD + ' lds')
        dt[ks] = a('buffer_load_dwordx4', vdma2, RWS, sHT, mods='offen offset:1024' + LD + ' lds')
        a('s_add_u32', sHT, sHT, 131072)
    NUP = E('NUP', 6)
    for ks in range(NUP): dma(ks)
    a('s_cmp_lg_u32', S(2), 0)
    a('s_cbranch_scc1', 'EP_skip')
    a('s_add_u32', sEp, sEp, 1)
    a('v_mov_b32', t0, sEp)
    a('s_mov_b32', st0, hex(EPOCH))
    a('s_mov_b64', 'exec', 1)
    a('buffer_store_dword', t0, 'off', RWS, st0, mods='sc1')
    a('s_mov_b64', 'exec', -1)
    a.label('EP_skip')
    steps = [(ks, j) for ks in range(KS) for j in range(8)]
    ends = {}
    cnt = lambda L: sum(4 if (j & 3) < 2 else 3 for _, j in L)
    n1 = cnt(steps)
    when = {}
    for P in range(2):
        for jb in (0, 2):
            for ks in range(KS, 20):
                steps += [(ks, 4*P + jb), (ks, 4*P + jb + 1)]
                when[(P, jb, ks)] = cnt(steps)
            ends[(P, jb)] = cnt(steps)
    NM = cnt(steps)
    g0 = NM + E('BURST', 30)
    sc = Sched(a)
    sc.step = E('VSTEP', 3)
    for ks in range(NUP, 20):
        def d1(ks=ks):
            a('s_add_u32', 'm0', sLds, 8192*ks)
            a('buffer_load_dwordx4', vdma, RWS, sHT, mods='offen' + LD + ' lds')
        def d2(ks=ks):
            dt[ks] = a('buffer_load_dwordx4', vdma2, RWS, sHT, mods='offen offset:1024' + LD + ' lds')
            a('s_add_u32', sHT, sHT, 131072)
        at = E('DSTEP', 12)*(ks - NUP)
        sc.add(1, at, 2, d1); sc.add(1, at + E('DSTEP', 12)//2, 2, d2)
    bars = eval(os.environ.get('BARS', '{30: 3, 86: 6, 170: 11, 226: 15, 258: 19, 300: 19}'))
    lastbar = min(k for k, v in bars.items() if v == 19)
    fl_at = E('FL_AT', 240)
    FC = Flags(a, 'CF', vfv, vfl, sC3)
    sc.add(1, fl_at - 60, 1, FC.load)
    sc.add(1, fl_at, 2, FC.check)
    for n in range(4):
        sc.op(1, fl_at, 1, 'buffer_load_dwordx4', (CSR[n], vq16, RWS, sCS3 if n == 3 else sCS0), f'offen offset:{64*(n % 3)} sc1')
    for op in late_setup_ops(): sc.op(0, 198, 1, *op)
    NANQ = CSR[0]
    c_at, cbar = E('C_AT', 110), E('CBAR', 258)
    assert cbar in bars
    for d in range(4): sc.op(0, c_at, 1, 'v_mov_b32', (NANQ[d], -1), '')
    for k in range(8):
        if k == 4: sc.op(0, c_at + E('CGAP', 8)*k, 1, 's_add_u32', (sClr, sClr, TS), '')
        sc.op(0, c_at + E('CGAP', 8)*k, 1, 'buffer_store_dwordx4', (NANQ, l16, RWS, sClr), f'offen offset:{(0, 1024, 2048, 2560)[k & 3]} sc1')
    sc.op(0, c_at + E('CGAP', 8)*8, 1, 'buffer_store_dword', (NANQ[0], vsqs, RWS, sSQs), 'offen sc1', tok=(T, 'clr'))
    assert c_at + E('CGAP', 8)*8 + 4 < fl_at
    sc.add(1, cbar + 1, 1, lambda: publish(a, sMe, 0))
    F3 = Flags(a, 'F3', vfv, vf3, sF3)
    sc.add(1, E('F3_AT', 470) - 70, 1, F3.load)
    sc.add(1, E('F3_AT', 470), 2, F3.check)
    sq_at = max(lastbar + 2, 226)
    assert any(sq_at + 24 <= k <= ends[(0, 0)] for k in bars)
    for i in range(3):
        for hf in range(2):
            sc.op(0, sq_at + 2*i, 1, 'ds_read_b64_tr_b16', (SQF[i][2*hf:2*hf+2], vsq), f'offset:{8192*i + 1024*hf}')
    def sq_mf():
        a(MFMA, SQA, SQF[1], SQF[1], 0)
        a(MFMA, SQA, SQF[2], SQF[2], SQA)
        a('s_bitcmp1_b32', sC, 2)
        a('s_cbranch_scc1', 'SQ_skip')
        a(MFMA, SQA, SQF[0], SQF[0], SQA)
        a.label('SQ_skip')
    sc.add(0, sq_at + 16, 2, sq_mf)
    sc.op(0, sq_at + 20, 1, 'v_cndmask_b32', (MT[0], SQA[0], SQA[1], MSK[0]), '')
    sc.op(0, sq_at + 20, 1, 'v_cndmask_b32', (MT[0], MT[0], SQA[2], MSK[1]), '')
    sc.op(0, sq_at + 20, 1, 'v_cndmask_b32', (MT[0], MT[0], SQA[3], MSK[2]), '')
    sc.op(0, sq_at + 20, 1, 'buffer_store_dword', (MT[0], vsqs, RWS, sSQs), 'offen sc1')
    for P in range(2):
        e0 = ends[(P, 0)]
        for k in range(2):
            sc.op(0, e0 + 3, 1, 'v_mul_f32', (MT[k], '0xbacccccd', ACC[3][4*P + k][0]), '')
        for k in range(2):
            sc.op(0, e0 + 3, 1, 'ds_write_b32', (vsw[k], MT[k]), f'offset:{16*P}', tok=(T, 'mw'))
        def mbar():
            a.wait_lg_tok(T['mw'])
            a('s_barrier')
        sc.add(0, e0 + 10, 2, mbar)
        for k in range(4):
            sc.op(0, e0 + 10, 1, 'ds_read_b32', (MEAN[4*P + k], vsr[k]), f'offset:{16*P}')
        for c, mn, ops, mods in epi_ops(P, 0): sc.op(0, e0 + 16, c, mn, ops, mods)
        for c, mn, ops, mods in epi_ops(P, 2, pk=(P == 1)): sc.op(0, ends[(P, 2)] + 3, c, mn, ops, mods)
        sc.add(0, ends[(P, 2)] + 3, 0, lambda P=P: T.__setitem__(f'st{P}', sc.n))
    GA, GB = 100000, 200000
    wd0 = E('WD_AT', 190)
    for f in range(70):
        w = WDL[f][1]
        av = max(28*(w[1] + 1) + 1, wd0) if w[0] == 'p1' else when[w] + 1
        sc.load(av, 2*f + 1, lambda f=f: wd_load(f))
    def hl(i, j, P):
        assert f'st{P}' in T, (i, j, sc.n)
        hload(i, j)
    for i in range(7):
        for j in range(2): sc.load(E('HA_AT', 530), 10*i - 10 + j, lambda i=i, j=j: hl(i, j, 0))
    sc.sort()

    GST = eval(os.environ.get('GST', '[]'))
    print('n1', n1, 'ends', ends, 'NM', NM, file=sys.stderr)
    base = [0]*8
    cover = [1]
    def bread(s, hf):
        ks, j = steps[s]
        assert ks <= cover[0], (s, ks, cover)
        c = 1
        if base[j] != ks >> 3:
            a('v_add_u32', VRD[j], ((ks >> 3) - base[j])*65536, VRD[j])
            base[j] = ks >> 3
            c += 1
        a('ds_read_b64_tr_b16', BF[s & 7][2*hf:2*hf+2], VRD[j], mods=f'offset:{(ks & 7)*8192 + 1024*hf}')
        return c
    a.wait_vm_tok(dt[1])
    a('s_barrier')
    stamp(a, 10)
    for s in range(8):
        for hf in range(2): bread(s, hf)
    seen = set()
    for s, (ks, j) in enumerate(steps):
        for k in range(4 if (j & 3) < 2 else 3):
            if sc.n in bars:
                a.wait_vm_tok(dt[bars[sc.n]])
                if sc.n == cbar: a.wait_vm_tok(T['clr'])
                a('s_barrier')
                cover[0] = bars[sc.n]
            if sc.n == ends[(0, 2)]: stamp(a, 11)
            if sc.n in GST: stamp(a, 1 + GST.index(sc.n))
            acc = ACC[k][j]
            a(MFMA, acc, W1(ks, k), BF[s & 7], acc if acc.idx in seen else 0)
            seen.add(acc.idx)
            sc.n += 1
            room = 2
            if k < 2 and 1 <= s and s + 7 < len(steps):
                room -= bread(s + 7, k)
            sc.fill(room)
    print('after gemm1:', sc.left(), 'first epilogue done at', T['st0'], file=sys.stderr)
    stamp(a, 12)
    for nu in range(5):
        a('ds_read_b64_tr_b16', RES[nu], vres, mods=f'offset:{4096*nu}')
    a('s_lshl_b32', st0, S(15), 2)
    a('s_add_u32', st0, st0, sStat)
    a('v_and_b32', t0, 15, lane)
    a('v_lshl_add_u32', t1, t0, 5, st0)
    a('ds_read_b32', RS2, t1)
    a('v_lshlrev_b32', t0, 5, t0)
    sc.burst(E('BEV', 10))
    print('after burst:', sc.left(), file=sys.stderr)
    g0 = sc.n
    for i in range(7, 14):
        for j in range(2): sc.load(g0, 10*i - 10 + j, lambda i=i, j=j: hl(i, j, 1))
    for i in range(14):
        for j in (2, 3): sc.load(g0 + max(10*i + 5*(j - 1), E('HB_AT', 60)), 140 + 10*i - 10 + j, lambda i=i, j=j: hl(i, j, 1))
    sc.sort()
    sc.step = E('VSTEP2', 2)
    hcheck(0, 0)
    for i in range(14):
        for j in range(2):
            for nu in range(5):
                a(MFMA, ACC2[j][nu], WD(5*i + nu), HF[2*i + j], ACC2[j][nu] if i else 0)
                sc.n += 1
                if (j, nu) == (1, 1) and i < 13: hcheck(i + 1, 0)
                elif (j, nu) != (1, 2): sc.fill(2)
    print('after gemm2a:', sc.left(), file=sys.stderr)
    stamp(a, 13)
    def sqload():
        for k in range(2):
            a('buffer_load_dwordx4', BFQ[k], t0, RWS, sSQl, mods=f'offen offset:{16*k} sc1')
    sqload()
    a.wait(lg=0)
    a('s_barrier')
    vw, vr = t1, t2
    a('s_mul_i32', st0, sw, 5120)
    a('v_add_u32', vw, st0, l16)
    a('s_mul_i32', st0, sw, 20480)
    a('v_add_u32', vr, st0, l16)
    vw2 = vsqs
    a('v_add_u32', vw2, 40960, vw)
    g1 = sc.n
    for j in range(2):
        for nu in range(5):
            sc.op(0, g1 + 2 + 5*(5*j + nu), 1, 'ds_write_b128', (vw, ACC2[j][nu]), f'offset:{20480*j + 1024*nu}')
    def sqbad():
        a('v_max3_u32', vck, BFQ[0][0], BFQ[0][1], BFQ[0][2])
        a('v_max3_u32', vck, vck, BFQ[0][3], BFQ[1][0])
        a('v_max3_u32', vck, vck, BFQ[1][1], BFQ[1][2])
        a('v_max_u32', vck, vck, BFQ[1][3])
        a('v_cmp_eq_u32', 'vcc', -1, vck)
    sc.add(1, g1 + 64, 2, lambda: guarded('SQC', sqbad, sqload))
    rec = []
    r = lambda mn, *ops, mods='': rec.append((mn, ops, mods))
    for k in range(4): r('v_add_f32', BFQ[0][k], BFQ[0][k], BFQ[1][k])
    r('v_add_f32', BFQ[0][0], BFQ[0][0], BFQ[0][1])
    r('v_add_f32', BFQ[0][2], BFQ[0][2], BFQ[0][3])
    r('v_add_f32', BFQ[0][0], BFQ[0][0], BFQ[0][2])
    s2, tt = BFQ[0][0], BFQ[0][1]
    r('v_mul_f32', tt, RS2, RS2)
    r('v_mul_f32', s2, '0x3acccccd', s2)
    r('v_sub_f32', s2, s2, tt)
    r('v_max_f32', s2, 0, s2)
    rbf(r, s2)
    r('v_add_f32', s2, '0x3727c5ac', s2)
    rbf(r, s2)
    r('v_sqrt_f32', s2, s2)
    rbf(r, s2)
    r('v_rcp_f32', s2, s2)
    r('v_mul_f32', RS2, s2, s2)
    for mn, ops, mods in rec: sc.op(1, g1 + 67, 2 if mn in TRANS else 1, mn, ops, mods)
    NT = E('NT', 4)
    seq = [(i, j, nu) for i in range(14 - NT) for j in (2, 3) for nu in range(5)]
    tail0 = len(seq)
    seq += [(i, j, nu) for j in (2, 3) for nu in range(5) for i in range(14 - NT, 14)]
    for k, (j, nu) in enumerate([(j, nu) for j in (2, 3) for nu in range(5)]):
        sc.op(0, g1 + tail0 + NT*(k + 1) + 2, 1, 'ds_write_b128', (vw2, ACC2[j][nu]), f'offset:{20480*(j - 2) + 1024*nu}')
    chk = {}
    for i in range(1, 14):
        chk[(10*i - 4) if i < 14 - NT else (tail0 - 2 - 2*(13 - i))] = i
    issued = lambda i: not any(e[0] in (140 + 10*i - 10 + 2, 140 + 10*i - 10 + 3) for e in sc.mem)
    assert issued(0)
    hcheck(0, 1)
    skip = False
    for k, (i, j, nu) in enumerate(seq):
        a(MFMA, ACC2[j][nu], WD(5*i + nu), HF[2*i + (j & 1)], ACC2[j][nu] if i else 0)
        sc.n += 1
        if k in chk:
            assert issued(chk[k]), chk[k]
            hcheck(chk[k], 1); skip = True
        elif skip: skip = False
        else: sc.fill(2)
    while any(sc.left()):
        sc.n += 1; sc.fill(2)
    a.wait(lg=0)
    a('s_barrier')
    RD = [V(16 + 4*k, 4) for k in range(20)]
    for nu in range(5):
        for k in range(4):
            a('ds_read_b128', RD[4*nu + k], vr, mods=f'offset:{5120*k + 1024*nu}')
    X = V(96, 4)
    Q = [V(100, 4), V(104, 4), V(108, 2)]
    vo2 = V(110)
    a('v_and_b32', t0, 15, lane)
    a('v_mul_u32_u24', t0, 1280, t0)
    a('v_lshrrev_b32', t1, 1, vq16)
    a('v_add_u32', vo2, t0, t1)
    rp = V(12, 2)
    for nu in range(5):
        C, C2 = RD[4*nu], RD[4*nu + 2]
        for h in range(2):
            a('v_pk_add_f32', C[2*h:2*h+2], C[2*h:2*h+2], RD[4*nu + 1][2*h:2*h+2])
            a('v_pk_add_f32', C2[2*h:2*h+2], C2[2*h:2*h+2], RD[4*nu + 3][2*h:2*h+2])
        a('v_lshlrev_b32', X[0], 16, RES[nu][0])
        a('v_and_b32', X[1], '0xffff0000', RES[nu][0])
        a('v_lshlrev_b32', X[2], 16, RES[nu][1])
        a('v_and_b32', X[3], '0xffff0000', RES[nu][1])
        for h in range(2):
            a('v_pk_add_f32', C[2*h:2*h+2], C[2*h:2*h+2], C2[2*h:2*h+2])
        for h in range(2):
            a('v_pk_fma_f32', C[2*h:2*h+2], C[2*h:2*h+2], rp, X[2*h:2*h+2], mods='op_sel:[0,1,0] op_sel_hi:[1,1,1]')
        q = Q[nu >> 1]
        for h in range(2):
            a('v_cvt_pk_bf16_f32', q[2*(nu & 1) + h], C[2*h], C[2*h+1])
        if nu & 1:
            a('v_permlane16_swap_b32', q[0], q[2])
            a('v_permlane16_swap_b32', q[1], q[3])
            a('buffer_store_dwordx4', q, vout, ROUT, sOut, mods=f'offen offset:{64*(nu >> 1)}')
    a('buffer_store_dwordx2', Q[2], vo2, ROUT, sOut, mods='offen offset:128')
    return slow

def slow_paths(a, slow):
    for name, bad, reload in slow:
        a.label(name + '_slow')
        a.wait(lg=0)
        a('s_mov_b32', sCnt, SPIN)
        reload()
        a.spin_head(name + '_spin')
        bad()
        a('s_cbranch_vccz', name + '_back')
        reload()
        a('s_sub_u32', sCnt, sCnt, 1)
        a('s_cbranch_scc0', name + '_spin')
        a.wait(vm=0)
        a('s_branch', name + '_back')

def kernel(a):
    stamp(a, 0)
    if STAMP:
        for i in range(1, 15): a('s_mov_b32', S(70 + 2*i), S(70))
    a('s_cmp_lt_u32', S(2), 256)
    a('s_cbranch_scc1', 'K_go')
    a('s_endpgm')
    a.label('K_go')
    load_args(a)
    if E('PF0', 1): code_prefetch(a, 'PC0')
    wave_id(a, sw, t0)
    a('v_and_b32', lane, 63, V(0))
    a('v_lshlrev_b32', l16, 4, lane)
    a('v_and_b32', vq16, 48, lane)
    a('s_cmp_ge_u32', S(2), 160)
    a('s_cbranch_scc1', 'K_helper')
    tht = conv_wg(a)
    gemm_setup(a)
    a.wait_vm_tok(tht)
    a('s_barrier')
    publish_rep(a, 'K_pub', FLH, HSTR, S(2))
    a('s_branch', 'K_gemm')
    a.label('K_helper')
    helper_wg(a)
    gemm_setup(a)
    a.label('K_gemm')
    a('s_cmp_lg_u32', sw, 0)
    a('s_cbranch_scc1', 'C2_skip')
    rep_base(a, st2, FLH, HSTR)
    a('v_min_u32', t2, 39, lane)
    a('v_lshlrev_b32', t2, 7, t2)
    Flags(a, 'C2', BF[2], t2, st2, tmp=S(68, 2)).wait()
    a.label('C2_skip')
    a.wait(lg=0)
    a('s_barrier')
    stamp(a, 9)
    slow = gemms(a)
    if STAMP: a.wait(vm=0)
    stamp_flush(a, 0, 15, sw, RWS)
    a('s_endpgm')
    slow_paths(a, slow)
    a.items.append('CODE_END:')

if __name__ == '__main__':
    txt = build([(NAME + '_kernel', kernel, 256, 163840, 512, 256)])
    txt = txt.replace(f'@launch kernel={NAME}_kernel grid', '@launch grid')
    open(sys.argv[1], 'w').write(txt)
```

```python
import re

class Reg:
    def __init__(self, kind, idx, n=1):
        self.kind, self.idx, self.n = kind, idx, n
    def __str__(self):
        if self.n == 1:
            return f"{self.kind}{self.idx}"
        return f"{self.kind}[{self.idx}:{self.idx+self.n-1}]"
    __repr__ = __str__
    def __getitem__(self, k):
        if isinstance(k, slice):
            a = k.start or 0
            b = self.n if k.stop is None else k.stop
            assert 0 <= a < b <= self.n, (self, k)
            return Reg(self.kind, self.idx + a, b - a)
        assert 0 <= k < self.n, (self, k)
        return Reg(self.kind, self.idx + k, 1)
    def sub(self, a, n):
        return self[a:a+n]
    def neg(self):
        return "-" + str(self)

def V(i, n=1): return Reg('v', i, n)
def A(i, n=1): return Reg('a', i, n)
def S(i, n=1): return Reg('s', i, n)

class Alloc:
    def __init__(self, kind, lo, hi):
        self.kind, self.lo, self.hi = kind, lo, hi
        self.free = [True] * (hi + 1)
        self.top = lo
    def get(self, n=1, align=None):
        if align is None:
            align = 1 if n == 1 else (2 if self.kind != 's' else (2 if n == 2 else 4))
        i = self.lo
        while True:
            i = (i + align - 1) // align * align
            assert i + n - 1 <= self.hi, f"out of {self.kind} registers (want {n})"
            if all(self.free[i:i+n]):
                for j in range(i, i+n): self.free[j] = False
                self.top = max(self.top, i + n)
                return Reg(self.kind, i, n)
            i += 1
    def put(self, r):
        for j in range(r.idx, r.idx + r.n):
            assert not self.free[j]
            self.free[j] = True
    def take(self, r):
        for j in range(r.idx, r.idx + r.n):
            assert self.free[j], r
            self.free[j] = False
        self.top = max(self.top, r.idx + r.n)
        return r

_RE_REG = re.compile(r'^-?(?:abs\()?\|?([vas])(?:(\d+)|\[(\d+):(\d+)\])\|?\)?$')
def regs_of(op):
    op = str(op).strip()
    if op in ('vcc',): return {('s', 106), ('s', 107)}
    if op == 'vcc_lo': return {('s', 106)}
    if op == 'vcc_hi': return {('s', 107)}
    if op == 'exec': return {('s', 126), ('s', 127)}
    if op == 'exec_lo': return {('s', 126)}
    if op == 'exec_hi': return {('s', 127)}
    if op == 'm0': return {('s', 124)}
    m = _RE_REG.match(op)
    if not m: return set()
    k = m.group(1)
    if m.group(2) is not None:
        return {(k, int(m.group(2)))}
    return {(k, i) for i in range(int(m.group(3)), int(m.group(4)) + 1)}

TRANS = ('v_exp_f32', 'v_log_f32', 'v_rcp_f32', 'v_rsq_f32', 'v_sqrt_f32', 'v_sin_f32', 'v_cos_f32', 'v_rcp_iflag_f32')
EXEC = {('s', 126), ('s', 127)}
VCC = {('s', 106), ('s', 107)}
M0 = {('s', 124)}

class Inst:
    __slots__ = ('mn', 'ops', 'mods', 'cls', 'wr', 'rd', 'srcA', 'srcC', 'dst', 'dpp', 'ws', 'target', 'lanesel', 'sdata', 'text', 'constrd')
    def __init__(self, mn, ops, mods):
        self.mn, self.ops, self.mods = mn, [str(o) for o in ops], mods
        self.ws = 1
        self.target = None
        self.srcA = set(); self.srcC = set(); self.lanesel = set(); self.sdata = set(); self.constrd = set()
        self.dpp = any(t in mods for t in ('row_', 'quad_perm', 'wave_', 'dpp'))
        o = self.ops
        R = [regs_of(x) for x in o]
        U = lambda l: set().union(*l) if l else set()
        wr, rd = set(), set()
        if mn.startswith('v_mfma'):
            self.cls = 'mfma'
            wr = R[0]; self.srcA = R[1] | R[2]; self.srcC = R[3]; rd = self.srcA | self.srcC
        elif mn.startswith('v_'):
            self.cls = 'valu'
            if mn.startswith('v_cmp'):
                wr = R[0]; rd = U(R[1:])
                assert not mn.startswith('v_cmpx')
            elif mn.startswith('v_permlane') and 'swap' in mn:
                wr = R[0] | R[1]; rd = set(wr)
            elif mn in ('v_add_co_u32', 'v_sub_co_u32', 'v_subrev_co_u32'):
                wr = R[0] | R[1]; rd = U(R[2:])
            elif mn in ('v_addc_co_u32', 'v_subb_co_u32'):
                wr = R[0] | R[1]; rd = U(R[2:])
            elif mn in ('v_fmac_f32', 'v_dot2c_f32_bf16', 'v_pk_fmac_f16'):
                wr = R[0]; rd = U(R)
            elif mn in ('v_readlane_b32',):
                wr = R[0]; rd = U(R[1:]); self.lanesel = R[2]
            elif mn in ('v_writelane_b32',):
                wr = R[0]; rd = U(R); self.lanesel = R[2]
            elif mn == 'v_nop':
                pass
            else:
                wr = R[0]; rd = U(R[1:])
                if self.dpp: rd |= R[0]
            self.constrd = {r for r in rd if r[0] == 's'}
        elif mn.startswith('ds_'):
            self.cls = 'ds'
            if mn.startswith('ds_read') or mn.startswith('ds_bpermute') or mn.startswith('ds_permute') or mn.startswith('ds_swizzle'):
                wr = R[0]; rd = U(R[1:])
            else:
                rd = U(R)
        elif mn.startswith('buffer_') or mn.startswith('global_'):
            self.cls = 'vmem'
            lds = ' lds' in (' ' + mods)
            if 'load' in mn:
                if lds:
                    rd = U(R) | M0
                else:
                    wr = R[0]; rd = U(R[1:])
            elif 'atomic' in mn:
                rd = U(R)
                if 'sc0' in mods: wr = R[0] if mn.startswith('buffer_') else R[0]
            elif 'store' in mn:
                rd = U(R)
                if 'x3' in mn or 'x4' in mn:
                    self.sdata = R[0] if mn.startswith('buffer_') else R[1]
            else:
                pass
        elif mn.startswith('s_load') or mn in ('s_memtime', 's_memrealtime'):
            self.cls = 'smem'
            wr = R[0]; rd = U(R[1:])
        elif mn.startswith('s_'):
            self.cls = 'salu'
            if mn == 's_nop':
                self.ws = int(o[0]) + 1
            elif mn.startswith('s_cmp') or mn.startswith('s_bitcmp') or mn in ('s_waitcnt', 's_barrier', 's_endpgm', 's_sleep', 's_setprio', 's_setreg_b32', 's_setreg_imm32_b32'):
                rd = U(R)
            elif mn.startswith('s_cbranch') or mn == 's_branch':
                self.target = o[0]
            elif 'saveexec' in mn:
                wr = R[0] | EXEC; rd = U(R[1:]) | EXEC
            elif mn in ('s_addk_i32', 's_mulk_i32', 's_cmov_b32'):
                wr = R[0]; rd = U(R)
            else:
                wr = R[0]; rd = U(R[1:])
        else:
            raise ValueError(mn)
        self.wr, self.rd = wr, rd
        self.text = mn + (' ' + ', '.join(o) if o else '') + (' ' + mods if mods else '')

def need_ws(p, c):
    n = 0
    if p.cls == 'valu':
        pv = {r for r in p.wr if r[0] != 's'}
        ps = {r for r in p.wr if r[0] == 's'}
        isdot = p.mn.startswith('v_dot')
        if pv:
            if c.cls == 'mfma' and pv & c.rd: n = max(n, 3 if isdot else 2)
            if c.cls == 'valu':
                if c.mn in ('v_readlane_b32', 'v_readfirstlane_b32') and pv & c.rd: n = max(n, 1)
                if (c.dpp or c.mn.startswith('v_permlane')) and pv & c.rd: n = max(n, 2)
                if p.mn in TRANS and pv & c.rd: n = max(n, 1)
            if isdot and pv & (c.rd | c.wr):
                if c.mn == p.mn:
                    ab = regs_of(c.ops[1]) | regs_of(c.ops[2])
                    if pv & ab: n = max(n, 3)
                else:
                    n = max(n, 3)
        if ps:
            if c.cls == 'vmem' and ps & c.rd: n = max(n, 5)
            if c.cls == 'valu':
                if ps & c.lanesel: n = max(n, 4)
                if ps & c.constrd: n = max(n, 2)
            if c.cls in ('salu', 'smem') and ps & c.rd: n = max(n, 1)
    elif p.cls == 'mfma':
        big = '32x32' in p.mn
        if c.cls == 'mfma':
            if p.wr & c.srcC and not (p.wr == c.srcC and p.mn == c.mn): n = max(n, 10 if big else 6)
            if p.wr & c.srcA: n = max(n, 12 if big else 8)
            if p.wr & c.wr and not (p.wr & c.srcC): n = max(n, 12 if big else 8)
        elif c.cls in ('valu', 'vmem', 'ds'):
            if p.wr & (c.rd | c.wr): n = max(n, 12 if big else 8)
            if c.cls == 'valu' and p.srcC & c.wr: n = max(n, 7 if big else 3)
    elif p.cls == 'salu':
        if p.wr & M0 and c.cls == 'vmem' and c.rd & M0: n = max(n, 1)
        if p.wr & M0 and c.cls == 'ds' and 'addtid' in c.mn: n = max(n, 1)
    elif p.cls == 'vmem':
        if p.sdata and p.sdata & c.wr:
            n = max(n, 2 if c.cls in ('valu', 'mfma') else 1)
    return n

class Label:
    def __init__(self, name): self.name = name

class WState:
    def __init__(self):
        self.vm = []; self.lg = []
        self.vmseq = 0; self.lgseq = 0
    def copy(self):
        w = WState(); w.vm = list(self.vm); w.lg = list(self.lg); w.vmseq = self.vmseq; w.lgseq = self.lgseq
        return w

class Asm:
    def __init__(self):
        self.items = []
        self.w = WState()
        self.saved = {}
        self.alive = True
        self.nlab = 0
        self.autowait = True
        self.gtok = 0
        self.spin = set()
    def newlabel(self, p='L'):
        self.nlab += 1
        return f"{p}_{self.nlab}"
    def comment(self, t):
        self.items.append('; ' + t)
    def _emit_wait(self, vm=None, lg=None):
        parts = []
        if vm is not None:
            vm = min(vm, 63)
            if len(self.w.vm) > vm:
                parts.append(f"vmcnt({vm})")
                self.w.vm = self.w.vm[len(self.w.vm) - vm:] if vm else []
        if lg is not None:
            lg = min(lg, 15)
            if any(e[1] == 'smem' for e in self.w.lg): lg = 0
            if len(self.w.lg) > lg:
                parts.append(f"lgkmcnt({lg})")
                self.w.lg = self.w.lg[len(self.w.lg) - lg:] if lg else []
        if parts:
            self.items.append(Inst('s_waitcnt', [], ' '.join(parts)))
    def wait(self, vm=None, lg=None):
        self._emit_wait(vm, lg)
    def wait_vm_tok(self, tok):
        hit = [i for i, e in enumerate(self.w.vm) if tok in e[2]]
        if hit: self._emit_wait(vm=len(self.w.vm) - 1 - hit[-1])
    def wait_lg_tok(self, tok):
        hit = [i for i, e in enumerate(self.w.lg) if tok in e[2]]
        if hit: self._emit_wait(lg=len(self.w.lg) - 1 - hit[-1])
    def needs(self, ins):
        touch = ins.rd | ins.wr
        vmn = None; lgn = None
        for i, e in enumerate(self.w.vm):
            if e[0] & touch:
                if ins.cls == 'vmem' and not (e[0] & ins.rd): continue
                vmn = len(self.w.vm) - 1 - i
        for i, e in enumerate(self.w.lg):
            if e[0] & touch:
                if ins.cls == 'ds' and e[1] == 'ds' and not (e[0] & ins.rd): continue
                lgn = len(self.w.lg) - 1 - i
        return vmn, lgn
    def prewait(self, lst, dry=False):
        vm = lg = None
        for mn, ops, mods in lst:
            v, l = self.needs(Inst(mn, ops, mods))
            if v is not None: vm = v if vm is None else min(vm, v)
            if l is not None: lg = l if lg is None else min(lg, l)
        need = (vm is not None and len(self.w.vm) > min(vm, 63)) or (lg is not None and len(self.w.lg) > min(lg, 15))
        if need and not dry: self._emit_wait(vm, lg)
        return need
    def __call__(self, mn, *ops, mods=''):
        assert self.alive, "emitting dead code"
        ins = Inst(mn, ops, mods)
        if self.autowait:
            touch = ins.rd | ins.wr
            vmn = None; lgn = None
            for i, e in enumerate(self.w.vm):
                if e[0] & touch:
                    if ins.cls == 'vmem' and not (e[0] & ins.rd): continue
                    vmn = len(self.w.vm) - 1 - i
            for i, e in enumerate(self.w.lg):
                if e[0] & touch:
                    if ins.cls == 'ds' and e[1] == 'ds' and not (e[0] & ins.rd): continue
                    lgn = len(self.w.lg) - 1 - i
            if vmn is not None or lgn is not None:
                self._emit_wait(vmn, lgn)
        self.items.append(ins)
        tok = None
        if ins.cls == 'vmem':
            self.gtok += 1; tok = self.gtok
            self.w.vm.append((frozenset(ins.wr), 'vm', frozenset([tok])))
        elif ins.cls == 'ds':
            self.gtok += 1; tok = self.gtok
            self.w.lg.append((frozenset(ins.wr), 'ds', frozenset([tok])))
        elif ins.cls == 'smem':
            self.gtok += 1; tok = self.gtok
            self.w.lg.append((frozenset(ins.wr), 'smem', frozenset([tok])))
        elif mn == 's_waitcnt':
            raise ValueError("use wait()")
        if ins.target is not None:
            if ins.target in self.saved and self.saved[ins.target] == 'placed':
                assert not self.w.lg, "backward branch with LDS/SMEM ops outstanding"
                assert ins.target in self.spin or not any(e[0] for e in self.w.vm), "backward branch with loads outstanding"
            else:
                self.saved.setdefault(ins.target, []).append(self.w.copy())
            if mn == 's_branch': self.alive = False
        if mn == 's_endpgm': self.alive = False
        return tok
    def label(self, name, loop=False):
        states = self.saved.get(name, [])
        assert states != 'placed'
        if self.alive: states = states + [self.w]
        assert states, f"label {name} unreachable"
        if loop:
            assert self.alive
            assert not self.w.lg and not any(e[0] for e in self.w.vm), "loop head with loads outstanding"
        def merge(lists):
            n = max(len(l) for l in lists)
            out = []
            for i in range(n):
                regs = set(); kind = None; toks = set()
                for l in lists:
                    j = len(l) - n + i
                    if j >= 0:
                        regs |= l[j][0]; toks |= l[j][2]
                        if kind is None or l[j][1] == 'smem': kind = l[j][1]
                out.append((frozenset(regs), kind, frozenset(toks)))
            return out
        w = WState()
        same_vm = all(s.vm == states[0].vm for s in states)
        same_lg = all(s.lg == states[0].lg for s in states)
        w.vm = list(states[0].vm) if same_vm else merge([s.vm for s in states])
        w.lg = list(states[0].lg) if same_lg else merge([s.lg for s in states])
        w.vmseq = max(s.vmseq for s in states); w.lgseq = max(s.lgseq for s in states)
        self.w = w
        self.saved[name] = 'placed'
        self.items.append(Label(name))
        self.alive = True
    def spin_head(self, name):
        self.label(name)
        self.spin.add(name)
        self.items.append(Inst('s_waitcnt', [], 'vmcnt(0)'))
        self.w.vm = []
    def reset(self):
        self.w = WState(); self.alive = True

    def finalize(self):
        items = self.items
        out = []
        labpos = {}
        branches = {}
        for it in items:
            if isinstance(it, Inst) and it.target is not None:
                branches.setdefault(it.target, []).append(it)
        prevmap = {}
        seq = []
        MAXW = 13
        def preds(idx, lst):
            res = []
            j = idx - 1
            while j >= 0:
                it = lst[j]
                if isinstance(it, Label):
                    for b in branches.get(it.name, []):
                        if id(b) in pos: res.append(pos[id(b)])
                        else: res.append(('orig', origpos[id(b)]))
                elif isinstance(it, Inst):
                    if it.mn not in ('s_branch', 's_endpgm'): res.append(j)
                    break
                j -= 1
            return res
        origpos = {id(it): i for i, it in enumerate(items)}
        pos = {}
        def walk(lst, idx, dist, c, isorig):
            need = 0
            stack = [(isorig, idx, dist)]
            seen = set()
            while stack:
                o, i, d = stack.pop()
                if (o, i, d) in seen: continue
                seen.add((o, i, d))
                L = items if o else out
                p = L[i]
                need = max(need, need_ws(p, c) - d)
                d2 = d + p.ws
                if d2 >= MAXW: continue
                j = i - 1
                while j >= 0:
                    it = L[j]
                    if isinstance(it, Label):
                        for b in branches.get(it.name, []):
                            if id(b) in pos: stack.append((False, pos[id(b)], d2))
                            else: stack.append((True, origpos[id(b)], d2))
                    elif isinstance(it, Inst):
                        if it.mn not in ('s_branch', 's_endpgm'): stack.append((o, j, d2))
                        break
                    j -= 1
            return need
        for it in items:
            if isinstance(it, Inst):
                need = 0
                j = len(out) - 1
                while j >= 0:
                    q = out[j]
                    if isinstance(q, Label):
                        for b in branches.get(q.name, []):
                            if id(b) in pos: need = max(need, walk(out, pos[id(b)], 0, it, False))
                            else: need = max(need, walk(items, origpos[id(b)], 0, it, True))
                    elif isinstance(q, Inst):
                        if q.mn not in ('s_branch', 's_endpgm'): need = max(need, walk(out, j, 0, it, False))
                        break
                    j -= 1
                if need > 0:
                    out.append(Inst('s_nop', [need - 1], ''))
                pos[id(it)] = len(out)
            out.append(it)
        txt = []
        for it in out:
            if isinstance(it, Inst): txt.append('  ' + it.text)
            elif isinstance(it, Label): txt.append(it.name + ':')
            else: txt.append(it)
        return '\n'.join(txt) + '\n'
```

```python
from mk4a import *

vdma2, RS2, vout = V(13), V(13), V(248)
ACC = [[V(16 + 32*n + 4*j, 4) for j in range(8)] for n in range(3)]
ACC.append({j: V(112 + 4*((j >> 2)*2 + (j & 1)), 4) for j in (0, 1, 4, 5)})
CSR = [V(128 + 4*n, 4) for n in range(4)]
BF = [V(208 + 4*i, 4) for i in range(8)]
VRD = [V(240 + i) for i in range(8)]
MEAN = V(176, 8)
vsr = [vst, V(184), V(185), V(186)]
vsw = [V(187), V(188)]
MT = [V(189), V(190)]
SQF = [V(192 + 4*i, 4) for i in range(3)]
SQA = V(204, 4)
vsq, vsqs, vf3 = V(250), V(251), V(253)
SQL = V(184, 8)
RES = [V(144, 2), V(146, 2), V(148, 2), V(150, 2), V(14, 2)]
ACC2 = [[V(208 + 4*nu, 4) for nu in range(5)], [V(228 + 4*nu, 4) for nu in range(5)],
        [V(176 + 4*nu, 4) for nu in range(5)], [V(196, 4), V(200, 4), V(204, 4), V(128, 4), V(132, 4)]]
MSK = [S(50, 2), S(52, 2), S(54, 2)]
WDL = [(W1(ks, n), ('p1', ks)) for ks in range(4) for n in range(4)]
WDL += [(V(152 + 4*f, 4), ('p1', 4 + (f >= 2))) for f in range(6)]
WDL += [(W1(ks, 3), (1, 0, ks)) for ks in range(KS, 20)]
WDL += [(W1(ks, n), (1, 2, ks)) for ks in range(KS, 20) for n in range(3)]
def WD(f): return WDL[f][0]
sMV, sDump, sF3, sClr = S(34, 2), S(12), S(49), S(39)
HF0 = [ACC[n][j] for j in (0, 1) for n in range(4)] + [ACC[n][j] for j in (2, 3) for n in range(3)]
HF1 = [ACC[n][j] for j in (4, 5) for n in range(4)] + [ACC[n][j] for j in (6, 7) for n in range(3)]
HF = HF0 + HF1

def gemm_setup(a):
    srd(a, ROUT, P_OUT, S_*D_*2)
    cs_bases(a)
    a('s_lshl_b32', sHT, sw, 15)
    a('s_lshl_b32', st0, sB, 8)
    a('s_add_u32', sHT, sHT, st0)
    a('s_add_u32', sHT, sHT, hex(HT))
    a('s_lshl_b32', sLds, sw, 11)
    half, cbk, mu = S(13), S(14), S(15)
    a('s_bfe_u32', half, sC, (1 << 16) | 2)
    a('s_lshr_b32', cbk, sC, 3)
    a('s_lshl_b32', cbk, cbk, 2)
    a('s_and_b32', st0, sC, 3)
    a('s_add_u32', cbk, cbk, st0)
    a('s_and_b32', st0, sw, 1)
    a('s_lshl_b32', sRot, st0, 1)
    a('s_lshr_b32', st1, sw, 1)
    a('s_or_b32', sRot, sRot, st1)
    a('s_lshl_b32', mu, st1, 2)
    a('s_add_u32', mu, mu, st0)
    a('s_lshl_b32', st0, half, 1)
    a('s_add_u32', mu, mu, st0)
    a('s_mul_i32', st0, cbk, 5*TS)
    a('s_mul_i32', st1, sw, 14*1024)
    a('s_add_u32', st0, st0, st1)
    for nu in range(5):
        a('s_add_u32', sWn[nu], st0, hex(WP2 + nu*TS))
    a('s_lshl_b32', st0, sB, 3)
    a('s_lshl_b32', st2, half, 1)
    a('s_add_u32', st2, st2, st0)
    a('s_mul_i32', st2, st2, TS)
    a('s_add_u32', st2, st2, st1)
    for j in range(4):
        a('s_add_u32', sHH[j], st2, hex(HH + ((j & 1) + 4*(j >> 1))*TS))
    a('s_and_b32', st1, sRot, 2)
    a('s_mul_i32', st2, sC, 14*256)
    a('s_add_u32', st2, st2, hex(HH))
    for k in range(2):
        if k: a('s_xor_b32', st1, st1, 2)
        a('s_add_u32', sA[k], st0, st1)
        a('s_mul_i32', sA[k], sA[k], TS)
        a('s_add_u32', sA[k], sA[k], st2)
    a('s_add_u32', st1, st0, mu)
    a('s_mul_i32', sOut, st1, 16*1280)
    a('s_mul_i32', st2, cbk, 160)
    a('s_add_u32', sOut, sOut, st2)
    a('s_lshl_b32', sSQl, st1, 9)
    a('s_add_u32', sSQl, sSQl, hex(SQ))
    a('s_add_u32', st1, st0, cbk)
    a('s_lshl_b32', sSQs, st1, 9)
    a('s_lshl_b32', st1, half, 2)
    a('s_add_u32', st1, st1, sw)
    a('s_lshl_b32', st1, st1, 2)
    a('s_add_u32', sSQs, sSQs, st1)
    a('s_add_u32', sSQs, sSQs, hex(SQ))
    a('s_cmp_eq_u32', cbk, 0)
    a('s_cselect_b32', sStat, 3*8192, 0)
    a('s_lshl_b32', sC3, sC, 7)
    a('s_lshl_b32', sF3, sB, 11)
    a('s_add_u32', sF3, sF3, hex(FL3))
    a('s_lshl_b32', st1, sw, 2)
    a('s_add_u32', sMe, sC3, st1)
    a('s_add_u32', sMe, sMe, sF3)
    a('s_add_u32', sC3, sC3, hex(FLC))
    a('s_lshl_b32', st1, sw, 1)
    a('s_add_u32', st1, st1, st0)
    a('s_mul_i32', sClr, st1, TS)
    a('s_mul_i32', st1, sC, 14*256)
    a('s_add_u32', sClr, sClr, st1)
    a('s_add_u32', sClr, sClr, hex(HH))
    a('s_add_u32', sDump, sStat, 1024)
    a('s_cmp_ge_u32', sw, 2)
    a('s_cselect_b32', sMV[1], '0xffff0000', 0)
    a('s_mov_b32', sMV[0], 0)
    q, r, m, x = V(208), V(209), V(210), V(211)
    a('v_lshrrev_b32', q, 4, lane)
    a('v_bfe_u32', r, lane, 2, 2)
    a('v_and_b32', m, 15, lane)
    a('s_and_b32', st1, sw, 1)
    a('s_lshl_b32', st1, st1, 2)
    a('v_or_b32', t0, st1, q)
    a('v_bfe_u32', t1, lane, 1, 3)
    a('v_xor_b32', t0, t0, t1)
    a('v_lshlrev_b32', t0, 5, t0)
    a('v_and_b32', t1, 1, lane)
    a('v_lshl_add_u32', t0, t1, 4, t0)
    a('v_lshl_add_u32', vdma, q, 12, t0)
    a('v_add_u32', vdma2, 16384 - 1024, vdma)
    a('v_and_b32', t0, 1, q)
    a('v_lshl_or_b32', t0, t0, 2, r)
    a('v_lshl_add_u32', t1, q, 3, r)
    a('v_lshlrev_b32', t1, 8, t1)
    a('v_and_b32', t2, 3, lane)
    a('v_lshl_add_u32', t1, t2, 3, t1)
    a('v_xor_b32', x, cbk, t0)
    a('v_lshl_add_u32', vsq, x, 5, t1)
    a('s_lshl_b32', st0, sw, 14)
    a('s_add_u32', st0, st0, 11*8192)
    a('s_mul_i32', st1, sw, 3*8192)
    a('s_cmp_eq_u32', half, 0)
    a('s_cselect_b32', st0, st1, st0)
    a('v_add_u32', vsq, st0, vsq)
    a('v_xor_b32', t0, sRot, t0)
    for j in range(8):
        a('v_xor_b32', VRD[j], j, t0)
        a('v_lshl_add_u32', VRD[j], VRD[j], 5, t1)
    for i in range(3):
        a('v_cmp_eq_u32', MSK[i], i + 1, t2)
    a('v_lshlrev_b32', t0, 5, m)
    a('v_cmp_eq_u32', 'vcc', r, q)
    a('v_mov_b32', t1, hex(OOB))
    a('v_cndmask_b32', vsqs, t1, t0, 'vcc')
    a('v_lshrrev_b32', t0, 1, q)
    a('v_lshl_or_b32', t0, t0, 2, r)
    a('v_xor_b32', t0, mu, t0)
    a('v_lshlrev_b32', t0, 5, t0)
    a('v_lshl_add_u32', t0, t2, 3, t0)
    a('v_lshl_add_u32', t1, q, 2, r)
    a('v_lshl_add_u32', t0, t1, 8, t0)
    a('s_mul_i32', st2, cbk, 80*256)
    a('v_add_u32', vres, st2, t0)
    a('s_lshl_b32', st0, sRot, 2)
    a('s_add_u32', st0, st0, sStat)
    a('v_lshl_add_u32', vst, m, 5, st0)
    a('s_and_b32', st0, sRot, 1)
    a('v_and_b32', t0, 1, q)
    a('v_lshrrev_b32', t2, 1, q)
    a('v_xor_b32', x, st0, t0)
    a('v_mul_u32_u24', x, TS, x)
    a('v_lshl_add_u32', x, m, 4, x)
    a('v_add_u32', t1, sUb, t2)
    a('v_lshl_add_u32', vh01, t1, 8, x)
    a('s_add_u32', st1, sUb, 2)
    a('s_sub_u32', st2, sU3, st1)
    a('v_mul_lo_u32', t1, st2, t2)
    a('v_add_u32', t1, st1, t1)
    a('v_lshl_add_u32', vh23, t1, 8, x)
    a('v_xor_b32', x, st0, t2)
    a('v_mul_u32_u24', x, TS, x)
    a('v_lshl_add_u32', x, m, 4, x)
    a('v_lshl_add_u32', x, t0, 3, x)
    a('s_lshl_b32', st1, st1, 8)
    a('v_add_u32', vh2x, st1, x)
    a('v_mul_u32_u24', t1, 1280, m)
    a('v_lshl_add_u32', t1, t0, 5, t1)
    a('v_lshl_add_u32', vout, t2, 4, t1)
    a('v_and_b32', t1, 3, lane)
    a('v_lshlrev_b32', vfl, 2, t1)
    a('v_lshrrev_b32', t0, 2, lane)
    a('v_lshl_add_u32', vf3, t0, 7, vfl)

def late_setup_ops():
    L = []
    for k in range(1, 4): L.append(('v_xor_b32', (vsr[k], 4*k, vst), ''))
    L.append(('v_lshl_add_u32', (MT[0], lane, 2, sDump), ''))
    L.append(('v_cndmask_b32', (vsw[0], MT[0], vst, sMV), ''))
    L.append(('v_cndmask_b32', (vsw[1], MT[0], vsr[1], sMV), ''))
    return L

def pair_ops(X, Y, cX, cY, jX, jY, Q, pk):
    L = []
    for Z, c, j in ((X, cX, jX), (Y, cY, jY)):
        if pk:
            s = j & 1
            for h in range(2):
                L.append((1, 'v_pk_fma_f32', (Z[2*h:2*h+2], c[2*h:2*h+2], MEAN[j-s:j-s+2], Z[2*h:2*h+2]), f'op_sel:[0,{s},0] op_sel_hi:[1,{s},1]'))
        else:
            for e in range(4): L.append((1, 'v_fmac_f32', (Z[e], c[e], MEAN[j]), ''))
    for e in range(4): L.append((2, 'v_permlane32_swap_b32', (X[e], Y[e]), ''))
    for e in range(4): L.append((1, 'v_max_f32', (X[e], 0, X[e]), ''))
    if pk:
        for h in range(2): L.append((1, 'v_pk_mul_f32', (X[2*h:2*h+2], X[2*h:2*h+2], Y[2*h:2*h+2]), ''))
    else:
        for e in range(4): L.append((1, 'v_mul_f32', (X[e], X[e], Y[e]), ''))
    for h in range(2): L.append((1, 'v_cvt_pk_bf16_f32', (Q[h], X[2*h], X[2*h+1]), ''))
    return L

def epi_ops(P, jb, pk=False):
    j0, j1 = 4*P + jb, 4*P + jb + 1
    L = []
    sbase = sA[jb >> 1]
    if P:
        L.append((1, 's_add_u32', (sbase, sbase, 4*TS), ''))
    groups = [(0, vh01)] + ([(2, vh23)] if jb == 0 else [])
    for n, va in groups:
        Q = ACC[n+1][j0]
        L += pair_ops(ACC[n][j0], ACC[n+1][j0], CSR[n], CSR[n+1], j0, j0, Q[0:2], pk)
        L += pair_ops(ACC[n][j1], ACC[n+1][j1], CSR[n], CSR[n+1], j1, j1, Q[2:4], pk)
        L.append((2, 'v_permlane16_swap_b32', (Q[0], Q[2]), ''))
        L.append((2, 'v_permlane16_swap_b32', (Q[1], Q[3]), ''))
        L.append((1, 'buffer_store_dwordx4', (Q, va, RWS, sbase), 'offen sc1'))
    if jb:
        Q = ACC[2][j1]
        L += pair_ops(ACC[2][j0], ACC[2][j1], CSR[2], CSR[2], j0, j1, Q[0:2], pk)
        L.append((1, 'buffer_store_dwordx2', (Q[0:2], vh2x, RWS, sbase), 'offen sc1'))
    return L

class Sched:
    def __init__(self, a):
        self.a = a; self.q = [[], []]; self.n = 0; self.mem = []; self.last = -100; self.step = 3
    def add(self, qi, at, cost, fn): self.q[qi].append((at, cost, fn))
    def op(self, qi, at, cost, mn, ops, mods, tok=None):
        def f():
            t = self.a(mn, *ops, mods=mods)
            if tok: tok[0][tok[1]] = t
        self.add(qi, at, cost, f)
    def load(self, avail, need, fn): self.mem.append((need, avail, fn))
    def issue(self):
        for k, e in enumerate(self.mem):
            if e[1] <= self.n:
                self.mem.pop(k); e[2](); self.last = self.n
                return True
        return False
    def fill(self, room):
        if room > 0 and self.n - self.last >= self.step and self.issue(): room -= 1
        go = True
        while go and room > 0:
            go = False
            for q in (self.q[1], self.q[0]):
                if q and q[0][0] <= self.n and q[0][1] <= room:
                    e = q.pop(0); e[2](); room -= e[1]; go = True
                    break
    def left(self): return [len(q) for q in self.q] + [len(self.mem)]
    def sort(self):
        for q in self.q: q.sort(key=lambda e: e[0])
        self.mem.sort(key=lambda e: e[0])
    def burst(self, every):
        c = 0
        while self.q[1]: self.q[1].pop(0)[2]()
        while self.q[0]:
            e = self.q[0].pop(0); e[2](); c += e[1]
            if c >= every:
                self.issue(); c = 0

class Ptr:
    def __init__(self, s): self.s, self.k = s, 0
    def at(self, a, i):
        if i >> 2 != self.k:
            a('s_add_u32', self.s, self.s, hex((4096*((i >> 2) - self.k)) & 0xffffffff))
            self.k = i >> 2
        return (i & 3)*1024

BFQ = [V(136, 4), V(140, 4)]
vck = V(252)

def gemms(a):
    T = {}
    dt = {}
    slow = []
    PW = [Ptr(s) for s in sWn]
    PH = [Ptr(s) for s in sHH]
    def wd_load(f):
        i, nu = divmod(f, 5)
        o = PW[nu].at(a, i)
        a('buffer_load_dwordx4', WD(f), l16, RWS, sWn[nu], mods=f'offen offset:{o}' + LD)
    def hload(i, j):
        o = PH[j].at(a, i)
        a('buffer_load_dwordx4', HF[2*i + (j & 1)], l16, RWS, sHH[j], mods=f'offen offset:{o}' + LD)
    def guarded(name, bad, reload):
        bad()
        a('s_cbranch_vccnz', name + '_slow')
        a.label(name + '_back')
        slow.append((name, bad, reload))
    def hcheck(i, ph):
        F0, F1 = HF[2*i], HF[2*i + 1]
        def bad():
            a('v_max3_u32', vck, F0[0], F0[2], F1[0])
            a('v_max_u32', vck, vck, F1[2])
            a('v_cmp_eq_u32', 'vcc', -1, vck)
        ks_ = [PH[2*ph + jj].k for jj in range(2)]
        def reload():
            for jj in range(2):
                a('s_add_u32', st0, sHH[2*ph + jj], hex((4096*((i >> 2) - ks_[jj])) & 0xffffffff))
                a('buffer_load_dwordx4', HF[2*i + jj], l16, RWS, st0, mods=f'offen offset:{(i & 3)*1024} sc1')
        guarded(f'HC{ph}_{i}', bad, reload)
    def dma(ks):
        a('s_add_u32', 'm0', sLds, 8192*ks)
        a('buffer_load_dwordx4', vdma, RWS, sHT, mods='offen' + LD + ' lds')
        dt[ks] = a('buffer_load_dwordx4', vdma2, RWS, sHT, mods='offen offset:1024' + LD + ' lds')
        a('s_add_u32', sHT, sHT, 131072)
    NUP = E('NUP', 6)
    for ks in range(NUP): dma(ks)
    a('s_cmp_lg_u32', S(2), 0)
    a('s_cbranch_scc1', 'EP_skip')
    a('s_add_u32', sEp, sEp, 1)
    a('v_mov_b32', t0, sEp)
    a('s_mov_b32', st0, hex(EPOCH))
    a('s_mov_b64', 'exec', 1)
    a('buffer_store_dword', t0, 'off', RWS, st0, mods='sc1')
    a('s_mov_b64', 'exec', -1)
    a.label('EP_skip')
    steps = [(ks, j) for ks in range(KS) for j in range(8)]
    ends = {}
    cnt = lambda L: sum(4 if (j & 3) < 2 else 3 for _, j in L)
    n1 = cnt(steps)
    when = {}
    for P in range(2):
        for jb in (0, 2):
            for ks in range(KS, 20):
                steps += [(ks, 4*P + jb), (ks, 4*P + jb + 1)]
                when[(P, jb, ks)] = cnt(steps)
            ends[(P, jb)] = cnt(steps)
    NM = cnt(steps)
    g0 = NM + E('BURST', 30)
    sc = Sched(a)
    sc.step = E('VSTEP', 3)
    for ks in range(NUP, 20):
        def d1(ks=ks):
            a('s_add_u32', 'm0', sLds, 8192*ks)
            a('buffer_load_dwordx4', vdma, RWS, sHT, mods='offen' + LD + ' lds')
        def d2(ks=ks):
            dt[ks] = a('buffer_load_dwordx4', vdma2, RWS, sHT, mods='offen offset:1024' + LD + ' lds')
            a('s_add_u32', sHT, sHT, 131072)
        at = E('DSTEP', 12)*(ks - NUP)
        sc.add(1, at, 2, d1); sc.add(1, at + E('DSTEP', 12)//2, 2, d2)
    bars = eval(os.environ.get('BARS', '{30: 3, 86: 6, 170: 11, 226: 15, 258: 19, 300: 19}'))
    lastbar = min(k for k, v in bars.items() if v == 19)
    fl_at = E('FL_AT', 240)
    FC = Flags(a, 'CF', vfv, vfl, sC3)
    sc.add(1, fl_at - 60, 1, FC.load)
    sc.add(1, fl_at, 2, FC.check)
    for n in range(4):
        sc.op(1, fl_at, 1, 'buffer_load_dwordx4', (CSR[n], vq16, RWS, sCS3 if n == 3 else sCS0), f'offen offset:{64*(n % 3)} sc1')
    for op in late_setup_ops(): sc.op(0, 198, 1, *op)
    NANQ = CSR[0]
    c_at, cbar = E('C_AT', 110), E('CBAR', 258)
    assert cbar in bars
    for d in range(4): sc.op(0, c_at, 1, 'v_mov_b32', (NANQ[d], -1), '')
    for k in range(8):
        if k == 4: sc.op(0, c_at + E('CGAP', 8)*k, 1, 's_add_u32', (sClr, sClr, TS), '')
        sc.op(0, c_at + E('CGAP', 8)*k, 1, 'buffer_store_dwordx4', (NANQ, l16, RWS, sClr), f'offen offset:{(0, 1024, 2048, 2560)[k & 3]} sc1')
    sc.op(0, c_at + E('CGAP', 8)*8, 1, 'buffer_store_dword', (NANQ[0], vsqs, RWS, sSQs), 'offen sc1', tok=(T, 'clr'))
    assert c_at + E('CGAP', 8)*8 + 4 < fl_at
    sc.add(1, cbar + 1, 1, lambda: publish(a, sMe, 0))
    F3 = Flags(a, 'F3', vfv, vf3, sF3)
    sc.add(1, E('F3_AT', 470) - 70, 1, F3.load)
    sc.add(1, E('F3_AT', 470), 2, F3.check)
    sq_at = max(lastbar + 2, 226)
    assert any(sq_at + 24 <= k <= ends[(0, 0)] for k in bars)
    for i in range(3):
        for hf in range(2):
            sc.op(0, sq_at + 2*i, 1, 'ds_read_b64_tr_b16', (SQF[i][2*hf:2*hf+2], vsq), f'offset:{8192*i + 1024*hf}')
    def sq_mf():
        a(MFMA, SQA, SQF[1], SQF[1], 0)
        a(MFMA, SQA, SQF[2], SQF[2], SQA)
        a('s_bitcmp1_b32', sC, 2)
        a('s_cbranch_scc1', 'SQ_skip')
        a(MFMA, SQA, SQF[0], SQF[0], SQA)
        a.label('SQ_skip')
    sc.add(0, sq_at + 16, 2, sq_mf)
    sc.op(0, sq_at + 20, 1, 'v_cndmask_b32', (MT[0], SQA[0], SQA[1], MSK[0]), '')
    sc.op(0, sq_at + 20, 1, 'v_cndmask_b32', (MT[0], MT[0], SQA[2], MSK[1]), '')
    sc.op(0, sq_at + 20, 1, 'v_cndmask_b32', (MT[0], MT[0], SQA[3], MSK[2]), '')
    sc.op(0, sq_at + 20, 1, 'buffer_store_dword', (MT[0], vsqs, RWS, sSQs), 'offen sc1')
    for P in range(2):
        e0 = ends[(P, 0)]
        for k in range(2):
            sc.op(0, e0 + 3, 1, 'v_mul_f32', (MT[k], '0xbacccccd', ACC[3][4*P + k][0]), '')
        for k in range(2):
            sc.op(0, e0 + 3, 1, 'ds_write_b32', (vsw[k], MT[k]), f'offset:{16*P}', tok=(T, 'mw'))
        def mbar():
            a.wait_lg_tok(T['mw'])
            a('s_barrier')
        sc.add(0, e0 + 10, 2, mbar)
        for k in range(4):
            sc.op(0, e0 + 10, 1, 'ds_read_b32', (MEAN[4*P + k], vsr[k]), f'offset:{16*P}')
        for c, mn, ops, mods in epi_ops(P, 0): sc.op(0, e0 + 16, c, mn, ops, mods)
        for c, mn, ops, mods in epi_ops(P, 2, pk=(P == 1)): sc.op(0, ends[(P, 2)] + 3, c, mn, ops, mods)
        sc.add(0, ends[(P, 2)] + 3, 0, lambda P=P: T.__setitem__(f'st{P}', sc.n))
    GA, GB = 100000, 200000
    wd0 = E('WD_AT', 190)
    for f in range(70):
        w = WDL[f][1]
        av = max(28*(w[1] + 1) + 1, wd0) if w[0] == 'p1' else when[w] + 1
        sc.load(av, 2*f + 1, lambda f=f: wd_load(f))
    def hl(i, j, P):
        assert f'st{P}' in T, (i, j, sc.n)
        hload(i, j)
    for i in range(7):
        for j in range(2): sc.load(E('HA_AT', 530), 10*i - 10 + j, lambda i=i, j=j: hl(i, j, 0))
    sc.sort()

    GST = eval(os.environ.get('GST', '[]'))
    print('n1', n1, 'ends', ends, 'NM', NM, file=sys.stderr)
    base = [0]*8
    cover = [1]
    def bread(s, hf):
        ks, j = steps[s]
        assert ks <= cover[0], (s, ks, cover)
        c = 1
        if base[j] != ks >> 3:
            a('v_add_u32', VRD[j], ((ks >> 3) - base[j])*65536, VRD[j])
            base[j] = ks >> 3
            c += 1
        a('ds_read_b64_tr_b16', BF[s & 7][2*hf:2*hf+2], VRD[j], mods=f'offset:{(ks & 7)*8192 + 1024*hf}')
        return c
    a.wait_vm_tok(dt[1])
    a('s_barrier')
    stamp(a, 10)
    for s in range(8):
        for hf in range(2): bread(s, hf)
    seen = set()
    for s, (ks, j) in enumerate(steps):
        for k in range(4 if (j & 3) < 2 else 3):
            if sc.n in bars:
                a.wait_vm_tok(dt[bars[sc.n]])
                if sc.n == cbar: a.wait_vm_tok(T['clr'])
                a('s_barrier')
                cover[0] = bars[sc.n]
            if sc.n == ends[(0, 2)]: stamp(a, 11)
            if sc.n in GST: stamp(a, 1 + GST.index(sc.n))
            acc = ACC[k][j]
            a(MFMA, acc, W1(ks, k), BF[s & 7], acc if acc.idx in seen else 0)
            seen.add(acc.idx)
            sc.n += 1
            room = 2
            if k < 2 and 1 <= s and s + 7 < len(steps):
                room -= bread(s + 7, k)
            sc.fill(room)
    print('after gemm1:', sc.left(), 'first epilogue done at', T['st0'], file=sys.stderr)
    stamp(a, 12)
    for nu in range(5):
        a('ds_read_b64_tr_b16', RES[nu], vres, mods=f'offset:{4096*nu}')
    a('s_lshl_b32', st0, S(15), 2)
    a('s_add_u32', st0, st0, sStat)
    a('v_and_b32', t0, 15, lane)
    a('v_lshl_add_u32', t1, t0, 5, st0)
    a('ds_read_b32', RS2, t1)
    a('v_lshlrev_b32', t0, 5, t0)
    sc.burst(E('BEV', 10))
    print('after burst:', sc.left(), file=sys.stderr)
    g0 = sc.n
    for i in range(7, 14):
        for j in range(2): sc.load(g0, 10*i - 10 + j, lambda i=i, j=j: hl(i, j, 1))
    for i in range(14):
        for j in (2, 3): sc.load(g0 + max(10*i + 5*(j - 1), E('HB_AT', 60)), 140 + 10*i - 10 + j, lambda i=i, j=j: hl(i, j, 1))
    sc.sort()
    sc.step = E('VSTEP2', 2)
    hcheck(0, 0)
    for i in range(14):
        for j in range(2):
            for nu in range(5):
                a(MFMA, ACC2[j][nu], WD(5*i + nu), HF[2*i + j], ACC2[j][nu] if i else 0)
                sc.n += 1
                if (j, nu) == (1, 1) and i < 13: hcheck(i + 1, 0)
                elif (j, nu) != (1, 2): sc.fill(2)
    print('after gemm2a:', sc.left(), file=sys.stderr)
    stamp(a, 13)
    def sqload():
        for k in range(2):
            a('buffer_load_dwordx4', BFQ[k], t0, RWS, sSQl, mods=f'offen offset:{16*k} sc1')
    sqload()
    a.wait(lg=0)
    a('s_barrier')
    vw, vr = t1, t2
    a('s_mul_i32', st0, sw, 5120)
    a('v_add_u32', vw, st0, l16)
    a('s_mul_i32', st0, sw, 20480)
    a('v_add_u32', vr, st0, l16)
    vw2 = vsqs
    a('v_add_u32', vw2, 40960, vw)
    g1 = sc.n
    for j in range(2):
        for nu in range(5):
            sc.op(0, g1 + 2 + 5*(5*j + nu), 1, 'ds_write_b128', (vw, ACC2[j][nu]), f'offset:{20480*j + 1024*nu}')
    def sqbad():
        a('v_max3_u32', vck, BFQ[0][0], BFQ[0][1], BFQ[0][2])
        a('v_max3_u32', vck, vck, BFQ[0][3], BFQ[1][0])
        a('v_max3_u32', vck, vck, BFQ[1][1], BFQ[1][2])
        a('v_max_u32', vck, vck, BFQ[1][3])
        a('v_cmp_eq_u32', 'vcc', -1, vck)
    sc.add(1, g1 + 64, 2, lambda: guarded('SQC', sqbad, sqload))
    rec = []
    r = lambda mn, *ops, mods='': rec.append((mn, ops, mods))
    for k in range(4): r('v_add_f32', BFQ[0][k], BFQ[0][k], BFQ[1][k])
    r('v_add_f32', BFQ[0][0], BFQ[0][0], BFQ[0][1])
    r('v_add_f32', BFQ[0][2], BFQ[0][2], BFQ[0][3])
    r('v_add_f32', BFQ[0][0], BFQ[0][0], BFQ[0][2])
    s2, tt = BFQ[0][0], BFQ[0][1]
    r('v_mul_f32', tt, RS2, RS2)
    r('v_mul_f32', s2, '0x3acccccd', s2)
    r('v_sub_f32', s2, s2, tt)
    r('v_max_f32', s2, 0, s2)
    rbf(r, s2)
    r('v_add_f32', s2, '0x3727c5ac', s2)
    rbf(r, s2)
    r('v_sqrt_f32', s2, s2)
    rbf(r, s2)
    r('v_rcp_f32', s2, s2)
    r('v_mul_f32', RS2, s2, s2)
    for mn, ops, mods in rec: sc.op(1, g1 + 67, 2 if mn in TRANS else 1, mn, ops, mods)
    NT = E('NT', 4)
    seq = [(i, j, nu) for i in range(14 - NT) for j in (2, 3) for nu in range(5)]
    tail0 = len(seq)
    seq += [(i, j, nu) for j in (2, 3) for nu in range(5) for i in range(14 - NT, 14)]
    for k, (j, nu) in enumerate([(j, nu) for j in (2, 3) for nu in range(5)]):
        sc.op(0, g1 + tail0 + NT*(k + 1) + 2, 1, 'ds_write_b128', (vw2, ACC2[j][nu]), f'offset:{20480*(j - 2) + 1024*nu}')
    chk = {}
    for i in range(1, 14):
        chk[(10*i - 4) if i < 14 - NT else (tail0 - 2 - 2*(13 - i))] = i
    issued = lambda i: not any(e[0] in (140 + 10*i - 10 + 2, 140 + 10*i - 10 + 3) for e in sc.mem)
    assert issued(0)
    hcheck(0, 1)
    skip = False
    for k, (i, j, nu) in enumerate(seq):
        a(MFMA, ACC2[j][nu], WD(5*i + nu), HF[2*i + (j & 1)], ACC2[j][nu] if i else 0)
        sc.n += 1
        if k in chk:
            assert issued(chk[k]), chk[k]
            hcheck(chk[k], 1); skip = True
        elif skip: skip = False
        else: sc.fill(2)
    while any(sc.left()):
        sc.n += 1; sc.fill(2)
    a.wait(lg=0)
    a('s_barrier')
    RD = [V(16 + 4*k, 4) for k in range(20)]
    for nu in range(5):
        for k in range(4):
            a('ds_read_b128', RD[4*nu + k], vr, mods=f'offset:{5120*k + 1024*nu}')
    X = V(96, 4)
    Q = [V(100, 4), V(104, 4), V(108, 2)]
    vo2 = V(110)
    a('v_and_b32', t0, 15, lane)
    a('v_mul_u32_u24', t0, 1280, t0)
    a('v_lshrrev_b32', t1, 1, vq16)
    a('v_add_u32', vo2, t0, t1)
    rp = V(12, 2)
    for nu in range(5):
        C, C2 = RD[4*nu], RD[4*nu + 2]
        for h in range(2):
            a('v_pk_add_f32', C[2*h:2*h+2], C[2*h:2*h+2], RD[4*nu + 1][2*h:2*h+2])
            a('v_pk_add_f32', C2[2*h:2*h+2], C2[2*h:2*h+2], RD[4*nu + 3][2*h:2*h+2])
        a('v_lshlrev_b32', X[0], 16, RES[nu][0])
        a('v_and_b32', X[1], '0xffff0000', RES[nu][0])
        a('v_lshlrev_b32', X[2], 16, RES[nu][1])
        a('v_and_b32', X[3], '0xffff0000', RES[nu][1])
        for h in range(2):
            a('v_pk_add_f32', C[2*h:2*h+2], C[2*h:2*h+2], C2[2*h:2*h+2])
        for h in range(2):
            a('v_pk_fma_f32', C[2*h:2*h+2], C[2*h:2*h+2], rp, X[2*h:2*h+2], mods='op_sel:[0,1,0] op_sel_hi:[1,1,1]')
        q = Q[nu >> 1]
        for h in range(2):
            a('v_cvt_pk_bf16_f32', q[2*(nu & 1) + h], C[2*h], C[2*h+1])
        if nu & 1:
            a('v_permlane16_swap_b32', q[0], q[2])
            a('v_permlane16_swap_b32', q[1], q[3])
            a('buffer_store_dwordx4', q, vout, ROUT, sOut, mods=f'offen offset:{64*(nu >> 1)}')
    a('buffer_store_dwordx2', Q[2], vo2, ROUT, sOut, mods='offen offset:128')
    return slow

def slow_paths(a, slow):
    for name, bad, reload in slow:
        a.label(name + '_slow')
        a.wait(lg=0)
        a('s_mov_b32', sCnt, SPIN)
        reload()
        a.spin_head(name + '_spin')
        bad()
        a('s_cbranch_vccz', name + '_back')
        reload()
        a('s_sub_u32', sCnt, sCnt, 1)
        a('s_cbranch_scc0', name + '_spin')
        a.wait(vm=0)
        a('s_branch', name + '_back')

def experiment(a):
    X = E('EXP', 0)
    if not X: return
    a.wait(vm=0)
    a('s_mov_b32', RWS[2], hex(256 << 20))
    N = 8 if X < 3 else 16
    def base():
        a('s_lshl_b32', S(4), S(2), 2)
        a('s_add_u32', S(4), S(4), sw)
        a('s_mul_i32', S(4), S(4), N*1024)
        a('s_add_u32', S(4), S(4), hex(64 << 20))
    for rep in range(2 if X == 2 else 1):
        base()
        for i in range(N):
            if i and i % 4 == 0: a('s_add_u32', S(4), S(4), 4096)
            if X < 3: a('buffer_store_dwordx4', V(16, 4), l16, RWS, S(4), mods=f'offen offset:{1024*(i & 3)} sc1')
            else: a('buffer_load_dwordx4', V(16 + 4*i, 4), l16, RWS, S(4), mods=f'offen offset:{1024*(i & 3)}' + (' nt' if X == 4 else ''))
        a.wait(vm=0)

def kernel(a):
    stamp(a, 0)
    if STAMP:
        for i in range(1, 15): a('s_mov_b32', S(70 + 2*i), S(70))
    a('s_cmp_lt_u32', S(2), 256)
    a('s_cbranch_scc1', 'K_go')
    a('s_endpgm')
    a.label('K_go')
    load_args(a)
    if E('PF0', 1): code_prefetch(a, 'PC0')
    wave_id(a, sw, t0)
    a('v_and_b32', lane, 63, V(0))
    a('v_lshlrev_b32', l16, 4, lane)
    a('v_and_b32', vq16, 48, lane)
    a('s_cmp_ge_u32', S(2), 160)
    a('s_cbranch_scc1', 'K_helper')
    tht = conv_wg(a)
    gemm_setup(a)
    a.wait_vm_tok(tht)
    a('s_barrier')
    publish_rep(a, 'K_pub', FLH, HSTR, S(2))
    a('s_branch', 'K_gemm')
    a.label('K_helper')
    helper_wg(a)
    gemm_setup(a)
    a.label('K_gemm')
    a('s_cmp_lg_u32', sw, 0)
    a('s_cbranch_scc1', 'C2_skip')
    rep_base(a, st2, FLH, HSTR)
    a('v_min_u32', t2, 39, lane)
    a('v_lshlrev_b32', t2, 7, t2)
    Flags(a, 'C2', BF[2], t2, st2, tmp=S(68, 2)).wait()
    a.label('C2_skip')
    a.wait(lg=0)
    a('s_barrier')
    stamp(a, 9)
    slow = gemms(a)
    if STAMP: a.wait(vm=0)
    experiment(a)
    stamp_flush(a, 0, 15, sw, RWS)
    a('s_endpgm')
    slow_paths(a, slow)
    a.items.append('CODE_END:')

if __name__ == '__main__':
    txt = build([(NAME + '_kernel', kernel, 256, 163840, 512, 256)])
    txt = txt.replace(f'@launch kernel={NAME}_kernel grid', '@launch grid')
    open(sys.argv[1], 'w').write(txt)
```

```python
import sys
from asmlib import *

NAME = "sequential_preLN__ssm_conv_h3__glu_gated_reglu__prompt"
S_, D_, F_ = 2048, 640, 1728
KVT, XT, HT = 0x0, 0x280000, 0x500000
ST, CS = 0x780000, 0x790000
WP1, WP2, HH = 0x800000, 0xD00000, 0x1000000
XX = 0x1900000
WS_SIZE = 0x1E00000
STAMPS = 0x1840000
import os
STAMP = int(os.environ.get('STAMP', '0'))
OOB = 0x7f000000

P_Q, P_K, P_V, P_SK, P_SSMK, P_SSMD, P_BX, P_WG = [S(16 + 2*i, 2) for i in range(8)]
P_WU, P_WD, P_OUT, P_DBG = [S(32 + 2*i, 2) for i in range(4)]
P_WS = S(40, 2)

def load_args(a):
    a('s_load_dwordx16', S(16, 16), S(0, 2), 0)
    a('s_load_dwordx8', S(32, 8), S(0, 2), 64)
    a('s_load_dwordx2', P_WS, S(0, 2), 96)

def srd(a, dst, ptr, size):
    a('s_mov_b32', dst[0], ptr[0])
    a('s_and_b32', dst[1], ptr[1], '0xffff')
    a('s_mov_b32', dst[2], hex(size))
    a('s_mov_b32', dst[3], '0x20000')

def wave_id(a, sdst, vtmp):
    a('v_lshrrev_b32', vtmp, 6, V(0))
    a('v_readfirstlane_b32', sdst, vtmp)

MFMA = 'v_mfma_f32_16x16x32_bf16'

CST = eval(os.environ.get('CST', '[]'))
CID = [1, 2, 10, 11, 12, 13]
STAMP_OFF = set(eval(os.environ.get('NOST', '[]')))
def stamp(a, i, force=False):
    if CST and i in CID and not force: return
    if i in STAMP_OFF and not force: return
    if STAMP:
        a('s_memrealtime', S(70 + 2*i, 2))
        a.wait(lg=0)

def stamp_flush(a, kidx, n, sw, RWS):
    if not STAMP: return
    stamp(a, n - 1)
    a('s_mov_b64', 'exec', 1)
    if os.environ.get('DBGST'):
        a('s_cmp_lg_u32', S(2), int(os.environ['DBGST']))
        a('s_cbranch_scc1', 'DBG_skip')
        a('s_cmp_lg_u32', sw, 0)
        a('s_cbranch_scc1', 'DBG_skip')
        a('s_load_dwordx2', S(68, 2), S(0, 2), 88)
        srd(a, S(64, 4), S(68, 2), 256)
        for i in range(1, n):
            a('s_sub_u32', S(68), S(70 + 2*i), S(70))
            a('v_mov_b32', V(2), S(68))
            a('buffer_store_dword', V(2), 'off', S(64, 4), 0, mods=f'offset:{4*i}')
        a.label('DBG_skip')
        return
    a('s_lshl_b32', S(68), S(2), 2)
    a('s_add_u32', S(68), S(68), sw)
    a('s_lshl_b32', S(68), S(68), 6)
    a('s_add_u32', S(68), S(68), hex(STAMPS + kidx*0x10000))
    a('v_mov_b32', V(1), 0)
    for i in range(n):
        a('v_mov_b32', V(2), S(70 + 2*i))
        a('buffer_store_dword', V(2), V(1), RWS, S(68), mods=f'offen offset:{4*i}')

def kernel_a(a):
    va = Alloc('v', 1, 255)
    stamp(a, 0)
    load_args(a)
    sw, st0, st1, st2 = S(3), S(4), S(5), S(6)
    selLO, selHI = S(8), S(9)
    RQ, RK, RV, RSK, RWS = S(44, 4), S(48, 4), S(52, 4), S(56, 4), S(60, 4)
    lane, t0, t1, t2 = va.get(), va.get(), va.get(), va.get()
    a('s_cmp_ge_u32', S(2), 224)
    a('s_cbranch_scc1', 'A_end')
    wave_id(a, sw, t0)
    a('v_and_b32', lane, 63, V(0))
    srd(a, RQ, P_Q, S_*D_*2)
    stamp(a, 6)
    srd(a, RWS, P_WS, WS_SIZE)
    a('s_cmp_ge_u32', S(2), 160)
    a('s_cbranch_scc1', 'A_stats')
    srd(a, RK, P_K, S_*D_*2)
    srd(a, RV, P_V, S_*D_*2)
    srd(a, RSK, P_SK, D_*8)
    a('s_lshr_b32', st0, S(2), 4)
    a('s_and_b32', st1, S(2), 15)
    a('s_lshl_b32', st1, st1, 7)
    a('s_lshl_b32', st2, sw, 5)
    a('s_add_u32', st1, st1, st2)
    g, c, voff, vneg, vsk = va.get(), va.get(), va.get(), va.get(), va.get()
    a('v_and_b32', c, 7, lane)
    a('v_bfe_u32', t0, lane, 3, 1)
    a('v_bfe_u32', t1, lane, 4, 1)
    a('v_lshl_or_b32', t2, t0, 1, t1)
    a('v_bfe_u32', t1, lane, 5, 1)
    a('v_lshl_or_b32', g, t1, 2, t2)
    a('v_lshl_add_u32', t2, g, 2, st1)
    a('v_mul_u32_u24', voff, 1280, t2)
    a('s_lshl_b32', st2, st0, 7)
    a('v_lshl_add_u32', t2, c, 4, st2)
    a('v_add_u32', voff, voff, t2)
    a('v_subrev_u32', vneg, 3840, voff)
    a('v_lshlrev_b32', vsk, 2, t2)
    K = [va.get(4) for _ in range(7)]
    Vv = [va.get(4) for _ in range(4)]
    X = [va.get(4) for _ in range(4)]
    SK = va.get(16)
    for i in range(4):
        a('buffer_load_dwordx4', SK.sub(4*i, 4), vsk, RSK, 0, mods=f'offen offset:{16*i}')
    for i in range(7):
        if i < 3: a('buffer_load_dwordx4', K[i], vneg, RK, 0, mods=f'offen offset:{1280*i}')
        else: a('buffer_load_dwordx4', K[i], voff, RK, 0, mods=f'offen offset:{1280*(i-3)}')
    for i in range(4):
        a('buffer_load_dwordx4', Vv[i], voff, RV, 0, mods=f'offen offset:{1280*i}')
    for i in range(4):
        a('buffer_load_dwordx4', X[i], voff, RQ, 0, mods=f'offen offset:{1280*i}')
    a('s_mov_b32', selLO, '0x05040100')
    a('s_mov_b32', selHI, '0x07060302')
    vox, vok = va.get(), va.get()
    a('v_bfe_u32', t1, lane, 4, 1)
    a('v_lshlrev_b32', t1, 2, t1)
    a('v_lshl_add_u32', t1, c, 3, t1)
    a('s_lshl_b32', st2, st0, 6)
    a('v_add_u32', t1, st2, t1)
    a('v_lshlrev_b32', t1, 12, t1)
    a('v_bfe_u32', t2, lane, 5, 1)
    a('v_lshl_or_b32', t2, t2, 1, t0)
    a('v_lshl_add_u32', t2, t2, 3, st1)
    a('v_lshl_add_u32', vox, t2, 1, t1)
    a('v_sub_u32', t2, 2040, t2)
    a('v_lshl_add_u32', vok, t2, 1, t1)
    QK = [va.get(4) for _ in range(4)]
    QX = [va.get(4) for _ in range(4)]
    P = [[va.get() for _ in range(7)] for _ in range(8)]
    KS = [[va.get() for _ in range(4)] for _ in range(8)]
    stamp(a, 1)
    if STAMP: a.wait(vm=8)
    stamp(a, 2)
    for ch in range(8):
        d, hi = ch >> 1, ch & 1
        for t in range(1, 7):
            a('v_perm_b32', P[ch][t], K[t-1][d], K[t][d], selHI if hi else selLO)
    for ch in range(8):
        for e in range(4):
            a('v_dot2_f32_bf16', KS[ch][e], P[ch][e+3], SK[2*ch], 0)
        for e in range(4):
            a('v_dot2_f32_bf16', KS[ch][e], P[ch][e+1], SK[2*ch+1], KS[ch][e])
    for ch in range(8):
        d, hi = ch >> 1, ch & 1
        for e in range(4):
            if hi: a('v_and_b32', P[ch][e], '0xffff0000', Vv[e][d])
            else: a('v_lshlrev_b32', P[ch][e], 16, Vv[e][d])
        for e in range(4):
            a('v_mul_f32', KS[ch][e], KS[ch][e], P[ch][e])
        q = QK[ch & 3]
        o = 2 if ch < 4 else 0
        a('v_cvt_pk_bf16_f32', q[o], KS[ch][3], KS[ch][2])
        a('v_cvt_pk_bf16_f32', q[o+1], KS[ch][1], KS[ch][0])
    for cp in range(4):
        a('v_permlane16_swap_b32', QK[cp][2], QK[cp][0])
        a('v_permlane16_swap_b32', QK[cp][3], QK[cp][1])
        a('s_mov_b32', st2, hex(KVT + 4096*cp))
        a('buffer_store_dwordx4', QK[cp], vok, RWS, st2, mods='offen')
    stamp(a, 3)
    for ch in range(8):
        d, hi = ch >> 1, ch & 1
        q = QX[ch & 3]
        o = 0 if ch < 4 else 2
        sel = selHI if hi else selLO
        a('v_perm_b32', q[o], X[1][d], X[0][d], sel)
        a('v_perm_b32', q[o+1], X[3][d], X[2][d], sel)
    for cp in range(4):
        a('v_permlane16_swap_b32', QX[cp][0], QX[cp][2])
        a('v_permlane16_swap_b32', QX[cp][1], QX[cp][3])
        a('s_mov_b32', st2, hex(XT + 4096*cp))
        a('buffer_store_dwordx4', QX[cp], vox, RWS, st2, mods='offen')
    stamp(a, 4)
    if STAMP: a.wait(vm=0)
    stamp(a, 5)
    stamp_flush(a, 0, 8, sw, RWS)
    a('s_endpgm')

    a.label('A_stats')
    va = Alloc('v', 8, 255)
    row, voff = va.get(), va.get()
    a('s_sub_u32', st0, S(2), 160)
    a('s_lshl_b32', st0, st0, 5)
    a('s_lshl_b32', st1, sw, 3)
    a('s_add_u32', st0, st0, st1)
    a('v_lshrrev_b32', t0, 4, lane)
    a('v_add_u32', row, st0, t0)
    a('v_mul_u32_u24', voff, 1280, row)
    a('v_and_b32', t1, 15, lane)
    a('v_lshl_add_u32', voff, t1, 4, voff)
    a('s_mov_b32', st1, 5120)
    XR = [[va.get(4) for _ in range(5)] for _ in range(2)]
    for p in range(2):
        for i in range(5):
            a('buffer_load_dwordx4', XR[p][i], voff, RQ, st1 if p else 0, mods=f'offen offset:{256*i}')
    ones = S(10)
    a('s_mov_b32', ones, '0x3f803f80')
    s1 = [va.get() for _ in range(2)]
    s2 = [va.get() for _ in range(2)]
    for p in range(2):
        for i in range(5):
            for d in range(4):
                first = (i == 0 and d == 0)
                a('v_dot2_f32_bf16', s1[p], XR[p][i][d], ones, 0 if first else s1[p])
                a('v_dot2_f32_bf16', s2[p], XR[p][i][d], XR[p][i][d], 0 if first else s2[p])
    for sh in (8, 4, 2, 1):
        for r in s1 + s2:
            a('v_add_f32', r, r, r, mods=f'row_ror:{sh} row_mask:0xf bank_mask:0xf')
    ra = [va.get() for _ in range(2)]
    rb = [va.get() for _ in range(2)]
    for p in range(2):
        ln_stats(a, s1[p], s2[p], t2)
        a('v_rcp_f32', ra[p], s2[p])
        a('v_mul_f32', rb[p], s1[p].neg(), ra[p])
    a('v_lshlrev_b32', row, 2, row)
    a('v_cmp_eq_u32', 'vcc', 0, t1)
    a('s_and_saveexec_b64', S(12, 2), 'vcc')
    a('s_mov_b32', st1, hex(ST))
    a('s_mov_b32', st2, hex(ST + 8192))
    for p in range(2):
        a('buffer_store_dword', ra[p], row, RWS, st1, mods=f'offen offset:{16*p}')
        a('buffer_store_dword', rb[p], row, RWS, st2, mods=f'offen offset:{16*p}')
    for i in range(1, 5): stamp(a, i)
    if STAMP: a.wait(vm=0)
    stamp(a, 5)
    stamp_flush(a, 0, 8, sw, RWS)
    a.label('A_end')
    a('s_endpgm')

def rbf(a, r):
    a('v_cvt_pk_bf16_f32', r, r, r)
    a('v_and_b32', r, '0xffff0000', r)

def ln_stats(a, s1, s2, t):
    a('v_mul_f32', s1, '0x3acccccd', s1)
    a('v_mul_f32', t, s1, s1)
    a('v_mul_f32', s2, '0x3acccccd', s2)
    a('v_sub_f32', s2, s2, t)
    a('v_max_f32', s2, 0, s2)
    rbf(a, s1)
    rbf(a, s2)
    a('v_add_f32', s2, '0x3727c5ac', s2)
    rbf(a, s2)
    a('v_sqrt_f32', s2, s2)
    rbf(a, s2)

CONV_LDS = 13312
def kernel_b(a):
    va = Alloc('v', 1, 255)
    stamp(a, 0)
    load_args(a)
    sw, st0, st1, st2, sch, sbase = S(3), S(4), S(5), S(6), S(7), S(8)
    RSS, RWS = S(44, 4), S(60, 4)
    lane, t0, t1, t2 = va.get(), va.get(), va.get(), va.get()
    a('s_cmp_ge_u32', S(2), 244)
    a('s_cbranch_scc1', 'B_end')
    wave_id(a, sw, t0)
    a('v_and_b32', lane, 63, V(0))
    srd(a, RWS, P_WS, WS_SIZE)
    stamp(a, 6)
    a('s_cmp_ge_u32', S(2), 160)
    a('s_cbranch_scc1', 'B_pack')
    srd(a, RSS, P_SSMK, D_*S_*2)
    a('s_lshl_b32', sch, S(2), 2)
    a('s_add_u32', sch, sch, sw)
    a('s_lshl_b32', st0, sch, 12)
    a('s_mul_i32', sbase, sw, CONV_LDS)
    l16, l16a, l16b = va.get(), va.get(), va.get()
    a('v_lshlrev_b32', l16, 4, lane)
    a('v_add_u32', l16a, 2, l16)
    a('v_add_u32', l16b, 4, l16)
    a('s_add_u32', 'm0', sbase, 32)
    for i in range(4):
        a('buffer_load_dwordx4', l16a, RSS, st0, mods=f'offen offset:{1024*i} lds')
    a('s_add_u32', 'm0', sbase, 4160 + 32)
    for i in range(4):
        a('buffer_load_dwordx4', l16b, RSS, st0, mods=f'offen offset:{1024*i} lds')
    a('s_add_u32', 'm0', sbase, 8320)
    a('s_add_u32', st1, st0, hex(KVT))
    for i in range(4):
        tok_dma = a('buffer_load_dwordx4', l16, RWS, st1, mods=f'offen offset:{1024*i} lds')
    sk01, sD = S(10), S(11)
    a('s_load_dword', sk01, P_SSMK, st0)
    a('s_lshl_b32', st1, sch, 1)
    a('s_and_b32', st1, st1, '0xfffc')
    a('s_load_dword', sD, P_SSMD, st1)
    li, lh, vx, vst = va.get(), va.get(), va.get(), va.get()
    a('v_and_b32', li, 15, lane)
    a('v_lshrrev_b32', lh, 4, lane)
    a('v_lshlrev_b32', t0, 5, li)
    a('v_lshl_add_u32', vx, lh, 3, t0)
    a('v_lshlrev_b32', vst, 1, vx)
    XS = [va.get(2) for _ in range(8)]
    SA = [va.get(4) for _ in range(8)]
    SB = [va.get(4) for _ in range(8)]
    a('s_add_u32', st1, st0, hex(XT))
    for t in range(8):
        a('buffer_load_dwordx2', XS[t], vx, RWS, st1, mods=f'offen offset:{512*t}')
    for half in range(2):
        a('s_mov_b32', st1, hex(ST + 4096*half))
        a('s_mov_b32', st2, hex(ST + 8192 + 4096*half))
        for t in range(4):
            a('buffer_load_dwordx4', SA[4*half+t], vst, RWS, st1, mods=f'offen offset:{1024*t}')
            a('buffer_load_dwordx4', SB[4*half+t], vst, RWS, st2, mods=f'offen offset:{1024*t}')
    if STAMP:
        a('s_memrealtime', S(70 + 2*7, 2))
    a('v_lshlrev_b32', t0, 2, lane)
    a('v_add_u32', t1, 4160 - 32, t0)
    a('v_cmp_gt_u32', 'vcc', 8, lane)
    a('v_cndmask_b32', t1, t1, t0, 'vcc')
    a('v_add_u32', t0, 8320 + 4096, t0)
    a('v_cmp_gt_u32', 'vcc', 16, lane)
    a('v_cndmask_b32', t1, t0, t1, 'vcc')
    a('v_add_u32', t1, sbase, t1)
    a('s_lshl_b32', st1, sk01, 16)
    a('v_mov_b32', t0, st1)
    a('v_cmp_eq_u32', 'vcc', 7, lane)
    a('v_cndmask_b32', t2, 0, t0, 'vcc')
    a('v_mov_b32', t0, sk01)
    a('v_cmp_eq_u32', 'vcc', 15, lane)
    a('v_cndmask_b32', t2, t2, t0, 'vcc')
    a('ds_write_b32', t1, t2)
    z2 = va.get(2)
    a('v_mov_b32', z2[0], 0)
    a('v_mov_b32', z2[1], 0)
    a('v_lshl_add_u32', t0, lane, 3, sbase)
    a('ds_write_b64', t0, z2, mods=f'offset:{8320+4096}')
    AD = va.get(4)
    a('s_bitcmp1_b32', sch, 0)
    a('s_cselect_b32', st1, 16, 0)
    a('s_lshr_b32', sD, sD, st1)
    a('s_and_b32', sD, sD, '0xffff')
    a('v_lshlrev_b32', t0, 3, lh)
    a('v_add_u32', t0, t0, li)
    a('v_sub_u32', t0, 15, t0)
    a('v_and_b32', t1, 1, t0)
    a('v_lshlrev_b32', t1, 4, t1)
    a('v_lshlrev_b32', t1, t1, sD)
    a('v_ashrrev_i32', t0, 1, t0)
    for d in range(4):
        a('v_cmp_eq_u32', 'vcc', d, t0)
        a('v_cndmask_b32', AD[d], 0, t1, 'vcc')
    vA = [va.get() for _ in range(4)]
    vB = va.get()
    a('v_lshl_add_u32', t0, lh, 3, li)
    a('v_lshrrev_b32', t0, 1, t0)
    a('v_lshl_add_u32', t0, t0, 2, sbase)
    a('v_and_b32', t1, 1, li)
    a('v_mul_u32_u24', t1, 4160, t1)
    a('v_add_u32', vA[0], t0, t1)
    for p in range(1, 4):
        a('v_add_u32', vA[p], 1024*p, vA[0])
    a('v_lshlrev_b32', t0, 5, li)
    a('v_sub_u32', t0, 8320 + 480, t0)
    a('v_lshl_add_u32', t0, lh, 4, t0)
    a('v_add_u32', vB, sbase, t0)
    vout = va.get()
    a('v_and_b32', t0, 1, lh)
    a('v_lshlrev_b32', t0, 9, t0)
    a('v_lshl_add_u32', t0, li, 5, t0)
    a('v_lshrrev_b32', t1, 1, lh)
    a('v_lshl_add_u32', vout, t1, 4, t0)
    FA = [[A(64*s + 4*i, 4) for i in range(8)] for s in range(2)]
    FB = [[A(64*s + 32 + 4*i, 4) for i in range(8)] for s in range(2)]
    ACC = [va.get(4) for _ in range(8)]
    def reads(rho):
        s = rho & 1
        L = []
        for i in range(8):
            L.append(('ds_read_b128', FB[s][i], vB, f'offset:{3584 - 512*i + 64*rho}'))
            o = 128*(i & 1) + 16*rho
            L.append(('ds_read2_b32', FA[s][i][0:2], vA[i >> 1], f'offset0:{o} offset1:{o+1}'))
            L.append(('ds_read2_b32', FA[s][i][2:4], vA[i >> 1], f'offset0:{o+2} offset1:{o+3}'))
        return L
    stamp(a, 1)
    a.wait_vm_tok(tok_dma)
    a.wait(lg=0)
    stamp(a, 2)
    for r in reads(0):
        a(r[0], r[1], r[2], mods=r[3])
    for rho in range(8):
        s = rho & 1
        nxt = reads(rho + 1) if rho < 7 else []
        mf = []
        for n in range(8):
            if rho == 0: mf.append((ACC[n], AD, FB[s][n], 0))
            for aa in range(n + 1):
                dl = n - aa
                if max(aa, dl) == n or True:
                    pass
        order = sorted([(aa, dl) for aa in range(8) for dl in range(8) if aa + dl <= 7], key=lambda p: (max(p), p[0] + p[1]))
        mf = []
        inited = set()
        for (aa, dl) in order:
            if rho == 0 and dl not in inited and aa == 0:
                pass
        if rho == 0:
            seq = []
            done_init = set()
            for (aa, dl) in order:
                t = aa + dl
                if t not in done_init:
                    seq.append((ACC[t], FA[s][aa], FB[s][dl], 0))
                    done_init.add(t)
                else:
                    seq.append((ACC[t], FA[s][aa], FB[s][dl], ACC[t]))
            for t in range(8):
                seq.append((ACC[t], AD, FB[s][t], ACC[t]))
        else:
            seq = [(ACC[aa+dl], FA[s][aa], FB[s][dl], ACC[aa+dl]) for (aa, dl) in order]
        k = 0
        for n, m in enumerate(seq):
            a(MFMA, *m)
            if n >= 4 and k < len(nxt):
                r = nxt[k]; k += 1
                a(r[0], r[1], r[2], mods=r[3])
        assert k == len(nxt)
    stamp(a, 3)
    XF = va.get(4)
    XN = va.get(4)
    O = [va.get(4) for _ in range(2)]
    a('s_add_u32', st1, st0, hex(HT))
    for p in range(4):
        q = O[p & 1]
        for e in range(2):
            t = 2*p + e
            a('v_lshlrev_b32', XF[0], 16, XS[t][0])
            a('v_and_b32', XF[1], '0xffff0000', XS[t][0])
            a('v_lshlrev_b32', XF[2], 16, XS[t][1])
            a('v_and_b32', XF[3], '0xffff0000', XS[t][1])
            a('v_pk_fma_f32', XN[0:2], XF[0:2], SA[t][0:2], SB[t][0:2])
            a('v_pk_fma_f32', XN[2:4], XF[2:4], SA[t][2:4], SB[t][2:4])
            a('v_pk_fma_f32', XN[0:2], XN[0:2], ACC[t][0:2], XF[0:2])
            a('v_pk_fma_f32', XN[2:4], XN[2:4], ACC[t][2:4], XF[2:4])
            a('v_cvt_pk_bf16_f32', q[2*e], XN[0], XN[1])
            a('v_cvt_pk_bf16_f32', q[2*e+1], XN[2], XN[3])
        a('v_permlane16_swap_b32', q[0], q[2])
        a('v_permlane16_swap_b32', q[1], q[3])
        a('buffer_store_dwordx4', q, vout, RWS, st1, mods=f'offen offset:{1024*p}')
    stamp(a, 4)
    if STAMP: a.wait(vm=0)
    stamp(a, 5)
    stamp_flush(a, 1, 9, sw, RWS)
    a('s_endpgm')

    a.label('B_pack')
    va = Alloc('v', 8, 255)
    RW = S(44, 4)
    task, stride, ssrc, sdst, sdstep, snk, scs = S(7), S(8), S(10), S(11), S(12), S(13), S(14)
    a('s_sub_u32', task, S(2), 160)
    a('s_mov_b32', RW[3], '0x20000')
    a('s_cmp_ge_u32', task, 54)
    a('s_cbranch_scc1', 'B_pack_d')
    a('s_cmp_ge_u32', task, 27)
    a('s_cselect_b32', RW[0], P_WU[0], P_WG[0])
    a('s_cselect_b32', RW[1], P_WU[1], P_WG[1])
    a('s_cselect_b32', st0, 27, 0)
    a('s_cselect_b32', st1, 1024, 0)
    a('s_cselect_b32', scs, F_*4, 0)
    a('s_and_b32', RW[1], RW[1], '0xffff')
    a('s_mov_b32', RW[2], hex(D_*F_*2))
    a('s_sub_u32', st0, task, st0)
    a('s_mov_b32', stride, F_*2)
    a('s_lshl_b32', ssrc, st0, 7)
    a('s_lshl_b32', st0, st0, 2)
    a('s_add_u32', st0, st0, sw)
    a('s_mul_i32', sdst, st0, 40960)
    a('s_add_u32', sdst, sdst, st1)
    a('s_add_u32', sdst, sdst, hex(WP1))
    a('s_mov_b32', sdstep, 2048)
    a('s_mov_b32', snk, 20)
    a('s_lshl_b32', st0, st0, 6)
    a('s_add_u32', scs, scs, st0)
    a('s_add_u32', scs, scs, hex(CS))
    a('s_branch', 'B_pack_go')
    a.label('B_pack_d')
    a('s_mov_b32', RW[0], P_WD[0])
    a('s_and_b32', RW[1], P_WD[1], '0xffff')
    a('s_mov_b32', RW[2], hex(D_*F_*2))
    a('s_sub_u32', st0, task, 54)
    a('s_mul_i32', st1, st0, 26)
    a('s_lshr_b32', st1, st1, 8)
    a('s_mul_i32', st2, st1, 10)
    a('s_sub_u32', st0, st0, st2)
    a('s_mov_b32', stride, D_*2)
    a('s_mul_i32', ssrc, st1, 576*1280)
    a('s_lshl_b32', st2, st0, 7)
    a('s_add_u32', ssrc, ssrc, st2)
    a('s_lshl_b32', st0, st0, 2)
    a('s_add_u32', st0, st0, sw)
    a('s_mul_i32', sdst, st0, 55296)
    a('s_mul_i32', st1, st1, 18*1024)
    a('s_add_u32', sdst, sdst, st1)
    a('s_add_u32', sdst, sdst, hex(WP2))
    a('s_mov_b32', sdstep, 1024)
    a('s_mov_b32', snk, 18)
    a('s_mov_b32', scs, hex(OOB))
    a.label('B_pack_go')
    stamp(a, 7)
    vsrc = [va.get(), va.get()]
    a('v_lshrrev_b32', t0, 3, lane)
    a('v_mul_lo_u32', t0, t0, stride)
    a('v_and_b32', t1, 1, lane)
    a('v_lshl_add_u32', t0, t1, 4, t0)
    a('v_bfe_u32', t1, lane, 1, 2)
    a('v_bfe_u32', t2, lane, 4, 1)
    a('v_xor_b32', t1, t1, t2)
    a('v_lshl_add_u32', vsrc[0], t1, 5, t0)
    a('v_xor_b32', t1, 2, t1)
    a('v_lshl_add_u32', vsrc[1], t1, 5, t0)
    s8 = S(15)
    a('s_lshl_b32', s8, stride, 3)
    a('s_lshl_b32', st2, stride, 5)
    a('s_mul_i32', st0, sw, st2)
    a('s_add_u32', ssrc, ssrc, st0)
    a('s_lshl_b32', st1, sw, 12)
    a('s_mul_i32', st2, s8, 13)
    for i in range(5):
        if i == 4:
            a('s_add_u32', st0, sw, 16)
            a('s_cmp_lt_u32', st0, snk)
            a('s_cselect_b32', ssrc, ssrc, hex(OOB))
        for p in range(4):
            a('s_add_u32', 'm0', st1, 16384*i + 1024*p)
            a('buffer_load_dwordx4', vsrc[p & 1], RW, ssrc, mods='offen lds')
            a('s_add_u32', ssrc, ssrc, s8 if p < 3 else st2)
    vrd = [va.get(), va.get()]
    l16 = va.get()
    a('v_lshlrev_b32', l16, 4, lane)
    a('v_lshrrev_b32', t0, 4, lane)
    a('v_bfe_u32', t1, lane, 2, 2)
    a('v_lshl_add_u32', t2, t0, 3, t1)
    a('v_lshlrev_b32', t2, 7, t2)
    a('v_and_b32', t0, 1, t0)
    a('v_lshrrev_b32', t1, 1, t1)
    a('v_lshl_or_b32', t0, t0, 1, t1)
    a('v_xor_b32', t0, sw, t0)
    a('v_lshl_add_u32', t2, t0, 5, t2)
    a('v_and_b32', t0, 3, lane)
    a('v_lshl_add_u32', vrd[0], t0, 3, t2)
    a('v_add_u32', vrd[1], 65536, vrd[0])
    ONES = va.get(4)
    for d in range(4):
        a('v_mov_b32', ONES[d], '0x3f803f80')
    FR = [va.get(4) for _ in range(20)]
    CSA = va.get(4)
    stamp(a, 1)
    a.wait(vm=0)
    stamp(a, 2)
    a('s_barrier')
    stamp(a, 3)
    def rd(ks):
        for hf in range(2):
            a('ds_read_b64_tr_b16', FR[ks][2*hf:2*hf+2], vrd[ks >> 4], mods=f'offset:{(ks & 15)*4096 + 512*hf}')
    for ks in range(6): rd(ks)
    for ks in range(20):
        if ks == 18:
            a('s_cmp_lt_u32', snk, 20)
            a('s_cbranch_scc1', 'B_pend')
        if ks + 6 < 20: rd(ks + 6)
        a('buffer_store_dwordx4', FR[ks], l16, RWS, sdst, mods='offen')
        a('s_add_u32', sdst, sdst, sdstep)
        a(MFMA, CSA, FR[ks], ONES, 0 if ks == 0 else CSA)
    a('v_and_b32', t0, 15, lane)
    a('v_cmp_eq_u32', 'vcc', 0, t0)
    a('s_and_saveexec_b64', S(64, 2), 'vcc')
    a('buffer_store_dwordx4', CSA, lane, RWS, scs, mods='offen')
    a.label('B_pend')
    stamp(a, 4)
    if STAMP: a.wait(vm=0)
    stamp(a, 5)
    stamp_flush(a, 1, 9, sw, RWS)
    a.label('B_end')
    a('s_endpgm')

KERNELS = [
    ('ka_kernel', kernel_a, 224, 0, 256, 256),
    ('kb_kernel', kernel_b, 244, 81920, 512, 256),
]

def build(kernels):
    hdr = ["; generated by gen/gen.py"]
    for (n, f, g, lds, nv, acc) in kernels:
        hdr.append(f"; @launch kernel={n} grid=({g},1,1) block=(256,1,1) lds={lds}")
    out = '\n'.join(hdr) + '\n.amdgcn_target "amdgcn-amd-amdhsa--gfx950"\n.text\n'
    for (n, f, g, lds, nv, acc) in kernels:
        a = Asm()
        f(a)
        out += f".globl {n}\n.p2align 8\n.type {n},@function\n{n}:\n" + a.finalize()
    out += '.section .rodata,"a"\n'
    for (n, f, g, lds, nv, acc) in kernels:
        out += f""".p2align 6
.amdhsa_kernel {n}
  .amdhsa_next_free_vgpr {nv}
  .amdhsa_next_free_sgpr 102
  .amdhsa_accum_offset {acc}
  .amdhsa_group_segment_fixed_size 0
  .amdhsa_kernarg_size 104
  .amdhsa_user_sgpr_count 2
  .amdhsa_user_sgpr_kernarg_segment_ptr 1
  .amdhsa_system_sgpr_workgroup_id_x 1
.end_amdhsa_kernel
"""
    return out

if __name__ == '__main__':
    path = sys.argv[1] if len(sys.argv) > 1 else f'cdna_kernels/{NAME}.s'
    open(path, 'w').write(build(KERNELS))
```

```python
from gen import *

E = lambda k, d: int(os.environ.get(k, str(d)))
LD = os.environ.get('LDM', '')
LD1 = os.environ.get('LD1', ' sc1')
NT_ = os.environ.get('NTI', ' nt')
KS = 8
FL = 0x1800000
FLA, FLH, FLP, FLC, FL3, EPOCH = FL, FL + 0x8000, FL + 0x10000, FL + 0x14000, FL + 0x18000, FL + 0x20000
FLD, FLG = FL + 0x5000, 0x1900000
HSTR, PSTR = 64*128, 24*128
SQ, AB, KV2, KVR = ST, 0x7A0000, WP1, 20480
SPIN = 20000
WROW = F_*2
TS = 224*256
WB, WSS, WUO = 4*CONV_LDS, 14368, 7184
RND = [[0, 1, 2, 3, 8, 9, 10], list(range(11, 18)), [4, 5, 6, 7, 18, 19]]

sw = S(3)
st0, st1, st2 = S(4), S(5), S(6)
ROUT, RWS = S(56, 4), S(60, 4)
sB, sC, sUb, sHT, sLds, sStat, sOut, sC3 = [S(16 + i) for i in range(8)]
sHH = [S(24 + i) for i in range(4)]
sRot, sSQl, sSQs, sU3, sCS0, sCS3 = [S(28 + i) for i in range(6)]
sA = [S(8), S(9)]
sCnt, sWo, sEp, sWl, sWs, sTag, sTag2 = S(11), S(42), S(43), S(38), S(49), S(100), S(100, 2)
RW1 = S(64, 4)
sWn = [S(44 + i) for i in range(5)]

lane, t0, t1, t2 = V(1), V(2), V(3), V(4)
l16, vdma, vh01, vh23, vh2x, vst, vres, vq16 = [V(5 + i) for i in range(8)]
vfl, vfv, vtg = V(249), V(254), V(255)
def W1(ks, n):
    if 4 <= ks < 8: return V(144 + 16*(ks - 4) + 4*n, 4)
    return A(16*(ks if ks < 4 else ks - 4) + 4*n, 4)
vWd = [V(226 + i) for i in range(4)]
vWr = [V(230 + i) for i in range(4)]

def spin(a, name, load, bad, first=True):
    a.wait(lg=0)
    a('s_mov_b32', sCnt, SPIN)
    if first: load()
    a.spin_head(name + '_spin')
    bad()
    a('s_cbranch_vccz', name + '_done')
    load()
    a('s_sub_u32', sCnt, sCnt, 1)
    a('s_cbranch_scc0', name + '_spin')
    a.wait(vm=0)
    a.label(name + '_done')

class Flags:
    def __init__(self, a, name, vval, vaddr, soff, off=0, tmp=None):
        self.a, self.name, self.vval, self.vaddr, self.soff, self.off, self.tmp = a, name, vval, vaddr, soff, off, tmp
    def load(self):
        mn = {1: 'buffer_load_dword', 2: 'buffer_load_dwordx2', 4: 'buffer_load_dwordx4'}[self.vval.n]
        self.tok = self.a(mn, self.vval, self.vaddr, RWS, self.soff, mods=f'offen offset:{self.off} sc1')
    def bad(self):
        a, v = self.a, self.vval
        if v.n == 1:
            a('v_cmp_ne_u32', 'vcc', sTag, v)
            return
        if v.n == 4: a('v_cmp_ne_u64', self.tmp, sTag2, v[2:4])
        a('v_cmp_ne_u64', 'vcc', sTag2, v[0:2])
        if v.n == 4: a('s_or_b64', 'vcc', 'vcc', self.tmp)
    def check(self):
        a = self.a
        a.wait_vm_tok(self.tok)
        self.bad()
        a('s_cbranch_vccz', self.name + '_ok')
        spin(a, self.name, self.load, self.bad)
        a.label(self.name + '_ok')
    def wait(self):
        spin(self.a, self.name, self.load, self.bad)

def publish(a, soff, off):
    return a('buffer_store_dword', vtg, 'off', RWS, soff, mods=f'offset:{off} sc1')

def publish_rep(a, name, base, stride, idx):
    a('s_cmp_lg_u32', sw, 0)
    a('s_cbranch_scc1', name)
    a('s_lshr_b32', st0, idx, 2)
    a('s_lshl_b32', st0, st0, 7)
    a('s_and_b32', st1, idx, 3)
    a('s_lshl_b32', st1, st1, 2)
    a('s_add_u32', st0, st0, st1)
    a('s_add_u32', st0, st0, hex(base))
    a('v_mul_u32_u24', t0, stride, lane)
    a('s_mov_b64', 'exec', 15)
    a('buffer_store_dword', vtg, t0, RWS, st0, mods='offen sc1')
    a('s_mov_b64', 'exec', -1)
    a.label(name)

def publish4(a, base, stride, idx):
    a('s_lshr_b32', st0, idx, 2)
    a('s_lshl_b32', st0, st0, 7)
    a('s_and_b32', st1, idx, 3)
    a('s_lshl_b32', st1, st1, 2)
    a('s_add_u32', st0, st0, st1)
    a('s_mul_i32', st1, sw, stride)
    a('s_add_u32', st0, st0, st1)
    a('s_add_u32', st0, st0, hex(base))
    a('s_mov_b64', 'exec', 1)
    a('buffer_store_dword', vtg, 'off', RWS, st0, mods='sc1')
    a('s_mov_b64', 'exec', -1)

def rep_base(a, dst, base, stride):
    a('s_and_b32', dst, S(2), 3)
    a('s_mul_i32', dst, dst, stride)
    a('s_add_u32', dst, dst, hex(base))

def tag_setup(a):
    a('s_mul_i32', sTag, sEp, '0x9e3779b1')
    a('s_add_u32', sTag, sTag, '0x7f4a7c15')
    a('s_mov_b32', sTag2[1], sTag)
    a('v_mov_b32', vtg, sTag)

def code_prefetch(a, nm):
    a('s_getpc_b64', S(68, 2))
    a.label(nm)
    if E('PFALL', 0):
        a('v_lshlrev_b32', t0, 7, V(0))
        for i in range(2):
            if i: a('v_add_u32', t0, 32768, t0)
            a('v_min_u32', t1, f'CODE_END-{nm}-4', t0)
            a('global_load_dword', V(14 + i), t1, S(68, 2))
        return
    a('s_lshr_b32', st0, S(2), 3)
    a('s_lshl_b32', st0, st0, 11)
    a('v_lshrrev_b32', t0, 4, V(0))
    a('v_lshl_add_u32', t0, t0, 7, st0)
    a('v_min_u32', t1, f'CODE_END-{nm}-4', t0)
    a('global_load_dword', V(14), t1, S(68, 2))

def role_setup(a):
    a('s_bfe_u32', sB, S(2), (1 << 16) | 2)
    a('s_lshl_b32', sB, sB, 3)
    a('s_lshr_b32', st1, S(2), 5)
    a('s_add_u32', sB, sB, st1)
    a('s_and_b32', sC, S(2), 3)
    a('s_lshl_b32', sC, sC, 2)
    a('s_bfe_u32', st1, S(2), (2 << 16) | 3)
    a('s_add_u32', sC, sC, st1)
    a('s_mul_i32', sUb, sw, 13)
    a('s_add_u32', sUb, sUb, 3)
    a('s_lshr_b32', sUb, sUb, 2)
    a('s_lshr_b32', sU3, sw, 1)
    a('s_mul_i32', sU3, sU3, 10)
    a('s_add_u32', sU3, sU3, 3)

def w_srd(a):
    a('s_cmp_ge_u32', sw, 2)
    a('s_cselect_b32', RW1[0], P_WU[0], P_WG[0])
    a('s_cselect_b32', RW1[1], P_WU[1], P_WG[1])
    a('s_and_b32', RW1[1], RW1[1], '0xffff')
    a('s_mov_b32', RW1[2], hex(D_*F_*2))
    a('s_mov_b32', RW1[3], '0x20000')

def w_setup(a):
    odd = st2
    a('s_and_b32', odd, sC, 1)
    a('s_lshl_b32', odd, odd, 3)
    a('s_mul_i32', sWo, sC, 216)
    a('s_sub_u32', sWo, sWo, odd)
    a('s_lshr_b32', st0, sw, 1)
    a('s_mul_i32', sWl, st0, WUO)
    a('s_and_b32', st0, sw, 1)
    a('s_mul_i32', st1, st0, 3584)
    a('s_add_u32', sWl, sWl, st1)
    a('s_add_u32', sWl, sWl, WB)
    a('s_mul_i32', st0, st0, 16*WROW)
    a('v_mul_u32_u24', t0, 37, lane)
    a('v_lshrrev_b32', t0, 9, t0)
    a('v_mul_u32_u24', t0, WROW - 224, t0)
    a('v_add3_u32', vWd[0], t0, l16, st0)
    for k in range(1, 4):
        a('v_add_u32', vWd[k], (8*(k & 1) + 4*(k >> 1))*WROW - 896*k, vWd[0])
    a('v_lshrrev_b32', t0, 5, lane)
    a('v_bfe_u32', t1, lane, 2, 3)
    a('v_lshl_add_u32', t0, t0, 4, t1)
    a('v_mul_u32_u24', t0, 224, t0)
    a('s_add_u32', odd, odd, WB)
    a('v_add_u32', t0, odd, t0)
    a('s_lshl_b32', st0, sUb, 4)
    a('v_and_b32', t1, 3, lane)
    a('v_lshl_add_u32', t1, t1, 3, t0)
    a('v_add_u32', vWr[0], st0, t1)
    a('v_and_b32', t1, 1, lane)
    a('v_lshl_add_u32', t0, t1, 3, t0)
    a('v_bfe_u32', t2, lane, 1, 1)
    a('v_mul_u32_u24', vWr[3], WUO, t2)
    a('v_add_u32', t0, t0, vWr[3])
    a('s_add_u32', st0, st0, 32)
    a('v_add_u32', vWr[1], st0, t0)
    a('s_lshl_b32', st0, sU3, 4)
    a('v_add_u32', vWr[2], st0, t0)
    a('v_add_u32', vWr[3], 1792, vWr[2])
    a('v_lshlrev_b32', t2, 3, t2)
    a('v_add_u32', t2, WB + 7168, t2)
    a('s_lshr_b32', st0, sw, 1)
    a('v_and_b32', t1, st0, t1)
    a('v_cmp_ne_u32', 'vcc', 0, t1)
    a('v_cndmask_b32', vWr[2], vWr[2], t2, 'vcc')
    a('v_cndmask_b32', vWr[3], vWr[3], t2, 'vcc')

def w_holes(a, Q):
    a('v_mov_b32', Q[0], 0)
    a('v_mov_b32', Q[1], 0)
    a('v_mov_b32', Q[2], '0x3f803f80')
    a('v_mov_b32', Q[3], '0x3f803f80')
    a('v_min_u32', t0, 6, lane)
    a('v_mul_u32_u24', t0, WSS, t0)
    a('ds_write_b128', t0, Q, mods=f'offset:{WB + 7168}')

def w_dma(a, ks, slot, part, mask=True):
    if part == 0 or mask: a('s_add_u32', 'm0', sWl, slot*WSS)
    if part == 0: a('s_add_u32', sWs, sWo, ks*32*WROW)
    if mask: a('s_mov_b32', 'exec_hi', '0xffffff')
    for k in (2*part, 2*part + 1):
        t = a('buffer_load_dwordx4', vWd[k], RW1, sWs, mods=f'offen offset:{896*k}' + os.environ.get('WNT', '') + ' lds')
    if mask: a('s_mov_b32', 'exec_hi', -1)
    return t

def w_round(a, r, slot0=0, lo=0, hi=7):
    a('s_mov_b32', 'exec_hi', '0xffffff')
    for i, ks in list(enumerate(RND[r]))[lo:hi]:
        for part in range(2): t = w_dma(a, ks, slot0 + i, part, False)
    a('s_mov_b32', 'exec_hi', -1)
    return t

def w_round_x(a, r, slot0, nm, lo=0, hi=7, older=False):
    a('s_cmp_lg_u32', sw, 1)
    a('s_cbranch_scc1', nm)
    w_round(a, r, slot0, lo, hi)
    a('s_sub_u32', sWl, sWl, 3584)
    for k in range(4): a('v_subrev_u32', vWd[k], 16*WROW, vWd[k])
    w_round(a, r, slot0, lo, hi)
    a('s_add_u32', sWl, sWl, 3584)
    for k in range(4): a('v_add_u32', vWd[k], 16*WROW, vWd[k])
    if older: a.wait(vm=8*(hi - lo))
    a.label(nm)

def w_round_y(a, r, slot0, nm, lo=0, hi=7, older=False):
    a('s_cmp_lt_u32', sw, 2)
    a('s_cbranch_scc1', nm)
    w_round(a, r, slot0, lo, hi)
    if older: a.wait(vm=4*(hi - lo))
    a.label(nm)

def touch_lanes(a, vt):
    a('s_and_b32', st0, S(2), 3)
    a('s_mul_i32', st0, st0, 27)
    a('s_lshr_b32', st0, st0, 2)
    a('v_and_b32', t0, 7, lane)
    a('v_add_u32', t0, st0, t0)
    a('v_min_u32', t0, 26, t0)
    a('v_lshrrev_b32', t1, 3, lane)
    a('v_mul_u32_u24', t1, WROW, t1)
    a('v_lshl_add_u32', vt, t0, 7, t1)

def w_reads(ks, rel, R=vWr):
    L = []
    for n in range(4):
        for hf in range(2):
            ad = R[0] if n < 2 else (R[1] if n == 2 else R[2 + hf])
            off = rel*WSS + (WUO if n == 1 else 0) + (1792*hf if n < 3 else 0)
            L.append(('ds_read_b64_tr_b16', (W1(ks, n)[2*hf:2*hf+2], ad), f'offset:{off}'))
    return L

def w_shift(d, R=vWr, D=None):
    return [('v_add_u32', ((D or R)[i], hex((d*WSS) & 0xffffffff), R[i]), '') for i in range(4)]

def w_read_ops(r):
    L = []
    if r == 0:
        for i, ks in enumerate(RND[0]):
            if i == 4: L += w_shift(4)
            L += w_reads(ks, i & 3)
    else:
        for i in reversed(range(7)):
            if i == 3: L += w_shift(-4)
            L += w_reads(RND[1][i], i & 3)
    return L

def clr_setup_h(a, sh):
    a('s_lshl_b32', st0, sB, 3)
    a('s_lshl_b32', st1, sw, 1)
    a('s_add_u32', st1, st1, st0)
    a('s_mul_i32', sh, st1, TS)
    a('s_mul_i32', st1, sC, 14*256)
    a('s_add_u32', sh, sh, st1)
    a('s_add_u32', sh, sh, hex(HH))

def clr_setup_q(a, sq, vq):
    a('s_lshl_b32', st0, sB, 3)
    a('s_lshr_b32', st1, sC, 3)
    a('s_lshl_b32', st1, st1, 2)
    a('s_add_u32', st0, st0, st1)
    a('s_and_b32', st1, sC, 3)
    a('s_add_u32', st0, st0, st1)
    a('s_lshl_b32', sq, st0, 9)
    a('s_and_b32', st1, sC, 4)
    a('s_add_u32', st1, st1, sw)
    a('s_lshl_b32', st1, st1, 2)
    a('s_add_u32', sq, sq, st1)
    a('s_add_u32', sq, sq, hex(SQ))
    a('v_lshrrev_b32', t0, 4, lane)
    a('v_bfe_u32', t1, lane, 2, 2)
    a('v_cmp_eq_u32', 'vcc', t0, t1)
    a('v_and_b32', t0, 15, lane)
    a('v_lshlrev_b32', t0, 5, t0)
    a('v_mov_b32', t1, hex(OOB))
    a('v_cndmask_b32', vq, t1, t0, 'vcc')

def clr_ops(Q, sh):
    L = []
    for k in range(8):
        if k == 4: L.append(('s_add_u32', (sh, sh, TS), ''))
        L.append(('buffer_store_dwordx4', (Q, l16, RWS, sh), f'offen offset:{(0, 1024, 2048, 2560)[k & 3]} sc1'))
    return L

def p2_touch_setup(a, vt2, sT2):
    a('s_lshr_b32', st2, S(2), 3)
    a('s_lshl_b32', st2, st2, 2)
    a('s_add_u32', st2, st2, sw)
    a('s_mul_i32', sT2, st2, 70*128)
    a('s_bfe_u32', st1, S(2), (1 << 16) | 1)
    a('s_mul_i32', st1, st1, 20*TS)
    a('s_add_u32', sT2, sT2, st1)
    a('s_add_u32', sT2, sT2, hex(WP2 + 124))
    a('v_min_u32', vt2, 34, lane)
    a('v_lshlrev_b32', vt2, 8, vt2)

def p2_touch(a):
    p2_touch_setup(a, V(134), S(68))
    a('buffer_load_dwordx2', V(136, 2), V(134), RWS, S(68), mods='offen')

def pack_flag_addr(a, vaddr):
    a('v_min_u32', vaddr, 39, lane)
    a('v_lshrrev_b32', t0, 1, vaddr)
    a('v_and_b32', vaddr, 1, vaddr)
    a('v_lshlrev_b32', vaddr, 3, vaddr)
    a('v_lshl_add_u32', vaddr, t0, 7, vaddr)

def icls(mn):
    if mn.startswith('s_'): return 's'
    if mn.startswith(('ds_', 'buffer_', 'global_')): return 'm'
    if 'permlane' in mn or mn in TRANS: return 'p'
    return 'v'

class Sched:
    def __init__(self, a, nq=3):
        self.a = a; self.q = [[] for _ in range(nq)]; self.n = 0; self.mem = []; self.last = -100; self.step = 4
        self.over = 0; self.win = E('WIN', 24)
    def op(self, qi, at, mn, ops, mods='', tok=None): self.q[qi].append((at, 'i', [(mn, ops, mods, tok)]))
    def ops(self, qi, at, L): self.q[qi].append((at, 'i', [tuple(x) + ('', None)[len(x) - 2:] for x in L]))
    def call(self, qi, at, fn): self.q[qi].append((at, 'x', fn))
    def sca(self, qi, at, fn): self.q[qi].append((at, 'b', fn))
    def note(self, qi, at, fn): self.q[qi].append((at, 'n', fn))
    def gate(self, qi, at, fn): self.q[qi].append((at, 'g', fn))
    def load(self, avail, need, gen): self.mem.append((need, avail, gen))
    def left(self): return [len(q) for q in self.q] + [len(self.mem)]
    def sort(self):
        for q in self.q: q.sort(key=lambda e: e[0])
        self.mem.sort(key=lambda e: e[0])
    def emit(self, L):
        for mn, ops, mods, tok in L:
            t = self.a(mn, *ops, mods=mods)
            if tok: tok[0][tok[1]] = t
    def gap(self, fixed=(), nxt=(), room=2):
        a = self.a
        C = {'s': [], 'm': [], 'v': []}
        pre = []
        def put(L):
            for x in L: C['v' if icls(x[0]) == 'p' else icls(x[0])].append(x)
        def cost(L=()):
            allv = C['m'] + C['v'] + [x for x in L if icls(x[0]) != 's']
            ns = len(C['s']) + len(pre) + sum(icls(x[0]) == 's' for x in L)
            ns += a.prewait([x[:3] for x in allv] + list(nxt), dry=True)
            return max(0, ns - 1) + sum(2 if icls(x[0]) == 'p' else 1 for x in allv)
        put([tuple(x) + ('', None)[len(x) - 2:] for x in fixed])
        heavy = None
        state = [None]*len(self.q)
        def notes(q):
            while q and q[0][0] <= self.n and (q[0][1] == 'n' or (q[0][1] == 'g' and q[0][2]())): q.pop(0)[2]()
        for q in reversed(self.q):
            notes(q)
            if heavy is None and q and q[0][0] <= self.n and q[0][1] == 'x': heavy = q.pop(0)[2]
        if heavy is None:
            if self.n - self.last >= self.step:
                for k, e in enumerate(self.mem):
                    if e[1] <= self.n:
                        L = e[2](True)
                        if cost(L) <= room:
                            self.mem.pop(k); put(e[2](False)); self.last = self.n
                        break
            for want in ('b', 'm', 'v'):
                for qi in reversed(range(len(self.q))):
                    q = self.q[qi]
                    k = 0
                    rd, wr = set(), set()
                    while k < len(q) and k < self.win and q[k][0] <= self.n:
                        at, kind, pl = q[k]
                        if kind == 'n':
                            if k or state[qi] is not None: break
                            q.pop(0); pl(); continue
                        if kind in 'xg': break
                        if kind == 'b':
                            if k or want != 'b' or state[qi] is not None or pre or C['s']: break
                            pre.append(pl)
                            if cost() > room: pre.pop(); break
                            q.pop(0); state[qi] = 's'; continue
                        if want == 'b': break
                        I = [Inst(x[0], x[1], x[2]) for x in pl]
                        r_ = set().union(*[i.rd for i in I]); w_ = set().union(*[i.wr for i in I])
                        ks = [icls(x[0]) for x in pl]
                        top = 'v' if ('v' in ks or 'p' in ks) else ('m' if 'm' in ks else 's')
                        low = 's' if 's' in ks else ('m' if 'm' in ks else 'v')
                        ok = not (top == 'v' and want != 'v')
                        ok = ok and not (k and top != 'v')
                        ok = ok and not (r_ & wr or w_ & (rd | wr))
                        ok = ok and not (state[qi] is not None and 'smv'.index(low) < 'smv'.index(state[qi]))
                        ok = ok and not (any(x[1][0] == 'm0' for x in pl if icls(x[0]) == 's') and any('lds' in x[2] for x in C['m']))
                        if ok and cost(pl) <= room:
                            q.pop(k); put(pl); state[qi] = top
                            continue
                        if want != 'v': break
                        rd |= r_; wr |= w_
                        k += 1
        if cost() > room: self.over += 1
        for f in pre: f()
        a.prewait([x[:3] for x in C['m'] + C['v']] + list(nxt))
        self.emit(C['s']); self.emit(C['m']); self.emit(C['v'])
        if heavy: heavy()
        for q in self.q: notes(q)
    def drain(self, every=8, keep_mem=True):
        c = 0
        for q in reversed(self.q):
            while q:
                at, kind, pl = q.pop(0)
                if kind == 'i': self.emit(pl); c += len(pl)
                else: pl()
                if c >= every:
                    c = 0
                    for k, e in enumerate(self.mem):
                        if e[1] <= self.n:
                            self.mem.pop(k); self.emit(e[2](False)); break

class Ptr:
    def __init__(self, s): self.s, self.k = s, 0
    def at(self, i, dry):
        L = []
        if i >> 2 != self.k:
            L.append(('s_add_u32', (self.s, self.s, hex((4096*((i >> 2) - self.k)) & 0xffffffff)), '', None))
            if not dry: self.k = i >> 2
        return L, (i & 3)*1024

def conv_wg(a):
    RK, RV, RSK, RSS = S(44, 4), S(48, 4), S(52, 4), S(56, 4)
    sch, sbase, sk01, sD = S(7), S(8), S(9), S(10)
    selLO, selHI, srow = S(13), S(14), S(12)
    va = Alloc('v', 16, 207)
    a('s_lshr_b32', st0, S(2), 4)
    a('s_and_b32', srow, S(2), 15)
    a('s_lshl_b32', srow, srow, 7)
    a('s_lshl_b32', st2, sw, 5)
    a('s_add_u32', srow, srow, st2)
    g, c, vneg, vsk, b3, vok = [va.get() for _ in range(6)]
    voff = V(234)
    a('v_and_b32', c, 7, lane)
    a('v_bfe_u32', b3, lane, 3, 1)
    a('v_bfe_u32', t1, lane, 4, 1)
    a('v_lshl_or_b32', t2, b3, 1, t1)
    a('v_bfe_u32', t0, lane, 5, 1)
    a('v_lshl_or_b32', g, t0, 2, t2)
    a('v_lshl_add_u32', t2, g, 2, srow)
    a('v_mul_u32_u24', voff, 1280, t2)
    a('s_lshl_b32', st2, st0, 7)
    a('v_lshl_add_u32', t2, c, 4, st2)
    a('v_add_u32', voff, voff, t2)
    a('v_subrev_u32', vneg, 3840, voff)
    a('v_lshlrev_b32', vsk, 2, t2)
    if E('EST', 0) == 1: stamp(a, 10, True)
    srd(a, RK, P_K, S_*D_*2)
    if E('EST', 0): stamp(a, 11 if E('EST', 0) == 1 else 9, True)
    K = [va.get(4) for _ in range(7)]
    Vv = [va.get(4) for _ in range(4)]
    SK = va.get(16)
    for i in range(7):
        if i < 3: tk = a('buffer_load_dwordx4', K[i], vneg, RK, 0, mods=f'offen offset:{1280*i}' + NT_)
        else: tk = a('buffer_load_dwordx4', K[i], voff, RK, 0, mods=f'offen offset:{1280*(i-3)}' + NT_)
    if E('EST', 0) == 2: stamp(a, 10, True)
    srd(a, RSK, P_SK, D_*8)
    for i in range(4):
        a('buffer_load_dwordx4', SK.sub(4*i, 4), vsk, RSK, 0, mods=f'offen offset:{16*i}')
    if E('EST', 0) == 2: stamp(a, 11, True)
    srd(a, RV, P_V, S_*D_*2)
    for i in range(4):
        a('buffer_load_dwordx4', Vv[i], voff, RV, 0, mods=f'offen offset:{1280*i}' + NT_)
    if E('EST', 0): stamp(a, 12, True)
    w_srd(a)
    vt = V(243)
    touch_lanes(a, vt)
    def t1_touch():
        a('s_cmp_ge_u32', S(2), 64)
        a('s_cbranch_scc1', 'T1_skip')
        a('s_bitcmp1_b32', sw, 0)
        a('s_cbranch_scc1', 'T1_skip')
        a('s_lshr_b32', st1, S(2), 3)
        a('s_add_u32', st1, st1, 32)
        a('s_mul_i32', st1, st1, 8*WROW)
        a('buffer_load_dword', V(14), vt, RW1, st1, mods='offen')
        a.label('T1_skip')
    if E('T1POS', 0) == 0: t1_touch()
    a('v_bfe_u32', t1, lane, 4, 1)
    a('v_bfe_u32', t0, lane, 5, 1)
    a('s_lshr_b32', st0, S(2), 4)
    a('s_mov_b32', sEp, hex(EPOCH))
    a('s_load_dword', sEp, P_WS, sEp)
    a('s_lshl_b32', sch, S(2), 2)
    a('s_add_u32', sch, sch, sw)
    a('s_lshl_b32', st2, sch, 12)
    a('s_load_dword', sk01, P_SSMK, st2)
    a('s_lshl_b32', st1, sch, 1)
    a('s_and_b32', st1, st1, '0xfffc')
    a('s_load_dword', sD, P_SSMD, st1)
    srd(a, RWS, P_WS, WS_SIZE)
    srd(a, RSS, P_SSMK, D_*S_*2)
    a('s_mul_i32', sbase, sw, CONV_LDS)
    def ssm_load():
        a('s_lshl_b32', st2, sch, 12)
        a('s_add_u32', 'm0', sbase, 4160 + 32)
        for i in range(4):
            t = a('buffer_load_dwordx4', l16, RSS, st2, mods=f'offen offset:{1024*i}' + NT_ + ' lds')
        return t
    if E('SSPOS', 2) == 0: tssm = ssm_load()
    vkw, vkr, sKV = va.get(), va.get(), S(50)
    a('v_lshl_or_b32', t2, t0, 1, b3)
    a('s_lshl_b32', st2, sw, 2)
    a('s_sub_u32', st1, 15, st2)
    a('v_sub_u32', t2, st1, t2)
    a('v_lshlrev_b32', t0, 1, c)
    a('v_xor_b32', t2, t2, t0)
    a('v_lshlrev_b32', t2, 4, t2)
    a('v_lshl_add_u32', t2, t1, 10, t2)
    a('v_and_b32', t1, 1, c)
    a('v_lshl_add_u32', t2, t1, 11, t2)
    a('v_lshrrev_b32', t1, 1, c)
    a('v_mul_u32_u24', t1, CONV_LDS, t1)
    a('v_add_u32', vkw, t1, t2)
    a('v_lshrrev_b32', t0, 4, lane)
    a('v_and_b32', t1, 2, t0)
    a('v_or_b32', t1, st2, t1)
    a('v_and_b32', t2, 15, lane)
    a('v_xor_b32', t1, t1, t2)
    a('v_lshl_add_u32', t1, t1, 4, sbase)
    a('v_lshl_add_u32', vkr, t0, 10, t1)
    a('v_mul_u32_u24', t0, KVR, t0)
    a('v_lshl_add_u32', vok, t2, 4, t0)
    a('s_lshl_b32', st1, st0, 4)
    a('s_add_u32', st1, st1, st2)
    a('s_mul_i32', sKV, st1, KVR)
    a('s_andn2_b32', st2, 15, S(2))
    a('s_lshl_b32', st2, st2, 8)
    a('s_add_u32', sKV, sKV, st2)
    a('s_add_u32', sKV, sKV, hex(KV2))
    sKF = S(69)
    a('s_lshl_b32', sKF, st1, 9)
    a('s_bfe_u32', st1, S(2), (2 << 16) | 2)
    a('s_lshl_b32', st1, st1, 7)
    a('s_add_u32', sKF, sKF, st1)
    a('s_and_b32', st1, S(2), 3)
    a('s_lshl_b32', st1, st1, 2)
    a('s_add_u32', sKF, sKF, st1)
    a('s_add_u32', sKF, sKF, hex(FLG))
    a('s_mov_b32', selLO, '0x05040100')
    a('s_mov_b32', selHI, '0x07060302')
    role_setup(a)
    w_setup(a)
    FB = [[V(16 + 64*s + 4*i, 4) for i in range(8)] for s in range(2)]
    FA = [[V(48 + 64*s + 4*i, 4) for i in range(8)] for s in range(2)]
    CA = [V(176 + 4*t, 4) for t in range(8)]
    ABR = [V(144 + 4*t, 4) for t in range(8)]
    XR = [V(i, 2) for i in (208, 210, 224, 234, 240, 242, 250, 252)]
    AD, CQ = V(208, 4), V(236, 4)
    vA = [V(212 + i) for i in range(4)]
    vB, vx, vo, li, lh, l16a, l16b, vg1 = [V(216 + i) for i in range(8)]
    vfa, vu = V(244), V(246)
    w_holes(a, CQ)
    a('v_and_b32', li, 15, lane)
    a('v_lshrrev_b32', lh, 4, lane)
    a('v_lshlrev_b32', vx, 5, li)
    a('v_lshl_add_u32', vx, lh, 3, vx)
    a('v_lshlrev_b32', vfl, 2, lane)
    a('v_lshrrev_b32', t0, 2, lane)
    a('v_lshlrev_b32', t0, 7, t0)
    a('v_and_b32', t1, 3, lane)
    a('v_lshl_add_u32', vfa, t1, 2, t0)
    a('v_add_u32', t1, 4160 - 32, vfl)
    a('v_cmp_gt_u32', 'vcc', 8, lane)
    a('v_cndmask_b32', t1, t1, vfl, 'vcc')
    a('v_add_u32', t0, 8320 + 4096, vfl)
    a('v_cmp_gt_u32', 'vcc', 16, lane)
    a('v_cndmask_b32', t1, t0, t1, 'vcc')
    a('v_add_u32', l16a, sbase, t1)
    z2 = AD[0:2]
    a('v_mov_b32', z2[0], 0)
    a('v_mov_b32', z2[1], 0)
    a('v_lshl_add_u32', t0, lane, 3, sbase)
    a('ds_write_b64', t0, z2, mods=f'offset:{8320+4096}')
    a('v_lshl_add_u32', t0, lh, 3, li)
    a('v_lshrrev_b32', t0, 1, t0)
    a('v_lshl_add_u32', t0, t0, 2, sbase)
    a('v_and_b32', t1, 1, li)
    a('v_mul_u32_u24', t1, 4164, t1)
    a('v_add_u32', vA[0], t0, t1)
    for p in range(1, 4):
        a('v_add_u32', vA[p], 1024*p, vA[0])
    a('v_lshlrev_b32', t0, 5, li)
    a('v_sub_u32', t0, 8320 + 480, t0)
    a('v_lshl_add_u32', t0, lh, 4, t0)
    a('v_add_u32', vB, sbase, t0)
    a('v_and_b32', t0, 1, lh)
    a('v_lshlrev_b32', t0, 9, t0)
    a('v_lshl_add_u32', t0, li, 5, t0)
    a('v_lshrrev_b32', t1, 1, lh)
    a('v_lshl_add_u32', vo, t1, 4, t0)
    a('v_add_u32', vu, sbase, l16)
    sPF, sGF = S(39), S(15)
    rep_base(a, sPF, FLP, PSTR)
    a('s_lshl_b32', sGF, S(2), 9)
    a('s_add_u32', sGF, sGF, hex(FLG))
    a('v_lshlrev_b32', l16b, 9, lane)
    clr_setup_q(a, S(28), V(247))
    for d in range(4): a('v_mov_b32', CQ[d], -1)
    stamp(a, 1)
    if E('SSPOS', 2) == 2:
        a.wait_vm_tok(tk)
        if E('EST', 0): stamp(a, 13, True)
        tssm = ssm_load()
    QK = [va.get(4) for _ in range(4)]
    P = [va.get(8, 2) for _ in range(8)]
    KSv = [va.get(4) for _ in range(8)]
    def kshift(chs):
        for ch in chs:
            d, hi = ch >> 1, ch & 1
            for t in range(1, 7):
                a('v_perm_b32', P[ch][t], K[t-1][d], K[t][d], selHI if hi else selLO)
        for ch in chs:
            for e in range(4):
                a('v_dot2_f32_bf16', KSv[ch][e], P[ch][e+3], SK[2*ch], 0)
            for e in range(4):
                a('v_dot2_f32_bf16', KSv[ch][e], P[ch][e+1], SK[2*ch+1], KSv[ch][e])
    KVO = E('KVO', 0)
    if KVO == 0: kshift(range(8))
    if KVO == 2: kshift((0, 4, 1, 5))
    stamp(a, 2)
    if E('T1POS', 0) == 1:
        a.wait(vm=4)
        t1_touch()
    for cp in range(4):
        if KVO == 1 or (KVO == 2 and cp >= 2): kshift((cp, cp + 4))
        for ch in (cp, cp + 4):
            d, hi = ch >> 1, ch & 1
            for e in range(4):
                if hi: a('v_and_b32', P[ch][e], '0xffff0000', Vv[e][d])
                else: a('v_lshlrev_b32', P[ch][e], 16, Vv[e][d])
        for ch in (cp, cp + 4):
            for h in range(2):
                a('v_pk_mul_f32', KSv[ch][2*h:2*h+2], KSv[ch][2*h:2*h+2], P[ch][2*h:2*h+2])
        q = QK[cp]
        for ch in (cp, cp + 4):
            o = 2 if ch < 4 else 0
            a('v_cvt_pk_bf16_f32', q[o], KSv[ch][3], KSv[ch][2])
            a('v_cvt_pk_bf16_f32', q[o+1], KSv[ch][1], KSv[ch][0])
        a('v_permlane16_swap_b32', q[2], q[0])
        a('v_permlane16_swap_b32', q[3], q[1])
        a('ds_write_b128', vkw, QK[cp], mods=f'offset:{8320 + 256*cp}')
    a.wait(lg=0)
    a('s_barrier')
    CK = P[0][0:4]
    for cp in range(4):
        a('ds_read_b128', QK[cp], vkr, mods=f'offset:{8320 + 256*cp}')
    tag_setup(a)
    for cp in range(4):
        q = QK[cp]
        a('v_add_u32', q[0], sTag, q[0])
        a('buffer_store_dwordx4', q, vok, RWS, sKV, mods='offen sc1')
        a('v_add3_u32', CK[cp], q[0], q[1], q[2])
        a('v_add3_u32', CK[cp], CK[cp], q[3], sTag)
        a('s_add_u32', sKV, sKV, 4096)
    a('buffer_store_dwordx4', CK, vok, RWS, sKV, mods='offen sc1')
    a('s_mov_b64', 'exec', 15)
    a('buffer_store_dword', vtg, l16b, RWS, sKF, mods='offen sc1')
    a('s_mov_b64', 'exec', -1)
    stamp(a, 3)
    if E('KVBAR', 0): a('s_barrier')
    a.wait_vm_tok(tssm)
    NA = E('R1A', 4)
    w_round_x(a, 0, 0, 'R1_x', 0, NA)
    def rdA(rho):
        s = rho & 1
        L = []
        for i in range(8):
            o = 128*(i & 1) + 16*rho
            L.append(('ds_read2_b32', (FA[s][i][0:2], vA[i >> 1]), f'offset0:{o} offset1:{o+1}'))
            L.append(('ds_read2_b32', (FA[s][i][2:4], vA[i >> 1]), f'offset0:{o+2} offset1:{o+3}'))
        return L
    def rdB(rho):
        return [('ds_read_b128', (FB[rho & 1][i], vB), f'offset:{3584 - 512*i + 64*rho}') for i in range(8)]
    def reads(rho):
        A_, B_ = rdA(rho), rdB(rho)
        L = []
        for i in range(8): L += [B_[i], A_[2*i], A_[2*i+1]]
        return L
    emit = lambda L: [a(mn, *ops, mods=mods) for mn, ops, mods in L]
    a('s_lshl_b32', st1, sk01, 16)
    a('v_mov_b32', t0, st1)
    a('v_cmp_eq_u32', 'vcc', 7, lane)
    a('v_cndmask_b32', t2, 0, t0, 'vcc')
    a('ds_write_b32', l16a, t2)
    a('s_bitcmp1_b32', sch, 0)
    a('s_cselect_b32', st1, 16, 0)
    a('s_lshr_b32', sD, sD, st1)
    a('s_and_b32', sD, sD, '0xffff')
    a('v_lshlrev_b32', t0, 3, lh)
    a('v_add_u32', t0, t0, li)
    a('v_sub_u32', t0, 15, t0)
    a('v_and_b32', t1, 1, t0)
    a('v_lshlrev_b32', t1, 4, t1)
    a('v_lshlrev_b32', t1, t1, sD)
    a('v_ashrrev_i32', t0, 1, t0)
    a.wait(lg=0)
    for d in range(4):
        a('v_cmp_eq_u32', 'vcc', d, t0)
        a('v_cndmask_b32', AD[d], 0, t1, 'vcc')
    a('v_and_b32', l16a, '0x1ff', vfa)
    SH = [V(80 + 4*i, 4) for i in range(4)]
    SN = [V(96 + i) for i in range(4)]
    a.wait_vm_tok(tssm)
    for i in range(4):
        a('ds_read_b128', SH[i], vu, mods=f'offset:{4160 + 32 + 1024*i}')
        a('ds_read_b32', SN[i], vu, mods=f'offset:{4160 + 48 + 1024*i}')
    for i in range(4):
        for d in range(4):
            a('v_alignbit_b32', SH[i][d], SH[i][d+1] if d < 3 else SN[i], SH[i][d], 16)
        a('ds_write_b128', vu, SH[i], mods=f'offset:{32 + 1024*i}')
    a.wait(lg=0)
    emit(rdA(0))
    w_round_y(a, 0, 0, 'R1_y', 0, NA)
    sU = [S(44), S(45), S(46), S(47), S(51)]
    a('s_mul_i32', sU[0], S(2), KVR)
    a('s_lshl_b32', st0, sw, 10)
    a('s_add_u32', sU[0], sU[0], st0)
    a('s_add_u32', sU[0], sU[0], hex(KV2))
    for i in range(1, 5): a('s_add_u32', sU[i], sU[0], 4096*i)
    a('v_add_u32', vu, st0, l16)
    a('s_cmp_lg_u32', sw, 0)
    a('s_cbranch_scc1', 'G1_skip')
    Flags(a, 'G1', vg1, l16a, sGF).wait()
    a.label('G1_skip')
    stamp(a, 4)
    a('s_barrier')
    stamp(a, 5)
    U = [V(80 + 4*i, 4) for i in range(5)]
    US = [V(100 + i) for i in range(4)]
    def uload():
        for i in (4, 0, 1, 2, 3):
            a('buffer_load_dwordx4', U[i], l16, RWS, sU[i], mods='offen sc1')
    def ubad():
        for i in range(4):
            a('v_add3_u32', US[i], U[i][0], U[i][1], U[i][2])
            a('v_add3_u32', US[i], US[i], U[i][3], sTag)
            a('v_subrev_u32', U[i][0], sTag, U[i][0])
            a('ds_write_b128', vu, U[i], mods=f'offset:{8320 + CONV_LDS*i}')
            a('v_xor_b32', US[i], US[i], U[4][i])
        a('v_or3_b32', US[0], US[0], US[1], US[2])
        a('v_or_b32', US[0], US[0], US[3])
        a('v_cmp_ne_u32', 'vcc', 0, US[0])
        a.wait(lg=0)
    uload()
    T = {}
    T['r1b'] = w_round(a, 0, 0, NA, 7)
    a.wait(vm=5 + 4*(7 - NA))
    a('s_barrier')
    for i in range(4): emit(w_reads(RND[0][i], i))
    a('s_lshl_b32', st0, sch, 12)
    sx, sht, pl, ph = S(12), S(13), S(50), S(52)
    sAB, ABL = S(56), WB + 7*WSS
    one = V(15)
    a('s_mov_b32', pl, selLO)
    a('s_add_u32', sht, st0, hex(HT))
    a('s_add_u32', sx, st0, hex(XT))
    a('s_mov_b32', ph, '0x05040302')
    a('v_mov_b32', one, '0x3f803f80')
    a('s_lshl_b32', S(57), sw, 11)
    a('s_add_u32', sAB, S(57), hex(AB))
    a('s_add_u32', S(57), S(57), ABL)
    a('v_mov_b32', t0, ABL)
    a('v_lshl_add_u32', l16a, vx, 1, t0)
    vt2, sT, sT2, sDF = V(248), S(53), S(54), S(58)
    a('v_min_u32', l16b, 15, lane)
    a('v_lshlrev_b32', l16b, 7, l16b)
    pack_flag_addr(a, vg1)
    a('s_add_u32', sDF, sPF, hex((FLD - FLP) & 0xffffffff))
    ubad()
    a('s_cbranch_vccz', 'U_ok')
    spin(a, 'U', uload, ubad)
    a.label('U_ok')
    a('s_barrier')
    stamp(a, 6)
    emit(rdB(0))
    sc = Sched(a)
    for i in range(4):
        sc.op(2, E('HC_AT', 4) + E('HC_STEP', 6)*i, 'buffer_store_dwordx4', (CQ, l16, RWS, sht), f'offen offset:{1024*i} sc1')
    sc.op(2, E('HC_AT', 4) + E('HC_STEP', 6)*4, 'buffer_store_dword', (CQ[0], V(247), RWS, S(28)), 'offen sc1', tok=(T, 'cl'))
    def dmas(r, slot0, lo, hi, at, step, key):
        for i, ks in list(enumerate(RND[r]))[lo:hi]:
            for part in range(2):
                sc.call(1, at, lambda i=i, ks=ks, part=part: T.__setitem__(key, w_dma(a, ks, slot0 + i, part)))
                at += step
        sc.note(1, at - step, lambda: T.__setitem__(key + '_ok', 1))
    def wbar(at, vkey, lkey):
        def f():
            if vkey in ('r2a', 'r2b'): assert T[vkey + '_ok']
            if vkey: a.wait_vm_tok(T[vkey])
            if vkey == 'r2b': a.wait_vm_tok(T['ab'])
            if lkey: assert T[lkey + '_ok']; a.wait_lg_tok(T[lkey])
            a('s_barrier')
            T['bar', at] = sc.n
            print('  barrier', at, 'at', sc.n, file=sys.stderr)
        sc.call(0, at, f)
    def rds(at, r, lo, hi, shift, key):
        L = w_shift(shift)
        for i in range(lo, hi): L += w_reads(RND[r][i], i & 3)
        for mn, ops, mods in L: sc.op(0, at, mn, ops, mods, tok=(T, key) if mn.startswith('ds') else None)
        sc.note(0, at, lambda: T.__setitem__(key + '_ok', 1))
    X1, X2, X3, ws_ = E('X1', 25), E('X2', 100), E('X3', 160), E('W_STEP', 8)
    dmas(1, 0, 0, 4, E('R2_AT', 28), ws_, 'r2a')
    wbar(X1, 'r1b', None)
    rds(X1, 0, 4, 7, 4, 'q1b')
    wbar(X2, 'r2a', 'q1b')
    sc.gate(1, X2, lambda: ('bar', X2) in T)
    dmas(1, 0, 4, 7, X2 + 1, ws_, 'r2b')
    rds(X2, 1, 0, 4, -4, 'q2a')
    wbar(X3, 'r2b', 'q2a')
    rds(X3, 1, 4, 7, 4, 'q2b')
    for mn, ops, mods in w_shift(-4): sc.op(0, X3, mn, ops, mods)
    N3 = E('R3A', 3)
    if N3:
        sc.gate(1, X3, lambda: ('bar', X3) in T)
        dmas(2, 1, 0, N3, E('R3_AT', X3 + 20), ws_, 'r3a')
    fl = E('FLAT', 45)
    def w0(nm, fn):
        def f():
            a('s_cmp_lg_u32', sw, 0)
            a('s_cbranch_scc1', nm)
            fn()
            a.label(nm)
        return f
    FS = Flags(a, 'GS', ABR[7], l16b, sPF, tmp=S(68, 2))
    sc.call(2, X2 - fl, w0('GS_l', FS.load))
    sc.call(2, X2 - 2, w0('GS_c', FS.check))
    FD_ = Flags(a, 'GD', V(244, 2), vg1, sDF)
    sc.call(2, E('GD_AT', 210), w0('GD_l', FD_.load))
    xs = E('XX_STEP', 6)
    PT = [V(i) for i in (6, 7, 8, 9, 10, 11, 13, 14)]
    sc.gate(2, X2, lambda: ('bar', X2) in T)
    sc.ops(2, X2 + 1, [('s_mov_b32', ('m0', S(57))), ('buffer_load_dwordx4', (l16, RWS, sAB), 'offen' + LD + ' lds')])
    sc.ops(2, X2 + 1, [('s_mov_b32', ('m0', S(57))), ('buffer_load_dwordx4', (l16, RWS, sAB), 'offen offset:1024' + LD + ' lds', (T, 'ab'))])
    for t in range(8):
        sc.op(2, X2 + 4 + xs*t, 'buffer_load_dwordx2', (XR[t], vx, RWS, sx), f'offen offset:{512*t}' + LD1)
    sc.gate(2, X3, lambda: ('bar', X3) in T)
    ps = E('PREP_STEP', 8)
    for t in range(8):
        sc.op(2, X3 + 1 + ps*t, 'ds_read_b128', (ABR[t], l16a), f'offset:{1024*t}')
        Pt = PT[4*(t & 1):4*(t & 1) + 4]
        at2 = X3 + 9 + ps*t
        for h in range(2):
            sc.op(2, at2, 'v_perm_b32', (Pt[2*h], one, XR[t][h], pl))
            sc.op(2, at2, 'v_perm_b32', (Pt[2*h+1], one, XR[t][h], ph))
        for k in range(4):
            sc.op(2, at2, 'v_dot2_f32_bf16', (ABR[t][k], Pt[k], ABR[t][k], 0))
    sc.note(2, X3 + 9 + 7*ps, lambda: (T.__setitem__('xn', sc.n), print('  prep done', sc.n, file=sys.stderr)))
    order = sorted([(aa, dl) for aa in range(8) for dl in range(8) if aa + dl <= 7], key=lambda p: (max(p), p[0] + p[1]))
    last = []
    done = {}
    for p in range(4):
        hi_ = [(aa, 2*p + 1 - aa) for aa in range(2*p + 2)]
        lo_ = [(aa, 2*p - aa) for aa in range(2*p + 1)]
        for k in range(2*p + 2):
            last.append(hi_[k])
            if k < 2*p + 1: last.append(lo_[k])
        done[p] = 44 + 36*6 + len(last)
    XF = [V(16 + 4*t, 4) for t in range(8)]
    sc.note(2, done[0] + 2, lambda: T['xn'])
    for p in range(4):
        e_at = done[p] + 3
        for t in (2*p, 2*p + 1):
            for h in range(2):
                sc.op(2, 44 + 36*6 + 3, 'v_lshlrev_b32', (XF[t][2*h], 16, XR[t][h]))
                sc.op(2, 44 + 36*6 + 3, 'v_and_b32', (XF[t][2*h+1], '0xffff0000', XR[t][h]))
        for t in (2*p, 2*p + 1):
            for k in range(4): sc.op(2, e_at, 'v_fmac_f32', (XF[t][k], ABR[t][k], CA[t][k]))
        q = ABR[2*p]
        for e in range(2):
            for h in range(2): sc.op(2, e_at, 'v_cvt_pk_bf16_f32', (q[2*e + h], XF[2*p + e][2*h], XF[2*p + e][2*h + 1]))
        sc.op(2, e_at, 'v_permlane16_swap_b32', (q[0], q[2]))
        sc.op(2, e_at, 'v_permlane16_swap_b32', (q[1], q[3]))
        sc.op(2, e_at, 'buffer_store_dwordx4', (q, vo, RWS, sht), f'offen offset:{1024*p} sc1', tok=(T, 'h'))
    sc.sort()
    allm = []
    for rho in range(8):
        s = rho & 1
        init = set()
        seq = []
        for (aa, dl) in (order if rho < 7 else last):
            t = aa + dl
            seq.append((CA[t], FA[s][aa], FB[s][dl], CA[t] if (rho or t in init) else 0))
            init.add(t)
        if rho == 0:
            seq += [(CA[t], AD, FB[s][t], CA[t]) for t in range(8)]
        nxt = reads(rho + 1) if rho < 7 else []
        k = 0
        for n, m in enumerate(seq):
            fx = []
            if n >= 4 and k < len(nxt) and (n % 3 != 2 or len(seq) - n <= len(nxt) - k):
                fx = [nxt[k]]; k += 1
            allm.append((m, fx))
        assert k == len(nxt)
    for x, (m, fx) in enumerate(allm):
        if x in CST: stamp(a, CID[CST.index(x)], True)
        a(MFMA, *m)
        sc.n += 1
        sc.gap(fx, [(MFMA, allm[x + 1][0], '')] if x + 1 < len(allm) else [])
    print('after conv:', sc.left(), 'over', sc.over, file=sys.stderr)
    stamp(a, 7)
    sc.n += 100
    sc.drain()
    w0('GD_c', FD_.check)()
    stamp(a, 8)
    return T['cl']

WDL0 = 0
def x_loads(a, n):
    RQ = S(44, 4)
    srd(a, RQ, P_Q, S_*D_*2)
    voff = V(16)
    a('s_lshl_b32', st0, n, 2)
    a('s_add_u32', st0, st0, sw)
    a('s_mul_i32', st0, st0, 8*1280)
    a('s_add_u32', st1, st0, 2560)
    a('v_lshrrev_b32', t0, 5, lane)
    a('v_mul_u32_u24', voff, 5120, t0)
    a('v_and_b32', t1, 31, lane)
    a('v_lshl_add_u32', voff, t1, 3, voff)
    X = [[V(48 + 10*r + 2*i, 2) for i in range(5)] for r in range(4)]
    s0, s1 = S(48), S(50)
    def loads():
        for r in range(4):
            for i in range(5):
                a('buffer_load_dwordx2', X[r][i], voff, RQ, s1 if r >= 2 else s0, mods=f'offen offset:{1280*(r & 1) + 256*i}' + NT_)
    a('s_mov_b32', s0, st0)
    a('s_mov_b32', s1, st1)
    if not E('QDEL', 0):
        loads()
        return lambda: X
    def late():
        a.wait(vm=0)
        loads()
        return X
    return late

XAB = WB + 7*WSS
def x_task(a, n, X):
    ones, pl, ph = S(12), S(50), S(51)
    vw, vg, vr = V(17), V(19), V(20)
    a('s_mov_b32', pl, '0x05040100')
    a('s_mov_b32', ph, '0x07060302')
    a('v_lshrrev_b32', t0, 5, lane)
    a('v_and_b32', t2, 3, lane)
    a('v_xor_b32', t1, sw, t2)
    a('v_lshlrev_b32', t1, 4, t1)
    a('v_lshl_add_u32', t1, t0, 3, t1)
    a('v_and_b32', vw, 31, lane)
    a('v_lshl_add_u32', vw, vw, 8, t1)
    a('v_lshrrev_b32', t1, 2, lane)
    a('v_lshlrev_b32', vg, 12, t1)
    a('v_lshl_add_u32', vg, t2, 4, vg)
    a('v_lshrrev_b32', t0, 4, lane)
    a('v_xor_b32', t0, t0, t2)
    a('v_lshlrev_b32', t1, 6, t1)
    a('v_lshl_add_u32', vr, t0, 4, t1)
    a('v_add_u32', vr, 28672, vr)
    PC = [V(96 + 2*k, 2) for k in range(8)]
    for i in range(5):
        for e in range(4):
            q = PC[4*(i & 1) + e]
            for h in range(2):
                a('v_perm_b32', q[h], X[2*h + 1][i][e >> 1], X[2*h][i][e >> 1], ph if e & 1 else pl)
        for e in range(4):
            a('ds_write_b64', vw, PC[4*(i & 1) + e], mods=f'offset:{28672 + 8192*i + 64*e}')
    a('s_mov_b32', ones, '0x3f803f80')
    a('s_lshl_b32', st2, n, 6)
    a('s_add_u32', st2, st2, hex(XT))
    a.wait(lg=0)
    a('s_barrier')
    s1 = [V(24 + r) for r in range(4)]
    s2 = [V(28 + r) for r in range(4)]
    L = []
    for i in range(5):
        for d in range(2):
            for r in range(4):
                first = i == 0 and d == 0
                L.append(('v_dot2_f32_bf16', s1[r], X[r][i][d], ones, 0 if first else s1[r]))
                L.append(('v_dot2_f32_bf16', s2[r], X[r][i][d], X[r][i][d], 0 if first else s2[r]))
    a('s_cmp_lg_u32', sw, 0)
    a('s_cbranch_scc1', 'X_nst')
    O = [V(112 + 4*j, 4) for j in range(20)]
    for j in range(20):
        a('ds_read_b128', O[j], vr, mods=f'offset:{1024*j}')
    for j in range(40):
        if j: a('s_add_u32', st2, st2, 65536)
        a('buffer_store_dwordx4', O[j % 20], vg, RWS, st2, mods='offen sc1')
        if 4 <= j < 24: a('ds_read_b128', O[j - 4], vr, mods=f'offset:{1024*(j + 16)}')
    a.label('X_nst')
    for x in L: a(*x)
    for s in (s1, s2):
        for r in (0, 2): a('v_permlane16_swap_b32', s[r], s[r + 1])
    for s in (s1, s2):
        for r in (0, 2): a('v_add_f32', s[r], s[r], s[r + 1])
    for sh in (8, 4, 2, 1):
        for x in (s1[0], s2[0], s1[2], s2[2]):
            a('v_add_f32', x, x, x, mods=f'row_ror:{sh} row_mask:0xf bank_mask:0xf')
    a('v_and_b32', t1, 1, lane)
    a('v_cmp_ne_u32', 'vcc', 0, t1)
    a('v_cndmask_b32', s1[0], s1[0], s1[2], 'vcc')
    a('v_cndmask_b32', s2[0], s2[0], s2[2], 'vcc')
    ln_stats(a, s1[0], s2[0], t2)
    a('v_rcp_f32', s2[0], s2[0])
    a('v_mul_f32', s1[0], s1[0].neg(), s2[0])
    a('v_cvt_pk_bf16_f32', s2[0], s2[0], s1[0])
    a('v_bfe_u32', t0, lane, 4, 1)
    a('v_lshl_or_b32', t1, t1, 1, t0)
    a('v_lshrrev_b32', t0, 5, lane)
    a('v_lshl_or_b32', t1, t0, 2, t1)
    a('s_lshl_b32', st0, sw, 5)
    a('s_add_u32', st0, st0, XAB)
    a('v_lshl_add_u32', t1, t1, 2, st0)
    a('ds_write_b32', t1, s2[0])
    a.wait(lg=0)
    a('s_barrier')

def x_finish(a, n):
    a('v_and_b32', t0, 31, lane)
    a('v_lshlrev_b32', t0, 2, t0)
    a('v_add_u32', t1, XAB, t0)
    a('ds_read_b32', t2, t1)
    a('s_lshl_b32', st0, n, 7)
    a('s_add_u32', st0, st0, hex(AB))
    a('buffer_store_dword', t2, t0, RWS, st0, mods='offen sc1')
    a.wait(vm=0)
    publish_rep(a, 'X_pub', FLP, PSTR, n)

def d_loads(a, n, extra=None):
    RW = S(52, 4)
    scb, scp, ssrc, sl = S(13), S(14), S(10), S(12)
    vsrc = [V(88), V(89)]
    a('v_lshrrev_b32', t0, 3, lane)
    a('v_mul_u32_u24', t0, 1280, t0)
    a('v_and_b32', t1, 1, lane)
    a('v_lshl_add_u32', t0, t1, 4, t0)
    a('v_bfe_u32', t1, lane, 1, 2)
    a('v_bfe_u32', t2, lane, 4, 1)
    a('v_xor_b32', t1, t1, t2)
    a('s_and_b32', st0, sw, 1)
    a('s_lshl_b32', st0, st0, 1)
    a('v_xor_b32', t1, st0, t1)
    a('v_lshl_add_u32', vsrc[0], t1, 5, t0)
    a('v_xor_b32', t1, 2, t1)
    a('v_lshl_add_u32', vsrc[1], t1, 5, t0)
    a('s_mul_i32', ssrc, scp, 216*1280)
    a('s_lshl_b32', st0, scb, 7)
    a('s_add_u32', ssrc, ssrc, st0)
    a('s_mul_i32', st0, sw, 56*1280)
    a('s_add_u32', ssrc, ssrc, st0)
    a('s_lshr_b32', st0, sw, 1)
    a('s_mul_i32', st0, st0, 4*1280)
    a('s_sub_u32', ssrc, ssrc, st0)
    a('s_mul_i32', sl, sw, 7*1024)
    def go():
        for g in range(7):
            a('s_add_u32', 'm0', sl, WDL0 + 1024*g)
            a('s_add_u32', st0, ssrc, 8*g*1280)
            td = a('buffer_load_dwordx4', vsrc[g & 1], RW, st0, mods='offen' + NT_ + ' lds')
        return td
    if extra:
        a('s_cmp_lg_u32', sw, 2)
        a('s_cbranch_scc1', extra)
        a('s_sub_u32', ssrc, ssrc, 108*1280)
        a('s_sub_u32', sl, sl, 14*1024)
        go()
        a('s_add_u32', ssrc, ssrc, 108*1280)
        a('s_add_u32', sl, sl, 14*1024)
        a.label(extra)
    return go()

def d_task(a):
    scb, scp, sdst, sl = S(13), S(14), S(10), S(12)
    vr = V(90)
    MK = [S(68, 2), S(50, 2)]
    a('v_lshrrev_b32', t0, 4, lane)
    a('v_bfe_u32', t1, lane, 2, 2)
    a('v_lshl_add_u32', t2, t0, 3, t1)
    a('v_lshlrev_b32', t2, 7, t2)
    a('v_and_b32', t0, 1, t0)
    a('v_lshrrev_b32', t1, 1, t1)
    a('v_lshl_or_b32', t0, t0, 1, t1)
    a('v_xor_b32', t0, sw, t0)
    a('v_lshl_add_u32', t2, t0, 5, t2)
    a('v_and_b32', t0, 3, lane)
    a('v_lshl_add_u32', t2, t0, 3, t2)
    a('v_add_u32', vr, WDL0, t2)
    a('s_lshl_b32', st0, scb, 2)
    a('s_add_u32', st0, st0, sw)
    a('s_mul_i32', sdst, st0, TS)
    a('s_mul_i32', st1, scp, 7*1024)
    a('s_add_u32', sdst, sdst, st1)
    a('s_add_u32', sdst, sdst, hex(WP2))
    a('s_add_u32', sl, sdst, 4096)
    a('s_mov_b32', MK[0][0], '0xffff0000')
    a('s_mov_b32', MK[0][1], 0)
    a('s_mov_b32', MK[1][0], 0)
    a('s_mov_b32', MK[1][1], '0xffff0000')
    FD = [V(176 + 4*i, 4) for i in range(7)]
    for ks in range(7):
        for hf in range(2):
            a('ds_read_b64_tr_b16', FD[ks][2*hf:2*hf+2], vr, mods=f'offset:{ks*4096 + 512*hf}')
    for ks in range(7):
        if ks in (3, 6):
            for d in (2, 3): a('v_cndmask_b32', FD[ks][d], FD[ks][d], 0, MK[ks == 6])
        tp = a('buffer_store_dwordx4', FD[ks], l16, RWS, sl if ks >= 4 else sdst, mods=f'offen offset:{1024*(ks & 3)} sc1')
    return tp

def helper_wg(a):
    n, nd, sj = S(7), S(9), S(15)
    vt = V(91)
    emit = lambda L: [a(mn, *ops, mods=mods) for mn, ops, mods in L]
    def common():
        srd(a, RWS, P_WS, WS_SIZE)
        a('s_mov_b32', sEp, hex(EPOCH))
        a('s_load_dword', sEp, P_WS, sEp)
        srd(a, S(52, 4), P_WD, D_*F_*2)
        role_setup(a)
        w_setup(a)
        tag_setup(a)
        a('s_sub_u32', nd, n, 16)
        a('s_mul_i32', S(14), nd, 205)
        a('s_lshr_b32', S(14), S(14), 11)
        a('s_mul_i32', st0, S(14), 10)
        a('s_sub_u32', S(13), nd, st0)
        clr_setup_q(a, S(28), V(247))
    def touch_setup():
        w_srd(a)
        touch_lanes(a, vt)
        a('s_bfe_u32', sj, n, (3 << 16) | 3)
        a('s_lshl_b32', sj, sj, 1)
        a('s_and_b32', st0, sw, 1)
        a('s_add_u32', sj, sj, st0)
        a('s_mul_i32', sj, sj, 8*WROW)
    def sq_clear():
        a('v_mov_b32', V(93), -1)
        a('buffer_store_dword', V(93), V(247), RWS, S(28), mods='offen sc1')
    def touch3():
        a('s_lshr_b32', st0, n, 3)
        a('s_lshl_b32', st0, st0, 1)
        a('s_and_b32', st1, sw, 1)
        a('s_add_u32', st0, st0, st1)
        a('s_cmp_lt_u32', st0, 16)
        a('s_cselect_b32', st1, 16, 56)
        a('s_add_u32', st0, st0, st1)
        a('s_mul_i32', st0, st0, 8*WROW)
        a('buffer_load_dword', V(92), vt, RW1, st0, mods='offen')
    def touch(blk):
        a('s_add_u32', st0, sj, blk*8*WROW)
        a('buffer_load_dword', V(92), vt, RW1, st0, mods='offen')
    a('s_sub_u32', n, S(2), 160)
    a('s_cmp_ge_u32', n, 64)
    a('s_cbranch_scc1', 'H_nx1')
    XL = x_loads(a, n)
    touch_setup()
    common()
    X = XL()
    sq_clear()
    stamp(a, 1)
    x_task(a, n, X)
    stamp(a, 2)
    a('s_cmp_lg_u32', sw, 0)
    a('s_cbranch_scc1', 'H_w123')
    x_finish(a, n)
    stamp(a, 4)
    a('s_branch', 'H_xj')
    a.label('H_w123')
    touch(48)
    a('s_cmp_lg_u32', sw, 1)
    a('s_cbranch_scc1', 'H_t47')
    touch(47)
    a.label('H_t47')
    a('s_cmp_lt_u32', n, 16)
    a('s_cbranch_scc1', 'H_a')
    d_loads(a, nd, 'H_d0')
    a.label('H_a')
    w_holes(a, V(236, 4))
    w_round_x(a, 0, 0, 'H_rx', 0, 4, True)
    w_round_y(a, 0, 0, 'H_ry', 0, 4, True)
    a.label('H_xj')
    a('s_cmp_ge_u32', n, 16)
    a('s_cbranch_scc1', 'H_nx2')
    tr0 = w_round(a, 0, 0, 4, 7)
    touch3()
    a.wait_vm_tok(tr0)
    a('s_branch', 'H_nd2')
    a.label('H_nx1')
    touch_setup()
    for blk in (0, 8, 40, 64): touch(blk)
    common()
    td = d_loads(a, nd)
    w_holes(a, V(236, 4))
    w_round(a, 0, 0, 0, 4)
    sq_clear()
    stamp(a, 1)
    a.wait_vm_tok(td)
    stamp(a, 2)
    a.label('H_nx2')
    a('s_barrier')
    tp = d_task(a)
    stamp(a, 3)
    tr = w_round(a, 0, 0, 4, 7)
    touch3()
    a.wait_vm_tok(tp)
    a('s_barrier')
    publish4(a, FLD, PSTR, nd)
    a.wait_vm_tok(tr)
    a.label('H_nd2')
    a.wait(lg=0)
    a('s_barrier')
    emit(w_read_ops(0))
    a.wait(lg=0)
    a('s_barrier')
    tr = w_round(a, 1)
    a.wait_vm_tok(tr)
    stamp(a, 5)
    a('s_barrier')
    emit(w_read_ops(1))
    sDF, sT2, vt2, vg1 = S(58), S(54), V(93), V(96)
    rep_base(a, sDF, FLD, PSTR)
    pack_flag_addr(a, vg1)
    FD_ = Flags(a, 'HD', V(94, 2), vg1, sDF)
    FD_.load()
    a.wait(lg=0)
    a('s_barrier')
    stamp(a, 6)
    tr = w_round(a, 2, 1)
    FD_.check()
    p2_touch(a)
    stamp(a, 7)
    a('s_cmp_lg_u32', sB, 7)
    a('s_cbranch_scc1', 'H_end')
    a.wait_vm_tok(tr)
    a('s_barrier')
    R = [V(16 + i) for i in range(4)]
    emit(w_shift(1, vWr, R))
    for i, ks in enumerate(RND[2]):
        if i == 4: emit(w_shift(4, R))
        emit(w_reads(ks, i & 3, R))
    ON = V(208, 4)
    CSA = [V(212 + 4*k, 4) for k in range(4)]
    CSA[3] = V(240, 4)
    for d in range(4): a('v_mov_b32', ON[d], '0x3f803f80')
    for ks in RND[0] + RND[1] + RND[2]:
        for k in range(4):
            a(MFMA, CSA[k], W1(ks, k), ON, CSA[k] if ks else 0)
    cs_bases(a)
    a('v_and_b32', t0, 15, lane)
    a('v_cmp_eq_u32', 'vcc', 0, t0)
    a('s_and_saveexec_b64', S(68, 2), 'vcc')
    for k in range(4):
        a('buffer_store_dwordx4', CSA[k], vq16, RWS, sCS3 if k == 3 else sCS0, mods=f'offen offset:{64*(k % 3)} sc1')
    a('s_mov_b64', 'exec', -1)
    a('s_lshl_b32', st0, sC, 7)
    a('s_lshl_b32', st1, sw, 2)
    a('s_add_u32', st0, st0, st1)
    a('s_add_u32', st0, st0, hex(FLC))
    a.wait(vm=0)
    publish(a, st0, 0)
    a.label('H_end')
    stamp(a, 8)

def cs_bases(a):
    a('s_mul_i32', st0, sC, 14*64)
    a('s_add_u32', st0, st0, hex(CS))
    a('s_lshl_b32', sCS0, sUb, 6)
    a('s_add_u32', sCS0, sCS0, st0)
    a('s_lshl_b32', sCS3, sU3, 6)
    a('s_add_u32', sCS3, sCS3, st0)
```

```python
from mk8a import *

vdma2, RS2, vout = V(13), V(13), V(248)
ACC = [[V(16 + 32*n + 4*j, 4) for j in range(8)] for n in range(3)]
ACC.append({j: V(112 + 4*((j >> 2)*2 + (j & 1)), 4) for j in (0, 1, 4, 5)})
CSR = [V(128 + 4*n, 4) for n in range(4)]
BF = [V(208 + 4*i, 4) for i in range(8)]
VRD = [V(240 + i) for i in range(8)]
MEAN = V(176, 8)
vsr = [vst, V(184), V(185), V(186)]
vsw = [V(187), V(188)]
MT = [V(189), V(190)]
SQF = [V(128 + 4*i, 4) for i in range(3)]
SQA = V(204, 4)
vsq, vsqs, vpr = V(250), V(251), V(191)
vWg = [V(128 + i) for i in range(4)]
SQL = V(184, 8)
RES = [V(144, 2), V(146, 2), V(148, 2), V(150, 2), V(14, 2)]
ACC2 = [[V(208 + 4*nu, 4) for nu in range(5)], [V(228 + 4*nu, 4) for nu in range(5)],
        [V(176 + 4*nu, 4) for nu in range(5)], [V(196, 4), V(200, 4), V(204, 4), V(128, 4), V(132, 4)]]
MSK = [S(50, 2), S(52, 2), S(54, 2)]
WDL = [(W1(ks, n), ('p1', ks)) for ks in range(4) for n in range(4)]
WDL += [(V(152 + 4*f, 4), ('p1', 4 + (f >= 2))) for f in range(6)]
WDL += [(W1(ks, 3), (1, 0, ks)) for ks in range(KS, 20)]
WDL += [(W1(ks, n), (1, 2, ks)) for ks in range(KS, 20) for n in range(3)]
def WD(f): return WDL[f][0]
sMV, sDump, sPkT, sPark, sPkG = S(34, 2), S(12), S(49), S(7), S(10)
NPK, PK0 = E('NPK', 15), 2048
sHT0, sHTt, vchk, vtch = S(36), S(37), V(253), V(132)
CKT = [V(138 + 2*i, 2) for i in range(3)]
sCl, sFX, sFXw, GQ = S(39), S(40), S(41), V(132, 4)
HF0 = [ACC[n][j] for j in (0, 1) for n in range(4)] + [ACC[n][j] for j in (2, 3) for n in range(3)]
HF1 = [ACC[n][j] for j in (4, 5) for n in range(4)] + [ACC[n][j] for j in (6, 7) for n in range(3)]
HF = HF0 + HF1

def gemm_setup(a):
    srd(a, ROUT, P_OUT, S_*D_*2)
    cs_bases(a)
    a('s_lshl_b32', sHT, sw, 15)
    a('s_lshl_b32', st0, sB, 8)
    a('s_add_u32', sHT, sHT, st0)
    a('s_add_u32', sHT, sHT, hex(HT))
    a('s_lshl_b32', sLds, sw, 11)
    a('s_mov_b32', sHT0, sHT)
    a('s_lshl_b32', sFX, sB, 7)
    a('s_add_u32', sFX, sFX, hex(FL3))
    a('s_lshl_b32', st1, sC, 2)
    a('s_add_u32', sFXw, sFX, st1)
    a('s_and_b32', st1, sC, 3)
    a('s_lshl_b32', st1, st1, 2)
    a('s_add_u32', st1, st1, sw)
    a('s_lshl_b32', st1, st1, 17)
    a('s_add_u32', st1, st1, st0)
    a('s_add_u32', sHTt, st1, hex(HT + 4*131072))
    a('v_bfe_u32', t0, lane, 4, 2)
    a('v_lshl_add_u32', t0, t0, 2, l16)
    a('v_add_u32', vchk, sLds, t0)
    a('v_lshrrev_b32', t0, 1, lane)
    a('v_and_b32', t1, 1, lane)
    a('v_lshlrev_b32', t1, 7, t1)
    a('v_lshl_add_u32', vtch, t0, 12, t1)
    clr_setup_h(a, sCl)
    half, cbk, mu = S(13), S(14), S(15)
    a('s_bfe_u32', half, sC, (1 << 16) | 2)
    a('s_lshr_b32', cbk, sC, 3)
    a('s_lshl_b32', cbk, cbk, 2)
    a('s_and_b32', st0, sC, 3)
    a('s_add_u32', cbk, cbk, st0)
    a('s_and_b32', st0, sw, 1)
    a('s_lshl_b32', sRot, st0, 1)
    a('s_lshr_b32', st1, sw, 1)
    a('s_or_b32', sRot, sRot, st1)
    a('s_lshl_b32', mu, st1, 2)
    a('s_add_u32', mu, mu, st0)
    a('s_lshl_b32', st0, half, 1)
    a('s_add_u32', mu, mu, st0)
    a('s_mul_i32', st0, cbk, 5*TS)
    a('s_mul_i32', st1, sw, 14*1024)
    a('s_add_u32', st0, st0, st1)
    for nu in range(5):
        a('s_add_u32', sWn[nu], st0, hex(WP2 + nu*TS))
    a('s_lshl_b32', st0, sB, 3)
    a('s_lshl_b32', st2, half, 1)
    a('s_add_u32', st2, st2, st0)
    a('s_mul_i32', st2, st2, TS)
    a('s_add_u32', st2, st2, st1)
    for j in range(4):
        a('s_add_u32', sHH[j], st2, hex(HH + ((j & 1) + 4*(j >> 1))*TS))
    a('s_and_b32', st1, sRot, 2)
    a('s_mul_i32', st2, sC, 14*256)
    a('s_add_u32', st2, st2, hex(HH))
    for k in range(2):
        if k: a('s_xor_b32', st1, st1, 2)
        a('s_add_u32', sA[k], st0, st1)
        a('s_mul_i32', sA[k], sA[k], TS)
        a('s_add_u32', sA[k], sA[k], st2)
    a('s_add_u32', st1, st0, mu)
    a('s_mul_i32', sOut, st1, 16*1280)
    a('s_mul_i32', st2, cbk, 160)
    a('s_add_u32', sOut, sOut, st2)
    a('s_lshl_b32', sSQl, st1, 9)
    a('s_add_u32', sSQl, sSQl, hex(SQ))
    a('s_add_u32', st1, st0, cbk)
    a('s_lshl_b32', sSQs, st1, 9)
    a('s_lshl_b32', st1, half, 2)
    a('s_add_u32', st1, st1, sw)
    a('s_lshl_b32', st1, st1, 2)
    a('s_add_u32', sSQs, sSQs, st1)
    a('s_add_u32', sSQs, sSQs, hex(SQ))
    a('s_mov_b32', sStat, 0)
    a('s_lshl_b32', sC3, sC, 7)
    a('s_add_u32', sC3, sC3, hex(FLC))
    a('s_mov_b32', sPkG, sWn[0])
    a('s_mul_i32', sPark, sw, NPK*1024)
    a('s_add_u32', sPark, sPark, PK0)
    for mn, ops, mods in w_shift(1, vWr, vWg): a(mn, *ops)
    a('s_add_u32', sDump, sStat, 1024)
    a('s_cmp_ge_u32', sw, 2)
    a('s_cselect_b32', sMV[1], '0xffff0000', 0)
    a('s_mov_b32', sMV[0], 0)
    q, r, m, x = V(208), V(209), V(210), V(211)
    a('v_lshrrev_b32', q, 4, lane)
    a('v_bfe_u32', r, lane, 2, 2)
    a('v_and_b32', m, 15, lane)
    a('s_and_b32', st1, sw, 1)
    a('s_lshl_b32', st1, st1, 2)
    a('v_or_b32', t0, st1, q)
    a('v_bfe_u32', t1, lane, 1, 3)
    a('v_xor_b32', t0, t0, t1)
    a('v_lshlrev_b32', t0, 5, t0)
    a('v_and_b32', t1, 1, lane)
    a('v_lshl_add_u32', t0, t1, 4, t0)
    a('v_lshl_add_u32', vdma, q, 12, t0)
    a('v_add_u32', vdma2, 16384 - 1024, vdma)
    a('v_and_b32', t0, 1, q)
    a('v_lshl_or_b32', t0, t0, 2, r)
    a('v_lshl_add_u32', t1, q, 3, r)
    a('v_lshlrev_b32', t1, 8, t1)
    a('v_and_b32', t2, 3, lane)
    a('v_lshl_add_u32', t1, t2, 3, t1)
    a('v_xor_b32', x, cbk, t0)
    a('v_lshl_add_u32', vsq, x, 5, t1)
    a('s_lshl_b32', st0, sw, 14)
    a('s_add_u32', st0, st0, 11*8192)
    a('s_mul_i32', st1, sw, 3*8192)
    a('s_cmp_eq_u32', half, 0)
    a('s_cselect_b32', st0, st1, st0)
    a('v_add_u32', vsq, st0, vsq)
    a('v_xor_b32', t0, sRot, t0)
    for j in range(8):
        a('v_xor_b32', VRD[j], j, t0)
        a('v_lshl_add_u32', VRD[j], VRD[j], 5, t1)
    for i in range(3):
        a('v_cmp_eq_u32', MSK[i], i + 1, t2)
    a('v_lshlrev_b32', t0, 5, m)
    a('v_cmp_eq_u32', 'vcc', r, q)
    a('v_mov_b32', t1, hex(OOB))
    a('v_cndmask_b32', vsqs, t1, t0, 'vcc')
    a('v_lshrrev_b32', t0, 1, q)
    a('v_lshl_or_b32', t0, t0, 2, r)
    a('v_xor_b32', t0, mu, t0)
    a('v_lshlrev_b32', t0, 5, t0)
    a('v_lshl_add_u32', t0, t2, 3, t0)
    a('v_lshl_add_u32', t1, q, 2, r)
    a('v_lshl_add_u32', t0, t1, 8, t0)
    a('s_mul_i32', st2, cbk, 80*256)
    a('v_add_u32', vres, st2, t0)
    a('s_lshl_b32', st0, sRot, 2)
    a('s_add_u32', st0, st0, sStat)
    a('v_lshl_add_u32', vst, m, 5, st0)
    a('s_and_b32', st0, sRot, 1)
    a('v_and_b32', t0, 1, q)
    a('v_lshrrev_b32', t2, 1, q)
    a('v_xor_b32', x, st0, t0)
    a('v_mul_u32_u24', x, TS, x)
    a('v_lshl_add_u32', x, m, 4, x)
    a('v_add_u32', t1, sUb, t2)
    a('v_lshl_add_u32', vh01, t1, 8, x)
    a('s_add_u32', st1, sUb, 2)
    a('s_sub_u32', st2, sU3, st1)
    a('v_mul_lo_u32', t1, st2, t2)
    a('v_add_u32', t1, st1, t1)
    a('v_lshl_add_u32', vh23, t1, 8, x)
    a('v_xor_b32', x, st0, t2)
    a('v_mul_u32_u24', x, TS, x)
    a('v_lshl_add_u32', x, m, 4, x)
    a('v_lshl_add_u32', x, t0, 3, x)
    a('s_lshl_b32', st1, st1, 8)
    a('v_add_u32', vh2x, st1, x)
    a('v_mul_u32_u24', t1, 1280, m)
    a('v_lshl_add_u32', t1, t0, 5, t1)
    a('v_lshl_add_u32', vout, t2, 4, t1)
    a('v_and_b32', t1, 3, lane)
    a('v_lshlrev_b32', vfl, 2, t1)

def late_setup_ops():
    L = []
    for k in range(1, 4): L.append(('v_xor_b32', (vsr[k], 4*k, vst), ''))
    L.append(('v_lshl_add_u32', (MT[0], lane, 2, sDump), ''))
    L.append(('v_cndmask_b32', (vsw[0], MT[0], vst, sMV), ''))
    L.append(('v_cndmask_b32', (vsw[1], MT[0], vsr[1], sMV), ''))
    L.append(('v_add_u32', (vpr, sPark, l16), ''))
    return L

def pair_ops(X, Y, cX, cY, jX, jY, Q, pk, swap=True):
    L = []
    for Z, c, j in ((X, cX, jX), (Y, cY, jY)):
        if pk:
            s = j & 1
            for h in range(2):
                L.append((1, 'v_pk_fma_f32', (Z[2*h:2*h+2], c[2*h:2*h+2], MEAN[j-s:j-s+2], Z[2*h:2*h+2]), f'op_sel:[0,{s},0] op_sel_hi:[1,{s},1]'))
        else:
            for e in range(4): L.append((1, 'v_fmac_f32', (Z[e], c[e], MEAN[j]), ''))
    if swap:
        for e in range(4): L.append((2, 'v_permlane32_swap_b32', (X[e], Y[e]), ''))
    for e in range(4): L.append((1, 'v_max_f32', (X[e], 0, X[e]), ''))
    if pk:
        for h in range(2): L.append((1, 'v_pk_mul_f32', (X[2*h:2*h+2], X[2*h:2*h+2], Y[2*h:2*h+2]), ''))
    else:
        for e in range(4): L.append((1, 'v_mul_f32', (X[e], X[e], Y[e]), ''))
    for h in range(2): L.append((1, 'v_cvt_pk_bf16_f32', (Q[h], X[2*h], X[2*h+1]), ''))
    return L

def epi_ops(P, jb, pk=False):
    j0, j1 = 4*P + jb, 4*P + jb + 1
    L = []
    sbase = sA[jb >> 1]
    if P:
        L.append((1, 's_add_u32', (sbase, sbase, 4*TS), ''))
    groups = [(0, vh01)] + ([(2, vh23)] if jb == 0 else [])
    for n, va in groups:
        Q = ACC[n+1][j0]
        L += pair_ops(ACC[n][j0], ACC[n+1][j0], CSR[n], CSR[n+1], j0, j0, Q[0:2], pk, n > 0)
        L += pair_ops(ACC[n][j1], ACC[n+1][j1], CSR[n], CSR[n+1], j1, j1, Q[2:4], pk, n > 0)
        L.append((2, 'v_permlane16_swap_b32', (Q[0], Q[2]), ''))
        L.append((2, 'v_permlane16_swap_b32', (Q[1], Q[3]), ''))
        L.append((1, 'buffer_store_dwordx4', (Q, va, RWS, sbase), 'offen sc1'))
    if jb:
        Q = ACC[2][j1]
        L += pair_ops(ACC[2][j0], ACC[2][j1], CSR[2], CSR[2], j0, j1, Q[0:2], pk)
        L.append((1, 'buffer_store_dwordx2', (Q[0:2], vh2x, RWS, sbase), 'offen sc1'))
    return L

BFQ = [V(136, 4), V(140, 4)]
vck = V(252)

def gemms(a):
    T = {}
    dt = {}
    slow = []
    PW = [Ptr(s) for s in sWn]
    PH = [Ptr(s) for s in sHH]
    def wd_load(f, dry):
        i, nu = divmod(f, 5)
        L, o = PW[nu].at(i, dry)
        return L + [('buffer_load_dwordx4', (WD(f), l16, RWS, sWn[nu]), f'offen offset:{o}' + LD, None)]
    def hload(i, j, dry):
        L, o = PH[j].at(i, dry)
        return L + [('buffer_load_dwordx4', (HF[2*i + (j & 1)], l16, RWS, sHH[j]), f'offen offset:{o}' + LD, None)]
    def guarded(sc, qi, at, name, badops, reload):
        for mn, ops in badops: sc.op(qi, at, mn, ops)
        def bad():
            for mn, ops in badops: a(mn, *ops)
        def br():
            a('s_cbranch_vccnz', name + '_slow')
            a.label(name + '_back')
            slow.append((name, bad, reload()))
            T[name] = sc.n
        sc.sca(qi, at, br)
    def hcheck(sc, at, i, ph):
        F0, F1 = HF[2*i], HF[2*i + 1]
        ops = [('v_max3_u32', (vck, F0[0], F0[2], F1[0])), ('v_max_u32', (vck, vck, F1[2])), ('v_cmp_eq_u32', ('vcc', -1, vck))]
        def mk():
            ks_ = [PH[2*ph + jj].k for jj in range(2)]
            def reload():
                for jj in range(2):
                    a('s_add_u32', st0, sHH[2*ph + jj], hex((4096*((i >> 2) - ks_[jj])) & 0xffffffff))
                    a('buffer_load_dwordx4', HF[2*i + jj], l16, RWS, st0, mods=f'offen offset:{(i & 3)*1024} sc1')
            return reload
        guarded(sc, 2, at, f'HC{ph}_{i}', ops, mk)
    def dma_ops(ks):
        return [[('s_add_u32', ('m0', sLds, 8192*ks)), ('buffer_load_dwordx4', (vdma, RWS, sHT), 'offen' + LD + ' lds')],
                [('buffer_load_dwordx4', (vdma2, RWS, sHT), 'offen offset:1024' + LD + ' lds', (dt, ks))],
                [('s_add_u32', (sHT, sHT, 131072))]]
    sc = Sched(a, 4)
    sc.step = E('VSTEP', 5)
    NUP = E('NUP', 4)
    for ks in range(NUP):
        for L in dma_ops(ks): sc.ops(0, 0, L)
    sc.drain()
    if E('HTT', 1): a('buffer_load_dword', V(133), vtch, RWS, sHTt, mods='offen')
    a('s_cmp_lg_u32', S(2), 0)
    a('s_cbranch_scc1', 'EP_skip')
    a('s_add_u32', sEp, sEp, 1)
    a('v_mov_b32', t0, sEp)
    a('s_mov_b32', st0, hex(EPOCH))
    a('s_mov_b64', 'exec', 1)
    a('buffer_store_dword', t0, 'off', RWS, st0, mods='sc1')
    a('s_mov_b64', 'exec', -1)
    a.label('EP_skip')
    steps = [(ks, j) for ks in range(KS) for j in range(8)]
    ends = {}
    cnt = lambda L: sum(4 if (j & 3) < 2 else 3 for _, j in L)
    n1 = cnt(steps)
    when = {}
    for P in range(2):
        for jb in (0, 2):
            for ks in range(KS, 20):
                steps += [(ks, 4*P + jb), (ks, 4*P + jb + 1)]
                when[(P, jb, ks)] = cnt(steps)
            ends[(P, jb)] = cnt(steps)
    NM = cnt(steps)
    d0, ds_ = E('D_AT', 30), E('DSTEP', 9)
    for ks in range(NUP, 20):
        at = d0 + ds_*(ks - NUP)
        st_ = ds_
        if ks >= 11: st_ = E('DSTEP2', 7); at = E('D2_AT', 88) + st_*(ks - 11)
        for k, L in enumerate(dma_ops(ks)): sc.ops(2, at + (st_//2 if k else 0), L)
    bars = eval(os.environ.get('BARS', '{30: 3, 86: 6, 142: 11, 198: 19}'))
    lastbar = min(k for k, v in bars.items() if v == 19)
    cbase = [0]
    def hval(lo, hi, at):
        name = f'HV{lo}'
        rd = lambda ks: ('ds_read2st64_b32', (CKT[ks % 3], vchk), f'offset0:{32*(ks - lo)} offset1:{32*(ks - lo) + 4}')
        mx = lambda ks: ('v_max_u32', (vck, CKT[ks % 3][0], CKT[ks % 3][1])) if ks == lo else ('v_max3_u32', (vck, vck, CKT[ks % 3][0], CKT[ks % 3][1]))
        cmp_ = ('v_cmp_eq_u32', ('vcc', -1, vck))
        def reload():
            a('s_mov_b32', st1, 'm0')
            for ks in range(lo, hi + 1):
                a('s_add_u32', 'm0', sLds, 8192*ks)
                a('s_add_u32', st0, sHT0, 131072*ks)
                a('buffer_load_dwordx4', vdma, RWS, st0, mods='offen sc1 lds')
                a('buffer_load_dwordx4', vdma2, RWS, st0, mods='offen offset:1024 sc1 lds')
            a('s_mov_b32', 'm0', st1)
        def bad():
            for ks in range(lo, hi + 1):
                r = rd(ks); a(r[0], *r[1], mods=r[2])
                m = mx(ks); a(m[0], *m[1])
            a(cmp_[0], *cmp_[1])
        def br():
            a('s_cbranch_vccnz', name + '_slow')
            a.label(name + '_back')
            slow.append((name, bad, reload))
            T[name] = sc.n
        sh = [('v_add_u32', (vchk, 8192*(lo - cbase[0]), vchk))] if lo != cbase[0] else []
        cbase[0] = lo
        if at is None:
            a.wait_vm_tok(dt[hi])
            for ks in range(lo, hi + 1):
                r = rd(ks); a(r[0], *r[1], mods=r[2])
            return lambda: ([a(mx(ks)[0], *mx(ks)[1]) for ks in range(lo, hi + 1)], a(cmp_[0], *cmp_[1]), br())
        lat, st_ = E('HV_LAT', 7), 3
        for x in sh: sc.op(3, at - lat - 3 - st_*(hi - lo) - 2, *x)
        for ks in range(lo, hi + 1):
            t = at - lat - 3 - st_*(hi - ks)
            sc.sca(3, t, lambda ks=ks: a.wait_vm_tok(dt[ks]))
            sc.op(3, t, *rd(ks))
            sc.op(3, t + lat, *mx(ks))
        sc.op(3, at - 3, *cmp_)
        sc.sca(3, at - 3, br)
    HV = E('HV', 1)
    if HV:
        lo = 2
        for n_, hi in sorted(bars.items()):
            hval(lo, hi, n_); lo = hi + 1
        cbase[0] = 0
    hvn = {n_: f'HV{lo_ + 1}' for n_, lo_ in zip(sorted(bars), [1] + [v for k, v in sorted(bars.items())])}
    pbar = E('PBAR', 228)
    bars[pbar] = 19
    b0, b1 = sorted(bars)[:2]
    for i, ks in enumerate(RND[2]):
        at = 0 if i < 2 else b0
        if i == 4:
            for op in w_shift(4, vWg): sc.op(0, at, *op)
        for op in w_reads(ks, i & 3, vWg): sc.op(0, at, *op, tok=(T, 'w3a' if i < 2 else 'w3b'))
    sc.note(0, 0, lambda: T.__setitem__('w3a_ok', 1))
    sc.note(0, b0, lambda: T.__setitem__('w3b_ok', 1))
    assert d0 + ds_*(8 - NUP) >= b0 and E('D2_AT', 88) > b1
    cl_at = E('GCL_AT', 152)
    for d in range(4): sc.op(1, cl_at - 8, 'v_mov_b32', (GQ[d], -1))
    for k, (mn, ops, mods) in enumerate(clr_ops(GQ, sCl)):
        sc.op(1, cl_at + E('GCL_STEP', 3)*k, mn, ops, mods, tok=(T, 'cl'))
    sc.note(1, cl_at + E('GCL_STEP', 3)*8, lambda: T.__setitem__('cl_ok', sc.n))
    fx_at = E('FX_AT', 540)
    FX = Flags(a, 'FX', vfv, vchk, sFX)
    sc.op(1, fx_at - 70, 'v_and_b32', (vchk, 15, lane))
    sc.op(1, fx_at - 70, 'v_lshlrev_b32', (vchk, 2, vchk))
    sc.call(1, fx_at - 60, FX.load)
    sc.call(1, fx_at, lambda: (FX.check(), T.__setitem__('fx', 1)))
    fl_at = E('FL_AT', 240)
    FC = Flags(a, 'CF', vfv, vfl, sC3)
    sc.call(1, cl_at - 62, FC.load)
    sc.call(1, cl_at - 10, FC.check)
    for n in range(4):
        sc.op(1, fl_at, 'buffer_load_dwordx4', (CSR[n], vq16, RWS, sCS3 if n == 3 else sCS0), f'offen offset:{64*(n % 3)} sc1')
    sq_at = lastbar + 2
    sc.note(0, sq_at, lambda: T['cl_ok'])
    for nu in range(5):
        sc.op(0, sq_at, 'ds_read_b64_tr_b16', (RES[nu], vres), f'offset:{4096*nu}')
    for op in late_setup_ops(): sc.op(0, sq_at, *op)
    for i in range(3):
        for hf in range(2):
            sc.op(0, sq_at, 'ds_read_b64_tr_b16', (SQF[i][2*hf:2*hf+2], vsq), f'offset:{8192*i + 1024*hf}', tok=(T, 'sqr'))
    def sq_mf():
        a(MFMA, SQA, SQF[1], SQF[1], 0)
        a(MFMA, SQA, SQF[2], SQF[2], SQA)
        a('s_bitcmp1_b32', sC, 2)
        a('s_cbranch_scc1', 'SQ_skip')
        a(MFMA, SQA, SQF[0], SQF[0], SQA)
        a.label('SQ_skip')
    sm = pbar + 4
    sc.call(0, sm, sq_mf)
    sc.op(0, sm + 4, 'v_cndmask_b32', (MT[0], SQA[0], SQA[1], MSK[0]))
    sc.op(0, sm + 4, 'v_cndmask_b32', (MT[0], MT[0], SQA[2], MSK[1]))
    sc.op(0, sm + 4, 'v_cndmask_b32', (MT[0], MT[0], SQA[3], MSK[2]))
    sc.op(0, sm + 4, 'buffer_store_dword', (MT[0], vsqs, RWS, sSQs), 'offen sc1')
    for P in range(2):
        e0 = ends[(P, 0)]
        for k in range(2):
            sc.op(0, e0 + 3, 'v_mul_f32', (MT[k], '0xbacccccd', ACC[3][4*P + k][0]))
        for k in range(2):
            sc.op(0, e0 + 3, 'ds_write_b32', (vsw[k], MT[k]), f'offset:{16*P}', tok=(T, 'mw'))
        def mbar(P=P):
            a.wait_lg_tok(T['mw'])
            if P == 0: a.wait_vm_tok(T['cl'])
            a('s_barrier')
            if P == 0: publish(a, sFXw, 0)
        sc.call(0, e0 + 10, mbar)
        for k in range(4):
            sc.op(0, e0 + 10, 'ds_read_b32', (MEAN[4*P + k], vsr[k]), f'offset:{16*P}')
        for c, mn, ops, mods in epi_ops(P, 0): sc.op(0, e0 + 16, mn, ops, mods)
        for c, mn, ops, mods in epi_ops(P, 2, pk=(P == 1)): sc.op(0, ends[(P, 2)] + 3, mn, ops, mods)
        sc.note(0, ends[(P, 2)] + 3, lambda P=P: T.__setitem__(f'st{P}', sc.n))
    wd0 = E('WD_AT', 170)
    for f in range(70 - NPK):
        w = WDL[f][1]
        av = max(28*(w[1] + 1) + 1, wd0) if w[0] == 'p1' else when[w] + 1
        sc.load(av, 2*f + 1, lambda dry, f=f: wd_load(f, dry))
    for k in range(NPK):
        f = 70 - NPK + k
        i, nu = divmod(f, 5)
        def park(dry, k=k, i=i, nu=nu):
            return [('s_add_u32', ('m0', sPark, 1024*k), '', None),
                    ('s_add_u32', (sPkT, sPkG, nu*TS + 1024*i), '', None),
                    ('buffer_load_dwordx4', (l16, RWS, sPkT), 'offen' + LD + ' lds', (T, 'pk'))]
        sc.load(pbar + 1, 44 + k*0.01, park)
        def wpk():
            a.wait_vm_tok(T['pk'])
        if k == 0: sc.sca(1, when[WDL[f][1]] + 1, wpk)
        sc.op(1, when[WDL[f][1]] + 1, 'ds_read_b128', (WD(f), vpr), f'offset:{1024*k}')
    def hl(i, j, P, dry):
        assert f'st{P}' in T and 'fx' in T, (i, j, sc.n)
        return hload(i, j, dry)
    for i in range(7):
        for j in range(2): sc.load(E('HA_AT', 560), 10*i - 10 + j, lambda dry, i=i, j=j: hl(i, j, 0, dry))
    sc.sort()

    GST = eval(os.environ.get('GST', '[]'))
    print('n1', n1, 'ends', ends, 'NM', NM, file=sys.stderr)
    base = [0]*8
    cover = [1]
    def bread(s, hf):
        ks, j = steps[s]
        assert ks <= cover[0], (s, ks, cover)
        return ('ds_read_b64_tr_b16', (BF[s & 7][2*hf:2*hf+2], VRD[j]), f'offset:{(ks & 7)*8192 + 1024*hf}')
    def bfix(s):
        ks, j = steps[s]
        if base[j] == ks >> 3: return []
        d = (ks >> 3) - base[j]
        base[j] = ks >> 3
        return [('v_add_u32', (VRD[j], d*65536, VRD[j]))]
    if HV: hval(0, 1, None)()
    a.wait_vm_tok(dt[1])
    a('s_barrier')
    stamp(a, 10)
    for s in range(8):
        for hf in range(2):
            r = bread(s, hf); a(r[0], *r[1], mods=r[2])
    seen = set()
    seq = []
    for s, (ks, j) in enumerate(steps):
        nk = 4 if (j & 3) < 2 else 3
        for k in range(nk):
            acc = ACC[k][j]
            seq.append((s, k, nk, (MFMA, (acc, W1(ks, k), BF[s & 7], acc if acc.idx in seen else 0), '')))
            seen.add(acc.idx)
    for x, (s, k, nk, m) in enumerate(seq):
        if sc.n in bars:
            a.wait_vm_tok(dt[bars[sc.n]])
            if HV and sc.n in hvn: assert hvn[sc.n] in T, sc.n
            if sc.n == pbar: a.wait_lg_tok(T['sqr'])
            if sc.n == b0: assert T['w3a_ok']; a.wait_lg_tok(T['w3a'])
            if sc.n == b1: assert T['w3b_ok']; a.wait_lg_tok(T['w3b'])
            a('s_barrier')
            cover[0] = bars[sc.n]
        if sc.n == ends[(0, 2)]: stamp(a, 11)
        if sc.n in GST: stamp(a, 1 + GST.index(sc.n))
        a(m[0], *m[1])
        sc.n += 1
        fixed = []
        if 1 <= s and s + 7 < len(steps):
            if E('BB', 1) and sc.n > E('BB_AT', 320): fixed += [bread(s + 7, 0), bread(s + 7, 1)] if k == 0 else []
            elif k < 2: fixed.append(bread(s + 7, k))
        if k == 2 and s + 8 < len(steps): fixed += bfix(s + 8)
        sc.gap(fixed, [seq[x + 1][3]] if x + 1 < len(seq) else [])
    print('after gemm1:', sc.left(), 'first epilogue done at', T['st0'], 'over', sc.over, file=sys.stderr)
    stamp(a, 12)
    a('s_lshl_b32', st0, S(15), 2)
    a('s_add_u32', st0, st0, sStat)
    a('v_and_b32', t0, 15, lane)
    a('v_lshl_add_u32', t1, t0, 5, st0)
    a('ds_read_b32', RS2, t1)
    a('v_lshlrev_b32', t0, 5, t0)
    sc.drain(E('BEV', 10))
    print('after burst:', sc.left(), file=sys.stderr)
    g0 = sc.n
    for i in range(7, 14):
        for j in range(2): sc.load(g0, 10*i - 10 + j, lambda dry, i=i, j=j: hl(i, j, 1, dry))
    for i in range(14):
        for j in (2, 3): sc.load(g0 + max(10*i + 5*(j - 1), E('HB_AT', 60)), 140 + 10*i - 10 + j, lambda dry, i=i, j=j: hl(i, j, 1, dry))
    sc.step = E('VSTEP2', 3)
    hcheck(sc, 0, 0, 0)
    while sc.q[2]:
        sc.gap()
    for i in range(1, 14): hcheck(sc, g0 + 10*i - E('CK', 5), i, 0)
    sc.sort()
    seq = [(i, (MFMA, (ACC2[j][nu], WD(5*i + nu), HF[2*i + j], ACC2[j][nu] if i else 0), '')) for i in range(14) for j in range(2) for nu in range(5)]
    for x, (i, m) in enumerate(seq):
        assert f'HC0_{i}' in T, i
        if 1000 + x in GST: stamp(a, 1 + GST.index(1000 + x))
        a(m[0], *m[1])
        sc.n += 1
        sc.gap([], [seq[x + 1][1]] if x + 1 < len(seq) and f'HC0_{seq[x + 1][0]}' in T else [])
    print('after gemm2a:', sc.left(), 'over', sc.over, file=sys.stderr)
    stamp(a, 13)
    def sqload():
        for k in range(2):
            a('buffer_load_dwordx4', BFQ[k], t0, RWS, sSQl, mods=f'offen offset:{16*k} sc1')
    sqload()
    a.wait(lg=0)
    a('s_barrier')
    vw, vr = t1, t2
    a('s_mul_i32', st0, sw, 5120)
    a('v_add_u32', vw, st0, l16)
    a('s_mul_i32', st0, sw, 20480)
    a('v_add_u32', vr, st0, l16)
    vw2 = vsqs
    a('v_add_u32', vw2, 40960, vw)
    g1 = sc.n
    for j in range(2):
        for nu in range(5):
            sc.op(0, g1 + 2 + 5*(5*j + nu), 'ds_write_b128', (vw, ACC2[j][nu]), f'offset:{20480*j + 1024*nu}')
    sqbad = [('v_max3_u32', (vck, BFQ[0][0], BFQ[0][1], BFQ[0][2])), ('v_max3_u32', (vck, vck, BFQ[0][3], BFQ[1][0])),
             ('v_max3_u32', (vck, vck, BFQ[1][1], BFQ[1][2])), ('v_max_u32', (vck, vck, BFQ[1][3])), ('v_cmp_eq_u32', ('vcc', -1, vck))]
    rec = []
    r = lambda mn, *ops, mods='': rec.append((mn, ops, mods))
    for k in range(4): r('v_add_f32', BFQ[0][k], BFQ[0][k], BFQ[1][k])
    r('v_add_f32', BFQ[0][0], BFQ[0][0], BFQ[0][1])
    r('v_add_f32', BFQ[0][2], BFQ[0][2], BFQ[0][3])
    r('v_add_f32', BFQ[0][0], BFQ[0][0], BFQ[0][2])
    s2, tt = BFQ[0][0], BFQ[0][1]
    r('v_mul_f32', tt, RS2, RS2)
    r('v_mul_f32', s2, '0x3acccccd', s2)
    r('v_sub_f32', s2, s2, tt)
    r('v_max_f32', s2, 0, s2)
    rbf(r, s2)
    r('v_add_f32', s2, '0x3727c5ac', s2)
    rbf(r, s2)
    r('v_sqrt_f32', s2, s2)
    rbf(r, s2)
    r('v_rcp_f32', s2, s2)
    r('v_mul_f32', RS2, s2, s2)
    for mn, ops, mods in rec: sc.op(1, g1 + 72, mn, ops, mods)
    NT = E('NT', 4)
    seq = [(i, j, nu) for i in range(14 - NT) for j in (2, 3) for nu in range(5)]
    tail0 = len(seq)
    seq += [(i, j, nu) for j in (2, 3) for nu in range(5) for i in range(14 - NT, 14)]
    for k, (j, nu) in enumerate([(j, nu) for j in (2, 3) for nu in range(5)]):
        sc.op(0, g1 + tail0 + NT*(k + 1) + 2, 'ds_write_b128', (vw2, ACC2[j][nu]), f'offset:{20480*(j - 2) + 1024*nu}')
    issued = lambda i: not any(e[0] in (140 + 10*i - 10 + 2, 140 + 10*i - 10 + 3) for e in sc.mem)
    assert issued(0)
    hcheck(sc, 0, 0, 1)
    while sc.q[2]:
        sc.gap()
    for i in range(1, 14):
        at = g1 + ((10*i - E('CK', 5)) if i < 14 - NT else (tail0 - 5 - 3*(13 - i)))
        sc.note(2, at, lambda i=i: None if issued(i) else 1/0)
        hcheck(sc, at, i, 1)
        if i == 6: guarded(sc, 2, g1 + 60, 'SQC', sqbad, lambda: sqload)
    sc.sort()
    ms = [(i, (MFMA, (ACC2[j][nu], WD(5*i + nu), HF[2*i + (j & 1)], ACC2[j][nu] if i else 0), '')) for i, j, nu in seq]
    for x, (i, m) in enumerate(ms):
        assert f'HC1_{i}' in T, i
        if sc.n == g1 + 71: assert 'SQC' in T
        if 1140 + x in GST: stamp(a, 1 + GST.index(1140 + x))
        a(m[0], *m[1])
        sc.n += 1
        sc.gap([], [ms[x + 1][1]] if x + 1 < len(ms) and f'HC1_{ms[x + 1][0]}' in T else [])
    print('after gemm2b:', sc.left(), 'over', sc.over, file=sys.stderr)
    sc.n += 100
    sc.drain()
    if 1280 in GST: stamp(a, 1 + GST.index(1280))
    a.wait(lg=0)
    a('s_barrier')
    RD = [V(16 + 4*k, 4) for k in range(20)]
    for nu in range(5):
        for k in range(4):
            a('ds_read_b128', RD[4*nu + k], vr, mods=f'offset:{5120*k + 1024*nu}')
    X = V(96, 4)
    Q = [V(100, 4), V(104, 4), V(108, 2)]
    vo2 = V(110)
    a('v_and_b32', t0, 15, lane)
    a('v_mul_u32_u24', t0, 1280, t0)
    a('v_lshrrev_b32', t1, 1, vq16)
    a('v_add_u32', vo2, t0, t1)
    rp = V(12, 2)
    for nu in range(5):
        C, C2 = RD[4*nu], RD[4*nu + 2]
        for h in range(2):
            a('v_pk_add_f32', C[2*h:2*h+2], C[2*h:2*h+2], RD[4*nu + 1][2*h:2*h+2])
            a('v_pk_add_f32', C2[2*h:2*h+2], C2[2*h:2*h+2], RD[4*nu + 3][2*h:2*h+2])
        a('v_lshlrev_b32', X[0], 16, RES[nu][0])
        a('v_and_b32', X[1], '0xffff0000', RES[nu][0])
        a('v_lshlrev_b32', X[2], 16, RES[nu][1])
        a('v_and_b32', X[3], '0xffff0000', RES[nu][1])
        for h in range(2):
            a('v_pk_add_f32', C[2*h:2*h+2], C[2*h:2*h+2], C2[2*h:2*h+2])
        for h in range(2):
            a('v_pk_fma_f32', C[2*h:2*h+2], C[2*h:2*h+2], rp, X[2*h:2*h+2], mods='op_sel:[0,1,0] op_sel_hi:[1,1,1]')
        q = Q[nu >> 1]
        for h in range(2):
            a('v_cvt_pk_bf16_f32', q[2*(nu & 1) + h], C[2*h], C[2*h+1])
        if nu & 1:
            a('v_permlane16_swap_b32', q[0], q[2])
            a('v_permlane16_swap_b32', q[1], q[3])
            a('buffer_store_dwordx4', q, vout, ROUT, sOut, mods=f'offen offset:{64*(nu >> 1)}')
    a('buffer_store_dwordx2', Q[2], vo2, ROUT, sOut, mods='offen offset:128')
    return slow

def slow_paths(a, slow):
    for name, bad, reload in slow:
        a.label(name + '_slow')
        a.wait(lg=0)
        a('s_mov_b32', sCnt, SPIN)
        reload()
        a.spin_head(name + '_spin')
        bad()
        a('s_cbranch_vccz', name + '_back')
        reload()
        a('s_sub_u32', sCnt, sCnt, 1)
        a('s_cbranch_scc0', name + '_spin')
        a.wait(vm=0)
        a('s_branch', name + '_back')

def kernel(a):
    stamp(a, 0)
    if STAMP:
        for i in range(1, 15): a('s_mov_b32', S(70 + 2*i), S(70))
    a('s_cmp_lt_u32', S(2), 256)
    a('s_cbranch_scc1', 'K_go')
    a('s_endpgm')
    a.label('K_go')
    load_args(a)
    if E('PF0', 1): code_prefetch(a, 'PC0')
    wave_id(a, sw, t0)
    a('v_and_b32', lane, 63, V(0))
    a('v_lshlrev_b32', l16, 4, lane)
    a('v_and_b32', vq16, 48, lane)
    a('s_cmp_ge_u32', S(2), 160)
    a('s_cbranch_scc1', 'K_helper')
    tht = conv_wg(a)
    gemm_setup(a)
    a.wait_vm_tok(tht)
    a.wait(lg=0)
    a('s_barrier')
    publish4(a, FLH, HSTR, S(2))
    w_round_x(a, 2, 1, 'R3_x', E('R3A', 3), 6)
    w_round_y(a, 2, 1, 'R3_y', E('R3A', 3), 6)
    p2_touch(a)
    a('s_branch', 'K_gemm')
    a.label('K_helper')
    helper_wg(a)
    gemm_setup(a)
    a.label('K_gemm')
    a('s_cmp_lg_u32', sw, 0)
    a('s_cbranch_scc1', 'C2_skip')
    rep_base(a, st2, FLH, HSTR)
    a('v_min_u32', t2, 39, lane)
    a('v_lshlrev_b32', t2, 7, t2)
    Flags(a, 'C2', BF[2], t2, st2, tmp=S(68, 2)).wait()
    a.label('C2_skip')
    a.wait(lg=0)
    a('s_barrier')
    stamp(a, 9)
    slow = gemms(a)
    if STAMP: a.wait(vm=0)
    stamp_flush(a, 0, 15, sw, RWS)
    a('s_endpgm')
    slow_paths(a, slow)
    a.items.append('CODE_END:')

if __name__ == '__main__':
    txt = build([(NAME + '_kernel', kernel, 256, 163840, 512, 256)])
    txt = txt.replace(f'@launch kernel={NAME}_kernel grid', '@launch grid')
    open(sys.argv[1], 'w').write(txt)
```

```python
from gen import *

E = lambda k, d: int(os.environ.get(k, str(d)))
LD = os.environ.get('LDM', '')
LD1 = os.environ.get('LD1', ' sc1')
NT_ = os.environ.get('NTI', ' nt')
KS = 8
FL = 0x1800000
FLA, FLH, FLP, FLC, FL3, EPOCH = FL, FL + 0x8000, FL + 0x10000, FL + 0x14000, FL + 0x18000, FL + 0x20000
FLD, FLG = FL + 0x5000, 0x1900000
HSTR, PSTR = 64*128, 24*128
SQ, AB, KV2, KVR = ST, 0x7A0000, WP1, 20480
SPIN = 20000
WROW = F_*2
TS = 224*256
WB, WSS, WUO = 4*CONV_LDS, 14368, 7184
RND = [[0, 1, 2, 3, 8, 9, 10], list(range(11, 18)), [4, 5, 6, 7, 18, 19]]

sw = S(3)
st0, st1, st2 = S(4), S(5), S(6)
ROUT, RWS = S(56, 4), S(60, 4)
sB, sC, sUb, sHT, sLds, sStat, sOut, sC3 = [S(16 + i) for i in range(8)]
sHH = [S(24 + i) for i in range(4)]
sRot, sSQl, sSQs, sU3, sCS0, sCS3 = [S(28 + i) for i in range(6)]
sA = [S(8), S(9)]
sCnt, sWo, sEp, sWl, sWs, sTag, sTag2 = S(11), S(42), S(43), S(38), S(49), S(100), S(100, 2)
RW1 = S(64, 4)
sWn = [S(44 + i) for i in range(5)]

lane, t0, t1, t2 = V(1), V(2), V(3), V(4)
l16, vdma, vh01, vh23, vh2x, vst, vres, vq16 = [V(5 + i) for i in range(8)]
vfl, vfv, vtg = V(249), V(254), V(255)
def W1(ks, n):
    if 4 <= ks < 8: return V(144 + 16*(ks - 4) + 4*n, 4)
    return A(16*(ks if ks < 4 else ks - 4) + 4*n, 4)
vWd = [V(226 + i) for i in range(4)]
vWr = [V(230 + i) for i in range(4)]

def spin(a, name, load, bad, first=True):
    a.wait(lg=0)
    a('s_mov_b32', sCnt, SPIN)
    if first: load()
    a.spin_head(name + '_spin')
    bad()
    a('s_cbranch_vccz', name + '_done')
    load()
    a('s_sub_u32', sCnt, sCnt, 1)
    a('s_cbranch_scc0', name + '_spin')
    a.wait(vm=0)
    a.label(name + '_done')

class Flags:
    def __init__(self, a, name, vval, vaddr, soff, off=0, tmp=None):
        self.a, self.name, self.vval, self.vaddr, self.soff, self.off, self.tmp = a, name, vval, vaddr, soff, off, tmp
    def load(self):
        mn = {1: 'buffer_load_dword', 2: 'buffer_load_dwordx2', 4: 'buffer_load_dwordx4'}[self.vval.n]
        self.tok = self.a(mn, self.vval, self.vaddr, RWS, self.soff, mods=f'offen offset:{self.off} sc1')
    def bad(self):
        a, v = self.a, self.vval
        if v.n == 1:
            a('v_cmp_ne_u32', 'vcc', sTag, v)
            return
        if v.n == 4: a('v_cmp_ne_u64', self.tmp, sTag2, v[2:4])
        a('v_cmp_ne_u64', 'vcc', sTag2, v[0:2])
        if v.n == 4: a('s_or_b64', 'vcc', 'vcc', self.tmp)
    def check(self):
        a = self.a
        a.wait_vm_tok(self.tok)
        self.bad()
        a('s_cbranch_vccz', self.name + '_ok')
        spin(a, self.name, self.load, self.bad)
        a.label(self.name + '_ok')
    def wait(self):
        spin(self.a, self.name, self.load, self.bad)

def publish(a, soff, off):
    return a('buffer_store_dword', vtg, 'off', RWS, soff, mods=f'offset:{off} sc1')

def publish_rep(a, name, base, stride, idx):
    a('s_cmp_lg_u32', sw, 0)
    a('s_cbranch_scc1', name)
    a('s_lshr_b32', st0, idx, 2)
    a('s_lshl_b32', st0, st0, 7)
    a('s_and_b32', st1, idx, 3)
    a('s_lshl_b32', st1, st1, 2)
    a('s_add_u32', st0, st0, st1)
    a('s_add_u32', st0, st0, hex(base))
    a('v_mul_u32_u24', t0, stride, lane)
    a('s_mov_b64', 'exec', 15)
    a('buffer_store_dword', vtg, t0, RWS, st0, mods='offen sc1')
    a('s_mov_b64', 'exec', -1)
    a.label(name)

def publish4(a, base, stride, idx):
    a('s_lshr_b32', st0, idx, 2)
    a('s_lshl_b32', st0, st0, 7)
    a('s_and_b32', st1, idx, 3)
    a('s_lshl_b32', st1, st1, 2)
    a('s_add_u32', st0, st0, st1)
    a('s_mul_i32', st1, sw, stride)
    a('s_add_u32', st0, st0, st1)
    a('s_add_u32', st0, st0, hex(base))
    a('s_mov_b64', 'exec', 1)
    a('buffer_store_dword', vtg, 'off', RWS, st0, mods='sc1')
    a('s_mov_b64', 'exec', -1)

NREP, WPL = E('NREP', 4), E('WPL', 2)
FLH2 = 0x1A00000
def publish_n(a, idx):
    a('s_lshr_b32', st0, idx, WPL)
    a('s_lshl_b32', st0, st0, 7)
    a('s_and_b32', st1, idx, (1 << WPL) - 1)
    a('s_lshl_b32', st1, st1, 2)
    a('s_add_u32', st0, st0, st1)
    a('s_mul_i32', st1, sw, HSTR*NREP//4)
    a('s_add_u32', st0, st0, st1)
    a('s_add_u32', st0, st0, hex(FLH2))
    a('v_min_u32', t0, NREP//4 - 1, lane)
    a('v_mul_u32_u24', t0, HSTR, t0)
    a('s_mov_b64', 'exec', (1 << NREP//4) - 1)
    a('buffer_store_dword', vtg, t0, RWS, st0, mods='offen sc1')
    a('s_mov_b64', 'exec', -1)

def rep_base(a, dst, base, stride):
    a('s_and_b32', dst, S(2), 3)
    a('s_mul_i32', dst, dst, stride)
    a('s_add_u32', dst, dst, hex(base))

def tag_setup(a):
    a('s_mul_i32', sTag, sEp, '0x9e3779b1')
    a('s_add_u32', sTag, sTag, '0x7f4a7c15')
    a('s_mov_b32', sTag2[1], sTag)
    a('v_mov_b32', vtg, sTag)

def code_prefetch(a, nm):
    a('s_getpc_b64', S(68, 2))
    a.label(nm)
    if E('PFALL', 0):
        a('v_lshlrev_b32', t0, 7, V(0))
        for i in range(2):
            if i: a('v_add_u32', t0, 32768, t0)
            a('v_min_u32', t1, f'CODE_END-{nm}-4', t0)
            a('global_load_dword', V(14 + i), t1, S(68, 2))
        return
    a('s_lshr_b32', st0, S(2), 3)
    a('s_lshl_b32', st0, st0, 11)
    a('v_lshrrev_b32', t0, 4, V(0))
    a('v_lshl_add_u32', t0, t0, 7, st0)
    a('v_min_u32', t1, f'CODE_END-{nm}-4', t0)
    a('global_load_dword', V(14), t1, S(68, 2))

def role_setup(a):
    a('s_bfe_u32', sB, S(2), (1 << 16) | 2)
    a('s_lshl_b32', sB, sB, 3)
    a('s_lshr_b32', st1, S(2), 5)
    a('s_add_u32', sB, sB, st1)
    a('s_and_b32', sC, S(2), 3)
    a('s_lshl_b32', sC, sC, 2)
    a('s_bfe_u32', st1, S(2), (2 << 16) | 3)
    a('s_add_u32', sC, sC, st1)
    a('s_mul_i32', sUb, sw, 13)
    a('s_add_u32', sUb, sUb, 3)
    a('s_lshr_b32', sUb, sUb, 2)
    a('s_lshr_b32', sU3, sw, 1)
    a('s_mul_i32', sU3, sU3, 10)
    a('s_add_u32', sU3, sU3, 3)

def w_srd(a):
    a('s_cmp_ge_u32', sw, 2)
    a('s_cselect_b32', RW1[0], P_WU[0], P_WG[0])
    a('s_cselect_b32', RW1[1], P_WU[1], P_WG[1])
    a('s_and_b32', RW1[1], RW1[1], '0xffff')
    a('s_mov_b32', RW1[2], hex(D_*F_*2))
    a('s_mov_b32', RW1[3], '0x20000')

def w_setup(a):
    odd = st2
    a('s_and_b32', odd, sC, 1)
    a('s_lshl_b32', odd, odd, 3)
    a('s_mul_i32', sWo, sC, 216)
    a('s_sub_u32', sWo, sWo, odd)
    a('s_lshr_b32', st0, sw, 1)
    a('s_mul_i32', sWl, st0, WUO)
    a('s_and_b32', st0, sw, 1)
    a('s_mul_i32', st1, st0, 3584)
    a('s_add_u32', sWl, sWl, st1)
    a('s_add_u32', sWl, sWl, WB)
    a('s_mul_i32', st0, st0, 16*WROW)
    a('v_mul_u32_u24', t0, 37, lane)
    a('v_lshrrev_b32', t0, 9, t0)
    a('v_mul_u32_u24', t0, WROW - 224, t0)
    a('v_add3_u32', vWd[0], t0, l16, st0)
    for k in range(1, 4):
        a('v_add_u32', vWd[k], (8*(k & 1) + 4*(k >> 1))*WROW - 896*k, vWd[0])
    a('v_lshrrev_b32', t0, 5, lane)
    a('v_bfe_u32', t1, lane, 2, 3)
    a('v_lshl_add_u32', t0, t0, 4, t1)
    a('v_mul_u32_u24', t0, 224, t0)
    a('s_add_u32', odd, odd, WB)
    a('v_add_u32', t0, odd, t0)
    a('s_lshl_b32', st0, sUb, 4)
    a('v_and_b32', t1, 3, lane)
    a('v_lshl_add_u32', t1, t1, 3, t0)
    a('v_add_u32', vWr[0], st0, t1)
    a('v_and_b32', t1, 1, lane)
    a('v_lshl_add_u32', t0, t1, 3, t0)
    a('v_bfe_u32', t2, lane, 1, 1)
    a('v_mul_u32_u24', vWr[3], WUO, t2)
    a('v_add_u32', t0, t0, vWr[3])
    a('s_add_u32', st0, st0, 32)
    a('v_add_u32', vWr[1], st0, t0)
    a('s_lshl_b32', st0, sU3, 4)
    a('v_add_u32', vWr[2], st0, t0)
    a('v_add_u32', vWr[3], 1792, vWr[2])
    a('v_lshlrev_b32', t2, 3, t2)
    a('v_add_u32', t2, WB + 7168, t2)
    a('s_lshr_b32', st0, sw, 1)
    a('v_and_b32', t1, st0, t1)
    a('v_cmp_ne_u32', 'vcc', 0, t1)
    a('v_cndmask_b32', vWr[2], vWr[2], t2, 'vcc')
    a('v_cndmask_b32', vWr[3], vWr[3], t2, 'vcc')

def w_holes(a, Q):
    a('v_mov_b32', Q[0], 0)
    a('v_mov_b32', Q[1], 0)
    a('v_mov_b32', Q[2], '0x3f803f80')
    a('v_mov_b32', Q[3], '0x3f803f80')
    a('v_min_u32', t0, 6, lane)
    a('v_mul_u32_u24', t0, WSS, t0)
    a('ds_write_b128', t0, Q, mods=f'offset:{WB + 7168}')

def w_dma(a, ks, slot, part, mask=True):
    if part == 0 or mask: a('s_add_u32', 'm0', sWl, slot*WSS)
    if part == 0: a('s_add_u32', sWs, sWo, ks*32*WROW)
    if mask: a('s_mov_b32', 'exec_hi', '0xffffff')
    for k in (2*part, 2*part + 1):
        t = a('buffer_load_dwordx4', vWd[k], RW1, sWs, mods=f'offen offset:{896*k}' + os.environ.get('WNT', '') + ' lds')
    if mask: a('s_mov_b32', 'exec_hi', -1)
    return t

def w_round(a, r, slot0=0, lo=0, hi=7):
    a('s_mov_b32', 'exec_hi', '0xffffff')
    for i, ks in list(enumerate(RND[r]))[lo:hi]:
        for part in range(2): t = w_dma(a, ks, slot0 + i, part, False)
    a('s_mov_b32', 'exec_hi', -1)
    return t

def w_round_x(a, r, slot0, nm, lo=0, hi=7, older=False):
    a('s_cmp_lg_u32', sw, 1)
    a('s_cbranch_scc1', nm)
    w_round(a, r, slot0, lo, hi)
    a('s_sub_u32', sWl, sWl, 3584)
    for k in range(4): a('v_subrev_u32', vWd[k], 16*WROW, vWd[k])
    w_round(a, r, slot0, lo, hi)
    a('s_add_u32', sWl, sWl, 3584)
    for k in range(4): a('v_add_u32', vWd[k], 16*WROW, vWd[k])
    if older: a.wait(vm=8*(hi - lo))
    a.label(nm)

def w_round_y(a, r, slot0, nm, lo=0, hi=7, older=False):
    a('s_cmp_lt_u32', sw, 2)
    a('s_cbranch_scc1', nm)
    w_round(a, r, slot0, lo, hi)
    if older: a.wait(vm=4*(hi - lo))
    a.label(nm)

def touch_lanes(a, vt):
    a('s_and_b32', st0, S(2), 3)
    a('s_mul_i32', st0, st0, 27)
    a('s_lshr_b32', st0, st0, 2)
    a('v_and_b32', t0, 7, lane)
    a('v_add_u32', t0, st0, t0)
    a('v_min_u32', t0, 26, t0)
    a('v_lshrrev_b32', t1, 3, lane)
    a('v_mul_u32_u24', t1, WROW, t1)
    a('v_lshl_add_u32', vt, t0, 7, t1)

def w_reads(ks, rel, R=vWr):
    L = []
    for n in range(4):
        for hf in range(2):
            ad = R[0] if n < 2 else (R[1] if n == 2 else R[2 + hf])
            off = rel*WSS + (WUO if n == 1 else 0) + (1792*hf if n < 3 else 0)
            L.append(('ds_read_b64_tr_b16', (W1(ks, n)[2*hf:2*hf+2], ad), f'offset:{off}'))
    return L

def w_shift(d, R=vWr, D=None):
    return [('v_add_u32', ((D or R)[i], hex((d*WSS) & 0xffffffff), R[i]), '') for i in range(4)]

def w_read_ops(r):
    L = []
    if r == 0:
        for i, ks in enumerate(RND[0]):
            if i == 4: L += w_shift(4)
            L += w_reads(ks, i & 3)
    else:
        for i in reversed(range(7)):
            if i == 3: L += w_shift(-4)
            L += w_reads(RND[1][i], i & 3)
    return L

def clr_setup_h(a, sh):
    a('s_lshl_b32', st0, sB, 3)
    a('s_lshl_b32', st1, sw, 1)
    a('s_add_u32', st1, st1, st0)
    a('s_mul_i32', sh, st1, TS)
    a('s_mul_i32', st1, sC, 14*256)
    a('s_add_u32', sh, sh, st1)
    a('s_add_u32', sh, sh, hex(HH))

def clr_setup_q(a, sq, vq):
    a('s_lshl_b32', st0, sB, 3)
    a('s_lshr_b32', st1, sC, 3)
    a('s_lshl_b32', st1, st1, 2)
    a('s_add_u32', st0, st0, st1)
    a('s_and_b32', st1, sC, 3)
    a('s_add_u32', st0, st0, st1)
    a('s_lshl_b32', sq, st0, 9)
    a('s_and_b32', st1, sC, 4)
    a('s_add_u32', st1, st1, sw)
    a('s_lshl_b32', st1, st1, 2)
    a('s_add_u32', sq, sq, st1)
    a('s_add_u32', sq, sq, hex(SQ))
    a('v_lshrrev_b32', t0, 4, lane)
    a('v_bfe_u32', t1, lane, 2, 2)
    a('v_cmp_eq_u32', 'vcc', t0, t1)
    a('v_and_b32', t0, 15, lane)
    a('v_lshlrev_b32', t0, 5, t0)
    a('v_mov_b32', t1, hex(OOB))
    a('v_cndmask_b32', vq, t1, t0, 'vcc')

def clr_ops(Q, sh):
    L = []
    for k in range(8):
        if k == 4: L.append(('s_add_u32', (sh, sh, TS), ''))
        L.append(('buffer_store_dwordx4', (Q, l16, RWS, sh), f'offen offset:{(0, 1024, 2048, 2560)[k & 3]} sc1'))
    return L

def p2_touch_setup(a, vt2, sT2):
    a('s_lshr_b32', st2, S(2), 3)
    a('s_lshl_b32', st2, st2, 2)
    a('s_add_u32', st2, st2, sw)
    a('s_mul_i32', sT2, st2, 70*128)
    a('s_bfe_u32', st1, S(2), (1 << 16) | 1)
    a('s_mul_i32', st1, st1, 20*TS)
    a('s_add_u32', sT2, sT2, st1)
    a('s_add_u32', sT2, sT2, hex(WP2 + 124))
    a('v_min_u32', vt2, 34, lane)
    a('v_lshlrev_b32', vt2, 8, vt2)

def p2_touch(a):
    p2_touch_setup(a, V(134), S(68))
    a('buffer_load_dwordx2', V(136, 2), V(134), RWS, S(68), mods='offen')

def pack_flag_addr(a, vaddr):
    a('v_min_u32', vaddr, 39, lane)
    a('v_lshrrev_b32', t0, 1, vaddr)
    a('v_and_b32', vaddr, 1, vaddr)
    a('v_lshlrev_b32', vaddr, 3, vaddr)
    a('v_lshl_add_u32', vaddr, t0, 7, vaddr)

def icls(mn):
    if mn.startswith('s_'): return 's'
    if mn.startswith(('ds_', 'buffer_', 'global_')): return 'm'
    if 'permlane' in mn or mn in TRANS: return 'p'
    return 'v'

class Sched:
    def __init__(self, a, nq=3):
        self.a = a; self.q = [[] for _ in range(nq)]; self.n = 0; self.mem = []; self.last = -100; self.step = 4
        self.over = 0; self.win = E('WIN', 24)
    def op(self, qi, at, mn, ops, mods='', tok=None): self.q[qi].append((at, 'i', [(mn, ops, mods, tok)]))
    def ops(self, qi, at, L): self.q[qi].append((at, 'i', [tuple(x) + ('', None)[len(x) - 2:] for x in L]))
    def call(self, qi, at, fn): self.q[qi].append((at, 'x', fn))
    def sca(self, qi, at, fn): self.q[qi].append((at, 'b', fn))
    def note(self, qi, at, fn): self.q[qi].append((at, 'n', fn))
    def gate(self, qi, at, fn): self.q[qi].append((at, 'g', fn))
    def load(self, avail, need, gen): self.mem.append((need, avail, gen))
    def left(self): return [len(q) for q in self.q] + [len(self.mem)]
    def sort(self):
        for q in self.q: q.sort(key=lambda e: e[0])
        self.mem.sort(key=lambda e: e[0])
    def emit(self, L):
        for mn, ops, mods, tok in L:
            t = self.a(mn, *ops, mods=mods)
            if tok: tok[0][tok[1]] = t
    def gap(self, fixed=(), nxt=(), room=2):
        a = self.a
        C = {'s': [], 'm': [], 'v': []}
        pre = []
        def put(L):
            for x in L: C['v' if icls(x[0]) == 'p' else icls(x[0])].append(x)
        def cost(L=()):
            allv = C['m'] + C['v'] + [x for x in L if icls(x[0]) != 's']
            ns = len(C['s']) + len(pre) + sum(icls(x[0]) == 's' for x in L)
            ns += a.prewait([x[:3] for x in allv] + list(nxt), dry=True)
            return max(0, ns - 1) + sum(2 if icls(x[0]) == 'p' else 1 for x in allv)
        put([tuple(x) + ('', None)[len(x) - 2:] for x in fixed])
        heavy = None
        state = [None]*len(self.q)
        def notes(q):
            while q and q[0][0] <= self.n and (q[0][1] == 'n' or (q[0][1] == 'g' and q[0][2]())): q.pop(0)[2]()
        for q in reversed(self.q):
            notes(q)
            if heavy is None and q and q[0][0] <= self.n and q[0][1] == 'x': heavy = q.pop(0)[2]
        if heavy is None:
            if self.n - self.last >= self.step:
                for k, e in enumerate(self.mem):
                    if e[1] <= self.n:
                        L = e[2](True)
                        if cost(L) <= room:
                            self.mem.pop(k); put(e[2](False)); self.last = self.n
                        break
            for want in ('b', 'm', 'v'):
                for qi in reversed(range(len(self.q))):
                    q = self.q[qi]
                    k = 0
                    rd, wr = set(), set()
                    while k < len(q) and k < self.win and q[k][0] <= self.n:
                        at, kind, pl = q[k]
                        if kind == 'n':
                            if k or state[qi] is not None: break
                            q.pop(0); pl(); continue
                        if kind in 'xg': break
                        if kind == 'b':
                            if k or want != 'b' or state[qi] is not None or pre or C['s']: break
                            pre.append(pl)
                            if cost() > room: pre.pop(); break
                            q.pop(0); state[qi] = 's'; continue
                        if want == 'b': break
                        I = [Inst(x[0], x[1], x[2]) for x in pl]
                        r_ = set().union(*[i.rd for i in I]); w_ = set().union(*[i.wr for i in I])
                        ks = [icls(x[0]) for x in pl]
                        top = 'v' if ('v' in ks or 'p' in ks) else ('m' if 'm' in ks else 's')
                        low = 's' if 's' in ks else ('m' if 'm' in ks else 'v')
                        ok = not (top == 'v' and want != 'v')
                        ok = ok and not (k and top != 'v')
                        ok = ok and not (r_ & wr or w_ & (rd | wr))
                        ok = ok and not (state[qi] is not None and 'smv'.index(low) < 'smv'.index(state[qi]))
                        ok = ok and not (any(x[1][0] == 'm0' for x in pl if icls(x[0]) == 's') and any('lds' in x[2] for x in C['m']))
                        if ok and cost(pl) <= room:
                            q.pop(k); put(pl); state[qi] = top
                            continue
                        if want != 'v': break
                        rd |= r_; wr |= w_
                        k += 1
        if cost() > room: self.over += 1
        for f in pre: f()
        a.prewait([x[:3] for x in C['m'] + C['v']] + list(nxt))
        self.emit(C['s']); self.emit(C['m']); self.emit(C['v'])
        if heavy: heavy()
        for q in self.q: notes(q)
    def drain(self, every=8, keep_mem=True):
        c = 0
        for q in reversed(self.q):
            while q:
                at, kind, pl = q.pop(0)
                if kind == 'i': self.emit(pl); c += len(pl)
                else: pl()
                if c >= every:
                    c = 0
                    for k, e in enumerate(self.mem):
                        if e[1] <= self.n:
                            self.mem.pop(k); self.emit(e[2](False)); break

class Ptr:
    def __init__(self, s): self.s, self.k = s, 0
    def at(self, i, dry):
        L = []
        if i >> 2 != self.k:
            L.append(('s_add_u32', (self.s, self.s, hex((4096*((i >> 2) - self.k)) & 0xffffffff)), '', None))
            if not dry: self.k = i >> 2
        return L, (i & 3)*1024

def conv_wg(a):
    RK, RV, RSK, RSS = S(44, 4), S(48, 4), S(52, 4), S(56, 4)
    sch, sbase, sk01, sD = S(7), S(8), S(9), S(10)
    selLO, selHI, srow = S(13), S(14), S(12)
    va = Alloc('v', 16, 207)
    a('s_lshr_b32', st0, S(2), 4)
    a('s_and_b32', srow, S(2), 15)
    a('s_lshl_b32', srow, srow, 7)
    a('s_lshl_b32', st2, sw, 5)
    a('s_add_u32', srow, srow, st2)
    g, c, vneg, vsk, b3, vok = [va.get() for _ in range(6)]
    voff = V(234)
    a('v_and_b32', c, 7, lane)
    a('v_bfe_u32', b3, lane, 3, 1)
    a('v_bfe_u32', t1, lane, 4, 1)
    a('v_lshl_or_b32', t2, b3, 1, t1)
    a('v_bfe_u32', t0, lane, 5, 1)
    a('v_lshl_or_b32', g, t0, 2, t2)
    a('v_lshl_add_u32', t2, g, 2, srow)
    a('v_mul_u32_u24', voff, 1280, t2)
    a('s_lshl_b32', st2, st0, 7)
    a('v_lshl_add_u32', t2, c, 4, st2)
    a('v_add_u32', voff, voff, t2)
    a('v_subrev_u32', vneg, 3840, voff)
    a('v_lshlrev_b32', vsk, 2, t2)
    if E('EST', 0) == 1: stamp(a, 10, True)
    srd(a, RK, P_K, S_*D_*2)
    if E('EST', 0): stamp(a, 11 if E('EST', 0) == 1 else 9, True)
    K = [va.get(4) for _ in range(7)]
    Vv = [va.get(4) for _ in range(4)]
    SK = va.get(16)
    for i in range(7):
        if i < 3: tk = a('buffer_load_dwordx4', K[i], vneg, RK, 0, mods=f'offen offset:{1280*i}' + NT_)
        else: tk = a('buffer_load_dwordx4', K[i], voff, RK, 0, mods=f'offen offset:{1280*(i-3)}' + NT_)
    if E('EST', 0) == 2: stamp(a, 10, True)
    srd(a, RSK, P_SK, D_*8)
    for i in range(4):
        a('buffer_load_dwordx4', SK.sub(4*i, 4), vsk, RSK, 0, mods=f'offen offset:{16*i}')
    if E('EST', 0) == 2: stamp(a, 11, True)
    srd(a, RV, P_V, S_*D_*2)
    for i in range(4):
        a('buffer_load_dwordx4', Vv[i], voff, RV, 0, mods=f'offen offset:{1280*i}' + NT_)
    if E('EST', 0): stamp(a, 12, True)
    w_srd(a)
    vt = V(243)
    touch_lanes(a, vt)
    def t1_touch():
        a('s_cmp_ge_u32', S(2), 64)
        a('s_cbranch_scc1', 'T1_skip')
        a('s_bitcmp1_b32', sw, 0)
        a('s_cbranch_scc1', 'T1_skip')
        a('s_lshr_b32', st1, S(2), 3)
        a('s_add_u32', st1, st1, 32)
        a('s_mul_i32', st1, st1, 8*WROW)
        a('buffer_load_dword', V(14), vt, RW1, st1, mods='offen')
        a.label('T1_skip')
    if E('T1POS', 2) == 0: t1_touch()
    a('v_bfe_u32', t1, lane, 4, 1)
    a('v_bfe_u32', t0, lane, 5, 1)
    a('s_lshr_b32', st0, S(2), 4)
    a('s_mov_b32', sEp, hex(EPOCH))
    a('s_load_dword', sEp, P_WS, sEp)
    a('s_lshl_b32', sch, S(2), 2)
    a('s_add_u32', sch, sch, sw)
    a('s_lshl_b32', st2, sch, 12)
    a('s_load_dword', sk01, P_SSMK, st2)
    a('s_lshl_b32', st1, sch, 1)
    a('s_and_b32', st1, st1, '0xfffc')
    a('s_load_dword', sD, P_SSMD, st1)
    srd(a, RWS, P_WS, WS_SIZE)
    srd(a, RSS, P_SSMK, D_*S_*2)
    a('s_mul_i32', sbase, sw, CONV_LDS)
    def ssm_load():
        a('s_lshl_b32', st2, sch, 12)
        a('s_add_u32', 'm0', sbase, 4160 + 32)
        for i in range(4):
            t = a('buffer_load_dwordx4', l16, RSS, st2, mods=f'offen offset:{1024*i}' + NT_ + ' lds')
        return t
    if E('SSPOS', 2) == 0: tssm = ssm_load()
    vkw, vkr, sKV = va.get(), va.get(), S(50)
    a('v_lshl_or_b32', t2, t0, 1, b3)
    a('s_lshl_b32', st2, sw, 2)
    a('s_sub_u32', st1, 15, st2)
    a('v_sub_u32', t2, st1, t2)
    a('v_lshlrev_b32', t0, 1, c)
    a('v_xor_b32', t2, t2, t0)
    a('v_lshlrev_b32', t2, 4, t2)
    a('v_lshl_add_u32', t2, t1, 10, t2)
    a('v_and_b32', t1, 1, c)
    a('v_lshl_add_u32', t2, t1, 11, t2)
    a('v_lshrrev_b32', t1, 1, c)
    a('v_mul_u32_u24', t1, CONV_LDS, t1)
    a('v_add_u32', vkw, t1, t2)
    a('v_lshrrev_b32', t0, 4, lane)
    a('v_and_b32', t1, 2, t0)
    a('v_or_b32', t1, st2, t1)
    a('v_and_b32', t2, 15, lane)
    a('v_xor_b32', t1, t1, t2)
    a('v_lshl_add_u32', t1, t1, 4, sbase)
    a('v_lshl_add_u32', vkr, t0, 10, t1)
    a('v_mul_u32_u24', t0, KVR, t0)
    a('v_lshl_add_u32', vok, t2, 4, t0)
    a('s_lshl_b32', st1, st0, 4)
    a('s_add_u32', st1, st1, st2)
    a('s_mul_i32', sKV, st1, KVR)
    a('s_andn2_b32', st2, 15, S(2))
    a('s_lshl_b32', st2, st2, 8)
    a('s_add_u32', sKV, sKV, st2)
    a('s_add_u32', sKV, sKV, hex(KV2))
    sKF = S(69)
    a('s_lshl_b32', sKF, st1, 9)
    a('s_bfe_u32', st1, S(2), (2 << 16) | 2)
    a('s_lshl_b32', st1, st1, 7)
    a('s_add_u32', sKF, sKF, st1)
    a('s_and_b32', st1, S(2), 3)
    a('s_lshl_b32', st1, st1, 2)
    a('s_add_u32', sKF, sKF, st1)
    a('s_add_u32', sKF, sKF, hex(FLG))
    a('s_mov_b32', selLO, '0x05040100')
    a('s_mov_b32', selHI, '0x07060302')
    role_setup(a)
    w_setup(a)
    FB = [[V(16 + 64*s + 4*i, 4) for i in range(8)] for s in range(2)]
    FA = [[V(48 + 64*s + 4*i, 4) for i in range(8)] for s in range(2)]
    CA = [V(176 + 4*t, 4) for t in range(8)]
    ABR = [V(144 + 4*t, 4) for t in range(8)]
    XR = [V(i, 2) for i in (208, 210, 224, 234, 240, 242, 250, 252)]
    AD, CQ = V(208, 4), V(236, 4)
    vA = [V(212 + i) for i in range(4)]
    vB, vx, vo, li, lh, l16a, l16b, vg1 = [V(216 + i) for i in range(8)]
    vfa, vu = V(244), V(246)
    w_holes(a, CQ)
    a('v_and_b32', li, 15, lane)
    a('v_lshrrev_b32', lh, 4, lane)
    a('v_lshlrev_b32', vx, 5, li)
    a('v_lshl_add_u32', vx, lh, 3, vx)
    a('v_lshlrev_b32', vfl, 2, lane)
    a('v_lshrrev_b32', t0, 2, lane)
    a('v_lshlrev_b32', t0, 7, t0)
    a('v_and_b32', t1, 3, lane)
    a('v_lshl_add_u32', vfa, t1, 2, t0)
    a('v_add_u32', t1, 4160 - 32, vfl)
    a('v_cmp_gt_u32', 'vcc', 8, lane)
    a('v_cndmask_b32', t1, t1, vfl, 'vcc')
    a('v_add_u32', t0, 8320 + 4096, vfl)
    a('v_cmp_gt_u32', 'vcc', 16, lane)
    a('v_cndmask_b32', t1, t0, t1, 'vcc')
    a('v_add_u32', l16a, sbase, t1)
    z2 = AD[0:2]
    a('v_mov_b32', z2[0], 0)
    a('v_mov_b32', z2[1], 0)
    a('v_lshl_add_u32', t0, lane, 3, sbase)
    a('ds_write_b64', t0, z2, mods=f'offset:{8320+4096}')
    a('v_lshl_add_u32', t0, lh, 3, li)
    a('v_lshrrev_b32', t0, 1, t0)
    a('v_lshl_add_u32', t0, t0, 2, sbase)
    a('v_and_b32', t1, 1, li)
    a('v_mul_u32_u24', t1, 4164, t1)
    a('v_add_u32', vA[0], t0, t1)
    for p in range(1, 4):
        a('v_add_u32', vA[p], 1024*p, vA[0])
    a('v_lshlrev_b32', t0, 5, li)
    a('v_sub_u32', t0, 8320 + 480, t0)
    a('v_lshl_add_u32', t0, lh, 4, t0)
    a('v_add_u32', vB, sbase, t0)
    a('v_and_b32', t0, 1, lh)
    a('v_lshlrev_b32', t0, 9, t0)
    a('v_lshl_add_u32', t0, li, 5, t0)
    a('v_lshrrev_b32', t1, 1, lh)
    a('v_lshl_add_u32', vo, t1, 4, t0)
    a('v_add_u32', vu, sbase, l16)
    sPF, sGF = S(39), S(15)
    rep_base(a, sPF, FLP, PSTR)
    a('s_lshl_b32', sGF, S(2), 9)
    a('s_add_u32', sGF, sGF, hex(FLG))
    a('v_lshlrev_b32', l16b, 9, lane)
    clr_setup_q(a, S(28), V(247))
    for d in range(4): a('v_mov_b32', CQ[d], -1)
    stamp(a, 1)
    if E('SSPOS', 2) == 2:
        a.wait_vm_tok(tk)
        if E('EST', 0): stamp(a, 13, True)
        tssm = ssm_load()
    QK = [va.get(4) for _ in range(4)]
    P = [va.get(8, 2) for _ in range(8)]
    KSv = [va.get(4) for _ in range(8)]
    def kshift(chs):
        for ch in chs:
            d, hi = ch >> 1, ch & 1
            for t in range(1, 7):
                a('v_perm_b32', P[ch][t], K[t-1][d], K[t][d], selHI if hi else selLO)
        for ch in chs:
            for e in range(4):
                a('v_dot2_f32_bf16', KSv[ch][e], P[ch][e+3], SK[2*ch], 0)
            for e in range(4):
                a('v_dot2_f32_bf16', KSv[ch][e], P[ch][e+1], SK[2*ch+1], KSv[ch][e])
    KVO = E('KVO', 0)
    if KVO == 0: kshift(range(8))
    if KVO == 2: kshift((0, 4, 1, 5))
    stamp(a, 2)
    if E('T1POS', 2) == 1:
        a.wait(vm=4)
        t1_touch()
    for cp in range(4):
        if KVO == 1 or (KVO == 2 and cp >= 2): kshift((cp, cp + 4))
        for ch in (cp, cp + 4):
            d, hi = ch >> 1, ch & 1
            for e in range(4):
                if hi: a('v_and_b32', P[ch][e], '0xffff0000', Vv[e][d])
                else: a('v_lshlrev_b32', P[ch][e], 16, Vv[e][d])
        for ch in (cp, cp + 4):
            for h in range(2):
                a('v_pk_mul_f32', KSv[ch][2*h:2*h+2], KSv[ch][2*h:2*h+2], P[ch][2*h:2*h+2])
        q = QK[cp]
        for ch in (cp, cp + 4):
            o = 2 if ch < 4 else 0
            a('v_cvt_pk_bf16_f32', q[o], KSv[ch][3], KSv[ch][2])
            a('v_cvt_pk_bf16_f32', q[o+1], KSv[ch][1], KSv[ch][0])
        a('v_permlane16_swap_b32', q[2], q[0])
        a('v_permlane16_swap_b32', q[3], q[1])
        a('ds_write_b128', vkw, QK[cp], mods=f'offset:{8320 + 256*cp}')
    a.wait(lg=0)
    a('s_barrier')
    CK = P[0][0:4]
    for cp in range(4):
        a('ds_read_b128', QK[cp], vkr, mods=f'offset:{8320 + 256*cp}')
    tag_setup(a)
    for cp in range(4):
        q = QK[cp]
        a('v_add_u32', q[0], sTag, q[0])
        a('buffer_store_dwordx4', q, vok, RWS, sKV, mods='offen sc1')
        a('v_add3_u32', CK[cp], q[0], q[1], q[2])
        a('v_add3_u32', CK[cp], CK[cp], q[3], sTag)
        a('s_add_u32', sKV, sKV, 4096)
    a('buffer_store_dwordx4', CK, vok, RWS, sKV, mods='offen sc1')
    SPEC = E('SPEC', 1)
    if not SPEC:
        a('s_mov_b64', 'exec', 15)
        a('buffer_store_dword', vtg, l16b, RWS, sKF, mods='offen sc1')
        a('s_mov_b64', 'exec', -1)
    stamp(a, 3)
    if E('T1POS', 2) == 2: t1_touch()
    if E('KVBAR', 0): a('s_barrier')
    NA = E('R1A', 4)
    if SPEC: w_round(a, 0, 0, 0, E('R1S', 2))
    a.wait_vm_tok(tssm)
    if not SPEC: w_round_x(a, 0, 0, 'R1_x', 0, NA)
    def rdA(rho):
        s = rho & 1
        L = []
        for i in range(8):
            o = 128*(i & 1) + 16*rho
            L.append(('ds_read2_b32', (FA[s][i][0:2], vA[i >> 1]), f'offset0:{o} offset1:{o+1}'))
            L.append(('ds_read2_b32', (FA[s][i][2:4], vA[i >> 1]), f'offset0:{o+2} offset1:{o+3}'))
        return L
    def rdB(rho):
        return [('ds_read_b128', (FB[rho & 1][i], vB), f'offset:{3584 - 512*i + 64*rho}') for i in range(8)]
    def reads(rho):
        A_, B_ = rdA(rho), rdB(rho)
        L = []
        for i in range(8): L += [B_[i], A_[2*i], A_[2*i+1]]
        return L
    emit = lambda L: [a(mn, *ops, mods=mods) for mn, ops, mods in L]
    a('s_lshl_b32', st1, sk01, 16)
    a('v_mov_b32', t0, st1)
    a('v_cmp_eq_u32', 'vcc', 7, lane)
    a('v_cndmask_b32', t2, 0, t0, 'vcc')
    a('ds_write_b32', l16a, t2)
    a('s_bitcmp1_b32', sch, 0)
    a('s_cselect_b32', st1, 16, 0)
    a('s_lshr_b32', sD, sD, st1)
    a('s_and_b32', sD, sD, '0xffff')
    a('v_lshlrev_b32', t0, 3, lh)
    a('v_add_u32', t0, t0, li)
    a('v_sub_u32', t0, 15, t0)
    a('v_and_b32', t1, 1, t0)
    a('v_lshlrev_b32', t1, 4, t1)
    a('v_lshlrev_b32', t1, t1, sD)
    a('v_ashrrev_i32', t0, 1, t0)
    a.wait(lg=0)
    for d in range(4):
        a('v_cmp_eq_u32', 'vcc', d, t0)
        a('v_cndmask_b32', AD[d], 0, t1, 'vcc')
    a('v_and_b32', l16a, '0x1ff', vfa)
    SH = [V(80 + 4*i, 4) for i in range(4)]
    SN = [V(96 + i) for i in range(4)]
    a.wait_vm_tok(tssm)
    for i in range(4):
        a('ds_read_b128', SH[i], vu, mods=f'offset:{4160 + 32 + 1024*i}')
        a('ds_read_b32', SN[i], vu, mods=f'offset:{4160 + 48 + 1024*i}')
    for i in range(4):
        for d in range(4):
            a('v_alignbit_b32', SH[i][d], SH[i][d+1] if d < 3 else SN[i], SH[i][d], 16)
        a('ds_write_b128', vu, SH[i], mods=f'offset:{32 + 1024*i}')
    a.wait(lg=0)
    emit(rdA(0))
    if SPEC: w_round(a, 0, 0, E('R1S', 2), NA)
    else: w_round_y(a, 0, 0, 'R1_y', 0, NA)
    sU = [S(44), S(45), S(46), S(47), S(51)]
    a('s_mul_i32', sU[0], S(2), KVR)
    a('s_lshl_b32', st0, sw, 10)
    a('s_add_u32', sU[0], sU[0], st0)
    a('s_add_u32', sU[0], sU[0], hex(KV2))
    for i in range(1, 5): a('s_add_u32', sU[i], sU[0], 4096*i)
    a('v_add_u32', vu, st0, l16)
    if not SPEC:
        a('s_cmp_lg_u32', sw, 0)
        a('s_cbranch_scc1', 'G1_skip')
        Flags(a, 'G1', vg1, l16a, sGF).wait()
        a.label('G1_skip')
        stamp(a, 4)
        a('s_barrier')
    U = [V(80 + 4*i, 4) for i in range(5)]
    US = [V(100 + i) for i in range(4)]
    def uload():
        for i in (4, 0, 1, 2, 3):
            a('buffer_load_dwordx4', U[i], l16, RWS, sU[i], mods='offen sc1')
    def ubad():
        for i in range(4):
            a('v_add3_u32', US[i], U[i][0], U[i][1], U[i][2])
            a('v_add3_u32', US[i], US[i], U[i][3], sTag)
            a('v_subrev_u32', U[i][0], sTag, U[i][0])
            a('ds_write_b128', vu, U[i], mods=f'offset:{8320 + CONV_LDS*i}')
            a('v_xor_b32', US[i], US[i], U[4][i])
        a('v_or3_b32', US[0], US[0], US[1], US[2])
        a('v_or_b32', US[0], US[0], US[3])
        a('v_cmp_ne_u32', 'vcc', 0, US[0])
        a.wait(lg=0)
    T = {}
    UP = E('UPOS', 3)
    if UP: T['r1b'] = w_round(a, 0, 0, NA, NA + UP)
    stamp(a, 5 if not SPEC else 4)
    uload()
    if NA + UP < 7: T['r1b'] = w_round(a, 0, 0, NA + UP, 7)
    a.wait(vm=5 + 4*(7 - NA))
    a('s_barrier')
    if SPEC: stamp(a, 5)
    for i in range(4): emit(w_reads(RND[0][i], i))
    a('s_lshl_b32', st0, sch, 12)
    sx, sht, pl, ph = S(12), S(13), S(50), S(52)
    sAB, ABL = S(56), WB + 7*WSS
    one = V(15)
    a('s_mov_b32', pl, selLO)
    a('s_add_u32', sht, st0, hex(HT))
    a('s_add_u32', sx, st0, hex(XT))
    a('s_mov_b32', ph, '0x05040302')
    a('v_mov_b32', one, '0x3f803f80')
    a('s_lshl_b32', S(57), sw, 11)
    a('s_add_u32', sAB, S(57), hex(AB))
    a('s_add_u32', S(57), S(57), ABL)
    a('v_mov_b32', t0, ABL)
    a('v_lshl_add_u32', l16a, vx, 1, t0)
    vt2, sT, sT2, sDF = V(248), S(53), S(54), S(58)
    a('v_min_u32', l16b, 15, lane)
    a('v_lshlrev_b32', l16b, 7, l16b)
    pack_flag_addr(a, vg1)
    a('s_add_u32', sDF, sPF, hex((FLD - FLP) & 0xffffffff))
    ubad()
    a('s_cbranch_vccz', 'U_ok')
    spin(a, 'U', uload, ubad)
    a.label('U_ok')
    a('s_barrier')
    stamp(a, 6)
    emit(rdB(0))
    sc = Sched(a)
    for i in range(4):
        sc.op(2, E('HC_AT', 88) + E('HC_STEP', 6)*i, 'buffer_store_dwordx4', (CQ, l16, RWS, sht), f'offen offset:{1024*i} sc1')
    sc.op(2, E('HC_AT', 88) + E('HC_STEP', 6)*4, 'buffer_store_dword', (CQ[0], V(247), RWS, S(28)), 'offen sc1', tok=(T, 'cl'))
    def dmas(r, slot0, lo, hi, at, step, key):
        for i, ks in list(enumerate(RND[r]))[lo:hi]:
            for part in range(2):
                sc.call(1, at, lambda i=i, ks=ks, part=part: T.__setitem__(key, w_dma(a, ks, slot0 + i, part)))
                at += step
        sc.note(1, at - step, lambda: T.__setitem__(key + '_ok', 1))
    def wbar(at, vkeys, lkey):
        def f():
            for vkey in vkeys:
                if vkey in ('r2a', 'r2b'): assert T[vkey + '_ok']
                a.wait_vm_tok(T[vkey])
            if lkey: assert T[lkey + '_ok']; a.wait_lg_tok(T[lkey])
            a('s_barrier')
            T['bar', at] = sc.n
            print('  barrier', at, 'at', sc.n, file=sys.stderr)
        sc.call(0, at, f)
    def rds(at, r, lo, hi, shift, key):
        L = w_shift(shift)
        for i in range(lo, hi): L += w_reads(RND[r][i], i & 3)
        for mn, ops, mods in L: sc.op(0, at, mn, ops, mods, tok=(T, key) if mn.startswith('ds') else None)
        sc.note(0, at, lambda: T.__setitem__(key + '_ok', 1))
    ws_ = E('W_STEP', 6)
    X1, XA, X2, X3, X4 = E('X1', 25), E('XA', 50), E('X2', 85), E('X3', 130), E('X4', 170)
    N3 = E('R3A', 3)
    dmas(1, 0, 0, 4, E('R2_AT', 2), ws_, 'r2a')
    wbar(X1, ['r1b'], None)
    rds(X1, 0, 4, 7, 4, 'q1b')
    wbar(XA, [], 'q1b')
    sc.gate(1, XA, lambda: ('bar', XA) in T)
    assert E('R2_AT', 2) + 7*ws_ <= XA and XA + 1 + 5*ws_ < X3
    dmas(1, 0, 4, 7, XA + 1, ws_, 'r2b')
    wbar(X2, ['r2a'], None)
    rds(X2, 1, 0, 4, -4, 'q2a')
    wbar(X3, ['r2b'], 'q2a')
    rds(X3, 1, 4, 7, 4, 'q2b')
    for mn, ops, mods in w_shift(-4): sc.op(0, X3, mn, ops, mods)
    sc.gate(1, X3, lambda: ('bar', X3) in T)
    dmas(2, 1, 0, 3, X3 + E('R3_OFF', 20), E('W3_STEP', 6), 'r3a')
    wbar(X4, ['ab', 'cl'], 'q2b')
    if E('R3B', 1):
        sc.gate(1, X4, lambda: ('bar', X4) in T)
        dmas(2, 1, 3, 6, max(X4 + E('R3B_OFF', 6), X3 + E('R3_OFF', 20) + 6*E('W3_STEP', 6)), E('W3_STEP', 6), 'r3b')
    XS, XP = X3, X4
    fl = E('FLAT', 45)
    def w0(nm, fn):
        def f():
            a('s_cmp_lg_u32', sw, 0)
            a('s_cbranch_scc1', nm)
            fn()
            a.label(nm)
        return f
    FS = Flags(a, 'GS', ABR[7], l16b, sPF, tmp=S(68, 2))
    sc.call(2, XS - fl, w0('GS_l', FS.load))
    sc.call(2, XS - 2, w0('GS_c', FS.check))
    FD_ = Flags(a, 'GD', V(244, 2), vg1, sDF)
    sc.call(2, E('GD_AT', 210), w0('GD_l', FD_.load))
    if E('PUB_AT', 265): sc.call(2, E('PUB_AT', 265), lambda: publish_n(a, S(2)))
    xs = E('XX_STEP', 6)
    PT = [V(i) for i in (6, 7, 8, 9, 10, 11, 13, 14)]
    sc.gate(2, XS, lambda: ('bar', XS) in T)
    sc.ops(2, XS + 1, [('s_mov_b32', ('m0', S(57))), ('buffer_load_dwordx4', (l16, RWS, sAB), 'offen' + LD + ' lds')])
    sc.ops(2, XS + 1, [('s_mov_b32', ('m0', S(57))), ('buffer_load_dwordx4', (l16, RWS, sAB), 'offen offset:1024' + LD + ' lds', (T, 'ab'))])
    for t in range(8):
        sc.op(2, XS + 4 + xs*t, 'buffer_load_dwordx2', (XR[t], vx, RWS, sx), f'offen offset:{512*t}' + LD1)
    sc.gate(2, XP, lambda: ('bar', XP) in T)
    ps = E('PREP_STEP', 8)
    for t in range(8):
        sc.op(2, XP + 1 + ps*t, 'ds_read_b128', (ABR[t], l16a), f'offset:{1024*t}')
        Pt = PT[4*(t & 1):4*(t & 1) + 4]
        at2 = XP + 9 + ps*t
        for h in range(2):
            sc.op(2, at2, 'v_perm_b32', (Pt[2*h], one, XR[t][h], pl))
            sc.op(2, at2, 'v_perm_b32', (Pt[2*h+1], one, XR[t][h], ph))
        for k in range(4):
            sc.op(2, at2, 'v_dot2_f32_bf16', (ABR[t][k], Pt[k], ABR[t][k], 0))
    sc.note(2, XP + 9 + 7*ps, lambda: (T.__setitem__('xn', sc.n), print('  prep done', sc.n, file=sys.stderr)))
    order = sorted([(aa, dl) for aa in range(8) for dl in range(8) if aa + dl <= 7], key=lambda p: (max(p), p[0] + p[1]))
    last = []
    done = {}
    for p in range(4):
        hi_ = [(aa, 2*p + 1 - aa) for aa in range(2*p + 2)]
        lo_ = [(aa, 2*p - aa) for aa in range(2*p + 1)]
        for k in range(2*p + 2):
            last.append(hi_[k])
            if k < 2*p + 1: last.append(lo_[k])
        done[p] = 44 + 36*6 + len(last)
    XF = [V(16 + 4*t, 4) for t in range(8)]
    sc.note(2, done[0] + 2, lambda: T['xn'])
    for p in range(4):
        e_at = done[p] + 3
        for t in (2*p, 2*p + 1):
            for h in range(2):
                sc.op(2, 44 + 36*6 + 3, 'v_lshlrev_b32', (XF[t][2*h], 16, XR[t][h]))
                sc.op(2, 44 + 36*6 + 3, 'v_and_b32', (XF[t][2*h+1], '0xffff0000', XR[t][h]))
        for t in (2*p, 2*p + 1):
            for k in range(4): sc.op(2, e_at, 'v_fmac_f32', (XF[t][k], ABR[t][k], CA[t][k]))
        q = ABR[2*p]
        for e in range(2):
            for h in range(2): sc.op(2, e_at, 'v_cvt_pk_bf16_f32', (q[2*e + h], XF[2*p + e][2*h], XF[2*p + e][2*h + 1]))
        sc.op(2, e_at, 'v_permlane16_swap_b32', (q[0], q[2]))
        sc.op(2, e_at, 'v_permlane16_swap_b32', (q[1], q[3]))
        sc.op(2, e_at, 'buffer_store_dwordx4', (q, vo, RWS, sht), f'offen offset:{1024*p} sc1', tok=(T, 'h'))
    sc.sort()
    allm = []
    for rho in range(8):
        s = rho & 1
        init = set()
        seq = []
        for (aa, dl) in (order if rho < 7 else last):
            t = aa + dl
            seq.append((CA[t], FA[s][aa], FB[s][dl], CA[t] if (rho or t in init) else 0))
            init.add(t)
        if rho == 0:
            seq += [(CA[t], AD, FB[s][t], CA[t]) for t in range(8)]
        nxt = reads(rho + 1) if rho < 7 else []
        k = 0
        for n, m in enumerate(seq):
            fx = []
            if n >= 4 and k < len(nxt) and (n % 3 != 2 or len(seq) - n <= len(nxt) - k):
                fx = [nxt[k]]; k += 1
            allm.append((m, fx))
        assert k == len(nxt)
    for x, (m, fx) in enumerate(allm):
        if x in CST: stamp(a, CID[CST.index(x)], True)
        a(MFMA, *m)
        sc.n += 1
        sc.gap(fx, [(MFMA, allm[x + 1][0], '')] if x + 1 < len(allm) else [])
    print('after conv:', sc.left(), 'over', sc.over, file=sys.stderr)
    stamp(a, 7)
    sc.n += 100
    sc.drain()
    w0('GD_c', FD_.check)()
    stamp(a, 8)
    return T['cl']

WDL0 = 0
def x_loads(a, n):
    RQ = S(44, 4)
    srd(a, RQ, P_Q, S_*D_*2)
    voff = V(16)
    a('s_lshl_b32', st0, n, 2)
    a('s_add_u32', st0, st0, sw)
    a('s_mul_i32', st0, st0, 8*1280)
    a('s_add_u32', st1, st0, 2560)
    a('v_lshrrev_b32', t0, 5, lane)
    a('v_mul_u32_u24', voff, 5120, t0)
    a('v_and_b32', t1, 31, lane)
    a('v_lshl_add_u32', voff, t1, 3, voff)
    X = [[V(48 + 10*r + 2*i, 2) for i in range(5)] for r in range(4)]
    s0, s1 = S(48), S(50)
    def loads():
        for r in range(4):
            for i in range(5):
                a('buffer_load_dwordx2', X[r][i], voff, RQ, s1 if r >= 2 else s0, mods=f'offen offset:{1280*(r & 1) + 256*i}' + NT_)
    a('s_mov_b32', s0, st0)
    a('s_mov_b32', s1, st1)
    if not E('QDEL', 0):
        loads()
        return lambda: X
    def late():
        a.wait(vm=0)
        loads()
        return X
    return late

XAB = WB + 7*WSS
def x_task(a, n, X, mid=None):
    ones, pl, ph = S(12), S(50), S(51)
    vw, vg, vr = V(17), V(19), V(20)
    a('s_mov_b32', pl, '0x05040100')
    a('s_mov_b32', ph, '0x07060302')
    a('v_lshrrev_b32', t0, 5, lane)
    a('v_and_b32', t2, 3, lane)
    a('v_xor_b32', t1, sw, t2)
    a('v_lshlrev_b32', t1, 4, t1)
    a('v_lshl_add_u32', t1, t0, 3, t1)
    a('v_and_b32', vw, 31, lane)
    a('v_lshl_add_u32', vw, vw, 8, t1)
    a('v_lshrrev_b32', t1, 2, lane)
    a('v_lshlrev_b32', vg, 12, t1)
    a('v_lshl_add_u32', vg, t2, 4, vg)
    a('v_lshrrev_b32', t0, 4, lane)
    a('v_xor_b32', t0, t0, t2)
    a('v_lshlrev_b32', t1, 6, t1)
    a('v_lshl_add_u32', vr, t0, 4, t1)
    a('v_add_u32', vr, 28672, vr)
    PC = [V(96 + 2*k, 2) for k in range(8)]
    for i in range(5):
        for e in range(4):
            q = PC[4*(i & 1) + e]
            for h in range(2):
                a('v_perm_b32', q[h], X[2*h + 1][i][e >> 1], X[2*h][i][e >> 1], ph if e & 1 else pl)
        for e in range(4):
            a('ds_write_b64', vw, PC[4*(i & 1) + e], mods=f'offset:{28672 + 8192*i + 64*e}')
    if mid: mid()
    a('s_mov_b32', ones, '0x3f803f80')
    a('s_lshl_b32', st2, n, 6)
    a('s_add_u32', st2, st2, hex(XT))
    a.wait(lg=0)
    a('s_barrier')
    s1 = [V(24 + r) for r in range(4)]
    s2 = [V(28 + r) for r in range(4)]
    L = []
    for i in range(5):
        for d in range(2):
            for r in range(4):
                first = i == 0 and d == 0
                L.append(('v_dot2_f32_bf16', s1[r], X[r][i][d], ones, 0 if first else s1[r]))
                L.append(('v_dot2_f32_bf16', s2[r], X[r][i][d], X[r][i][d], 0 if first else s2[r]))
    a('s_cmp_lg_u32', sw, 0)
    a('s_cbranch_scc1', 'X_nst')
    O = [V(112 + 4*j, 4) for j in range(20)]
    for j in range(20):
        a('ds_read_b128', O[j], vr, mods=f'offset:{1024*j}')
    for j in range(40):
        if j: a('s_add_u32', st2, st2, 65536)
        a('buffer_store_dwordx4', O[j % 20], vg, RWS, st2, mods='offen sc1')
        if 4 <= j < 24: a('ds_read_b128', O[j - 4], vr, mods=f'offset:{1024*(j + 16)}')
    a.label('X_nst')
    for x in L: a(*x)
    for s in (s1, s2):
        for r in (0, 2): a('v_permlane16_swap_b32', s[r], s[r + 1])
    for s in (s1, s2):
        for r in (0, 2): a('v_add_f32', s[r], s[r], s[r + 1])
    for sh in (8, 4, 2, 1):
        for x in (s1[0], s2[0], s1[2], s2[2]):
            a('v_add_f32', x, x, x, mods=f'row_ror:{sh} row_mask:0xf bank_mask:0xf')
    a('v_and_b32', t1, 1, lane)
    a('v_cmp_ne_u32', 'vcc', 0, t1)
    a('v_cndmask_b32', s1[0], s1[0], s1[2], 'vcc')
    a('v_cndmask_b32', s2[0], s2[0], s2[2], 'vcc')
    ln_stats(a, s1[0], s2[0], t2)
    a('v_rcp_f32', s2[0], s2[0])
    a('v_mul_f32', s1[0], s1[0].neg(), s2[0])
    a('v_cvt_pk_bf16_f32', s2[0], s2[0], s1[0])
    a('v_bfe_u32', t0, lane, 4, 1)
    a('v_lshl_or_b32', t1, t1, 1, t0)
    a('v_lshrrev_b32', t0, 5, lane)
    a('v_lshl_or_b32', t1, t0, 2, t1)
    a('s_lshl_b32', st0, sw, 5)
    a('s_add_u32', st0, st0, XAB)
    a('v_lshl_add_u32', t1, t1, 2, st0)
    a('ds_write_b32', t1, s2[0])
    a.wait(lg=0)
    a('s_barrier')

def x_finish(a, n):
    a('v_and_b32', t0, 31, lane)
    a('v_lshlrev_b32', t0, 2, t0)
    a('v_add_u32', t1, XAB, t0)
    a('ds_read_b32', t2, t1)
    a('s_lshl_b32', st0, n, 7)
    a('s_add_u32', st0, st0, hex(AB))
    a('buffer_store_dword', t2, t0, RWS, st0, mods='offen sc1')
    a.wait(vm=0)
    publish_rep(a, 'X_pub', FLP, PSTR, n)

def d_loads(a, n, extra=None):
    RW = S(52, 4)
    scb, scp, ssrc, sl = S(13), S(14), S(10), S(12)
    vsrc = [V(88), V(89)]
    a('v_lshrrev_b32', t0, 3, lane)
    a('v_mul_u32_u24', t0, 1280, t0)
    a('v_and_b32', t1, 1, lane)
    a('v_lshl_add_u32', t0, t1, 4, t0)
    a('v_bfe_u32', t1, lane, 1, 2)
    a('v_bfe_u32', t2, lane, 4, 1)
    a('v_xor_b32', t1, t1, t2)
    a('s_and_b32', st0, sw, 1)
    a('s_lshl_b32', st0, st0, 1)
    a('v_xor_b32', t1, st0, t1)
    a('v_lshl_add_u32', vsrc[0], t1, 5, t0)
    a('v_xor_b32', t1, 2, t1)
    a('v_lshl_add_u32', vsrc[1], t1, 5, t0)
    a('s_mul_i32', ssrc, scp, 216*1280)
    a('s_lshl_b32', st0, scb, 7)
    a('s_add_u32', ssrc, ssrc, st0)
    a('s_mul_i32', st0, sw, 56*1280)
    a('s_add_u32', ssrc, ssrc, st0)
    a('s_lshr_b32', st0, sw, 1)
    a('s_mul_i32', st0, st0, 4*1280)
    a('s_sub_u32', ssrc, ssrc, st0)
    a('s_mul_i32', sl, sw, 7*1024)
    def go():
        for g in range(7):
            a('s_add_u32', 'm0', sl, WDL0 + 1024*g)
            a('s_add_u32', st0, ssrc, 8*g*1280)
            td = a('buffer_load_dwordx4', vsrc[g & 1], RW, st0, mods='offen' + NT_ + ' lds')
        return td
    if extra:
        a('s_cmp_lg_u32', sw, 2)
        a('s_cbranch_scc1', extra)
        a('s_sub_u32', ssrc, ssrc, 108*1280)
        a('s_sub_u32', sl, sl, 14*1024)
        go()
        a('s_add_u32', ssrc, ssrc, 108*1280)
        a('s_add_u32', sl, sl, 14*1024)
        a.label(extra)
    return go()

def d_task(a):
    scb, scp, sdst, sl = S(13), S(14), S(10), S(12)
    vr = V(90)
    MK = [S(68, 2), S(50, 2)]
    a('v_lshrrev_b32', t0, 4, lane)
    a('v_bfe_u32', t1, lane, 2, 2)
    a('v_lshl_add_u32', t2, t0, 3, t1)
    a('v_lshlrev_b32', t2, 7, t2)
    a('v_and_b32', t0, 1, t0)
    a('v_lshrrev_b32', t1, 1, t1)
    a('v_lshl_or_b32', t0, t0, 1, t1)
    a('v_xor_b32', t0, sw, t0)
    a('v_lshl_add_u32', t2, t0, 5, t2)
    a('v_and_b32', t0, 3, lane)
    a('v_lshl_add_u32', t2, t0, 3, t2)
    a('v_add_u32', vr, WDL0, t2)
    a('s_lshl_b32', st0, scb, 2)
    a('s_add_u32', st0, st0, sw)
    a('s_mul_i32', sdst, st0, TS)
    a('s_mul_i32', st1, scp, 7*1024)
    a('s_add_u32', sdst, sdst, st1)
    a('s_add_u32', sdst, sdst, hex(WP2))
    a('s_add_u32', sl, sdst, 4096)
    a('s_mov_b32', MK[0][0], '0xffff0000')
    a('s_mov_b32', MK[0][1], 0)
    a('s_mov_b32', MK[1][0], 0)
    a('s_mov_b32', MK[1][1], '0xffff0000')
    FD = [V(176 + 4*i, 4) for i in range(7)]
    for ks in range(7):
        for hf in range(2):
            a('ds_read_b64_tr_b16', FD[ks][2*hf:2*hf+2], vr, mods=f'offset:{ks*4096 + 512*hf}')
    for ks in range(7):
        if ks in (3, 6):
            for d in (2, 3): a('v_cndmask_b32', FD[ks][d], FD[ks][d], 0, MK[ks == 6])
        tp = a('buffer_store_dwordx4', FD[ks], l16, RWS, sl if ks >= 4 else sdst, mods=f'offen offset:{1024*(ks & 3)} sc1')
    return tp

def helper_wg(a):
    n, nd, sj, sHR = S(7), S(9), S(15), S(8)
    vt = V(91)
    emit = lambda L: [a(mn, *ops, mods=mods) for mn, ops, mods in L]
    def common():
        srd(a, RWS, P_WS, WS_SIZE)
        a('s_mov_b32', sEp, hex(EPOCH))
        a('s_load_dword', sEp, P_WS, sEp)
        srd(a, S(52, 4), P_WD, D_*F_*2)
        role_setup(a)
        w_setup(a)
        tag_setup(a)
        a('s_sub_u32', nd, n, 16)
        a('s_max_i32', nd, nd, 0)
        a('s_mul_i32', S(14), nd, 205)
        a('s_lshr_b32', S(14), S(14), 11)
        a('s_mul_i32', st0, S(14), 10)
        a('s_sub_u32', S(13), nd, st0)
        clr_setup_q(a, S(28), V(247))
    def touch_setup():
        w_srd(a)
        touch_lanes(a, vt)
        a('s_bfe_u32', sj, n, (3 << 16) | 3)
        a('s_lshl_b32', sj, sj, 1)
        a('s_and_b32', st0, sw, 1)
        a('s_add_u32', sj, sj, st0)
        a('s_mul_i32', sj, sj, 8*WROW)
    def sq_clear():
        a('v_mov_b32', V(93), -1)
        a('buffer_store_dword', V(93), V(247), RWS, S(28), mods='offen sc1')
    def touch3():
        a('s_lshr_b32', st0, n, 3)
        a('s_lshl_b32', st0, st0, 1)
        a('s_and_b32', st1, sw, 1)
        a('s_add_u32', st0, st0, st1)
        a('s_cmp_lt_u32', st0, 16)
        a('s_cselect_b32', st1, 16, 56)
        a('s_add_u32', st0, st0, st1)
        a('s_mul_i32', st0, st0, 8*WROW)
        a('buffer_load_dword', V(92), vt, RW1, st0, mods='offen')
    def touch(blk):
        a('s_add_u32', st0, sj, blk*8*WROW)
        a('buffer_load_dword', V(92), vt, RW1, st0, mods='offen')
    a('s_sub_u32', n, S(2), 160)
    a('s_cmp_ge_u32', n, 64)
    a('s_cbranch_scc1', 'H_nx1')
    XL = x_loads(a, n)
    touch_setup()
    common()
    DP = E('DPOS', 2)
    if DP == 0: d_loads(a, nd)
    X = XL()
    sq_clear()
    stamp(a, 1)
    x_task(a, n, X, (lambda: d_loads(a, nd)) if DP == 1 else None)
    stamp(a, 2)
    a('s_cmp_lg_u32', sw, 0)
    a('s_cbranch_scc1', 'H_w123')
    x_finish(a, n)
    stamp(a, 4)
    a('s_branch', 'H_xj')
    a.label('H_w123')
    HR = E('HR1', 4)
    def dl():
        a('s_cmp_lt_u32', n, 16)
        a('s_cbranch_scc1', 'H_a')
        d_loads(a, nd, 'H_d0')
        a.label('H_a')
    if DP == 2 and E('DFIRST', 1): dl()
    touch(48)
    a('s_cmp_lg_u32', sw, 1)
    a('s_cbranch_scc1', 'H_t47')
    touch(47)
    a.label('H_t47')
    if DP == 2 and not E('DFIRST', 1): dl()
    w_holes(a, V(236, 4))
    if HR:
        w_round_x(a, 0, 0, 'H_rx', 0, HR, True)
        w_round_y(a, 0, 0, 'H_ry', 0, HR, True)
    else: a.wait(vm=1 if E('DFIRST', 1) else 0)
    a.label('H_xj')
    a('s_mov_b32', sHR, 1)
    a('s_cmp_ge_u32', n, 16)
    a('s_cbranch_scc1', 'H_nx2')
    tr0 = w_round(a, 0, 0, HR, 7)
    touch3()
    a.wait(vm=13 if E('HPIPE', 1) else 1)
    a('s_branch', 'H_nd2')
    a.label('H_nx1')
    touch_setup()
    for blk in (0, 8, 40, 64): touch(blk)
    common()
    td = d_loads(a, nd)
    w_holes(a, V(236, 4))
    w_round(a, 0, 0, 0, 4)
    sq_clear()
    stamp(a, 1)
    a.wait_vm_tok(td)
    a('s_mov_b32', sHR, 0)
    stamp(a, 2)
    a.label('H_nx2')
    a('s_barrier')
    tp = d_task(a)
    stamp(a, 3)
    if HR < 4:
        a('s_cmp_eq_u32', sHR, 0)
        a('s_cbranch_scc1', 'H_hr')
        w_round(a, 0, 0, HR, 4)
        a.wait(vm=4*(4 - HR))
        a('s_barrier')
        publish4(a, FLD, PSTR, nd)
        w_round(a, 0, 0, 4, 7)
        touch3()
        a.wait(vm=14)
        a('s_branch', 'H_nd2')
        a.label('H_hr')
    tr = w_round(a, 0, 0, 4, 7)
    touch3()
    LP = E('LATEP', 0)
    if LP: a.wait(vm=20)
    else:
        a.wait_vm_tok(tp)
        a('s_barrier')
        publish4(a, FLD, PSTR, nd)
    if not E('HPIPE', 1): a.wait_vm_tok(tr)
    a.label('H_nd2')
    sDF, sT2, vt2, vg1 = S(58), S(54), V(93), V(96)
    FD_ = Flags(a, 'HD', V(94, 2), vg1, sDF)
    def bar():
        a.wait(lg=0)
        a('s_barrier')
    def rd(r, lo, hi):
        for i in range(lo, hi): emit(w_reads(RND[r][i], i & 3))
    bar()
    if E('HPIPE', 1):
        rd(0, 0, 4)
        bar()
        w_round(a, 1, 0, 0, 4)
        a.wait(vm=16)
        bar()
        if LP:
            a('s_cmp_lt_u32', n, 16)
            a('s_cbranch_scc1', 'H_np')
            publish4(a, FLD, PSTR, nd)
            a.label('H_np')
        emit(w_shift(4))
        rd(0, 4, 7)
        bar()
        w_round(a, 1, 0, 4, 7)
        a.wait(vm=12)
        stamp(a, 5)
        bar()
        emit(w_shift(-4))
        rd(1, 0, 4)
        rep_base(a, sDF, FLD, PSTR)
        pack_flag_addr(a, vg1)
        bar()
        w_round(a, 2, 1, 0, 3)
        FD_.load()
        a.wait(vm=13)
        bar()
        emit(w_shift(4))
        rd(1, 4, 7)
        emit(w_shift(-4))
        bar()
        stamp(a, 6)
        tr = w_round(a, 2, 1, 3, 6)
    else:
        emit(w_read_ops(0))
        bar()
        tr = w_round(a, 1)
        a.wait_vm_tok(tr)
        stamp(a, 5)
        a('s_barrier')
        emit(w_read_ops(1))
        rep_base(a, sDF, FLD, PSTR)
        pack_flag_addr(a, vg1)
        FD_.load()
        bar()
        stamp(a, 6)
        tr = w_round(a, 2, 1)
    FD_.check()
    p2_touch(a)
    stamp(a, 7)
    a('s_cmp_lg_u32', sB, 7)
    a('s_cbranch_scc1', 'H_end')
    a.wait_vm_tok(tr)
    a('s_barrier')
    R = [V(16 + i) for i in range(4)]
    emit(w_shift(1, vWr, R))
    for i, ks in enumerate(RND[2]):
        if i == 4: emit(w_shift(4, R))
        emit(w_reads(ks, i & 3, R))
    ON = V(208, 4)
    CSA = [V(212 + 4*k, 4) for k in range(4)]
    CSA[3] = V(240, 4)
    for d in range(4): a('v_mov_b32', ON[d], '0x3f803f80')
    for ks in RND[0] + RND[1] + RND[2]:
        for k in range(4):
            a(MFMA, CSA[k], W1(ks, k), ON, CSA[k] if ks else 0)
    cs_bases(a)
    a('v_and_b32', t0, 15, lane)
    a('v_cmp_eq_u32', 'vcc', 0, t0)
    a('s_and_saveexec_b64', S(68, 2), 'vcc')
    for k in range(4):
        a('buffer_store_dwordx4', CSA[k], vq16, RWS, sCS3 if k == 3 else sCS0, mods=f'offen offset:{64*(k % 3)} sc1')
    a('s_mov_b64', 'exec', -1)
    a('s_lshl_b32', st0, sC, 7)
    a('s_lshl_b32', st1, sw, 2)
    a('s_add_u32', st0, st0, st1)
    a('s_add_u32', st0, st0, hex(FLC))
    a.wait(vm=0)
    publish(a, st0, 0)
    a.label('H_end')
    stamp(a, 8)

def cs_bases(a):
    a('s_mul_i32', st0, sC, 14*64)
    a('s_add_u32', st0, st0, hex(CS))
    a('s_lshl_b32', sCS0, sUb, 6)
    a('s_add_u32', sCS0, sCS0, st0)
    a('s_lshl_b32', sCS3, sU3, 6)
    a('s_add_u32', sCS3, sCS3, st0)
```

```python
from mk8a import *

vdma2, RS2, vout = V(13), V(13), V(248)
ACC = [[V(16 + 32*n + 4*j, 4) for j in range(8)] for n in range(3)]
ACC.append({j: V(112 + 4*((j >> 2)*2 + (j & 1)), 4) for j in (0, 1, 4, 5)})
CSR = [V(128 + 4*n, 4) for n in range(4)]
BF = [V(208 + 4*i, 4) for i in range(8)]
VRD = [V(240 + i) for i in range(8)]
MEAN = V(176, 8)
vsr = [vst, V(184), V(185), V(186)]
vsw = [V(187), V(188)]
MT = [V(189), V(190)]
SQF = [V(128 + 4*i, 4) for i in range(3)]
SQA = V(204, 4)
vsq, vsqs, vpr = V(250), V(251), V(191)
vWg = [V(128 + i) for i in range(4)]
SQL = V(184, 8)
RES = [V(144, 2), V(146, 2), V(148, 2), V(150, 2), V(14, 2)]
ACC2 = [[V(208 + 4*nu, 4) for nu in range(5)], [V(228 + 4*nu, 4) for nu in range(5)],
        [V(176 + 4*nu, 4) for nu in range(5)], [V(196, 4), V(200, 4), V(204, 4), V(128, 4), V(132, 4)]]
MSK = [S(50, 2), S(52, 2), S(54, 2)]
WDL = [(W1(ks, n), ('p1', ks)) for ks in range(4) for n in range(4)]
WDL += [(V(152 + 4*f, 4), ('p1', 4 + (f >= 2))) for f in range(6)]
WDL += [(W1(ks, 3), (1, 0, ks)) for ks in range(KS, 20)]
WDL += [(W1(ks, n), (1, 2, ks)) for ks in range(KS, 20) for n in range(3)]
def WD(f): return WDL[f][0]
sMV, sDump, sPkT, sPark, sPkG = S(34, 2), S(12), S(49), S(7), S(10)
NPK, PK0 = E('NPK', 15), 2048
sHT0, sHTt, vchk, vtch = S(36), S(37), V(253), V(132)
CKT = [V(138 + 2*i, 2) for i in range(3)]
sCl, sFX, sFXw, GQ = S(39), S(40), S(41), V(132, 4)
HF0 = [ACC[n][j] for j in (0, 1) for n in range(4)] + [ACC[n][j] for j in (2, 3) for n in range(3)]
HF1 = [ACC[n][j] for j in (4, 5) for n in range(4)] + [ACC[n][j] for j in (6, 7) for n in range(3)]
HF = HF0 + HF1

def gemm_setup(a):
    srd(a, ROUT, P_OUT, S_*D_*2)
    cs_bases(a)
    a('s_lshl_b32', sHT, sw, 15)
    a('s_lshl_b32', st0, sB, 8)
    a('s_add_u32', sHT, sHT, st0)
    a('s_add_u32', sHT, sHT, hex(HT))
    a('s_lshl_b32', sLds, sw, 11)
    a('s_mov_b32', sHT0, sHT)
    a('s_lshl_b32', sFX, sB, 9)
    a('s_add_u32', sFX, sFX, hex(FL3))
    a('s_lshr_b32', st1, sC, 2)
    a('s_lshl_b32', st1, st1, 7)
    a('s_add_u32', sFXw, sFX, st1)
    a('s_and_b32', st1, sC, 3)
    a('s_lshl_b32', st1, st1, 2)
    a('s_add_u32', sFXw, sFXw, st1)
    a('s_and_b32', st1, sC, 3)
    a('s_lshl_b32', st1, st1, 2)
    a('s_add_u32', st1, st1, sw)
    a('s_lshl_b32', st1, st1, 17)
    a('s_add_u32', st1, st1, st0)
    a('s_add_u32', sHTt, st1, hex(HT + 4*131072))
    a('v_bfe_u32', t0, lane, 4, 2)
    a('v_lshl_add_u32', t0, t0, 2, l16)
    a('v_add_u32', vchk, sLds, t0)
    a('v_lshrrev_b32', t0, 1, lane)
    a('v_and_b32', t1, 1, lane)
    a('v_lshlrev_b32', t1, 7, t1)
    a('v_lshl_add_u32', vtch, t0, 12, t1)
    clr_setup_h(a, sCl)
    half, cbk, mu = S(13), S(14), S(15)
    a('s_bfe_u32', half, sC, (1 << 16) | 2)
    a('s_lshr_b32', cbk, sC, 3)
    a('s_lshl_b32', cbk, cbk, 2)
    a('s_and_b32', st0, sC, 3)
    a('s_add_u32', cbk, cbk, st0)
    a('s_and_b32', st0, sw, 1)
    a('s_lshl_b32', sRot, st0, 1)
    a('s_lshr_b32', st1, sw, 1)
    a('s_or_b32', sRot, sRot, st1)
    a('s_lshl_b32', mu, st1, 2)
    a('s_add_u32', mu, mu, st0)
    a('s_lshl_b32', st0, half, 1)
    a('s_add_u32', mu, mu, st0)
    a('s_mul_i32', st0, cbk, 5*TS)
    a('s_mul_i32', st1, sw, 14*1024)
    a('s_add_u32', st0, st0, st1)
    for nu in range(5):
        a('s_add_u32', sWn[nu], st0, hex(WP2 + nu*TS))
    a('s_lshl_b32', st0, sB, 3)
    a('s_lshl_b32', st2, half, 1)
    a('s_add_u32', st2, st2, st0)
    a('s_mul_i32', st2, st2, TS)
    a('s_add_u32', st2, st2, st1)
    for j in range(4):
        a('s_add_u32', sHH[j], st2, hex(HH + ((j & 1) + 4*(j >> 1))*TS))
    a('s_and_b32', st1, sRot, 2)
    a('s_mul_i32', st2, sC, 14*256)
    a('s_add_u32', st2, st2, hex(HH))
    for k in range(2):
        if k: a('s_xor_b32', st1, st1, 2)
        a('s_add_u32', sA[k], st0, st1)
        a('s_mul_i32', sA[k], sA[k], TS)
        a('s_add_u32', sA[k], sA[k], st2)
    a('s_add_u32', st1, st0, mu)
    a('s_mul_i32', sOut, st1, 16*1280)
    a('s_mul_i32', st2, cbk, 160)
    a('s_add_u32', sOut, sOut, st2)
    a('s_lshl_b32', sSQl, st1, 9)
    a('s_add_u32', sSQl, sSQl, hex(SQ))
    a('s_add_u32', st1, st0, cbk)
    a('s_lshl_b32', sSQs, st1, 9)
    a('s_lshl_b32', st1, half, 2)
    a('s_add_u32', st1, st1, sw)
    a('s_lshl_b32', st1, st1, 2)
    a('s_add_u32', sSQs, sSQs, st1)
    a('s_add_u32', sSQs, sSQs, hex(SQ))
    a('s_mov_b32', sStat, 0)
    a('s_lshl_b32', sC3, sC, 7)
    a('s_add_u32', sC3, sC3, hex(FLC))
    a('s_mov_b32', sPkG, sWn[0])
    a('s_mul_i32', sPark, sw, NPK*1024)
    a('s_add_u32', sPark, sPark, PK0)
    for mn, ops, mods in w_shift(1, vWr, vWg): a(mn, *ops)
    a('s_add_u32', sDump, sStat, 1024)
    a('s_cmp_ge_u32', sw, 2)
    a('s_cselect_b32', sMV[1], '0xffff0000', 0)
    a('s_mov_b32', sMV[0], 0)
    q, r, m, x = V(208), V(209), V(210), V(211)
    a('v_lshrrev_b32', q, 4, lane)
    a('v_bfe_u32', r, lane, 2, 2)
    a('v_and_b32', m, 15, lane)
    a('s_and_b32', st1, sw, 1)
    a('s_lshl_b32', st1, st1, 2)
    a('v_or_b32', t0, st1, q)
    a('v_bfe_u32', t1, lane, 1, 3)
    a('v_xor_b32', t0, t0, t1)
    a('v_lshlrev_b32', t0, 5, t0)
    a('v_and_b32', t1, 1, lane)
    a('v_lshl_add_u32', t0, t1, 4, t0)
    a('v_lshl_add_u32', vdma, q, 12, t0)
    a('v_add_u32', vdma2, 16384 - 1024, vdma)
    a('v_and_b32', t0, 1, q)
    a('v_lshl_or_b32', t0, t0, 2, r)
    a('v_lshl_add_u32', t1, q, 3, r)
    a('v_lshlrev_b32', t1, 8, t1)
    a('v_and_b32', t2, 3, lane)
    a('v_lshl_add_u32', t1, t2, 3, t1)
    a('v_xor_b32', x, cbk, t0)
    a('v_lshl_add_u32', vsq, x, 5, t1)
    a('s_lshl_b32', st0, sw, 14)
    a('s_add_u32', st0, st0, 11*8192)
    a('s_mul_i32', st1, sw, 3*8192)
    a('s_cmp_eq_u32', half, 0)
    a('s_cselect_b32', st0, st1, st0)
    a('v_add_u32', vsq, st0, vsq)
    a('v_xor_b32', t0, sRot, t0)
    for j in range(8):
        a('v_xor_b32', VRD[j], j, t0)
        a('v_lshl_add_u32', VRD[j], VRD[j], 5, t1)
    for i in range(3):
        a('v_cmp_eq_u32', MSK[i], i + 1, t2)
    a('v_lshlrev_b32', t0, 5, m)
    a('v_cmp_eq_u32', 'vcc', r, q)
    a('v_mov_b32', t1, hex(OOB))
    a('v_cndmask_b32', vsqs, t1, t0, 'vcc')
    a('v_lshrrev_b32', t0, 1, q)
    a('v_lshl_or_b32', t0, t0, 2, r)
    a('v_xor_b32', t0, mu, t0)
    a('v_lshlrev_b32', t0, 5, t0)
    a('v_lshl_add_u32', t0, t2, 3, t0)
    a('v_lshl_add_u32', t1, q, 2, r)
    a('v_lshl_add_u32', t0, t1, 8, t0)
    a('s_mul_i32', st2, cbk, 80*256)
    a('v_add_u32', vres, st2, t0)
    a('s_lshl_b32', st0, sRot, 2)
    a('s_add_u32', st0, st0, sStat)
    a('v_lshl_add_u32', vst, m, 5, st0)
    a('s_and_b32', st0, sRot, 1)
    a('v_and_b32', t0, 1, q)
    a('v_lshrrev_b32', t2, 1, q)
    a('v_xor_b32', x, st0, t0)
    a('v_mul_u32_u24', x, TS, x)
    a('v_lshl_add_u32', x, m, 4, x)
    a('v_add_u32', t1, sUb, t2)
    a('v_lshl_add_u32', vh01, t1, 8, x)
    a('s_add_u32', st1, sUb, 2)
    a('s_sub_u32', st2, sU3, st1)
    a('v_mul_lo_u32', t1, st2, t2)
    a('v_add_u32', t1, st1, t1)
    a('v_lshl_add_u32', vh23, t1, 8, x)
    a('v_xor_b32', x, st0, t2)
    a('v_mul_u32_u24', x, TS, x)
    a('v_lshl_add_u32', x, m, 4, x)
    a('v_lshl_add_u32', x, t0, 3, x)
    a('s_lshl_b32', st1, st1, 8)
    a('v_add_u32', vh2x, st1, x)
    a('v_mul_u32_u24', t1, 1280, m)
    a('v_lshl_add_u32', t1, t0, 5, t1)
    a('v_lshl_add_u32', vout, t2, 4, t1)
    a('v_and_b32', t1, 3, lane)
    a('v_lshlrev_b32', vfl, 2, t1)

def late_setup_ops():
    L = []
    for k in range(1, 4): L.append(('v_xor_b32', (vsr[k], 4*k, vst), ''))
    L.append(('v_lshl_add_u32', (MT[0], lane, 2, sDump), ''))
    L.append(('v_cndmask_b32', (vsw[0], MT[0], vst, sMV), ''))
    L.append(('v_cndmask_b32', (vsw[1], MT[0], vsr[1], sMV), ''))
    L.append(('v_add_u32', (vpr, sPark, l16), ''))
    return L

def pair_ops(X, Y, cX, cY, jX, jY, Q, pk, swap=True):
    L = []
    for Z, c, j in ((X, cX, jX), (Y, cY, jY)):
        if pk:
            s = j & 1
            for h in range(2):
                L.append((1, 'v_pk_fma_f32', (Z[2*h:2*h+2], c[2*h:2*h+2], MEAN[j-s:j-s+2], Z[2*h:2*h+2]), f'op_sel:[0,{s},0] op_sel_hi:[1,{s},1]'))
        else:
            for e in range(4): L.append((1, 'v_fmac_f32', (Z[e], c[e], MEAN[j]), ''))
    if swap:
        for e in range(4): L.append((2, 'v_permlane32_swap_b32', (X[e], Y[e]), ''))
    for e in range(4): L.append((1, 'v_max_f32', (X[e], 0, X[e]), ''))
    if pk:
        for h in range(2): L.append((1, 'v_pk_mul_f32', (X[2*h:2*h+2], X[2*h:2*h+2], Y[2*h:2*h+2]), ''))
    else:
        for e in range(4): L.append((1, 'v_mul_f32', (X[e], X[e], Y[e]), ''))
    for h in range(2): L.append((1, 'v_cvt_pk_bf16_f32', (Q[h], X[2*h], X[2*h+1]), ''))
    return L

def epi_ops(P, jb, pk=False):
    j0, j1 = 4*P + jb, 4*P + jb + 1
    L = []
    sbase = sA[jb >> 1]
    if P:
        L.append((1, 's_add_u32', (sbase, sbase, 4*TS), ''))
    groups = [(0, vh01)] + ([(2, vh23)] if jb == 0 else [])
    for n, va in groups:
        Q = ACC[n+1][j0]
        L += pair_ops(ACC[n][j0], ACC[n+1][j0], CSR[n], CSR[n+1], j0, j0, Q[0:2], pk, n > 0)
        L += pair_ops(ACC[n][j1], ACC[n+1][j1], CSR[n], CSR[n+1], j1, j1, Q[2:4], pk, n > 0)
        L.append((2, 'v_permlane16_swap_b32', (Q[0], Q[2]), ''))
        L.append((2, 'v_permlane16_swap_b32', (Q[1], Q[3]), ''))
        L.append((1, 'buffer_store_dwordx4', (Q, va, RWS, sbase), 'offen sc1'))
    if jb:
        Q = ACC[2][j1]
        L += pair_ops(ACC[2][j0], ACC[2][j1], CSR[2], CSR[2], j0, j1, Q[0:2], pk)
        L.append((1, 'buffer_store_dwordx2', (Q[0:2], vh2x, RWS, sbase), 'offen sc1'))
    return L

BFQ = [V(136, 4), V(140, 4)]
vck = V(252)

def gemms(a):
    T = {}
    dt = {}
    slow = []
    PW = [Ptr(s) for s in sWn]
    PH = [Ptr(s) for s in sHH]
    def wd_load(f, dry):
        i, nu = divmod(f, 5)
        L, o = PW[nu].at(i, dry)
        return L + [('buffer_load_dwordx4', (WD(f), l16, RWS, sWn[nu]), f'offen offset:{o}' + LD, None)]
    def hload(i, j, dry):
        L, o = PH[j].at(i, dry)
        return L + [('buffer_load_dwordx4', (HF[2*i + (j & 1)], l16, RWS, sHH[j]), f'offen offset:{o}' + LD, None)]
    def guarded(sc, qi, at, name, badops, reload):
        for mn, ops in badops: sc.op(qi, at, mn, ops)
        def bad():
            for mn, ops in badops: a(mn, *ops)
        def br():
            a('s_cbranch_vccnz', name + '_slow')
            a.label(name + '_back')
            slow.append((name, bad, reload()))
            T[name] = sc.n
        sc.sca(qi, at, br)
    def hcheck(sc, at, i, ph):
        F0, F1 = HF[2*i], HF[2*i + 1]
        ops = [('v_max3_u32', (vck, F0[0], F0[2], F1[0])), ('v_max_u32', (vck, vck, F1[2])), ('v_cmp_eq_u32', ('vcc', -1, vck))]
        def mk():
            ks_ = [PH[2*ph + jj].k for jj in range(2)]
            def reload():
                for jj in range(2):
                    a('s_add_u32', st0, sHH[2*ph + jj], hex((4096*((i >> 2) - ks_[jj])) & 0xffffffff))
                    a('buffer_load_dwordx4', HF[2*i + jj], l16, RWS, st0, mods=f'offen offset:{(i & 3)*1024} sc1')
            return reload
        guarded(sc, 2, at, f'HC{ph}_{i}', ops, mk)
    def dma_ops(ks):
        return [[('s_add_u32', ('m0', sLds, 8192*ks)), ('buffer_load_dwordx4', (vdma, RWS, sHT), 'offen' + LD + ' lds')],
                [('buffer_load_dwordx4', (vdma2, RWS, sHT), 'offen offset:1024' + LD + ' lds', (dt, ks))],
                [('s_add_u32', (sHT, sHT, 131072))]]
    sc = Sched(a, 4)
    sc.step = E('VSTEP', 5)
    NUP = E('NUP', 4)
    for ks in range(NUP):
        for L in dma_ops(ks): sc.ops(0, 0, L)
    sc.drain()
    if E('HTT', 1): a('buffer_load_dword', V(133), vtch, RWS, sHTt, mods='offen')
    a('s_cmp_lg_u32', S(2), 0)
    a('s_cbranch_scc1', 'EP_skip')
    a('s_add_u32', sEp, sEp, 1)
    a('v_mov_b32', t0, sEp)
    a('s_mov_b32', st0, hex(EPOCH))
    a('s_mov_b64', 'exec', 1)
    a('buffer_store_dword', t0, 'off', RWS, st0, mods='sc1')
    a('s_mov_b64', 'exec', -1)
    a.label('EP_skip')
    steps = [(ks, j) for ks in range(KS) for j in range(8)]
    ends = {}
    cnt = lambda L: sum(4 if (j & 3) < 2 else 3 for _, j in L)
    n1 = cnt(steps)
    when = {}
    for P in range(2):
        for jb in (0, 2):
            for ks in range(KS, 20):
                steps += [(ks, 4*P + jb), (ks, 4*P + jb + 1)]
                when[(P, jb, ks)] = cnt(steps)
            ends[(P, jb)] = cnt(steps)
    NM = cnt(steps)
    d0, ds_ = E('D_AT', 30), E('DSTEP', 9)
    for ks in range(NUP, 20):
        at = d0 + ds_*(ks - NUP)
        st_ = ds_
        if ks >= 11: st_ = E('DSTEP2', 7); at = E('D2_AT', 88) + st_*(ks - 11)
        for k, L in enumerate(dma_ops(ks)): sc.ops(2, at + (st_//2 if k else 0), L)
    bars = eval(os.environ.get('BARS', '{30: 3, 86: 6, 142: 11, 198: 19}'))
    lastbar = min(k for k, v in bars.items() if v == 19)
    cbase = [0]
    def hval(lo, hi, at):
        name = f'HV{lo}'
        rd = lambda ks: ('ds_read2st64_b32', (CKT[ks % 3], vchk), f'offset0:{32*(ks - lo)} offset1:{32*(ks - lo) + 4}')
        mx = lambda ks: ('v_max_u32', (vck, CKT[ks % 3][0], CKT[ks % 3][1])) if ks == lo else ('v_max3_u32', (vck, vck, CKT[ks % 3][0], CKT[ks % 3][1]))
        cmp_ = ('v_cmp_eq_u32', ('vcc', -1, vck))
        def reload():
            a('s_mov_b32', st1, 'm0')
            for ks in range(lo, hi + 1):
                a('s_add_u32', 'm0', sLds, 8192*ks)
                a('s_add_u32', st0, sHT0, 131072*ks)
                a('buffer_load_dwordx4', vdma, RWS, st0, mods='offen sc1 lds')
                a('buffer_load_dwordx4', vdma2, RWS, st0, mods='offen offset:1024 sc1 lds')
            a('s_mov_b32', 'm0', st1)
        def bad():
            for ks in range(lo, hi + 1):
                r = rd(ks); a(r[0], *r[1], mods=r[2])
                m = mx(ks); a(m[0], *m[1])
            a(cmp_[0], *cmp_[1])
        def br():
            a('s_cbranch_vccnz', name + '_slow')
            a.label(name + '_back')
            slow.append((name, bad, reload))
            T[name] = sc.n
        sh = [('v_add_u32', (vchk, 8192*(lo - cbase[0]), vchk))] if lo != cbase[0] else []
        cbase[0] = lo
        if at is None:
            a.wait_vm_tok(dt[hi])
            for ks in range(lo, hi + 1):
                r = rd(ks); a(r[0], *r[1], mods=r[2])
            return lambda: ([a(mx(ks)[0], *mx(ks)[1]) for ks in range(lo, hi + 1)], a(cmp_[0], *cmp_[1]), br())
        lat, st_ = E('HV_LAT', 7), 3
        for x in sh: sc.op(3, at - lat - 3 - st_*(hi - lo) - 2, *x)
        for ks in range(lo, hi + 1):
            t = at - lat - 3 - st_*(hi - ks)
            sc.sca(3, t, lambda ks=ks: a.wait_vm_tok(dt[ks]))
            sc.op(3, t, *rd(ks))
            sc.op(3, t + lat, *mx(ks))
        sc.op(3, at - 3, *cmp_)
        sc.sca(3, at - 3, br)
    HV = E('HV', 1)
    if HV:
        lo = 2
        for n_, hi in sorted(bars.items()):
            hval(lo, hi, n_); lo = hi + 1
        cbase[0] = 0
    hvn = {n_: f'HV{lo_ + 1}' for n_, lo_ in zip(sorted(bars), [1] + [v for k, v in sorted(bars.items())])}
    pbar = E('PBAR', 228)
    bars[pbar] = 19
    b0, b1 = sorted(bars)[:2]
    for i, ks in enumerate(RND[2]):
        at = 0 if i < 2 else b0
        if i == 4:
            for op in w_shift(4, vWg): sc.op(0, at, *op)
        for op in w_reads(ks, i & 3, vWg): sc.op(0, at, *op, tok=(T, 'w3a' if i < 2 else 'w3b'))
    sc.note(0, 0, lambda: T.__setitem__('w3a_ok', 1))
    sc.note(0, b0, lambda: T.__setitem__('w3b_ok', 1))
    assert d0 + ds_*(8 - NUP) >= b0 and E('D2_AT', 88) > b1
    cl_at = E('GCL_AT', 152)
    for d in range(4): sc.op(1, cl_at - 8, 'v_mov_b32', (GQ[d], -1))
    for k, (mn, ops, mods) in enumerate(clr_ops(GQ, sCl)):
        if E('NOCL', 0) and k > 0: continue
        sc.op(1, cl_at + E('GCL_STEP', 3)*k, mn, ops, mods, tok=(T, 'cl'))
    sc.note(1, cl_at + E('GCL_STEP', 3)*8, lambda: T.__setitem__('cl_ok', sc.n))
    fx_at = E('FX_AT', 540)
    FX = Flags(a, 'FX', vfv, vchk, sFX)
    sc.op(1, fx_at - 70, 'v_bfe_u32', (vchk, lane, 2, 2))
    sc.op(1, fx_at - 70, 'v_lshl_add_u32', (vchk, vchk, 7, vfl))
    sc.call(1, fx_at - 60, FX.load)
    sc.call(1, fx_at, lambda: (FX.check(), T.__setitem__('fx', 1)))
    fl_at = E('FL_AT', 240)
    FC = Flags(a, 'CF', vfv, vfl, sC3)
    sc.call(1, cl_at - 62, FC.load)
    sc.call(1, cl_at - 10, FC.check)
    for n in range(4):
        sc.op(1, fl_at, 'buffer_load_dwordx4', (CSR[n], vq16, RWS, sCS3 if n == 3 else sCS0), f'offen offset:{64*(n % 3)} sc1')
    sq_at = lastbar + 2
    sc.note(0, sq_at, lambda: T['cl_ok'])
    for nu in range(5):
        sc.op(0, sq_at, 'ds_read_b64_tr_b16', (RES[nu], vres), f'offset:{4096*nu}')
    for op in late_setup_ops(): sc.op(0, sq_at, *op)
    for i in range(3):
        for hf in range(2):
            sc.op(0, sq_at, 'ds_read_b64_tr_b16', (SQF[i][2*hf:2*hf+2], vsq), f'offset:{8192*i + 1024*hf}', tok=(T, 'sqr'))
    def sq_mf():
        a(MFMA, SQA, SQF[1], SQF[1], 0)
        a(MFMA, SQA, SQF[2], SQF[2], SQA)
        a('s_bitcmp1_b32', sC, 2)
        a('s_cbranch_scc1', 'SQ_skip')
        a(MFMA, SQA, SQF[0], SQF[0], SQA)
        a.label('SQ_skip')
    sm = pbar + 4
    sc.call(0, sm, sq_mf)
    sc.op(0, sm + 4, 'v_cndmask_b32', (MT[0], SQA[0], SQA[1], MSK[0]))
    sc.op(0, sm + 4, 'v_cndmask_b32', (MT[0], MT[0], SQA[2], MSK[1]))
    sc.op(0, sm + 4, 'v_cndmask_b32', (MT[0], MT[0], SQA[3], MSK[2]))
    sc.op(0, sm + 4, 'buffer_store_dword', (MT[0], vsqs, RWS, sSQs), 'offen sc1')
    held = []
    def flush_ha():
        for e in [e for e in sc.mem if e[3:] == ('ha',)]:
            sc.mem.remove(e); sc.emit(e[2](False))
    for P in range(2):
        e0 = ends[(P, 0)]
        for k in range(2):
            sc.op(0, e0 + 3, 'v_mul_f32', (MT[k], '0xbacccccd', ACC[3][4*P + k][0]))
        for k in range(2):
            sc.op(0, e0 + 3, 'ds_write_b32', (vsw[k], MT[k]), f'offset:{16*P}', tok=(T, 'mw'))
        def mbar(P=P):
            a.wait_lg_tok(T['mw'])
            if P == 0: a.wait_vm_tok(T['cl'])
            a('s_barrier')
            if P == 0:
                a('s_cmp_lg_u32', sw, 0)
                a('s_cbranch_scc1', 'FX_pub')
                a('s_mov_b64', 'exec', 1)
                publish(a, sFXw, 0)
                a('s_mov_b64', 'exec', -1)
                a.label('FX_pub')
        sc.call(0, e0 + 10, mbar)
        for k in range(4):
            sc.op(0, e0 + 10, 'ds_read_b32', (MEAN[4*P + k], vsr[k]), f'offset:{16*P}')
        for c, mn, ops, mods in epi_ops(P, 0):
            if P and E('DEFER', 0) and 'store' in mn: held.append((mn, ops, mods))
            else: sc.op(0, e0 + 16, mn, ops, mods)
        for c, mn, ops, mods in epi_ops(P, 2, pk=(P == 1)):
            if P and E('DEFER', 0) >= 2 and 'store' in mn: held.append((mn, ops, mods))
            else: sc.op(0, ends[(P, 2)] + 3, mn, ops, mods)
        if P and held:
            if E('DEFER', 0) == 1:
                k = [i for i, e in enumerate(sc.q[0]) if e[0] == ends[(1, 2)] + 3 and e[1] == 'i' and 'store' in e[2][0][0]][0]
                for mn, ops, mods in reversed(held): sc.q[0].insert(k, (ends[(1, 2)] + 3, 'i', [(mn, ops, mods, None)]))
            else:
                sc.note(0, ends[(1, 2)] + 3, lambda: flush_ha())
                for mn, ops, mods in held: sc.op(0, ends[(1, 2)] + 3, mn, ops, mods)
        sc.note(0, ends[(P, 2)] + 3, lambda P=P: T.__setitem__(f'st{P}', sc.n))
    wd0 = E('WD_AT', 170)
    for f in range(70 - NPK):
        w = WDL[f][1]
        av = max(28*(w[1] + 1) + 1, wd0) if w[0] == 'p1' else when[w] + 1
        if not E('NOWD', 0): sc.load(av, 2*f + 1, lambda dry, f=f: wd_load(f, dry))
    for k in range(NPK):
        f = 70 - NPK + k
        i, nu = divmod(f, 5)
        def park(dry, k=k, i=i, nu=nu):
            return [('s_add_u32', ('m0', sPark, 1024*k), '', None),
                    ('s_add_u32', (sPkT, sPkG, nu*TS + 1024*i), '', None),
                    ('buffer_load_dwordx4', (l16, RWS, sPkT), 'offen' + LD + ' lds', (T, 'pk'))]
        if not E('NOWD', 0): sc.load(pbar + 1, 44 + k*0.01, park)
        def wpk():
            a.wait_vm_tok(T['pk'])
        if k == 0 and not E('NOWD', 0): sc.sca(1, when[WDL[f][1]] + 1, wpk)
        sc.op(1, when[WDL[f][1]] + 1, 'ds_read_b128', (WD(f), vpr), f'offset:{1024*k}')
    def hl(i, j, P, dry):
        assert f'st{P}' in T and 'fx' in T, (i, j, sc.n)
        return hload(i, j, dry)
    for i in range(7):
        for j in range(2):
            sc.load(E('HA_AT', 560), 10*i - 10 + j - E('HA_PRI', 0), lambda dry, i=i, j=j: hl(i, j, 0, dry))
            sc.mem[-1] += ('ha',)
    sc.sort()

    GST = eval(os.environ.get('GST', '[]'))
    print('n1', n1, 'ends', ends, 'NM', NM, file=sys.stderr)
    base = [0]*8
    cover = [1]
    def bread(s, hf):
        ks, j = steps[s]
        assert ks <= cover[0], (s, ks, cover)
        return ('ds_read_b64_tr_b16', (BF[s & 7][2*hf:2*hf+2], VRD[j]), f'offset:{(ks & 7)*8192 + 1024*hf}')
    def bfix(s):
        ks, j = steps[s]
        if base[j] == ks >> 3: return []
        d = (ks >> 3) - base[j]
        base[j] = ks >> 3
        return [('v_add_u32', (VRD[j], d*65536, VRD[j]))]
    if HV: hval(0, 1, None)()
    a.wait_vm_tok(dt[1])
    a('s_barrier')
    stamp(a, 10)
    if E('CLK', 0): a('s_memtime', S(72, 2)); a.wait(lg=0)
    for s in range(8):
        for hf in range(2):
            r = bread(s, hf); a(r[0], *r[1], mods=r[2])
    seen = set()
    seq = []
    for s, (ks, j) in enumerate(steps):
        nk = 4 if (j & 3) < 2 else 3
        for k in range(nk):
            acc = ACC[k][j]
            seq.append((s, k, nk, (MFMA, (acc, W1(ks, k), BF[s & 7], acc if acc.idx in seen else 0), '')))
            seen.add(acc.idx)
    for x, (s, k, nk, m) in enumerate(seq):
        if sc.n in bars:
            a.wait_vm_tok(dt[bars[sc.n]])
            if HV and sc.n in hvn: assert hvn[sc.n] in T, sc.n
            if sc.n == pbar: a.wait_lg_tok(T['sqr'])
            if sc.n == b0: assert T['w3a_ok']; a.wait_lg_tok(T['w3a'])
            if sc.n == b1: assert T['w3b_ok']; a.wait_lg_tok(T['w3b'])
            a('s_barrier')
            cover[0] = bars[sc.n]
        if sc.n == ends[(0, 2)]: stamp(a, 11)
        if sc.n in GST: stamp(a, 1 + GST.index(sc.n))
        a(m[0], *m[1])
        sc.n += 1
        fixed = []
        if 1 <= s and s + 7 < len(steps):
            if E('BB', 1) and sc.n > E('BB_AT', 320): fixed += [bread(s + 7, 0), bread(s + 7, 1)] if k == 0 else []
            elif k < 2: fixed.append(bread(s + 7, k))
        if k == 2 and s + 8 < len(steps): fixed += bfix(s + 8)
        sc.gap(fixed, [seq[x + 1][3]] if x + 1 < len(seq) else [])
    print('after gemm1:', sc.left(), 'first epilogue done at', T['st0'], 'over', sc.over, file=sys.stderr)
    stamp(a, 12)
    if E('CLK', 0):
        a('s_memtime', S(74, 2)); a.wait(lg=0)
        a('s_sub_u32', S(72), S(74), S(72))
        a('s_add_u32', S(72), S(72), S(70))
    a('s_lshl_b32', st0, S(15), 2)
    a('s_add_u32', st0, st0, sStat)
    a('v_and_b32', t0, 15, lane)
    a('v_lshl_add_u32', t1, t0, 5, st0)
    a('ds_read_b32', RS2, t1)
    a('v_lshlrev_b32', t0, 5, t0)
    sc.drain(E('BEV', 10))
    print('after burst:', sc.left(), file=sys.stderr)
    g0 = sc.n
    for i in range(7, 14):
        for j in range(2): sc.load(g0, 10*i - 10 + j, lambda dry, i=i, j=j: hl(i, j, 1, dry))
    for i in range(14):
        for j in (2, 3): sc.load(g0 + max(10*i + 5*(j - 1), E('HB_AT', 60)), 140 + 10*i - 10 + j, lambda dry, i=i, j=j: hl(i, j, 1, dry))
    sc.step = E('VSTEP2', 3)
    hcheck(sc, 0, 0, 0)
    while sc.q[2]:
        sc.gap()
    for i in range(1, 14): hcheck(sc, g0 + 10*i - E('CK', 5), i, 0)
    sc.sort()
    seq = [(i, (MFMA, (ACC2[j][nu], WD(5*i + nu), HF[2*i + j], ACC2[j][nu] if i else 0), '')) for i in range(14) for j in range(2) for nu in range(5)]
    for x, (i, m) in enumerate(seq):
        assert f'HC0_{i}' in T, i
        if 1000 + x in GST: stamp(a, 1 + GST.index(1000 + x))
        a(m[0], *m[1])
        sc.n += 1
        sc.gap([], [seq[x + 1][1]] if x + 1 < len(seq) and f'HC0_{seq[x + 1][0]}' in T else [])
    print('after gemm2a:', sc.left(), 'over', sc.over, file=sys.stderr)
    stamp(a, 13)
    def sqload():
        for k in range(2):
            a('buffer_load_dwordx4', BFQ[k], t0, RWS, sSQl, mods=f'offen offset:{16*k} sc1')
    sqload()
    a.wait(lg=0)
    a('s_barrier')
    vw, vr = t1, t2
    a('s_mul_i32', st0, sw, 5120)
    a('v_add_u32', vw, st0, l16)
    a('s_mul_i32', st0, sw, 20480)
    a('v_add_u32', vr, st0, l16)
    vw2 = vsqs
    a('v_add_u32', vw2, 40960, vw)
    g1 = sc.n
    for j in range(2):
        for nu in range(5):
            sc.op(0, g1 + 2 + 5*(5*j + nu), 'ds_write_b128', (vw, ACC2[j][nu]), f'offset:{20480*j + 1024*nu}')
    sqbad = [('v_max3_u32', (vck, BFQ[0][0], BFQ[0][1], BFQ[0][2])), ('v_max3_u32', (vck, vck, BFQ[0][3], BFQ[1][0])),
             ('v_max3_u32', (vck, vck, BFQ[1][1], BFQ[1][2])), ('v_max_u32', (vck, vck, BFQ[1][3])), ('v_cmp_eq_u32', ('vcc', -1, vck))]
    rec = []
    r = lambda mn, *ops, mods='': rec.append((mn, ops, mods))
    for k in range(4): r('v_add_f32', BFQ[0][k], BFQ[0][k], BFQ[1][k])
    r('v_add_f32', BFQ[0][0], BFQ[0][0], BFQ[0][1])
    r('v_add_f32', BFQ[0][2], BFQ[0][2], BFQ[0][3])
    r('v_add_f32', BFQ[0][0], BFQ[0][0], BFQ[0][2])
    s2, tt = BFQ[0][0], BFQ[0][1]
    r('v_mul_f32', tt, RS2, RS2)
    r('v_mul_f32', s2, '0x3acccccd', s2)
    r('v_sub_f32', s2, s2, tt)
    r('v_max_f32', s2, 0, s2)
    rbf(r, s2)
    r('v_add_f32', s2, '0x3727c5ac', s2)
    rbf(r, s2)
    r('v_sqrt_f32', s2, s2)
    rbf(r, s2)
    r('v_rcp_f32', s2, s2)
    r('v_mul_f32', RS2, s2, s2)
    for mn, ops, mods in rec: sc.op(1, g1 + 72, mn, ops, mods)
    NT = E('NT', 4)
    seq = [(i, j, nu) for i in range(14 - NT) for j in (2, 3) for nu in range(5)]
    tail0 = len(seq)
    seq += [(i, j, nu) for j in (2, 3) for nu in range(5) for i in range(14 - NT, 14)]
    for k, (j, nu) in enumerate([(j, nu) for j in (2, 3) for nu in range(5)]):
        sc.op(0, g1 + tail0 + NT*(k + 1) + 2, 'ds_write_b128', (vw2, ACC2[j][nu]), f'offset:{20480*(j - 2) + 1024*nu}')
    issued = lambda i: not any(e[0] in (140 + 10*i - 10 + 2, 140 + 10*i - 10 + 3) for e in sc.mem)
    assert issued(0)
    hcheck(sc, 0, 0, 1)
    while sc.q[2]:
        sc.gap()
    for i in range(1, 14):
        at = g1 + ((10*i - E('CK', 5)) if i < 14 - NT else (tail0 - 5 - 3*(13 - i)))
        sc.note(2, at, lambda i=i: None if issued(i) else 1/0)
        hcheck(sc, at, i, 1)
        if i == 6: guarded(sc, 2, g1 + 60, 'SQC', sqbad, lambda: sqload)
    sc.sort()
    ms = [(i, (MFMA, (ACC2[j][nu], WD(5*i + nu), HF[2*i + (j & 1)], ACC2[j][nu] if i else 0), '')) for i, j, nu in seq]
    for x, (i, m) in enumerate(ms):
        assert f'HC1_{i}' in T, i
        if sc.n == g1 + 71: assert 'SQC' in T
        if 1140 + x in GST: stamp(a, 1 + GST.index(1140 + x))
        a(m[0], *m[1])
        sc.n += 1
        sc.gap([], [ms[x + 1][1]] if x + 1 < len(ms) and f'HC1_{ms[x + 1][0]}' in T else [])
    print('after gemm2b:', sc.left(), 'over', sc.over, file=sys.stderr)
    sc.n += 100
    sc.drain()
    if 1280 in GST: stamp(a, 1 + GST.index(1280))
    a.wait(lg=0)
    a('s_barrier')
    RD = [V(16 + 4*k, 4) for k in range(20)]
    for nu in range(5):
        for k in range(4):
            a('ds_read_b128', RD[4*nu + k], vr, mods=f'offset:{5120*k + 1024*nu}')
    X = V(96, 4)
    Q = [V(100, 4), V(104, 4), V(108, 2)]
    vo2 = V(110)
    a('v_and_b32', t0, 15, lane)
    a('v_mul_u32_u24', t0, 1280, t0)
    a('v_lshrrev_b32', t1, 1, vq16)
    a('v_add_u32', vo2, t0, t1)
    rp = V(12, 2)
    for nu in range(5):
        C, C2 = RD[4*nu], RD[4*nu + 2]
        for h in range(2):
            a('v_pk_add_f32', C[2*h:2*h+2], C[2*h:2*h+2], RD[4*nu + 1][2*h:2*h+2])
            a('v_pk_add_f32', C2[2*h:2*h+2], C2[2*h:2*h+2], RD[4*nu + 3][2*h:2*h+2])
        a('v_lshlrev_b32', X[0], 16, RES[nu][0])
        a('v_and_b32', X[1], '0xffff0000', RES[nu][0])
        a('v_lshlrev_b32', X[2], 16, RES[nu][1])
        a('v_and_b32', X[3], '0xffff0000', RES[nu][1])
        for h in range(2):
            a('v_pk_add_f32', C[2*h:2*h+2], C[2*h:2*h+2], C2[2*h:2*h+2])
        for h in range(2):
            a('v_pk_fma_f32', C[2*h:2*h+2], C[2*h:2*h+2], rp, X[2*h:2*h+2], mods='op_sel:[0,1,0] op_sel_hi:[1,1,1]')
        q = Q[nu >> 1]
        for h in range(2):
            a('v_cvt_pk_bf16_f32', q[2*(nu & 1) + h], C[2*h], C[2*h+1])
        if nu & 1:
            a('v_permlane16_swap_b32', q[0], q[2])
            a('v_permlane16_swap_b32', q[1], q[3])
            a('buffer_store_dwordx4', q, vout, ROUT, sOut, mods=f'offen offset:{64*(nu >> 1)}')
    a('buffer_store_dwordx2', Q[2], vo2, ROUT, sOut, mods='offen offset:128')
    return slow

def slow_paths(a, slow):
    for name, bad, reload in slow:
        a.label(name + '_slow')
        a.wait(lg=0)
        a('s_mov_b32', sCnt, SPIN)
        reload()
        a.spin_head(name + '_spin')
        bad()
        a('s_cbranch_vccz', name + '_back')
        reload()
        a('s_sub_u32', sCnt, sCnt, 1)
        a('s_cbranch_scc0', name + '_spin')
        a.wait(vm=0)
        a('s_branch', name + '_back')

def kernel(a):
    stamp(a, 0)
    if STAMP:
        for i in range(1, 15): a('s_mov_b32', S(70 + 2*i), S(70))
    a('s_cmp_lt_u32', S(2), 256)
    a('s_cbranch_scc1', 'K_go')
    a('s_endpgm')
    a.label('K_go')
    load_args(a)
    if E('PF0', 1): code_prefetch(a, 'PC0')
    wave_id(a, sw, t0)
    a('v_and_b32', lane, 63, V(0))
    a('v_lshlrev_b32', l16, 4, lane)
    a('v_and_b32', vq16, 48, lane)
    a('s_cmp_ge_u32', S(2), 160)
    a('s_cbranch_scc1', 'K_helper')
    tht = conv_wg(a)
    if E('PUBE', 0) == 0: gemm_setup(a)
    a.wait_vm_tok(tht)
    a.wait(lg=0)
    a('s_barrier')
    if not E('PUB_AT', 265): publish_n(a, S(2))
    if E('PUBE', 0) == 1: gemm_setup(a)
    if not E('R3B', 1):
        w_round_x(a, 2, 1, 'R3_x', 3, 6)
        w_round_y(a, 2, 1, 'R3_y', 3, 6)
    p2_touch(a)
    a('s_branch', 'K_gemm')
    a.label('K_helper')
    helper_wg(a)
    gemm_setup(a)
    a.label('K_gemm')
    a('s_cmp_lg_u32', sw, 0)
    a('s_cbranch_scc1', 'C2_skip')
    a('s_and_b32', st2, S(2), NREP - 1)
    a('s_mul_i32', st2, st2, HSTR)
    a('s_add_u32', st2, st2, hex(FLH2))
    a('v_min_u32', t1, 39, lane)
    a('v_lshrrev_b32', t2, WPL - 2, t1)
    a('v_lshlrev_b32', t2, 7, t2)
    a('v_and_b32', t1, (1 << WPL - 2) - 1, t1)
    a('v_lshl_add_u32', t2, t1, 4, t2)
    Flags(a, 'C2', BF[2], t2, st2, tmp=S(68, 2)).wait()
    a.label('C2_skip')
    a.wait(lg=0)
    a('s_barrier')
    stamp(a, 9)
    slow = gemms(a)
    if STAMP: a.wait(vm=0)
    stamp_flush(a, 0, 15, sw, RWS)
    a('s_endpgm')
    slow_paths(a, slow)
    a.items.append('CODE_END:')

if __name__ == '__main__':
    txt = build([(NAME + '_kernel', kernel, 256, 163840, 512, 256)])
    txt = txt.replace(f'@launch kernel={NAME}_kernel grid', '@launch grid')
    open(sys.argv[1], 'w').write(txt)
```

```python
from gen import *

E = lambda k, d: int(os.environ.get(k, str(d)))
LD = os.environ.get('LDM', '')
LD1 = os.environ.get('LD1', ' sc1')
NT_ = os.environ.get('NTI', ' nt')
KS = 8
FL = 0x1800000
FLA, FLH, FLP, FLC, FL3, EPOCH = FL, FL + 0x8000, FL + 0x10000, FL + 0x14000, FL + 0x18000, FL + 0x20000
FLD, FLG = FL + 0x5000, 0x1900000
HSTR, PSTR = 64*128, 24*128
SQ, AB, KV2, KVR = ST, 0x7A0000, WP1, 20480
SPIN = 20000
WROW = F_*2
TS = 224*256
WB, WSS, WUO = 4*CONV_LDS, 14368, 7184
RND = [[0, 1, 2, 3, 8, 9, 10], list(range(11, 18)), [4, 5, 6, 7, 18, 19]]

sw = S(3)
st0, st1, st2 = S(4), S(5), S(6)
ROUT, RWS = S(56, 4), S(60, 4)
sB, sC, sUb, sHT, sLds, sStat, sOut, sC3 = [S(16 + i) for i in range(8)]
sHH = [S(24 + i) for i in range(4)]
sRot, sSQl, sSQs, sU3, sCS0, sCS3 = [S(28 + i) for i in range(6)]
sA = [S(8), S(9)]
sCnt, sWo, sEp, sWl, sWs, sTag, sTag2 = S(11), S(42), S(43), S(38), S(49), S(100), S(100, 2)
RW1 = S(64, 4)
sWn = [S(44 + i) for i in range(5)]

lane, t0, t1, t2 = V(1), V(2), V(3), V(4)
l16, vdma, vh01, vh23, vh2x, vst, vres, vq16 = [V(5 + i) for i in range(8)]
vfl, vfv, vtg = V(249), V(254), V(255)
def W1(ks, n):
    if 4 <= ks < 8: return V(144 + 16*(ks - 4) + 4*n, 4)
    return A(16*(ks if ks < 4 else ks - 4) + 4*n, 4)
vWd = [V(226 + i) for i in range(4)]
vWr = [V(230 + i) for i in range(4)]

def spin(a, name, load, bad, first=True):
    a.wait(lg=0)
    a('s_mov_b32', sCnt, SPIN)
    if first: load()
    a.spin_head(name + '_spin')
    bad()
    a('s_cbranch_vccz', name + '_done')
    load()
    a('s_sub_u32', sCnt, sCnt, 1)
    a('s_cbranch_scc0', name + '_spin')
    a.wait(vm=0)
    a.label(name + '_done')

class Flags:
    def __init__(self, a, name, vval, vaddr, soff, off=0, tmp=None):
        self.a, self.name, self.vval, self.vaddr, self.soff, self.off, self.tmp = a, name, vval, vaddr, soff, off, tmp
    def load(self):
        mn = {1: 'buffer_load_dword', 2: 'buffer_load_dwordx2', 4: 'buffer_load_dwordx4'}[self.vval.n]
        self.tok = self.a(mn, self.vval, self.vaddr, RWS, self.soff, mods=f'offen offset:{self.off} sc1')
    def bad(self):
        a, v = self.a, self.vval
        if v.n == 1:
            a('v_cmp_ne_u32', 'vcc', sTag, v)
            return
        if v.n == 4: a('v_cmp_ne_u64', self.tmp, sTag2, v[2:4])
        a('v_cmp_ne_u64', 'vcc', sTag2, v[0:2])
        if v.n == 4: a('s_or_b64', 'vcc', 'vcc', self.tmp)
    def check(self):
        a = self.a
        a.wait_vm_tok(self.tok)
        self.bad()
        a('s_cbranch_vccz', self.name + '_ok')
        spin(a, self.name, self.load, self.bad)
        a.label(self.name + '_ok')
    def wait(self):
        spin(self.a, self.name, self.load, self.bad)

def publish(a, soff, off):
    return a('buffer_store_dword', vtg, 'off', RWS, soff, mods=f'offset:{off} sc1')

def publish_rep(a, name, base, stride, idx):
    a('s_cmp_lg_u32', sw, 0)
    a('s_cbranch_scc1', name)
    a('s_lshr_b32', st0, idx, 2)
    a('s_lshl_b32', st0, st0, 7)
    a('s_and_b32', st1, idx, 3)
    a('s_lshl_b32', st1, st1, 2)
    a('s_add_u32', st0, st0, st1)
    a('s_add_u32', st0, st0, hex(base))
    a('v_mul_u32_u24', t0, stride, lane)
    a('s_mov_b64', 'exec', 15)
    a('buffer_store_dword', vtg, t0, RWS, st0, mods='offen sc1')
    a('s_mov_b64', 'exec', -1)
    a.label(name)

def publish4(a, base, stride, idx):
    a('s_lshr_b32', st0, idx, 2)
    a('s_lshl_b32', st0, st0, 7)
    a('s_and_b32', st1, idx, 3)
    a('s_lshl_b32', st1, st1, 2)
    a('s_add_u32', st0, st0, st1)
    a('s_mul_i32', st1, sw, stride)
    a('s_add_u32', st0, st0, st1)
    a('s_add_u32', st0, st0, hex(base))
    a('s_mov_b64', 'exec', 1)
    a('buffer_store_dword', vtg, 'off', RWS, st0, mods='sc1')
    a('s_mov_b64', 'exec', -1)

NREP, WPL = E('NREP', 4), E('WPL', 2)
FLH2 = 0x1A00000
def publish_n(a, idx):
    a('s_lshr_b32', st0, idx, WPL)
    a('s_lshl_b32', st0, st0, 7)
    a('s_and_b32', st1, idx, (1 << WPL) - 1)
    a('s_lshl_b32', st1, st1, 2)
    a('s_add_u32', st0, st0, st1)
    a('s_mul_i32', st1, sw, HSTR*NREP//4)
    a('s_add_u32', st0, st0, st1)
    a('s_add_u32', st0, st0, hex(FLH2))
    a('v_min_u32', t0, NREP//4 - 1, lane)
    a('v_mul_u32_u24', t0, HSTR, t0)
    a('s_mov_b64', 'exec', (1 << NREP//4) - 1)
    a('buffer_store_dword', vtg, t0, RWS, st0, mods='offen sc1')
    a('s_mov_b64', 'exec', -1)

def rep_base(a, dst, base, stride):
    a('s_and_b32', dst, S(2), 3)
    a('s_mul_i32', dst, dst, stride)
    a('s_add_u32', dst, dst, hex(base))

def tag_setup(a):
    a('s_mul_i32', sTag, sEp, '0x9e3779b1')
    a('s_add_u32', sTag, sTag, '0x7f4a7c15')
    a('s_mov_b32', sTag2[1], sTag)
    a('v_mov_b32', vtg, sTag)

def code_prefetch(a, nm):
    a('s_getpc_b64', S(68, 2))
    a.label(nm)
    if E('PFALL', 0):
        a('v_lshlrev_b32', t0, 7, V(0))
        for i in range(2):
            if i: a('v_add_u32', t0, 32768, t0)
            a('v_min_u32', t1, f'CODE_END-{nm}-4', t0)
            a('global_load_dword', V(14 + i), t1, S(68, 2))
        return
    a('s_lshr_b32', st0, S(2), 3)
    a('s_lshl_b32', st0, st0, 11)
    a('v_lshrrev_b32', t0, 4, V(0))
    a('v_lshl_add_u32', t0, t0, 7, st0)
    a('v_min_u32', t1, f'CODE_END-{nm}-4', t0)
    a('global_load_dword', V(14), t1, S(68, 2))

def role_setup(a):
    a('s_bfe_u32', sB, S(2), (1 << 16) | 2)
    a('s_lshl_b32', sB, sB, 3)
    a('s_lshr_b32', st1, S(2), 5)
    a('s_add_u32', sB, sB, st1)
    a('s_and_b32', sC, S(2), 3)
    a('s_lshl_b32', sC, sC, 2)
    a('s_bfe_u32', st1, S(2), (2 << 16) | 3)
    a('s_add_u32', sC, sC, st1)
    a('s_mul_i32', sUb, sw, 13)
    a('s_add_u32', sUb, sUb, 3)
    a('s_lshr_b32', sUb, sUb, 2)
    a('s_lshr_b32', sU3, sw, 1)
    a('s_mul_i32', sU3, sU3, 10)
    a('s_add_u32', sU3, sU3, 3)

def w_srd(a):
    a('s_cmp_ge_u32', sw, 2)
    a('s_cselect_b32', RW1[0], P_WU[0], P_WG[0])
    a('s_cselect_b32', RW1[1], P_WU[1], P_WG[1])
    a('s_and_b32', RW1[1], RW1[1], '0xffff')
    a('s_mov_b32', RW1[2], hex(D_*F_*2))
    a('s_mov_b32', RW1[3], '0x20000')

def w_setup(a):
    odd = st2
    a('s_and_b32', odd, sC, 1)
    a('s_lshl_b32', odd, odd, 3)
    a('s_mul_i32', sWo, sC, 216)
    a('s_sub_u32', sWo, sWo, odd)
    a('s_lshr_b32', st0, sw, 1)
    a('s_mul_i32', sWl, st0, WUO)
    a('s_and_b32', st0, sw, 1)
    a('s_mul_i32', st1, st0, 3584)
    a('s_add_u32', sWl, sWl, st1)
    a('s_add_u32', sWl, sWl, WB)
    a('s_mul_i32', st0, st0, 16*WROW)
    a('v_mul_u32_u24', t0, 37, lane)
    a('v_lshrrev_b32', t0, 9, t0)
    a('v_mul_u32_u24', t0, WROW - 224, t0)
    a('v_add3_u32', vWd[0], t0, l16, st0)
    for k in range(1, 4):
        a('v_add_u32', vWd[k], (8*(k & 1) + 4*(k >> 1))*WROW - 896*k, vWd[0])
    a('v_lshrrev_b32', t0, 5, lane)
    a('v_bfe_u32', t1, lane, 2, 3)
    a('v_lshl_add_u32', t0, t0, 4, t1)
    a('v_mul_u32_u24', t0, 224, t0)
    a('s_add_u32', odd, odd, WB)
    a('v_add_u32', t0, odd, t0)
    a('s_lshl_b32', st0, sUb, 4)
    a('v_and_b32', t1, 3, lane)
    a('v_lshl_add_u32', t1, t1, 3, t0)
    a('v_add_u32', vWr[0], st0, t1)
    a('v_and_b32', t1, 1, lane)
    a('v_lshl_add_u32', t0, t1, 3, t0)
    a('v_bfe_u32', t2, lane, 1, 1)
    a('v_mul_u32_u24', vWr[3], WUO, t2)
    a('v_add_u32', t0, t0, vWr[3])
    a('s_add_u32', st0, st0, 32)
    a('v_add_u32', vWr[1], st0, t0)
    a('s_lshl_b32', st0, sU3, 4)
    a('v_add_u32', vWr[2], st0, t0)
    a('v_add_u32', vWr[3], 1792, vWr[2])
    a('v_lshlrev_b32', t2, 3, t2)
    a('v_add_u32', t2, WB + 7168, t2)
    a('s_lshr_b32', st0, sw, 1)
    a('v_and_b32', t1, st0, t1)
    a('v_cmp_ne_u32', 'vcc', 0, t1)
    a('v_cndmask_b32', vWr[2], vWr[2], t2, 'vcc')
    a('v_cndmask_b32', vWr[3], vWr[3], t2, 'vcc')

def w_holes(a, Q):
    a('v_mov_b32', Q[0], 0)
    a('v_mov_b32', Q[1], 0)
    a('v_mov_b32', Q[2], '0x3f803f80')
    a('v_mov_b32', Q[3], '0x3f803f80')
    a('v_min_u32', t0, 6, lane)
    a('v_mul_u32_u24', t0, WSS, t0)
    a('ds_write_b128', t0, Q, mods=f'offset:{WB + 7168}')

def w_dma(a, ks, slot, part, mask=True):
    if part == 0 or mask: a('s_add_u32', 'm0', sWl, slot*WSS)
    if part == 0: a('s_add_u32', sWs, sWo, ks*32*WROW)
    if mask: a('s_mov_b32', 'exec_hi', '0xffffff')
    for k in (2*part, 2*part + 1):
        t = a('buffer_load_dwordx4', vWd[k], RW1, sWs, mods=f'offen offset:{896*k}' + os.environ.get('WNT', '') + ' lds')
    if mask: a('s_mov_b32', 'exec_hi', -1)
    return t

def w_round(a, r, slot0=0, lo=0, hi=7):
    a('s_mov_b32', 'exec_hi', '0xffffff')
    for i, ks in list(enumerate(RND[r]))[lo:hi]:
        for part in range(2): t = w_dma(a, ks, slot0 + i, part, False)
    a('s_mov_b32', 'exec_hi', -1)
    return t

def w_round_x(a, r, slot0, nm, lo=0, hi=7, older=False):
    a('s_cmp_lg_u32', sw, 1)
    a('s_cbranch_scc1', nm)
    w_round(a, r, slot0, lo, hi)
    a('s_sub_u32', sWl, sWl, 3584)
    for k in range(4): a('v_subrev_u32', vWd[k], 16*WROW, vWd[k])
    w_round(a, r, slot0, lo, hi)
    a('s_add_u32', sWl, sWl, 3584)
    for k in range(4): a('v_add_u32', vWd[k], 16*WROW, vWd[k])
    if older: a.wait(vm=8*(hi - lo))
    a.label(nm)

def w_round_y(a, r, slot0, nm, lo=0, hi=7, older=False):
    a('s_cmp_lt_u32', sw, 2)
    a('s_cbranch_scc1', nm)
    w_round(a, r, slot0, lo, hi)
    if older: a.wait(vm=4*(hi - lo))
    a.label(nm)

def touch_lanes(a, vt):
    a('s_and_b32', st0, S(2), 3)
    a('s_mul_i32', st0, st0, 27)
    a('s_lshr_b32', st0, st0, 2)
    a('v_and_b32', t0, 7, lane)
    a('v_add_u32', t0, st0, t0)
    a('v_min_u32', t0, 26, t0)
    a('v_lshrrev_b32', t1, 3, lane)
    a('v_mul_u32_u24', t1, WROW, t1)
    a('v_lshl_add_u32', vt, t0, 7, t1)

def w_reads(ks, rel, R=vWr):
    L = []
    for n in range(4):
        for hf in range(2):
            ad = R[0] if n < 2 else (R[1] if n == 2 else R[2 + hf])
            off = rel*WSS + (WUO if n == 1 else 0) + (1792*hf if n < 3 else 0)
            L.append(('ds_read_b64_tr_b16', (W1(ks, n)[2*hf:2*hf+2], ad), f'offset:{off}'))
    return L

def w_shift(d, R=vWr, D=None):
    return [('v_add_u32', ((D or R)[i], hex((d*WSS) & 0xffffffff), R[i]), '') for i in range(4)]

def w_read_ops(r):
    L = []
    if r == 0:
        for i, ks in enumerate(RND[0]):
            if i == 4: L += w_shift(4)
            L += w_reads(ks, i & 3)
    else:
        for i in reversed(range(7)):
            if i == 3: L += w_shift(-4)
            L += w_reads(RND[1][i], i & 3)
    return L

def clr_setup_h(a, sh):
    a('s_lshl_b32', st0, sB, 3)
    a('s_lshl_b32', st1, sw, 1)
    a('s_add_u32', st1, st1, st0)
    a('s_mul_i32', sh, st1, TS)
    a('s_mul_i32', st1, sC, 14*256)
    a('s_add_u32', sh, sh, st1)
    a('s_add_u32', sh, sh, hex(HH))

def clr_setup_q(a, sq, vq):
    a('s_lshl_b32', st0, sB, 3)
    a('s_lshr_b32', st1, sC, 3)
    a('s_lshl_b32', st1, st1, 2)
    a('s_add_u32', st0, st0, st1)
    a('s_and_b32', st1, sC, 3)
    a('s_add_u32', st0, st0, st1)
    a('s_lshl_b32', sq, st0, 9)
    a('s_and_b32', st1, sC, 4)
    a('s_add_u32', st1, st1, sw)
    a('s_lshl_b32', st1, st1, 2)
    a('s_add_u32', sq, sq, st1)
    a('s_add_u32', sq, sq, hex(SQ))
    a('v_lshrrev_b32', t0, 4, lane)
    a('v_bfe_u32', t1, lane, 2, 2)
    a('v_cmp_eq_u32', 'vcc', t0, t1)
    a('v_and_b32', t0, 15, lane)
    a('v_lshlrev_b32', t0, 5, t0)
    a('v_mov_b32', t1, hex(OOB))
    a('v_cndmask_b32', vq, t1, t0, 'vcc')

def clr_ops(Q, sh):
    L = []
    for k in range(8):
        if k == 4: L.append(('s_add_u32', (sh, sh, TS), ''))
        L.append(('buffer_store_dwordx4', (Q, l16, RWS, sh), f'offen offset:{(0, 1024, 2048, 2560)[k & 3]} sc1'))
    return L

def p2_touch_setup(a, vt2, sT2):
    a('s_lshr_b32', st2, S(2), 3)
    a('s_lshl_b32', st2, st2, 2)
    a('s_add_u32', st2, st2, sw)
    a('s_mul_i32', sT2, st2, 70*128)
    a('s_bfe_u32', st1, S(2), (1 << 16) | 1)
    a('s_mul_i32', st1, st1, 20*TS)
    a('s_add_u32', sT2, sT2, st1)
    a('s_add_u32', sT2, sT2, hex(WP2 + 124))
    a('v_min_u32', vt2, 34, lane)
    a('v_lshlrev_b32', vt2, 8, vt2)

def p2_touch(a):
    p2_touch_setup(a, V(134), S(68))
    a('buffer_load_dwordx2', V(136, 2), V(134), RWS, S(68), mods='offen')

def pack_flag_addr(a, vaddr):
    a('v_min_u32', vaddr, 39, lane)
    a('v_lshrrev_b32', t0, 1, vaddr)
    a('v_and_b32', vaddr, 1, vaddr)
    a('v_lshlrev_b32', vaddr, 3, vaddr)
    a('v_lshl_add_u32', vaddr, t0, 7, vaddr)

def icls(mn):
    if mn.startswith('s_'): return 's'
    if mn.startswith(('ds_', 'buffer_', 'global_')): return 'm'
    if 'permlane' in mn or mn in TRANS: return 'p'
    return 'v'

class Sched:
    def __init__(self, a, nq=3):
        self.a = a; self.q = [[] for _ in range(nq)]; self.n = 0; self.mem = []; self.last = -100; self.step = 4
        self.over = 0; self.win = E('WIN', 24)
    def op(self, qi, at, mn, ops, mods='', tok=None): self.q[qi].append((at, 'i', [(mn, ops, mods, tok)]))
    def ops(self, qi, at, L): self.q[qi].append((at, 'i', [tuple(x) + ('', None)[len(x) - 2:] for x in L]))
    def call(self, qi, at, fn): self.q[qi].append((at, 'x', fn))
    def sca(self, qi, at, fn): self.q[qi].append((at, 'b', fn))
    def note(self, qi, at, fn): self.q[qi].append((at, 'n', fn))
    def gate(self, qi, at, fn): self.q[qi].append((at, 'g', fn))
    def load(self, avail, need, gen): self.mem.append((need, avail, gen))
    def left(self): return [len(q) for q in self.q] + [len(self.mem)]
    def sort(self):
        for q in self.q: q.sort(key=lambda e: e[0])
        self.mem.sort(key=lambda e: e[0])
    def emit(self, L):
        for mn, ops, mods, tok in L:
            t = self.a(mn, *ops, mods=mods)
            if tok: tok[0][tok[1]] = t
    def gap(self, fixed=(), nxt=(), room=2):
        a = self.a
        C = {'s': [], 'm': [], 'v': []}
        pre = []
        def put(L):
            for x in L: C['v' if icls(x[0]) == 'p' else icls(x[0])].append(x)
        def cost(L=()):
            allv = C['m'] + C['v'] + [x for x in L if icls(x[0]) != 's']
            ns = len(C['s']) + len(pre) + sum(icls(x[0]) == 's' for x in L)
            ns += a.prewait([x[:3] for x in allv] + list(nxt), dry=True)
            return max(0, ns - 1) + sum(2 if icls(x[0]) == 'p' else 1 for x in allv)
        put([tuple(x) + ('', None)[len(x) - 2:] for x in fixed])
        heavy = None
        state = [None]*len(self.q)
        def notes(q):
            while q and q[0][0] <= self.n and (q[0][1] == 'n' or (q[0][1] == 'g' and q[0][2]())): q.pop(0)[2]()
        for q in reversed(self.q):
            notes(q)
            if heavy is None and q and q[0][0] <= self.n and q[0][1] == 'x': heavy = q.pop(0)[2]
        if heavy is None:
            if self.n - self.last >= self.step:
                for k, e in enumerate(self.mem):
                    if e[1] <= self.n:
                        L = e[2](True)
                        if cost(L) <= room:
                            self.mem.pop(k); put(e[2](False)); self.last = self.n
                        break
            for want in ('b', 'm', 'v'):
                for qi in reversed(range(len(self.q))):
                    q = self.q[qi]
                    k = 0
                    rd, wr = set(), set()
                    while k < len(q) and k < self.win and q[k][0] <= self.n:
                        at, kind, pl = q[k]
                        if kind == 'n':
                            if k or state[qi] is not None: break
                            q.pop(0); pl(); continue
                        if kind in 'xg': break
                        if kind == 'b':
                            if k or want != 'b' or state[qi] is not None or pre or C['s']: break
                            pre.append(pl)
                            if cost() > room: pre.pop(); break
                            q.pop(0); state[qi] = 's'; continue
                        if want == 'b': break
                        I = [Inst(x[0], x[1], x[2]) for x in pl]
                        r_ = set().union(*[i.rd for i in I]); w_ = set().union(*[i.wr for i in I])
                        ks = [icls(x[0]) for x in pl]
                        top = 'v' if ('v' in ks or 'p' in ks) else ('m' if 'm' in ks else 's')
                        low = 's' if 's' in ks else ('m' if 'm' in ks else 'v')
                        ok = not (top == 'v' and want != 'v')
                        ok = ok and not (k and top != 'v')
                        ok = ok and not (r_ & wr or w_ & (rd | wr))
                        ok = ok and not (state[qi] is not None and 'smv'.index(low) < 'smv'.index(state[qi]))
                        ok = ok and not (any(x[1][0] == 'm0' for x in pl if icls(x[0]) == 's') and any('lds' in x[2] for x in C['m']))
                        if ok and cost(pl) <= room:
                            q.pop(k); put(pl); state[qi] = top
                            continue
                        if want != 'v': break
                        rd |= r_; wr |= w_
                        k += 1
        if cost() > room: self.over += 1
        for f in pre: f()
        a.prewait([x[:3] for x in C['m'] + C['v']] + list(nxt))
        self.emit(C['s']); self.emit(C['m']); self.emit(C['v'])
        if heavy: heavy()
        for q in self.q: notes(q)
    def drain(self, every=8, keep_mem=True):
        c = 0
        for q in reversed(self.q):
            while q:
                at, kind, pl = q.pop(0)
                if kind == 'i': self.emit(pl); c += len(pl)
                else: pl()
                if c >= every:
                    c = 0
                    for k, e in enumerate(self.mem):
                        if e[1] <= self.n:
                            self.mem.pop(k); self.emit(e[2](False)); break

class Ptr:
    def __init__(self, s): self.s, self.k = s, 0
    def at(self, i, dry):
        L = []
        if i >> 2 != self.k:
            L.append(('s_add_u32', (self.s, self.s, hex((4096*((i >> 2) - self.k)) & 0xffffffff)), '', None))
            if not dry: self.k = i >> 2
        return L, (i & 3)*1024

def conv_wg(a):
    RK, RV, RSK, RSS = S(44, 4), S(48, 4), S(52, 4), S(56, 4)
    sch, sbase, sk01, sD = S(7), S(8), S(9), S(10)
    selLO, selHI, srow = S(13), S(14), S(12)
    va = Alloc('v', 16, 207)
    a('s_lshr_b32', st0, S(2), 4)
    a('s_and_b32', srow, S(2), 15)
    a('s_lshl_b32', srow, srow, 7)
    a('s_lshl_b32', st2, sw, 5)
    a('s_add_u32', srow, srow, st2)
    g, c, vneg, vsk, b3, vok = [va.get() for _ in range(6)]
    voff = V(234)
    a('v_and_b32', c, 7, lane)
    a('v_bfe_u32', b3, lane, 3, 1)
    a('v_bfe_u32', t1, lane, 4, 1)
    a('v_lshl_or_b32', t2, b3, 1, t1)
    a('v_bfe_u32', t0, lane, 5, 1)
    a('v_lshl_or_b32', g, t0, 2, t2)
    a('v_lshl_add_u32', t2, g, 2, srow)
    a('v_mul_u32_u24', voff, 1280, t2)
    a('s_lshl_b32', st2, st0, 7)
    a('v_lshl_add_u32', t2, c, 4, st2)
    a('v_add_u32', voff, voff, t2)
    a('v_subrev_u32', vneg, 3840, voff)
    a('v_lshlrev_b32', vsk, 2, t2)
    if E('EST', 0) == 1: stamp(a, 10, True)
    srd(a, RK, P_K, S_*D_*2)
    if E('EST', 0): stamp(a, 11 if E('EST', 0) == 1 else 9, True)
    K = [va.get(4) for _ in range(7)]
    Vv = [va.get(4) for _ in range(4)]
    SK = va.get(16)
    for i in range(7):
        if i < 3: tk = a('buffer_load_dwordx4', K[i], vneg, RK, 0, mods=f'offen offset:{1280*i}' + NT_)
        else: tk = a('buffer_load_dwordx4', K[i], voff, RK, 0, mods=f'offen offset:{1280*(i-3)}' + NT_)
    if E('EST', 0) == 2: stamp(a, 10, True)
    srd(a, RSK, P_SK, D_*8)
    for i in range(4):
        a('buffer_load_dwordx4', SK.sub(4*i, 4), vsk, RSK, 0, mods=f'offen offset:{16*i}')
    if E('EST', 0) == 2: stamp(a, 11, True)
    srd(a, RV, P_V, S_*D_*2)
    for i in range(4):
        a('buffer_load_dwordx4', Vv[i], voff, RV, 0, mods=f'offen offset:{1280*i}' + NT_)
    if E('EST', 0): stamp(a, 12, True)
    w_srd(a)
    vt = V(243)
    def t1_touch():
        a('s_cmp_ge_u32', S(2), 64)
        a('s_cbranch_scc1', 'T1_skip')
        a('s_bitcmp1_b32', sw, 0)
        a('s_cbranch_scc1', 'T1_skip')
        a('s_lshr_b32', st1, S(2), 3)
        a('s_add_u32', st1, st1, 32)
        a('s_mul_i32', st1, st1, 8*WROW)
        a('buffer_load_dword', V(14), vt, RW1, st1, mods='offen')
        a.label('T1_skip')
    if E('T1POS', 2) == 0: t1_touch()
    a('v_bfe_u32', t1, lane, 4, 1)
    a('v_bfe_u32', t0, lane, 5, 1)
    a('s_lshr_b32', st0, S(2), 4)
    a('s_mov_b32', sEp, hex(EPOCH))
    a('s_load_dword', sEp, P_WS, sEp)
    a('s_lshl_b32', sch, S(2), 2)
    a('s_add_u32', sch, sch, sw)
    a('s_lshl_b32', st2, sch, 12)
    a('s_load_dword', sk01, P_SSMK, st2)
    a('s_lshl_b32', st1, sch, 1)
    a('s_and_b32', st1, st1, '0xfffc')
    a('s_load_dword', sD, P_SSMD, st1)
    srd(a, RWS, P_WS, WS_SIZE)
    srd(a, RSS, P_SSMK, D_*S_*2)
    a('s_mul_i32', sbase, sw, CONV_LDS)
    def ssm_load():
        a('s_lshl_b32', st2, sch, 12)
        a('s_add_u32', 'm0', sbase, 4160 + 32)
        for i in range(4):
            t = a('buffer_load_dwordx4', l16, RSS, st2, mods=f'offen offset:{1024*i}' + NT_ + ' lds')
        return t
    if E('SSPOS', 2) == 0: tssm = ssm_load()
    vkw, vkr, sKV = va.get(), va.get(), S(50)
    a('v_lshl_or_b32', t2, t0, 1, b3)
    a('s_lshl_b32', st2, sw, 2)
    a('s_sub_u32', st1, 15, st2)
    a('v_sub_u32', t2, st1, t2)
    a('v_lshlrev_b32', t0, 1, c)
    a('v_xor_b32', t2, t2, t0)
    a('v_lshlrev_b32', t2, 4, t2)
    a('v_lshl_add_u32', t2, t1, 10, t2)
    a('v_and_b32', t1, 1, c)
    a('v_lshl_add_u32', t2, t1, 11, t2)
    a('v_lshrrev_b32', t1, 1, c)
    a('v_mul_u32_u24', t1, CONV_LDS, t1)
    a('v_add_u32', vkw, t1, t2)
    a('v_lshrrev_b32', t0, 4, lane)
    a('v_and_b32', t1, 2, t0)
    a('v_or_b32', t1, st2, t1)
    a('v_and_b32', t2, 15, lane)
    a('v_xor_b32', t1, t1, t2)
    a('v_lshl_add_u32', t1, t1, 4, sbase)
    a('v_lshl_add_u32', vkr, t0, 10, t1)
    a('v_mul_u32_u24', t0, KVR, t0)
    a('v_lshl_add_u32', vok, t2, 4, t0)
    a('s_lshl_b32', st1, st0, 4)
    a('s_add_u32', st1, st1, st2)
    a('s_mul_i32', sKV, st1, KVR)
    a('s_andn2_b32', st2, 15, S(2))
    a('s_lshl_b32', st2, st2, 8)
    a('s_add_u32', sKV, sKV, st2)
    a('s_add_u32', sKV, sKV, hex(KV2))
    sKF = S(69)
    if not E('SPEC', 1):
        a('s_lshl_b32', sKF, st1, 9)
        a('s_bfe_u32', st1, S(2), (2 << 16) | 2)
        a('s_lshl_b32', st1, st1, 7)
        a('s_add_u32', sKF, sKF, st1)
        a('s_and_b32', st1, S(2), 3)
        a('s_lshl_b32', st1, st1, 2)
        a('s_add_u32', sKF, sKF, st1)
        a('s_add_u32', sKF, sKF, hex(FLG))
    a('s_mov_b32', selLO, '0x05040100')
    a('s_mov_b32', selHI, '0x07060302')
    FB = [[V(16 + 64*s + 4*i, 4) for i in range(8)] for s in range(2)]
    FA = [[V(48 + 64*s + 4*i, 4) for i in range(8)] for s in range(2)]
    CA = [V(176 + 4*t, 4) for t in range(8)]
    ABR = [V(144 + 4*t, 4) for t in range(8)]
    XR = [V(i, 2) for i in (208, 210, 224, 234, 240, 242, 250, 252)]
    AD, CQ = V(208, 4), V(236, 4)
    vA = [V(212 + i) for i in range(4)]
    vB, vx, vo, li, lh, l16a, l16b, vg1 = [V(216 + i) for i in range(8)]
    vfa, vu = V(244), V(246)
    z2 = AD[0:2]
    sPF, sGF = S(39), S(15)
    def setup_a():
        touch_lanes(a, vt)
        role_setup(a)
        w_setup(a)
        w_holes(a, CQ)
    def setup_b():
        a('v_and_b32', li, 15, lane)
        a('v_lshrrev_b32', lh, 4, lane)
        a('v_lshlrev_b32', vx, 5, li)
        a('v_lshl_add_u32', vx, lh, 3, vx)
        a('v_lshlrev_b32', vfl, 2, lane)
        if not E('SPEC', 1):
            a('v_lshrrev_b32', t0, 2, lane)
            a('v_lshlrev_b32', t0, 7, t0)
            a('v_and_b32', t1, 3, lane)
            a('v_lshl_add_u32', vfa, t1, 2, t0)
            a('s_lshl_b32', sGF, S(2), 9)
            a('s_add_u32', sGF, sGF, hex(FLG))
            a('v_lshlrev_b32', l16b, 9, lane)
        a('v_add_u32', t1, 4160 - 32, vfl)
        a('v_cmp_gt_u32', 'vcc', 8, lane)
        a('v_cndmask_b32', t1, t1, vfl, 'vcc')
        a('v_add_u32', t0, 8320 + 4096, vfl)
        a('v_cmp_gt_u32', 'vcc', 16, lane)
        a('v_cndmask_b32', t1, t0, t1, 'vcc')
        a('v_add_u32', l16a, sbase, t1)
        a('v_mov_b32', z2[0], 0)
        a('v_mov_b32', z2[1], 0)
        a('v_lshl_add_u32', t0, lane, 3, sbase)
        a('ds_write_b64', t0, z2, mods=f'offset:{8320+4096}')
        a('v_lshl_add_u32', t0, lh, 3, li)
        a('v_lshrrev_b32', t0, 1, t0)
        a('v_lshl_add_u32', t0, t0, 2, sbase)
        a('v_and_b32', t1, 1, li)
        a('v_mul_u32_u24', t1, 4164, t1)
        a('v_add_u32', vA[0], t0, t1)
        for p in range(1, 4):
            a('v_add_u32', vA[p], 1024*p, vA[0])
        a('v_lshlrev_b32', t0, 5, li)
        a('v_sub_u32', t0, 8320 + 480, t0)
        a('v_lshl_add_u32', t0, lh, 4, t0)
        a('v_add_u32', vB, sbase, t0)
        a('v_and_b32', t0, 1, lh)
        a('v_lshlrev_b32', t0, 9, t0)
        a('v_lshl_add_u32', t0, li, 5, t0)
        a('v_lshrrev_b32', t1, 1, lh)
        a('v_lshl_add_u32', vo, t1, 4, t0)
        a('v_add_u32', vu, sbase, l16)
        rep_base(a, sPF, FLP, PSTR)
        clr_setup_q(a, S(28), V(247))
        for d in range(4): a('v_mov_b32', CQ[d], -1)
    SA, SB = E('SA', 1), E('SB', 2)
    if SA == 0: setup_a()
    if SB == 0: setup_b()
    stamp(a, 1)
    if E('SSPOS', 2) == 2:
        a.wait_vm_tok(tk)
        if E('EST', 0): stamp(a, 13, True)
        tssm = ssm_load()
    QK = [va.get(4) for _ in range(4)]
    P = [va.get(8, 2) for _ in range(8)]
    KSv = [va.get(4) for _ in range(8)]
    def kshift(chs):
        for ch in chs:
            d, hi = ch >> 1, ch & 1
            for t in range(1, 7):
                a('v_perm_b32', P[ch][t], K[t-1][d], K[t][d], selHI if hi else selLO)
        for ch in chs:
            for e in range(4):
                a('v_dot2_f32_bf16', KSv[ch][e], P[ch][e+3], SK[2*ch], 0)
            for e in range(4):
                a('v_dot2_f32_bf16', KSv[ch][e], P[ch][e+1], SK[2*ch+1], KSv[ch][e])
    KVO = E('KVO', 0)
    if KVO == 0: kshift(range(8))
    if KVO == 2: kshift((0, 4, 1, 5))
    stamp(a, 2)
    if SA == 1: setup_a()
    if SB == 1: setup_b()
    if E('EST', 0) == 2:
        a.wait(vm=4)
        stamp(a, 4, True)
    if E('T1POS', 2) == 1:
        a.wait(vm=4)
        t1_touch()
    for cp in range(4):
        if KVO == 1 or (KVO == 2 and cp >= 2): kshift((cp, cp + 4))
        for ch in (cp, cp + 4):
            d, hi = ch >> 1, ch & 1
            for e in range(4):
                if hi: a('v_and_b32', P[ch][e], '0xffff0000', Vv[e][d])
                else: a('v_lshlrev_b32', P[ch][e], 16, Vv[e][d])
        for ch in (cp, cp + 4):
            for h in range(2):
                a('v_pk_mul_f32', KSv[ch][2*h:2*h+2], KSv[ch][2*h:2*h+2], P[ch][2*h:2*h+2])
        q = QK[cp]
        for ch in (cp, cp + 4):
            o = 2 if ch < 4 else 0
            a('v_cvt_pk_bf16_f32', q[o], KSv[ch][3], KSv[ch][2])
            a('v_cvt_pk_bf16_f32', q[o+1], KSv[ch][1], KSv[ch][0])
        a('v_permlane16_swap_b32', q[2], q[0])
        a('v_permlane16_swap_b32', q[3], q[1])
        a('ds_write_b128', vkw, QK[cp], mods=f'offset:{8320 + 256*cp}')
    a.wait(lg=0)
    if E('EST', 0) == 2: stamp(a, 5, True)
    a('s_barrier')
    if E('EST', 0) == 2: stamp(a, 6, True)
    CK = P[0][0:4]
    for cp in range(4):
        a('ds_read_b128', QK[cp], vkr, mods=f'offset:{8320 + 256*cp}')
    tag_setup(a)
    for cp in range(4):
        q = QK[cp]
        a('v_add_u32', q[0], sTag, q[0])
        a('buffer_store_dwordx4', q, vok, RWS, sKV, mods='offen sc1')
        a('v_add3_u32', CK[cp], q[0], q[1], q[2])
        a('v_add3_u32', CK[cp], CK[cp], q[3], sTag)
        a('s_add_u32', sKV, sKV, 4096)
    a('buffer_store_dwordx4', CK, vok, RWS, sKV, mods='offen sc1')
    SPEC = E('SPEC', 1)
    if not SPEC:
        a('s_mov_b64', 'exec', 15)
        a('buffer_store_dword', vtg, l16b, RWS, sKF, mods='offen sc1')
        a('s_mov_b64', 'exec', -1)
    stamp(a, 3)
    if E('T1POS', 2) == 2: t1_touch()
    if E('KVBAR', 0): a('s_barrier')
    NA = E('R1A', 4)
    if SA == 2: setup_a()
    if SPEC: w_round(a, 0, 0, 0, E('R1S', 2))
    if SB == 2: setup_b()
    a.wait_vm_tok(tssm)
    if not SPEC: w_round_x(a, 0, 0, 'R1_x', 0, NA)
    def rdA(rho):
        s = rho & 1
        L = []
        for i in range(8):
            o = 128*(i & 1) + 16*rho
            L.append(('ds_read2_b32', (FA[s][i][0:2], vA[i >> 1]), f'offset0:{o} offset1:{o+1}'))
            L.append(('ds_read2_b32', (FA[s][i][2:4], vA[i >> 1]), f'offset0:{o+2} offset1:{o+3}'))
        return L
    def rdB(rho):
        return [('ds_read_b128', (FB[rho & 1][i], vB), f'offset:{3584 - 512*i + 64*rho}') for i in range(8)]
    def reads(rho):
        A_, B_ = rdA(rho), rdB(rho)
        L = []
        for i in range(8): L += [B_[i], A_[2*i], A_[2*i+1]]
        return L
    emit = lambda L: [a(mn, *ops, mods=mods) for mn, ops, mods in L]
    a('s_lshl_b32', st1, sk01, 16)
    a('v_mov_b32', t0, st1)
    a('v_cmp_eq_u32', 'vcc', 7, lane)
    a('v_cndmask_b32', t2, 0, t0, 'vcc')
    a('ds_write_b32', l16a, t2)
    a('s_bitcmp1_b32', sch, 0)
    a('s_cselect_b32', st1, 16, 0)
    a('s_lshr_b32', sD, sD, st1)
    a('s_and_b32', sD, sD, '0xffff')
    a('v_lshlrev_b32', t0, 3, lh)
    a('v_add_u32', t0, t0, li)
    a('v_sub_u32', t0, 15, t0)
    a('v_and_b32', t1, 1, t0)
    a('v_lshlrev_b32', t1, 4, t1)
    a('v_lshlrev_b32', t1, t1, sD)
    a('v_ashrrev_i32', t0, 1, t0)
    a.wait(lg=0)
    for d in range(4):
        a('v_cmp_eq_u32', 'vcc', d, t0)
        a('v_cndmask_b32', AD[d], 0, t1, 'vcc')
    if not SPEC: a('v_and_b32', l16a, '0x1ff', vfa)
    SH = [V(80 + 4*i, 4) for i in range(4)]
    SN = [V(96 + i) for i in range(4)]
    a.wait_vm_tok(tssm)
    for i in range(4):
        a('ds_read_b128', SH[i], vu, mods=f'offset:{4160 + 32 + 1024*i}')
        a('ds_read_b32', SN[i], vu, mods=f'offset:{4160 + 48 + 1024*i}')
    for i in range(4):
        for d in range(4):
            a('v_alignbit_b32', SH[i][d], SH[i][d+1] if d < 3 else SN[i], SH[i][d], 16)
        a('ds_write_b128', vu, SH[i], mods=f'offset:{32 + 1024*i}')
    a.wait(lg=0)
    emit(rdA(0))
    if SPEC: w_round(a, 0, 0, E('R1S', 2), NA)
    else: w_round_y(a, 0, 0, 'R1_y', 0, NA)
    sU = [S(44), S(45), S(46), S(47), S(51)]
    a('s_mul_i32', sU[0], S(2), KVR)
    a('s_lshl_b32', st0, sw, 10)
    a('s_add_u32', sU[0], sU[0], st0)
    a('s_add_u32', sU[0], sU[0], hex(KV2))
    for i in range(1, 5): a('s_add_u32', sU[i], sU[0], 4096*i)
    a('v_add_u32', vu, st0, l16)
    if not SPEC:
        a('s_cmp_lg_u32', sw, 0)
        a('s_cbranch_scc1', 'G1_skip')
        Flags(a, 'G1', vg1, l16a, sGF).wait()
        a.label('G1_skip')
        stamp(a, 4)
        a('s_barrier')
    U = [V(80 + 4*i, 4) for i in range(5)]
    US = [V(100 + i) for i in range(4)]
    def uload():
        for i in (4, 0, 1, 2, 3):
            a('buffer_load_dwordx4', U[i], l16, RWS, sU[i], mods='offen sc1')
    def ubad():
        for i in range(4):
            a('v_add3_u32', US[i], U[i][0], U[i][1], U[i][2])
            a('v_add3_u32', US[i], US[i], U[i][3], sTag)
            a('v_subrev_u32', U[i][0], sTag, U[i][0])
            a('ds_write_b128', vu, U[i], mods=f'offset:{8320 + CONV_LDS*i}')
            a('v_xor_b32', US[i], US[i], U[4][i])
        a('v_or3_b32', US[0], US[0], US[1], US[2])
        a('v_or_b32', US[0], US[0], US[3])
        a('v_cmp_ne_u32', 'vcc', 0, US[0])
        a.wait(lg=0)
    T = {}
    UP = E('UPOS', 3)
    if UP: T['r1b'] = w_round(a, 0, 0, NA, NA + UP)
    stamp(a, 5 if not SPEC else 4)
    uload()
    if NA + UP < 7: T['r1b'] = w_round(a, 0, 0, NA + UP, 7)
    a.wait(vm=5 + 4*(7 - NA))
    a('s_barrier')
    if SPEC: stamp(a, 5)
    for i in range(4): emit(w_reads(RND[0][i], i))
    a('s_lshl_b32', st0, sch, 12)
    sx, sht, pl, ph = S(12), S(13), S(50), S(52)
    sAB, ABL = S(56), WB + 7*WSS
    one = V(15)
    a('s_mov_b32', pl, selLO)
    a('s_add_u32', sht, st0, hex(HT))
    a('s_add_u32', sx, st0, hex(XT))
    a('s_mov_b32', ph, '0x05040302')
    a('v_mov_b32', one, '0x3f803f80')
    a('s_lshl_b32', S(57), sw, 11)
    a('s_add_u32', sAB, S(57), hex(AB))
    a('s_add_u32', S(57), S(57), ABL)
    a('v_mov_b32', t0, ABL)
    a('v_lshl_add_u32', l16a, vx, 1, t0)
    vt2, sT, sT2, sDF = V(248), S(53), S(54), S(58)
    a('v_min_u32', l16b, 15, lane)
    a('v_lshlrev_b32', l16b, 7, l16b)
    pack_flag_addr(a, vg1)
    a('s_add_u32', sDF, sPF, hex((FLD - FLP) & 0xffffffff))
    PRE, PRE2 = E('PRE', 0), E('PRE2', 0)
    if PRE:
        assert UP == 3 and PRE2 < 4
        a.wait(vm=5, lg=0)
        a('s_barrier')
        if PRE2: w_round(a, 1, 0, 0, PRE2)
        emit(w_shift(4))
        for i in range(4, 7): emit(w_reads(RND[0][i], i & 3))
    ubad()
    a('s_cbranch_vccz', 'U_ok')
    spin(a, 'U', uload, ubad)
    a.label('U_ok')
    a('s_barrier')
    stamp(a, 6)
    emit(rdB(0))
    sc = Sched(a)
    for i in range(4):
        sc.op(2, E('HC_AT', 88) + E('HC_STEP', 6)*i, 'buffer_store_dwordx4', (CQ, l16, RWS, sht), f'offen offset:{1024*i} sc1')
    sc.op(2, E('HC_AT', 88) + E('HC_STEP', 6)*4, 'buffer_store_dword', (CQ[0], V(247), RWS, S(28)), 'offen sc1', tok=(T, 'cl'))
    def dmas(r, slot0, lo, hi, at, step, key):
        for i, ks in list(enumerate(RND[r]))[lo:hi]:
            for part in range(2):
                sc.call(1, at, lambda i=i, ks=ks, part=part: T.__setitem__(key, w_dma(a, ks, slot0 + i, part)))
                at += step
        sc.note(1, at - step, lambda: T.__setitem__(key + '_ok', 1))
    def wbar(at, vkeys, lkey):
        def f():
            for vkey in vkeys:
                if vkey in ('r2a', 'r2b'): assert T[vkey + '_ok']
                a.wait_vm_tok(T[vkey])
            if lkey: assert T[lkey + '_ok']; a.wait_lg_tok(T[lkey])
            a('s_barrier')
            T['bar', at] = sc.n
            print('  barrier', at, 'at', sc.n, file=sys.stderr)
        sc.call(0, at, f)
    def rds(at, r, lo, hi, shift, key):
        L = w_shift(shift)
        for i in range(lo, hi): L += w_reads(RND[r][i], i & 3)
        for mn, ops, mods in L: sc.op(0, at, mn, ops, mods, tok=(T, key) if mn.startswith('ds') else None)
        sc.note(0, at, lambda: T.__setitem__(key + '_ok', 1))
    ws_ = E('W_STEP', 6)
    w3 = E('W3_STEP', 10)
    if PRE:
        X2, X3, XS, XP = E('X2', 60), E('X3', 100), E('XS', 130), E('X4', 170)
        r2 = E('R2_AT', 2)
        dmas(1, 0, PRE2, 4, r2, ws_, 'r2a')
        dmas(1, 0, 4, 7, r2 + 2*(4 - PRE2)*ws_, ws_, 'r2b')
        wbar(X2, ['r2a'], None)
        rds(X2, 1, 0, 4, -4, 'q2a')
        wbar(X3, ['r2b'], 'q2a')
        rds(X3, 1, 4, 7, 4, 'q2b')
        for mn, ops, mods in w_shift(-4): sc.op(0, X3, mn, ops, mods)
        sc.gate(1, X3, lambda: ('bar', X3) in T)
        dmas(2, 1, 0, 3, X3 + E('R3_OFF', 4), w3, 'r3a')
        wbar(XS, [], 'q2b')
        sc.gate(1, XS, lambda: ('bar', XS) in T)
        dmas(2, 1, 3, 6, max(XS + 1, X3 + E('R3_OFF', 4) + 6*w3), w3, 'r3b')
        wbar(XP, ['ab', 'cl'], None)
    else:
        X1, XA, X2, X3, X4 = E('X1', 25), E('XA', 50), E('X2', 85), E('X3', 130), E('X4', 170)
        dmas(1, 0, 0, 4, E('R2_AT', 2), ws_, 'r2a')
        wbar(X1, ['r1b'], None)
        rds(X1, 0, 4, 7, 4, 'q1b')
        wbar(XA, [], 'q1b')
        sc.gate(1, XA, lambda: ('bar', XA) in T)
        assert E('R2_AT', 2) + 7*ws_ <= XA and XA + 1 + 5*ws_ < X3
        dmas(1, 0, 4, 7, XA + 1, ws_, 'r2b')
        wbar(X2, ['r2a'], None)
        rds(X2, 1, 0, 4, -4, 'q2a')
        wbar(X3, ['r2b'], 'q2a')
        rds(X3, 1, 4, 7, 4, 'q2b')
        for mn, ops, mods in w_shift(-4): sc.op(0, X3, mn, ops, mods)
        sc.gate(1, X3, lambda: ('bar', X3) in T)
        dmas(2, 1, 0, 3, X3 + E('R3_OFF', 20), w3, 'r3a')
        wbar(X4, ['ab', 'cl'], 'q2b')
        if E('R3B', 1):
            sc.gate(1, X4, lambda: ('bar', X4) in T)
            dmas(2, 1, 3, 6, max(X4 + E('R3B_OFF', 6), X3 + E('R3_OFF', 20) + 6*w3), w3, 'r3b')
        XS, XP = X3, X4
    fl = E('FLAT', 45)
    def w0(nm, fn):
        def f():
            a('s_cmp_lg_u32', sw, 0)
            a('s_cbranch_scc1', nm)
            fn()
            a.label(nm)
        return f
    FS = Flags(a, 'GS', ABR[7], l16b, sPF, tmp=S(68, 2))
    sc.call(2, XS - fl, w0('GS_l', FS.load))
    sc.call(2, XS - 2, w0('GS_c', FS.check))
    FD_ = Flags(a, 'GD', V(244, 2), vg1, sDF)
    sc.call(2, E('GD_AT', 210), w0('GD_l', FD_.load))
    if E('PUB_AT', 232): sc.call(2, E('PUB_AT', 232), lambda: publish_n(a, S(2)))
    xs = E('XX_STEP', 6)
    PT = [V(i) for i in (6, 7, 8, 9, 10, 11, 13, 14)]
    sc.gate(2, XS, lambda: ('bar', XS) in T)
    sc.ops(2, XS + 1, [('s_mov_b32', ('m0', S(57))), ('buffer_load_dwordx4', (l16, RWS, sAB), 'offen' + LD + ' lds')])
    sc.ops(2, XS + 1, [('s_mov_b32', ('m0', S(57))), ('buffer_load_dwordx4', (l16, RWS, sAB), 'offen offset:1024' + LD + ' lds', (T, 'ab'))])
    for t in range(8):
        sc.op(2, XS + 4 + xs*t, 'buffer_load_dwordx2', (XR[t], vx, RWS, sx), f'offen offset:{512*t}' + LD1)
    sc.gate(2, XP, lambda: ('bar', XP) in T)
    ps = E('PREP_STEP', 8)
    for t in range(8):
        sc.op(2, XP + 1 + ps*t, 'ds_read_b128', (ABR[t], l16a), f'offset:{1024*t}')
        Pt = PT[4*(t & 1):4*(t & 1) + 4]
        at2 = XP + 9 + ps*t
        for h in range(2):
            sc.op(2, at2, 'v_perm_b32', (Pt[2*h], one, XR[t][h], pl))
            sc.op(2, at2, 'v_perm_b32', (Pt[2*h+1], one, XR[t][h], ph))
        for k in range(4):
            sc.op(2, at2, 'v_dot2_f32_bf16', (ABR[t][k], Pt[k], ABR[t][k], 0))
    sc.note(2, XP + 9 + 7*ps, lambda: (T.__setitem__('xn', sc.n), print('  prep done', sc.n, file=sys.stderr)))
    order = sorted([(aa, dl) for aa in range(8) for dl in range(8) if aa + dl <= 7], key=lambda p: (max(p), p[0] + p[1]))
    last = []
    done = {}
    for p in range(4):
        hi_ = [(aa, 2*p + 1 - aa) for aa in range(2*p + 2)]
        lo_ = [(aa, 2*p - aa) for aa in range(2*p + 1)]
        for k in range(2*p + 2):
            last.append(hi_[k])
            if k < 2*p + 1: last.append(lo_[k])
        done[p] = 44 + 36*6 + len(last)
    XF = [V(16 + 4*t, 4) for t in range(8)]
    sc.note(2, done[0] + 2, lambda: T['xn'])
    for p in range(4):
        e_at = done[p] + 3
        for t in (2*p, 2*p + 1):
            for h in range(2):
                sc.op(2, 44 + 36*6 + 3, 'v_lshlrev_b32', (XF[t][2*h], 16, XR[t][h]))
                sc.op(2, 44 + 36*6 + 3, 'v_and_b32', (XF[t][2*h+1], '0xffff0000', XR[t][h]))
        for t in (2*p, 2*p + 1):
            for k in range(4): sc.op(2, e_at, 'v_fmac_f32', (XF[t][k], ABR[t][k], CA[t][k]))
        q = ABR[2*p]
        for e in range(2):
            for h in range(2): sc.op(2, e_at, 'v_cvt_pk_bf16_f32', (q[2*e + h], XF[2*p + e][2*h], XF[2*p + e][2*h + 1]))
        sc.op(2, e_at, 'v_permlane16_swap_b32', (q[0], q[2]))
        sc.op(2, e_at, 'v_permlane16_swap_b32', (q[1], q[3]))
        sc.op(2, e_at, 'buffer_store_dwordx4', (q, vo, RWS, sht), f'offen offset:{1024*p} sc1', tok=(T, 'h'))
    sc.sort()
    allm = []
    for rho in range(8):
        s = rho & 1
        init = set()
        seq = []
        for (aa, dl) in (order if rho < 7 else last):
            t = aa + dl
            seq.append((CA[t], FA[s][aa], FB[s][dl], CA[t] if (rho or t in init) else 0))
            init.add(t)
        if rho == 0:
            seq += [(CA[t], AD, FB[s][t], CA[t]) for t in range(8)]
        nxt = reads(rho + 1) if rho < 7 else []
        k = 0
        for n, m in enumerate(seq):
            fx = []
            if n >= 4 and k < len(nxt) and (n % 3 != 2 or len(seq) - n <= len(nxt) - k):
                fx = [nxt[k]]; k += 1
            allm.append((m, fx))
        assert k == len(nxt)
    for x, (m, fx) in enumerate(allm):
        if x in CST: stamp(a, CID[CST.index(x)], True)
        a(MFMA, *m)
        sc.n += 1
        sc.gap(fx, [(MFMA, allm[x + 1][0], '')] if x + 1 < len(allm) else [])
    print('after conv:', sc.left(), 'over', sc.over, file=sys.stderr)
    stamp(a, 7)
    sc.n += 100
    sc.drain()
    w0('GD_c', FD_.check)()
    stamp(a, 8)
    return T['cl']

WDL0 = 0
def x_loads(a, n):
    RQ = S(44, 4)
    srd(a, RQ, P_Q, S_*D_*2)
    voff = V(16)
    a('s_lshl_b32', st0, n, 2)
    a('s_add_u32', st0, st0, sw)
    a('s_mul_i32', st0, st0, 8*1280)
    a('s_add_u32', st1, st0, 2560)
    a('v_lshrrev_b32', t0, 5, lane)
    a('v_mul_u32_u24', voff, 5120, t0)
    a('v_and_b32', t1, 31, lane)
    a('v_lshl_add_u32', voff, t1, 3, voff)
    X = [[V(48 + 10*r + 2*i, 2) for i in range(5)] for r in range(4)]
    s0, s1 = S(48), S(50)
    def loads():
        for r in range(4):
            for i in range(5):
                a('buffer_load_dwordx2', X[r][i], voff, RQ, s1 if r >= 2 else s0, mods=f'offen offset:{1280*(r & 1) + 256*i}' + NT_)
    a('s_mov_b32', s0, st0)
    a('s_mov_b32', s1, st1)
    if not E('QDEL', 0):
        loads()
        return lambda: X
    def late():
        a.wait(vm=0)
        loads()
        return X
    return late

XAB = WB + 7*WSS
def x_task(a, n, X, mid=None):
    ones, pl, ph = S(12), S(50), S(51)
    vw, vg, vr = V(17), V(19), V(20)
    a('s_mov_b32', pl, '0x05040100')
    a('s_mov_b32', ph, '0x07060302')
    a('v_lshrrev_b32', t0, 5, lane)
    a('v_and_b32', t2, 3, lane)
    a('v_xor_b32', t1, sw, t2)
    a('v_lshlrev_b32', t1, 4, t1)
    a('v_lshl_add_u32', t1, t0, 3, t1)
    a('v_and_b32', vw, 31, lane)
    a('v_lshl_add_u32', vw, vw, 8, t1)
    a('v_lshrrev_b32', t1, 2, lane)
    a('v_lshlrev_b32', vg, 12, t1)
    a('v_lshl_add_u32', vg, t2, 4, vg)
    a('v_lshrrev_b32', t0, 4, lane)
    a('v_xor_b32', t0, t0, t2)
    a('v_lshlrev_b32', t1, 6, t1)
    a('v_lshl_add_u32', vr, t0, 4, t1)
    a('v_add_u32', vr, 28672, vr)
    PC = [V(96 + 2*k, 2) for k in range(8)]
    for i in range(5):
        for e in range(4):
            q = PC[4*(i & 1) + e]
            for h in range(2):
                a('v_perm_b32', q[h], X[2*h + 1][i][e >> 1], X[2*h][i][e >> 1], ph if e & 1 else pl)
        for e in range(4):
            a('ds_write_b64', vw, PC[4*(i & 1) + e], mods=f'offset:{28672 + 8192*i + 64*e}')
    if mid: mid()
    a('s_mov_b32', ones, '0x3f803f80')
    a('s_lshl_b32', st2, n, 6)
    a('s_add_u32', st2, st2, hex(XT))
    a.wait(lg=0)
    a('s_barrier')
    s1 = [V(24 + r) for r in range(4)]
    s2 = [V(28 + r) for r in range(4)]
    L = []
    for i in range(5):
        for d in range(2):
            for r in range(4):
                first = i == 0 and d == 0
                L.append(('v_dot2_f32_bf16', s1[r], X[r][i][d], ones, 0 if first else s1[r]))
                L.append(('v_dot2_f32_bf16', s2[r], X[r][i][d], X[r][i][d], 0 if first else s2[r]))
    a('s_cmp_lg_u32', sw, 0)
    a('s_cbranch_scc1', 'X_nst')
    O = [V(112 + 4*j, 4) for j in range(20)]
    for j in range(20):
        a('ds_read_b128', O[j], vr, mods=f'offset:{1024*j}')
    for j in range(40):
        if j: a('s_add_u32', st2, st2, 65536)
        a('buffer_store_dwordx4', O[j % 20], vg, RWS, st2, mods='offen sc1')
        if 4 <= j < 24: a('ds_read_b128', O[j - 4], vr, mods=f'offset:{1024*(j + 16)}')
    a.label('X_nst')
    for x in L: a(*x)
    for s in (s1, s2):
        for r in (0, 2): a('v_permlane16_swap_b32', s[r], s[r + 1])
    for s in (s1, s2):
        for r in (0, 2): a('v_add_f32', s[r], s[r], s[r + 1])
    for sh in (8, 4, 2, 1):
        for x in (s1[0], s2[0], s1[2], s2[2]):
            a('v_add_f32', x, x, x, mods=f'row_ror:{sh} row_mask:0xf bank_mask:0xf')
    a('v_and_b32', t1, 1, lane)
    a('v_cmp_ne_u32', 'vcc', 0, t1)
    a('v_cndmask_b32', s1[0], s1[0], s1[2], 'vcc')
    a('v_cndmask_b32', s2[0], s2[0], s2[2], 'vcc')
    ln_stats(a, s1[0], s2[0], t2)
    a('v_rcp_f32', s2[0], s2[0])
    a('v_mul_f32', s1[0], s1[0].neg(), s2[0])
    a('v_cvt_pk_bf16_f32', s2[0], s2[0], s1[0])
    a('v_bfe_u32', t0, lane, 4, 1)
    a('v_lshl_or_b32', t1, t1, 1, t0)
    a('v_lshrrev_b32', t0, 5, lane)
    a('v_lshl_or_b32', t1, t0, 2, t1)
    a('s_lshl_b32', st0, sw, 5)
    a('s_add_u32', st0, st0, XAB)
    a('v_lshl_add_u32', t1, t1, 2, st0)
    a('ds_write_b32', t1, s2[0])
    a.wait(lg=0)
    a('s_barrier')

def x_finish(a, n):
    a('v_and_b32', t0, 31, lane)
    a('v_lshlrev_b32', t0, 2, t0)
    a('v_add_u32', t1, XAB, t0)
    a('ds_read_b32', t2, t1)
    a('s_lshl_b32', st0, n, 7)
    a('s_add_u32', st0, st0, hex(AB))
    a('buffer_store_dword', t2, t0, RWS, st0, mods='offen sc1')
    a.wait(vm=0)
    publish_rep(a, 'X_pub', FLP, PSTR, n)

def d_loads(a, n, extra=None):
    RW = S(52, 4)
    scb, scp, ssrc, sl = S(13), S(14), S(10), S(12)
    vsrc = [V(88), V(89)]
    a('v_lshrrev_b32', t0, 3, lane)
    a('v_mul_u32_u24', t0, 1280, t0)
    a('v_and_b32', t1, 1, lane)
    a('v_lshl_add_u32', t0, t1, 4, t0)
    a('v_bfe_u32', t1, lane, 1, 2)
    a('v_bfe_u32', t2, lane, 4, 1)
    a('v_xor_b32', t1, t1, t2)
    a('s_and_b32', st0, sw, 1)
    a('s_lshl_b32', st0, st0, 1)
    a('v_xor_b32', t1, st0, t1)
    a('v_lshl_add_u32', vsrc[0], t1, 5, t0)
    a('v_xor_b32', t1, 2, t1)
    a('v_lshl_add_u32', vsrc[1], t1, 5, t0)
    a('s_mul_i32', ssrc, scp, 216*1280)
    a('s_lshl_b32', st0, scb, 7)
    a('s_add_u32', ssrc, ssrc, st0)
    a('s_mul_i32', st0, sw, 56*1280)
    a('s_add_u32', ssrc, ssrc, st0)
    a('s_lshr_b32', st0, sw, 1)
    a('s_mul_i32', st0, st0, 4*1280)
    a('s_sub_u32', ssrc, ssrc, st0)
    a('s_mul_i32', sl, sw, 7*1024)
    def go():
        for g in range(7):
            a('s_add_u32', 'm0', sl, WDL0 + 1024*g)
            a('s_add_u32', st0, ssrc, 8*g*1280)
            td = a('buffer_load_dwordx4', vsrc[g & 1], RW, st0, mods='offen' + NT_ + ' lds')
        return td
    if extra:
        a('s_cmp_lg_u32', sw, 2)
        a('s_cbranch_scc1', extra)
        a('s_sub_u32', ssrc, ssrc, 108*1280)
        a('s_sub_u32', sl, sl, 14*1024)
        go()
        a('s_add_u32', ssrc, ssrc, 108*1280)
        a('s_add_u32', sl, sl, 14*1024)
        a.label(extra)
    return go()

def d_task(a):
    scb, scp, sdst, sl = S(13), S(14), S(10), S(12)
    vr = V(90)
    MK = [S(68, 2), S(50, 2)]
    a('v_lshrrev_b32', t0, 4, lane)
    a('v_bfe_u32', t1, lane, 2, 2)
    a('v_lshl_add_u32', t2, t0, 3, t1)
    a('v_lshlrev_b32', t2, 7, t2)
    a('v_and_b32', t0, 1, t0)
    a('v_lshrrev_b32', t1, 1, t1)
    a('v_lshl_or_b32', t0, t0, 1, t1)
    a('v_xor_b32', t0, sw, t0)
    a('v_lshl_add_u32', t2, t0, 5, t2)
    a('v_and_b32', t0, 3, lane)
    a('v_lshl_add_u32', t2, t0, 3, t2)
    a('v_add_u32', vr, WDL0, t2)
    a('s_lshl_b32', st0, scb, 2)
    a('s_add_u32', st0, st0, sw)
    a('s_mul_i32', sdst, st0, TS)
    a('s_mul_i32', st1, scp, 7*1024)
    a('s_add_u32', sdst, sdst, st1)
    a('s_add_u32', sdst, sdst, hex(WP2))
    a('s_add_u32', sl, sdst, 4096)
    a('s_mov_b32', MK[0][0], '0xffff0000')
    a('s_mov_b32', MK[0][1], 0)
    a('s_mov_b32', MK[1][0], 0)
    a('s_mov_b32', MK[1][1], '0xffff0000')
    FD = [V(176 + 4*i, 4) for i in range(7)]
    for ks in range(7):
        for hf in range(2):
            a('ds_read_b64_tr_b16', FD[ks][2*hf:2*hf+2], vr, mods=f'offset:{ks*4096 + 512*hf}')
    for ks in range(7):
        if ks in (3, 6):
            for d in (2, 3): a('v_cndmask_b32', FD[ks][d], FD[ks][d], 0, MK[ks == 6])
        tp = a('buffer_store_dwordx4', FD[ks], l16, RWS, sl if ks >= 4 else sdst, mods=f'offen offset:{1024*(ks & 3)} sc1')
    return tp

def helper_wg(a):
    n, nd, sj, sHR = S(7), S(9), S(15), S(8)
    vt = V(91)
    emit = lambda L: [a(mn, *ops, mods=mods) for mn, ops, mods in L]
    def common():
        srd(a, RWS, P_WS, WS_SIZE)
        a('s_mov_b32', sEp, hex(EPOCH))
        a('s_load_dword', sEp, P_WS, sEp)
        srd(a, S(52, 4), P_WD, D_*F_*2)
        role_setup(a)
        w_setup(a)
        tag_setup(a)
        a('s_sub_u32', nd, n, 16)
        a('s_lshr_b32', st0, n, 3)
        a('s_lshl_b32', st0, st0, 2)
        a('s_and_b32', st1, n, 3)
        a('s_add_u32', st0, st0, st1)
        a('s_cmp_lt_u32', n, 32)
        a('s_cselect_b32', nd, st0, nd)
        a('s_mul_i32', S(14), nd, 205)
        a('s_lshr_b32', S(14), S(14), 11)
        a('s_mul_i32', st0, S(14), 10)
        a('s_sub_u32', S(13), nd, st0)
        clr_setup_q(a, S(28), V(247))
    def touch_setup():
        w_srd(a)
        touch_lanes(a, vt)
        a('s_bfe_u32', sj, n, (3 << 16) | 3)
        a('s_lshl_b32', sj, sj, 1)
        a('s_and_b32', st0, sw, 1)
        a('s_add_u32', sj, sj, st0)
        a('s_mul_i32', sj, sj, 8*WROW)
    def sq_clear():
        a('v_mov_b32', V(93), -1)
        a('buffer_store_dword', V(93), V(247), RWS, S(28), mods='offen sc1')
    def touch3():
        a('s_lshr_b32', st0, n, 3)
        a('s_lshl_b32', st0, st0, 1)
        a('s_and_b32', st1, sw, 1)
        a('s_add_u32', st0, st0, st1)
        a('s_cmp_lt_u32', st0, 16)
        a('s_cselect_b32', st1, 16, 56)
        a('s_add_u32', st0, st0, st1)
        a('s_mul_i32', st0, st0, 8*WROW)
        a('buffer_load_dword', V(92), vt, RW1, st0, mods='offen')
    def touch(blk):
        a('s_add_u32', st0, sj, blk*8*WROW)
        a('buffer_load_dword', V(92), vt, RW1, st0, mods='offen')
    a('s_sub_u32', n, S(2), 160)
    a('s_cmp_ge_u32', n, 64)
    a('s_cbranch_scc1', 'H_nx1')
    XL = x_loads(a, n)
    touch_setup()
    common()
    DP = E('DPOS', 2)
    if DP == 0: d_loads(a, nd)
    X = XL()
    sq_clear()
    stamp(a, 1)
    x_task(a, n, X, (lambda: d_loads(a, nd)) if DP == 1 else None)
    stamp(a, 2)
    a('s_cmp_lg_u32', sw, 0)
    a('s_cbranch_scc1', 'H_w123')
    x_finish(a, n)
    stamp(a, 4)
    a('s_branch', 'H_xj')
    a.label('H_w123')
    HR = E('HR1', 4)
    def dl():
        a('s_cmp_eq_u32', sB, 5)
        a('s_cbranch_scc1', 'H_a')
        d_loads(a, nd, 'H_d0')
        a.label('H_a')
    if DP == 2 and E('DFIRST', 1): dl()
    touch(48)
    a('s_cmp_lg_u32', sw, 1)
    a('s_cbranch_scc1', 'H_t47')
    touch(47)
    a.label('H_t47')
    if DP == 2 and not E('DFIRST', 1): dl()
    w_holes(a, V(236, 4))
    if HR:
        w_round_x(a, 0, 0, 'H_rx', 0, HR, True)
        w_round_y(a, 0, 0, 'H_ry', 0, HR, True)
    else: a.wait(vm=1 if E('DFIRST', 1) else 0)
    a.label('H_xj')
    a('s_mov_b32', sHR, 1)
    a('s_cmp_lg_u32', sB, 5)
    a('s_cbranch_scc1', 'H_nx2')
    tr0 = w_round(a, 0, 0, HR, 7)
    touch3()
    a.wait(vm=13 if E('HPIPE', 1) else 1)
    a('s_branch', 'H_nd2')
    a.label('H_nx1')
    touch_setup()
    for blk in (0, 8, 40, 64): touch(blk)
    common()
    td = d_loads(a, nd)
    w_holes(a, V(236, 4))
    w_round(a, 0, 0, 0, 4)
    sq_clear()
    stamp(a, 1)
    a.wait_vm_tok(td)
    a('s_mov_b32', sHR, 0)
    stamp(a, 2)
    a.label('H_nx2')
    a('s_barrier')
    tp = d_task(a)
    stamp(a, 3)
    if HR < 4:
        a('s_cmp_eq_u32', sHR, 0)
        a('s_cbranch_scc1', 'H_hr')
        w_round(a, 0, 0, HR, 4)
        a.wait(vm=4*(4 - HR))
        a('s_barrier')
        publish4(a, FLD, PSTR, nd)
        w_round(a, 0, 0, 4, 7)
        touch3()
        a.wait(vm=14)
        a('s_branch', 'H_nd2')
        a.label('H_hr')
    tr = w_round(a, 0, 0, 4, 7)
    touch3()
    LP = E('LATEP', 0)
    if LP: a.wait(vm=20)
    else:
        a.wait_vm_tok(tp)
        a('s_barrier')
        publish4(a, FLD, PSTR, nd)
    if not E('HPIPE', 1): a.wait_vm_tok(tr)
    a.label('H_nd2')
    sDF, sT2, vt2, vg1 = S(58), S(54), V(93), V(96)
    FD_ = Flags(a, 'HD', V(94, 2), vg1, sDF)
    def bar():
        a.wait(lg=0)
        a('s_barrier')
    def rd(r, lo, hi):
        for i in range(lo, hi): emit(w_reads(RND[r][i], i & 3))
    bar()
    if E('HPIPE', 1):
        rd(0, 0, 4)
        bar()
        w_round(a, 1, 0, 0, 4)
        a.wait(vm=16)
        bar()
        if LP:
            a('s_cmp_eq_u32', sB, 5)
            a('s_cbranch_scc1', 'H_np')
            publish4(a, FLD, PSTR, nd)
            a.label('H_np')
        emit(w_shift(4))
        rd(0, 4, 7)
        bar()
        w_round(a, 1, 0, 4, 7)
        a.wait(vm=12)
        stamp(a, 5)
        bar()
        emit(w_shift(-4))
        rd(1, 0, 4)
        rep_base(a, sDF, FLD, PSTR)
        pack_flag_addr(a, vg1)
        bar()
        w_round(a, 2, 1, 0, 3)
        FD_.load()
        a.wait(vm=13)
        bar()
        emit(w_shift(4))
        rd(1, 4, 7)
        emit(w_shift(-4))
        bar()
        stamp(a, 6)
        tr = w_round(a, 2, 1, 3, 6)
    else:
        emit(w_read_ops(0))
        bar()
        tr = w_round(a, 1)
        a.wait_vm_tok(tr)
        stamp(a, 5)
        a('s_barrier')
        emit(w_read_ops(1))
        rep_base(a, sDF, FLD, PSTR)
        pack_flag_addr(a, vg1)
        FD_.load()
        bar()
        stamp(a, 6)
        tr = w_round(a, 2, 1)
    FD_.check()
    p2_touch(a)
    stamp(a, 7)
    a('s_cmp_lg_u32', sB, E('CSB', 5))
    a('s_cbranch_scc1', 'H_end')
    a.wait_vm_tok(tr)
    a('s_barrier')
    R = [V(16 + i) for i in range(4)]
    emit(w_shift(1, vWr, R))
    for i, ks in enumerate(RND[2]):
        if i == 4: emit(w_shift(4, R))
        emit(w_reads(ks, i & 3, R))
    ON = V(208, 4)
    CSA = [V(212 + 4*k, 4) for k in range(4)]
    CSA[3] = V(240, 4)
    for d in range(4): a('v_mov_b32', ON[d], '0x3f803f80')
    for ks in RND[0] + RND[1] + RND[2]:
        for k in range(4):
            a(MFMA, CSA[k], W1(ks, k), ON, CSA[k] if ks else 0)
    cs_bases(a)
    a('v_and_b32', t0, 15, lane)
    a('v_cmp_eq_u32', 'vcc', 0, t0)
    a('s_and_saveexec_b64', S(68, 2), 'vcc')
    for k in range(4):
        a('buffer_store_dwordx4', CSA[k], vq16, RWS, sCS3 if k == 3 else sCS0, mods=f'offen offset:{64*(k % 3)} sc1')
    a('s_mov_b64', 'exec', -1)
    a('s_lshl_b32', st0, sC, 7)
    a('s_lshl_b32', st1, sw, 2)
    a('s_add_u32', st0, st0, st1)
    a('s_add_u32', st0, st0, hex(FLC))
    a.wait(vm=0)
    publish(a, st0, 0)
    a.label('H_end')
    stamp(a, 8)

def cs_bases(a):
    a('s_mul_i32', st0, sC, 14*64)
    a('s_add_u32', st0, st0, hex(CS))
    a('s_lshl_b32', sCS0, sUb, 6)
    a('s_add_u32', sCS0, sCS0, st0)
    a('s_lshl_b32', sCS3, sU3, 6)
    a('s_add_u32', sCS3, sCS3, st0)
```

```python
from mk8a import *

vdma2, RS2, vout = V(13), V(13), V(248)
ACC = [[V(16 + 32*n + 4*j, 4) for j in range(8)] for n in range(3)]
ACC.append({j: V(112 + 4*((j >> 2)*2 + (j & 1)), 4) for j in (0, 1, 4, 5)})
CSR = [V(128 + 4*n, 4) for n in range(4)]
BF = [V(208 + 4*i, 4) for i in range(8)]
VRD = [V(240 + i) for i in range(8)]
MEAN = V(176, 8)
vsr = [vst, V(184), V(185), V(186)]
vsw = [V(187), V(188)]
MT = [V(189), V(190)]
SQF = [V(128 + 4*i, 4) for i in range(3)]
SQA = V(204, 4)
vsq, vsqs, vpr = V(250), V(251), V(191)
vWg = [V(128 + i) for i in range(4)]
SQL = V(184, 8)
RES = [V(144, 2), V(146, 2), V(148, 2), V(150, 2), V(14, 2)]
ACC2 = [[V(208 + 4*nu, 4) for nu in range(5)], [V(228 + 4*nu, 4) for nu in range(5)],
        [V(176 + 4*nu, 4) for nu in range(5)], [V(196, 4), V(200, 4), V(204, 4), V(128, 4), V(132, 4)]]
MSK = [S(50, 2), S(52, 2), S(54, 2)]
WDL = [(W1(ks, n), ('p1', ks)) for ks in range(4) for n in range(4)]
WDL += [(V(152 + 4*f, 4), ('p1', 4 + (f >= 2))) for f in range(6)]
WDL += [(W1(ks, 3), (1, 0, ks)) for ks in range(KS, 20)]
WDL += [(W1(ks, n), (1, 2, ks)) for ks in range(KS, 20) for n in range(3)]
def WD(f): return WDL[f][0]
sMV, sDump, sPkT, sPark, sPkG = S(34, 2), S(12), S(49), S(7), S(10)
NPK, PK0 = E('NPK', 15), 2048
sHT0, sHTt, vchk, vtch = S(36), S(37), V(253), V(132)
CKT = [V(138 + 2*i, 2) for i in range(3)]
sCl, sFX, sFXw, GQ = S(39), S(40), S(41), V(132, 4)
HF0 = [ACC[n][j] for j in (0, 1) for n in range(4)] + [ACC[n][j] for j in (2, 3) for n in range(3)]
HF1 = [ACC[n][j] for j in (4, 5) for n in range(4)] + [ACC[n][j] for j in (6, 7) for n in range(3)]
HF = HF0 + HF1

def gemm_setup(a):
    srd(a, ROUT, P_OUT, S_*D_*2)
    cs_bases(a)
    a('s_lshl_b32', sHT, sw, 15)
    a('s_lshl_b32', st0, sB, 8)
    a('s_add_u32', sHT, sHT, st0)
    a('s_add_u32', sHT, sHT, hex(HT))
    a('s_lshl_b32', sLds, sw, 11)
    a('s_mov_b32', sHT0, sHT)
    a('s_lshl_b32', sFX, sB, 9)
    a('s_add_u32', sFX, sFX, hex(FL3))
    a('s_lshr_b32', st1, sC, 2)
    a('s_lshl_b32', st1, st1, 7)
    a('s_add_u32', sFXw, sFX, st1)
    a('s_and_b32', st1, sC, 3)
    a('s_lshl_b32', st1, st1, 2)
    a('s_add_u32', sFXw, sFXw, st1)
    a('s_and_b32', st1, sC, 3)
    a('s_lshl_b32', st1, st1, 2)
    a('s_add_u32', st1, st1, sw)
    a('s_lshl_b32', st1, st1, 17)
    a('s_add_u32', st1, st1, st0)
    a('s_add_u32', sHTt, st1, hex(HT + 4*131072))
    a('v_bfe_u32', t0, lane, 4, 2)
    a('v_lshl_add_u32', t0, t0, 2, l16)
    a('v_add_u32', vchk, sLds, t0)
    a('v_lshrrev_b32', t0, 1, lane)
    a('v_and_b32', t1, 1, lane)
    a('v_lshlrev_b32', t1, 7, t1)
    a('v_lshl_add_u32', vtch, t0, 12, t1)
    clr_setup_h(a, sCl)
    half, cbk, mu = S(13), S(14), S(15)
    a('s_bfe_u32', half, sC, (1 << 16) | 2)
    a('s_lshr_b32', cbk, sC, 3)
    a('s_lshl_b32', cbk, cbk, 2)
    a('s_and_b32', st0, sC, 3)
    a('s_add_u32', cbk, cbk, st0)
    a('s_and_b32', st0, sw, 1)
    a('s_lshl_b32', sRot, st0, 1)
    a('s_lshr_b32', st1, sw, 1)
    a('s_or_b32', sRot, sRot, st1)
    a('s_lshl_b32', mu, st1, 2)
    a('s_add_u32', mu, mu, st0)
    a('s_lshl_b32', st0, half, 1)
    a('s_add_u32', mu, mu, st0)
    a('s_mul_i32', st0, cbk, 5*TS)
    a('s_mul_i32', st1, sw, 14*1024)
    a('s_add_u32', st0, st0, st1)
    for nu in range(5):
        a('s_add_u32', sWn[nu], st0, hex(WP2 + nu*TS))
    a('s_lshl_b32', st0, sB, 3)
    a('s_lshl_b32', st2, half, 1)
    a('s_add_u32', st2, st2, st0)
    a('s_mul_i32', st2, st2, TS)
    a('s_add_u32', st2, st2, st1)
    for j in range(4):
        a('s_add_u32', sHH[j], st2, hex(HH + ((j & 1) + 4*(j >> 1))*TS))
    a('s_and_b32', st1, sRot, 2)
    a('s_mul_i32', st2, sC, 14*256)
    a('s_add_u32', st2, st2, hex(HH))
    for k in range(2):
        if k: a('s_xor_b32', st1, st1, 2)
        a('s_add_u32', sA[k], st0, st1)
        a('s_mul_i32', sA[k], sA[k], TS)
        a('s_add_u32', sA[k], sA[k], st2)
    a('s_add_u32', st1, st0, mu)
    a('s_mul_i32', sOut, st1, 16*1280)
    a('s_mul_i32', st2, cbk, 160)
    a('s_add_u32', sOut, sOut, st2)
    a('s_lshl_b32', sSQl, st1, 9)
    a('s_add_u32', sSQl, sSQl, hex(SQ))
    a('s_add_u32', st1, st0, cbk)
    a('s_lshl_b32', sSQs, st1, 9)
    a('s_lshl_b32', st1, half, 2)
    a('s_add_u32', st1, st1, sw)
    a('s_lshl_b32', st1, st1, 2)
    a('s_add_u32', sSQs, sSQs, st1)
    a('s_add_u32', sSQs, sSQs, hex(SQ))
    a('s_mov_b32', sStat, 0)
    a('s_lshl_b32', sC3, sC, 7)
    a('s_add_u32', sC3, sC3, hex(FLC))
    a('s_mov_b32', sPkG, sWn[0])
    a('s_mul_i32', sPark, sw, NPK*1024)
    a('s_add_u32', sPark, sPark, PK0)
    for mn, ops, mods in w_shift(1, vWr, vWg): a(mn, *ops)
    a('s_add_u32', sDump, sStat, 1024)
    a('s_cmp_ge_u32', sw, 2)
    a('s_cselect_b32', sMV[1], '0xffff0000', 0)
    a('s_mov_b32', sMV[0], 0)
    q, r, m, x = V(208), V(209), V(210), V(211)
    a('v_lshrrev_b32', q, 4, lane)
    a('v_bfe_u32', r, lane, 2, 2)
    a('v_and_b32', m, 15, lane)
    a('s_and_b32', st1, sw, 1)
    a('s_lshl_b32', st1, st1, 2)
    a('v_or_b32', t0, st1, q)
    a('v_bfe_u32', t1, lane, 1, 3)
    a('v_xor_b32', t0, t0, t1)
    a('v_lshlrev_b32', t0, 5, t0)
    a('v_and_b32', t1, 1, lane)
    a('v_lshl_add_u32', t0, t1, 4, t0)
    a('v_lshl_add_u32', vdma, q, 12, t0)
    a('v_add_u32', vdma2, 16384 - 1024, vdma)
    a('v_and_b32', t0, 1, q)
    a('v_lshl_or_b32', t0, t0, 2, r)
    a('v_lshl_add_u32', t1, q, 3, r)
    a('v_lshlrev_b32', t1, 8, t1)
    a('v_and_b32', t2, 3, lane)
    a('v_lshl_add_u32', t1, t2, 3, t1)
    a('v_xor_b32', x, cbk, t0)
    a('v_lshl_add_u32', vsq, x, 5, t1)
    a('s_lshl_b32', st0, sw, 14)
    a('s_add_u32', st0, st0, 11*8192)
    a('s_mul_i32', st1, sw, 3*8192)
    a('s_cmp_eq_u32', half, 0)
    a('s_cselect_b32', st0, st1, st0)
    a('v_add_u32', vsq, st0, vsq)
    a('v_xor_b32', t0, sRot, t0)
    for j in range(8):
        a('v_xor_b32', VRD[j], j, t0)
        a('v_lshl_add_u32', VRD[j], VRD[j], 5, t1)
    for i in range(3):
        a('v_cmp_eq_u32', MSK[i], i + 1, t2)
    a('v_lshlrev_b32', t0, 5, m)
    a('v_cmp_eq_u32', 'vcc', r, q)
    a('v_mov_b32', t1, hex(OOB))
    a('v_cndmask_b32', vsqs, t1, t0, 'vcc')
    a('v_lshrrev_b32', t0, 1, q)
    a('v_lshl_or_b32', t0, t0, 2, r)
    a('v_xor_b32', t0, mu, t0)
    a('v_lshlrev_b32', t0, 5, t0)
    a('v_lshl_add_u32', t0, t2, 3, t0)
    a('v_lshl_add_u32', t1, q, 2, r)
    a('v_lshl_add_u32', t0, t1, 8, t0)
    a('s_mul_i32', st2, cbk, 80*256)
    a('v_add_u32', vres, st2, t0)
    a('s_lshl_b32', st0, sRot, 2)
    a('s_add_u32', st0, st0, sStat)
    a('v_lshl_add_u32', vst, m, 5, st0)
    a('s_and_b32', st0, sRot, 1)
    a('v_and_b32', t0, 1, q)
    a('v_lshrrev_b32', t2, 1, q)
    a('v_xor_b32', x, st0, t0)
    a('v_mul_u32_u24', x, TS, x)
    a('v_lshl_add_u32', x, m, 4, x)
    a('v_add_u32', t1, sUb, t2)
    a('v_lshl_add_u32', vh01, t1, 8, x)
    a('s_add_u32', st1, sUb, 2)
    a('s_sub_u32', st2, sU3, st1)
    a('v_mul_lo_u32', t1, st2, t2)
    a('v_add_u32', t1, st1, t1)
    a('v_lshl_add_u32', vh23, t1, 8, x)
    a('v_xor_b32', x, st0, t2)
    a('v_mul_u32_u24', x, TS, x)
    a('v_lshl_add_u32', x, m, 4, x)
    a('v_lshl_add_u32', x, t0, 3, x)
    a('s_lshl_b32', st1, st1, 8)
    a('v_add_u32', vh2x, st1, x)
    a('v_mul_u32_u24', t1, 1280, m)
    a('v_lshl_add_u32', t1, t0, 5, t1)
    a('v_lshl_add_u32', vout, t2, 4, t1)
    a('v_and_b32', t1, 3, lane)
    a('v_lshlrev_b32', vfl, 2, t1)

def late_setup_ops():
    L = []
    for k in range(1, 4): L.append(('v_xor_b32', (vsr[k], 4*k, vst), ''))
    L.append(('v_lshl_add_u32', (MT[0], lane, 2, sDump), ''))
    L.append(('v_cndmask_b32', (vsw[0], MT[0], vst, sMV), ''))
    L.append(('v_cndmask_b32', (vsw[1], MT[0], vsr[1], sMV), ''))
    L.append(('v_add_u32', (vpr, sPark, l16), ''))
    return L

def pair_ops(X, Y, cX, cY, jX, jY, Q, pk, swap=True):
    L = []
    for Z, c, j in ((X, cX, jX), (Y, cY, jY)):
        if pk:
            s = j & 1
            for h in range(2):
                L.append((1, 'v_pk_fma_f32', (Z[2*h:2*h+2], c[2*h:2*h+2], MEAN[j-s:j-s+2], Z[2*h:2*h+2]), f'op_sel:[0,{s},0] op_sel_hi:[1,{s},1]'))
        else:
            for e in range(4): L.append((1, 'v_fmac_f32', (Z[e], c[e], MEAN[j]), ''))
    if swap:
        for e in range(4): L.append((2, 'v_permlane32_swap_b32', (X[e], Y[e]), ''))
    for e in range(4): L.append((1, 'v_max_f32', (X[e], 0, X[e]), ''))
    if pk:
        for h in range(2): L.append((1, 'v_pk_mul_f32', (X[2*h:2*h+2], X[2*h:2*h+2], Y[2*h:2*h+2]), ''))
    else:
        for e in range(4): L.append((1, 'v_mul_f32', (X[e], X[e], Y[e]), ''))
    for h in range(2): L.append((1, 'v_cvt_pk_bf16_f32', (Q[h], X[2*h], X[2*h+1]), ''))
    return L

def epi_ops(P, jb, pk=False):
    j0, j1 = 4*P + jb, 4*P + jb + 1
    L = []
    sbase = sA[jb >> 1]
    if P:
        L.append((1, 's_add_u32', (sbase, sbase, 4*TS), ''))
    groups = [(0, vh01)] + ([(2, vh23)] if jb == 0 else [])
    for n, va in groups:
        Q = ACC[n+1][j0]
        L += pair_ops(ACC[n][j0], ACC[n+1][j0], CSR[n], CSR[n+1], j0, j0, Q[0:2], pk, n > 0)
        L += pair_ops(ACC[n][j1], ACC[n+1][j1], CSR[n], CSR[n+1], j1, j1, Q[2:4], pk, n > 0)
        L.append((2, 'v_permlane16_swap_b32', (Q[0], Q[2]), ''))
        L.append((2, 'v_permlane16_swap_b32', (Q[1], Q[3]), ''))
        L.append((1, 'buffer_store_dwordx4', (Q, va, RWS, sbase), 'offen sc1'))
    if jb:
        Q = ACC[2][j1]
        L += pair_ops(ACC[2][j0], ACC[2][j1], CSR[2], CSR[2], j0, j1, Q[0:2], pk)
        L.append((1, 'buffer_store_dwordx2', (Q[0:2], vh2x, RWS, sbase), 'offen sc1'))
    return L

BFQ = [V(136, 4), V(140, 4)]
vck = V(252)

def gemms(a):
    T = {}
    dt = {}
    slow = []
    PW = [Ptr(s) for s in sWn]
    PH = [Ptr(s) for s in sHH]
    def wd_load(f, dry):
        i, nu = divmod(f, 5)
        L, o = PW[nu].at(i, dry)
        return L + [('buffer_load_dwordx4', (WD(f), l16, RWS, sWn[nu]), f'offen offset:{o}' + LD, None)]
    def hload(i, j, dry):
        L, o = PH[j].at(i, dry)
        return L + [('buffer_load_dwordx4', (HF[2*i + (j & 1)], l16, RWS, sHH[j]), f'offen offset:{o}' + LD, None)]
    def guarded(sc, qi, at, name, badops, reload):
        for mn, ops in badops: sc.op(qi, at, mn, ops)
        def bad():
            for mn, ops in badops: a(mn, *ops)
        def br():
            a('s_cbranch_vccnz', name + '_slow')
            a.label(name + '_back')
            slow.append((name, bad, reload()))
            T[name] = sc.n
        sc.sca(qi, at, br)
    def hcheck(sc, at, i, ph):
        F0, F1 = HF[2*i], HF[2*i + 1]
        ops = [('v_max3_u32', (vck, F0[0], F0[2], F1[0])), ('v_max_u32', (vck, vck, F1[2])), ('v_cmp_eq_u32', ('vcc', -1, vck))]
        def mk():
            ks_ = [PH[2*ph + jj].k for jj in range(2)]
            def reload():
                for jj in range(2):
                    a('s_add_u32', st0, sHH[2*ph + jj], hex((4096*((i >> 2) - ks_[jj])) & 0xffffffff))
                    a('buffer_load_dwordx4', HF[2*i + jj], l16, RWS, st0, mods=f'offen offset:{(i & 3)*1024} sc1')
            return reload
        guarded(sc, 2, at, f'HC{ph}_{i}', ops, mk)
    def dma_ops(ks):
        return [[('s_add_u32', ('m0', sLds, 8192*ks)), ('buffer_load_dwordx4', (vdma, RWS, sHT), 'offen' + LD + ' lds')],
                [('buffer_load_dwordx4', (vdma2, RWS, sHT), 'offen offset:1024' + LD + ' lds', (dt, ks))],
                [('s_add_u32', (sHT, sHT, 131072))]]
    sc = Sched(a, 4)
    sc.step = E('VSTEP', 5)
    NUP = E('NUP', 4)
    for ks in range(NUP):
        for L in dma_ops(ks): sc.ops(0, 0, L)
    sc.drain()
    if E('HTT', 1): a('buffer_load_dword', V(133), vtch, RWS, sHTt, mods='offen')
    a('s_cmp_lg_u32', S(2), 0)
    a('s_cbranch_scc1', 'EP_skip')
    a('s_add_u32', sEp, sEp, 1)
    a('v_mov_b32', t0, sEp)
    a('s_mov_b32', st0, hex(EPOCH))
    a('s_mov_b64', 'exec', 1)
    a('buffer_store_dword', t0, 'off', RWS, st0, mods='sc1')
    a('s_mov_b64', 'exec', -1)
    a.label('EP_skip')
    steps = [(ks, j) for ks in range(KS) for j in range(8)]
    ends = {}
    cnt = lambda L: sum(4 if (j & 3) < 2 else 3 for _, j in L)
    n1 = cnt(steps)
    when = {}
    for P in range(2):
        for jb in (0, 2):
            for ks in range(KS, 20):
                steps += [(ks, 4*P + jb), (ks, 4*P + jb + 1)]
                when[(P, jb, ks)] = cnt(steps)
            ends[(P, jb)] = cnt(steps)
    NM = cnt(steps)
    d0, ds_ = E('D_AT', 30), E('DSTEP', 9)
    for ks in range(NUP, 20):
        at = d0 + ds_*(ks - NUP)
        st_ = ds_
        if ks >= 11: st_ = E('DSTEP2', 7); at = E('D2_AT', 88) + st_*(ks - 11)
        for k, L in enumerate(dma_ops(ks)): sc.ops(2, at + (st_//2 if k else 0), L)
    bars = eval(os.environ.get('BARS', '{30: 3, 86: 6, 142: 11, 198: 19}'))
    lastbar = min(k for k, v in bars.items() if v == 19)
    cbase = [0]
    def hval(lo, hi, at):
        name = f'HV{lo}'
        rd = lambda ks: ('ds_read2st64_b32', (CKT[ks % 3], vchk), f'offset0:{32*(ks - lo)} offset1:{32*(ks - lo) + 4}')
        mx = lambda ks: ('v_max_u32', (vck, CKT[ks % 3][0], CKT[ks % 3][1])) if ks == lo else ('v_max3_u32', (vck, vck, CKT[ks % 3][0], CKT[ks % 3][1]))
        cmp_ = ('v_cmp_eq_u32', ('vcc', -1, vck))
        def reload():
            a('s_mov_b32', st1, 'm0')
            for ks in range(lo, hi + 1):
                a('s_add_u32', 'm0', sLds, 8192*ks)
                a('s_add_u32', st0, sHT0, 131072*ks)
                a('buffer_load_dwordx4', vdma, RWS, st0, mods='offen sc1 lds')
                a('buffer_load_dwordx4', vdma2, RWS, st0, mods='offen offset:1024 sc1 lds')
            a('s_mov_b32', 'm0', st1)
        def bad():
            for ks in range(lo, hi + 1):
                r = rd(ks); a(r[0], *r[1], mods=r[2])
                m = mx(ks); a(m[0], *m[1])
            a(cmp_[0], *cmp_[1])
        def br():
            a('s_cbranch_vccnz', name + '_slow')
            a.label(name + '_back')
            slow.append((name, bad, reload))
            T[name] = sc.n
        sh = [('v_add_u32', (vchk, 8192*(lo - cbase[0]), vchk))] if lo != cbase[0] else []
        cbase[0] = lo
        if at is None:
            a.wait_vm_tok(dt[hi])
            for ks in range(lo, hi + 1):
                r = rd(ks); a(r[0], *r[1], mods=r[2])
            return lambda: ([a(mx(ks)[0], *mx(ks)[1]) for ks in range(lo, hi + 1)], a(cmp_[0], *cmp_[1]), br())
        lat, st_ = E('HV_LAT', 7), 3
        for x in sh: sc.op(3, at - lat - 3 - st_*(hi - lo) - 2, *x)
        for ks in range(lo, hi + 1):
            t = at - lat - 3 - st_*(hi - ks)
            sc.sca(3, t, lambda ks=ks: a.wait_vm_tok(dt[ks]))
            sc.op(3, t, *rd(ks))
            sc.op(3, t + lat, *mx(ks))
        sc.op(3, at - 3, *cmp_)
        sc.sca(3, at - 3, br)
    HV = E('HV', 1)
    if HV:
        lo = 2
        for n_, hi in sorted(bars.items()):
            hval(lo, hi, n_); lo = hi + 1
        cbase[0] = 0
    hvn = {n_: f'HV{lo_ + 1}' for n_, lo_ in zip(sorted(bars), [1] + [v for k, v in sorted(bars.items())])}
    pbar = E('PBAR', 228)
    bars[pbar] = 19
    b0, b1 = sorted(bars)[:2]
    for i, ks in enumerate(RND[2]):
        at = 0 if i < 2 else b0
        if i == 4:
            for op in w_shift(4, vWg): sc.op(0, at, *op)
        for op in w_reads(ks, i & 3, vWg): sc.op(0, at, *op, tok=(T, 'w3a' if i < 2 else 'w3b'))
    sc.note(0, 0, lambda: T.__setitem__('w3a_ok', 1))
    sc.note(0, b0, lambda: T.__setitem__('w3b_ok', 1))
    assert d0 + ds_*(8 - NUP) >= b0 and E('D2_AT', 88) > b1
    cl_at = E('GCL_AT', 152)
    for d in range(4): sc.op(1, cl_at - 8, 'v_mov_b32', (GQ[d], -1))
    for k, (mn, ops, mods) in enumerate(clr_ops(GQ, sCl)):
        if E('NOCL', 0) and k > 0: continue
        sc.op(1, cl_at + E('GCL_STEP', 3)*k, mn, ops, mods, tok=(T, 'cl'))
    sc.note(1, cl_at + E('GCL_STEP', 3)*8, lambda: T.__setitem__('cl_ok', sc.n))
    fx_at = E('FX_AT', 520)
    FX = Flags(a, 'FX', vfv, vchk, sFX)
    sc.op(1, fx_at - 70, 'v_bfe_u32', (vchk, lane, 2, 2))
    sc.op(1, fx_at - 70, 'v_lshl_add_u32', (vchk, vchk, 7, vfl))
    sc.call(1, fx_at - 60, FX.load)
    sc.call(1, fx_at, lambda: (FX.check(), T.__setitem__('fx', 1)))
    fl_at = E('FL_AT', 240)
    FC = Flags(a, 'CF', vfv, vfl, sC3)
    sc.call(1, cl_at - 62, FC.load)
    sc.call(1, cl_at - 10, FC.check)
    for n in range(4):
        sc.op(1, fl_at, 'buffer_load_dwordx4', (CSR[n], vq16, RWS, sCS3 if n == 3 else sCS0), f'offen offset:{64*(n % 3)} sc1')
    sq_at = lastbar + 2
    sc.note(0, sq_at, lambda: T['cl_ok'])
    for nu in range(5):
        sc.op(0, sq_at, 'ds_read_b64_tr_b16', (RES[nu], vres), f'offset:{4096*nu}')
    for op in late_setup_ops(): sc.op(0, sq_at, *op)
    for i in range(3):
        for hf in range(2):
            sc.op(0, sq_at, 'ds_read_b64_tr_b16', (SQF[i][2*hf:2*hf+2], vsq), f'offset:{8192*i + 1024*hf}', tok=(T, 'sqr'))
    def sq_mf():
        a(MFMA, SQA, SQF[1], SQF[1], 0)
        a(MFMA, SQA, SQF[2], SQF[2], SQA)
        a('s_bitcmp1_b32', sC, 2)
        a('s_cbranch_scc1', 'SQ_skip')
        a(MFMA, SQA, SQF[0], SQF[0], SQA)
        a.label('SQ_skip')
    sm = pbar + 4
    sc.call(0, sm, sq_mf)
    sc.op(0, sm + 4, 'v_cndmask_b32', (MT[0], SQA[0], SQA[1], MSK[0]))
    sc.op(0, sm + 4, 'v_cndmask_b32', (MT[0], MT[0], SQA[2], MSK[1]))
    sc.op(0, sm + 4, 'v_cndmask_b32', (MT[0], MT[0], SQA[3], MSK[2]))
    sc.op(0, sm + 4, 'buffer_store_dword', (MT[0], vsqs, RWS, sSQs), 'offen sc1')
    held = []
    def flush_ha():
        for e in [e for e in sc.mem if e[3:] == ('ha',)]:
            sc.mem.remove(e); sc.emit(e[2](False))
    for P in range(2):
        e0 = ends[(P, 0)]
        for k in range(2):
            sc.op(0, e0 + 3, 'v_mul_f32', (MT[k], '0xbacccccd', ACC[3][4*P + k][0]))
        for k in range(2):
            sc.op(0, e0 + 3, 'ds_write_b32', (vsw[k], MT[k]), f'offset:{16*P}', tok=(T, 'mw'))
        def mbar(P=P):
            a.wait_lg_tok(T['mw'])
            if P == 0: a.wait_vm_tok(T['cl'])
            a('s_barrier')
            if P == 0:
                a('s_cmp_lg_u32', sw, 0)
                a('s_cbranch_scc1', 'FX_pub')
                a('s_mov_b64', 'exec', 1)
                publish(a, sFXw, 0)
                a('s_mov_b64', 'exec', -1)
                a.label('FX_pub')
        sc.call(0, e0 + 10, mbar)
        for k in range(4):
            sc.op(0, e0 + 10, 'ds_read_b32', (MEAN[4*P + k], vsr[k]), f'offset:{16*P}')
        for c, mn, ops, mods in epi_ops(P, 0):
            if P and E('DEFER', 0) and 'store' in mn: held.append((mn, ops, mods))
            else: sc.op(0, e0 + 16, mn, ops, mods)
        for c, mn, ops, mods in epi_ops(P, 2, pk=(P == 1)):
            if P and E('DEFER', 0) >= 2 and 'store' in mn: held.append((mn, ops, mods))
            else: sc.op(0, ends[(P, 2)] + 3, mn, ops, mods)
        if P and held:
            if E('DEFER', 0) == 1:
                k = [i for i, e in enumerate(sc.q[0]) if e[0] == ends[(1, 2)] + 3 and e[1] == 'i' and 'store' in e[2][0][0]][0]
                for mn, ops, mods in reversed(held): sc.q[0].insert(k, (ends[(1, 2)] + 3, 'i', [(mn, ops, mods, None)]))
            else:
                sc.note(0, ends[(1, 2)] + 3, lambda: flush_ha())
                for mn, ops, mods in held: sc.op(0, ends[(1, 2)] + 3, mn, ops, mods)
        sc.note(0, ends[(P, 2)] + 3, lambda P=P: T.__setitem__(f'st{P}', sc.n))
    wd0 = E('WD_AT', 170)
    for f in range(70 - NPK):
        w = WDL[f][1]
        av = max(28*(w[1] + 1) + 1, wd0) if w[0] == 'p1' else when[w] + 1
        if not E('NOWD', 0): sc.load(av, 2*f + 1, lambda dry, f=f: wd_load(f, dry))
    for k in range(NPK):
        f = 70 - NPK + k
        i, nu = divmod(f, 5)
        def park(dry, k=k, i=i, nu=nu):
            return [('s_add_u32', ('m0', sPark, 1024*k), '', None),
                    ('s_add_u32', (sPkT, sPkG, nu*TS + 1024*i), '', None),
                    ('buffer_load_dwordx4', (l16, RWS, sPkT), 'offen' + LD + ' lds', (T, 'pk'))]
        if not E('NOWD', 0): sc.load(pbar + 1, 44 + k*0.01, park)
        def wpk():
            a.wait_vm_tok(T['pk'])
        if k == 0 and not E('NOWD', 0): sc.sca(1, when[WDL[f][1]] + 1, wpk)
        sc.op(1, when[WDL[f][1]] + 1, 'ds_read_b128', (WD(f), vpr), f'offset:{1024*k}')
    def hl(i, j, P, dry):
        assert f'st{P}' in T and 'fx' in T, (i, j, sc.n)
        return hload(i, j, dry)
    for i in range(7):
        for j in range(2):
            sc.load(E('HA_AT', 545), 10*i - 10 + j - E('HA_PRI', 100), lambda dry, i=i, j=j: hl(i, j, 0, dry))
            sc.mem[-1] += ('ha',)
    sc.sort()

    GST = eval(os.environ.get('GST', '[]'))
    print('n1', n1, 'ends', ends, 'NM', NM, file=sys.stderr)
    base = [0]*8
    cover = [1]
    def bread(s, hf):
        ks, j = steps[s]
        assert ks <= cover[0], (s, ks, cover)
        return ('ds_read_b64_tr_b16', (BF[s & 7][2*hf:2*hf+2], VRD[j]), f'offset:{(ks & 7)*8192 + 1024*hf}')
    def bfix(s):
        ks, j = steps[s]
        if base[j] == ks >> 3: return []
        d = (ks >> 3) - base[j]
        base[j] = ks >> 3
        return [('v_add_u32', (VRD[j], d*65536, VRD[j]))]
    if HV: hval(0, 1, None)()
    a.wait_vm_tok(dt[1])
    a('s_barrier')
    stamp(a, 10)
    if E('CLK', 0): a('s_memtime', S(72, 2)); a.wait(lg=0)
    for s in range(8):
        for hf in range(2):
            r = bread(s, hf); a(r[0], *r[1], mods=r[2])
    seen = set()
    seq = []
    for s, (ks, j) in enumerate(steps):
        nk = 4 if (j & 3) < 2 else 3
        for k in range(nk):
            acc = ACC[k][j]
            seq.append((s, k, nk, (MFMA, (acc, W1(ks, k), BF[s & 7], acc if acc.idx in seen else 0), '')))
            seen.add(acc.idx)
    for x, (s, k, nk, m) in enumerate(seq):
        if sc.n in bars:
            a.wait_vm_tok(dt[bars[sc.n]])
            if HV and sc.n in hvn: assert hvn[sc.n] in T, sc.n
            if sc.n == pbar: a.wait_lg_tok(T['sqr'])
            if sc.n == b0: assert T['w3a_ok']; a.wait_lg_tok(T['w3a'])
            if sc.n == b1: assert T['w3b_ok']; a.wait_lg_tok(T['w3b'])
            a('s_barrier')
            cover[0] = bars[sc.n]
        if sc.n == ends[(0, 2)]: stamp(a, 11)
        if sc.n in GST: stamp(a, 1 + GST.index(sc.n))
        a(m[0], *m[1])
        sc.n += 1
        fixed = []
        if 1 <= s and s + 7 < len(steps):
            if E('BB', 1) and sc.n > E('BB_AT', 320): fixed += [bread(s + 7, 0), bread(s + 7, 1)] if k == 0 else []
            elif k < 2: fixed.append(bread(s + 7, k))
        if k == 2 and s + 8 < len(steps): fixed += bfix(s + 8)
        sc.gap(fixed, [seq[x + 1][3]] if x + 1 < len(seq) else [])
    print('after gemm1:', sc.left(), 'first epilogue done at', T['st0'], 'over', sc.over, file=sys.stderr)
    stamp(a, 12)
    if E('CLK', 0):
        a('s_memtime', S(74, 2)); a.wait(lg=0)
        a('s_sub_u32', S(72), S(74), S(72))
        a('s_add_u32', S(72), S(72), S(70))
    a('s_lshl_b32', st0, S(15), 2)
    a('s_add_u32', st0, st0, sStat)
    a('v_and_b32', t0, 15, lane)
    a('v_lshl_add_u32', t1, t0, 5, st0)
    a('ds_read_b32', RS2, t1)
    a('v_lshlrev_b32', t0, 5, t0)
    sc.drain(E('BEV', 10))
    print('after burst:', sc.left(), file=sys.stderr)
    g0 = sc.n
    for i in range(7, 14):
        for j in range(2): sc.load(g0, 10*i - 10 + j, lambda dry, i=i, j=j: hl(i, j, 1, dry))
    for i in range(14):
        for j in (2, 3): sc.load(g0 + max(10*i + 5*(j - 1), E('HB_AT', 85), 140 + min(10*i, 140 - 10*E('NT', 4)) - E('HB_LEAD', 55)), 140 + 10*i - 10 + j, lambda dry, i=i, j=j: hl(i, j, 1, dry))
    EB = E('EBAR', 40)
    if EB:
        def ebar():
            a.wait(lg=0)
            a('s_barrier')
        sc.call(0, g0 + EB, ebar)
    sc.step = E('VSTEP2', 3)
    hcheck(sc, 0, 0, 0)
    while sc.q[2]:
        sc.gap()
    for i in range(1, 14): hcheck(sc, g0 + 10*i - E('CK', 5), i, 0)
    sc.sort()
    seq = [(i, (MFMA, (ACC2[j][nu], WD(5*i + nu), HF[2*i + j], ACC2[j][nu] if i else 0), '')) for i in range(14) for j in range(2) for nu in range(5)]
    for x, (i, m) in enumerate(seq):
        assert f'HC0_{i}' in T, i
        if 1000 + x in GST: stamp(a, 1 + GST.index(1000 + x))
        a(m[0], *m[1])
        sc.n += 1
        sc.gap([], [seq[x + 1][1]] if x + 1 < len(seq) and f'HC0_{seq[x + 1][0]}' in T else [])
    print('after gemm2a:', sc.left(), 'over', sc.over, file=sys.stderr)
    stamp(a, 13)
    def sqload():
        for k in range(2):
            a('buffer_load_dwordx4', BFQ[k], t0, RWS, sSQl, mods=f'offen offset:{16*k} sc1')
    sqload()
    if not EB:
        a.wait(lg=0)
        a('s_barrier')
    vw, vr = t1, t2
    a('s_mul_i32', st0, sw, 5120)
    a('v_add_u32', vw, st0, l16)
    a('s_mul_i32', st0, sw, 20480)
    a('v_add_u32', vr, st0, l16)
    vw2 = vsqs
    a('v_add_u32', vw2, 40960, vw)
    g1 = sc.n
    for j in range(2):
        for nu in range(5):
            sc.op(0, g1 + 2 + 5*(5*j + nu), 'ds_write_b128', (vw, ACC2[j][nu]), f'offset:{20480*j + 1024*nu}')
    sqbad = [('v_max3_u32', (vck, BFQ[0][0], BFQ[0][1], BFQ[0][2])), ('v_max3_u32', (vck, vck, BFQ[0][3], BFQ[1][0])),
             ('v_max3_u32', (vck, vck, BFQ[1][1], BFQ[1][2])), ('v_max_u32', (vck, vck, BFQ[1][3])), ('v_cmp_eq_u32', ('vcc', -1, vck))]
    rec = []
    r = lambda mn, *ops, mods='': rec.append((mn, ops, mods))
    for k in range(4): r('v_add_f32', BFQ[0][k], BFQ[0][k], BFQ[1][k])
    r('v_add_f32', BFQ[0][0], BFQ[0][0], BFQ[0][1])
    r('v_add_f32', BFQ[0][2], BFQ[0][2], BFQ[0][3])
    r('v_add_f32', BFQ[0][0], BFQ[0][0], BFQ[0][2])
    s2, tt = BFQ[0][0], BFQ[0][1]
    r('v_mul_f32', tt, RS2, RS2)
    r('v_mul_f32', s2, '0x3acccccd', s2)
    r('v_sub_f32', s2, s2, tt)
    r('v_max_f32', s2, 0, s2)
    rbf(r, s2)
    r('v_add_f32', s2, '0x3727c5ac', s2)
    rbf(r, s2)
    r('v_sqrt_f32', s2, s2)
    rbf(r, s2)
    r('v_rcp_f32', s2, s2)
    r('v_mul_f32', RS2, s2, s2)
    for mn, ops, mods in rec: sc.op(1, g1 + 72, mn, ops, mods)
    NT = E('NT', 4)
    seq = [(i, j, nu) for i in range(14 - NT) for j in (2, 3) for nu in range(5)]
    tail0 = len(seq)
    seq += [(i, j, nu) for j in (2, 3) for nu in range(5) for i in range(14 - NT, 14)]
    for k, (j, nu) in enumerate([(j, nu) for j in (2, 3) for nu in range(5)]):
        sc.op(0, g1 + tail0 + NT*(k + 1) + 2, 'ds_write_b128', (vw2, ACC2[j][nu]), f'offset:{20480*(j - 2) + 1024*nu}')
    issued = lambda i: not any(e[0] in (140 + 10*i - 10 + 2, 140 + 10*i - 10 + 3) for e in sc.mem)
    assert issued(0)
    hcheck(sc, 0, 0, 1)
    while sc.q[2]:
        sc.gap()
    for i in range(1, 14):
        at = g1 + ((10*i - E('CK', 5)) if i < 14 - NT else (tail0 - 5 - 3*(13 - i)))
        sc.note(2, at, lambda i=i: None if issued(i) else 1/0)
        hcheck(sc, at, i, 1)
        if i == 6: guarded(sc, 2, g1 + 60, 'SQC', sqbad, lambda: sqload)
    sc.sort()
    ms = [(i, (MFMA, (ACC2[j][nu], WD(5*i + nu), HF[2*i + (j & 1)], ACC2[j][nu] if i else 0), '')) for i, j, nu in seq]
    for x, (i, m) in enumerate(ms):
        assert f'HC1_{i}' in T, i
        if sc.n == g1 + 71: assert 'SQC' in T
        if 1140 + x in GST: stamp(a, 1 + GST.index(1140 + x))
        a(m[0], *m[1])
        sc.n += 1
        sc.gap([], [ms[x + 1][1]] if x + 1 < len(ms) and f'HC1_{ms[x + 1][0]}' in T else [])
    print('after gemm2b:', sc.left(), 'over', sc.over, file=sys.stderr)
    sc.n += 100
    sc.drain()
    if 1280 in GST: stamp(a, 1 + GST.index(1280))
    a.wait(lg=0)
    a('s_barrier')
    RD = [V(16 + 4*k, 4) for k in range(20)]
    for nu in range(5):
        for k in range(4):
            a('ds_read_b128', RD[4*nu + k], vr, mods=f'offset:{5120*k + 1024*nu}')
    X = V(96, 4)
    Q = [V(100, 4), V(104, 4), V(108, 2)]
    vo2 = V(110)
    a('v_and_b32', t0, 15, lane)
    a('v_mul_u32_u24', t0, 1280, t0)
    a('v_lshrrev_b32', t1, 1, vq16)
    a('v_add_u32', vo2, t0, t1)
    rp = V(12, 2)
    for nu in range(5):
        C, C2 = RD[4*nu], RD[4*nu + 2]
        for h in range(2):
            a('v_pk_add_f32', C[2*h:2*h+2], C[2*h:2*h+2], RD[4*nu + 1][2*h:2*h+2])
            a('v_pk_add_f32', C2[2*h:2*h+2], C2[2*h:2*h+2], RD[4*nu + 3][2*h:2*h+2])
        a('v_lshlrev_b32', X[0], 16, RES[nu][0])
        a('v_and_b32', X[1], '0xffff0000', RES[nu][0])
        a('v_lshlrev_b32', X[2], 16, RES[nu][1])
        a('v_and_b32', X[3], '0xffff0000', RES[nu][1])
        for h in range(2):
            a('v_pk_add_f32', C[2*h:2*h+2], C[2*h:2*h+2], C2[2*h:2*h+2])
        for h in range(2):
            a('v_pk_fma_f32', C[2*h:2*h+2], C[2*h:2*h+2], rp, X[2*h:2*h+2], mods='op_sel:[0,1,0] op_sel_hi:[1,1,1]')
        q = Q[nu >> 1]
        for h in range(2):
            a('v_cvt_pk_bf16_f32', q[2*(nu & 1) + h], C[2*h], C[2*h+1])
        if nu & 1:
            a('v_permlane16_swap_b32', q[0], q[2])
            a('v_permlane16_swap_b32', q[1], q[3])
            a('buffer_store_dwordx4', q, vout, ROUT, sOut, mods=f'offen offset:{64*(nu >> 1)}')
    a('buffer_store_dwordx2', Q[2], vo2, ROUT, sOut, mods='offen offset:128')
    return slow

def slow_paths(a, slow):
    for name, bad, reload in slow:
        a.label(name + '_slow')
        a.wait(lg=0)
        a('s_mov_b32', sCnt, SPIN)
        reload()
        a.spin_head(name + '_spin')
        bad()
        a('s_cbranch_vccz', name + '_back')
        reload()
        a('s_sub_u32', sCnt, sCnt, 1)
        a('s_cbranch_scc0', name + '_spin')
        a.wait(vm=0)
        a('s_branch', name + '_back')

def kernel(a):
    stamp(a, 0)
    if STAMP:
        for i in range(1, 15): a('s_mov_b32', S(70 + 2*i), S(70))
    a('s_cmp_lt_u32', S(2), 256)
    a('s_cbranch_scc1', 'K_go')
    a('s_endpgm')
    a.label('K_go')
    load_args(a)
    if E('PF0', 1): code_prefetch(a, 'PC0')
    wave_id(a, sw, t0)
    a('v_and_b32', lane, 63, V(0))
    a('v_lshlrev_b32', l16, 4, lane)
    a('v_and_b32', vq16, 48, lane)
    a('s_cmp_ge_u32', S(2), 160)
    a('s_cbranch_scc1', 'K_helper')
    tht = conv_wg(a)
    if E('PUBE', 0) == 0: gemm_setup(a)
    a.wait_vm_tok(tht)
    a.wait(lg=0)
    a('s_barrier')
    if not E('PUB_AT', 232): publish_n(a, S(2))
    if E('PUBE', 0) == 1: gemm_setup(a)
    if not E('R3B', 1):
        w_round(a, 2, 1, 3, 6)
    p2_touch(a)
    a('s_branch', 'K_gemm')
    a.label('K_helper')
    helper_wg(a)
    gemm_setup(a)
    a.label('K_gemm')
    a('s_cmp_lg_u32', sw, 0)
    a('s_cbranch_scc1', 'C2_skip')
    a('s_and_b32', st2, S(2), NREP - 1)
    a('s_mul_i32', st2, st2, HSTR)
    a('s_add_u32', st2, st2, hex(FLH2))
    a('v_min_u32', t1, 39, lane)
    a('v_lshrrev_b32', t2, WPL - 2, t1)
    a('v_lshlrev_b32', t2, 7, t2)
    a('v_and_b32', t1, (1 << WPL - 2) - 1, t1)
    a('v_lshl_add_u32', t2, t1, 4, t2)
    Flags(a, 'C2', BF[2], t2, st2, tmp=S(68, 2)).wait()
    a.label('C2_skip')
    a.wait(lg=0)
    a('s_barrier')
    stamp(a, 9)
    slow = gemms(a)
    if STAMP: a.wait(vm=0)
    stamp_flush(a, 0, 15, sw, RWS)
    a('s_endpgm')
    slow_paths(a, slow)
    a.items.append('CODE_END:')

if __name__ == '__main__':
    txt = build([(NAME + '_kernel', kernel, 256, 163840, 512, 256)])
    txt = txt.replace(f'@launch kernel={NAME}_kernel grid', '@launch grid')
    open(sys.argv[1], 'w').write(txt)
```

```python
from gen import *

E = lambda k, d: int(os.environ.get(k, str(d)))
LD = os.environ.get('LDM', '')
LD1 = os.environ.get('LD1', ' sc1')
NT_ = os.environ.get('NTI', ' nt')
KS = 8
FL = 0x1800000
FLA, FLH, FLP, FLC, FL3, EPOCH = FL, FL + 0x8000, FL + 0x10000, FL + 0x14000, FL + 0x18000, FL + 0x20000
FLD, FLG = FL + 0x5000, 0x1900000
HSTR, PSTR = 64*128, 24*128
SQ, AB, KV2, KVR = ST, 0x7A0000, WP1, 20480
SPIN = 20000
WROW = F_*2
TS = 224*256
WB, WSS, WUO = 4*CONV_LDS, 14368, 7184
RND = [[0, 1, 2, 3, 8, 9, 10], list(range(11, 18)), [4, 5, 6, 7, 18, 19]]

sw = S(3)
st0, st1, st2 = S(4), S(5), S(6)
ROUT, RWS = S(56, 4), S(60, 4)
sB, sC, sUb, sHT, sLds, sStat, sOut, sC3 = [S(16 + i) for i in range(8)]
sHH = [S(24 + i) for i in range(4)]
sRot, sSQl, sSQs, sU3, sCS0, sCS3 = [S(28 + i) for i in range(6)]
sA = [S(8), S(9)]
sCnt, sWo, sEp, sWl, sWs, sTag, sTag2 = S(11), S(42), S(43), S(38), S(49), S(100), S(100, 2)
RW1 = S(64, 4)
sWn = [S(44 + i) for i in range(5)]

lane, t0, t1, t2 = V(1), V(2), V(3), V(4)
l16, vdma, vh01, vh23, vh2x, vst, vres, vq16 = [V(5 + i) for i in range(8)]
vfl, vfv, vtg = V(249), V(254), V(255)
def W1(ks, n):
    if 4 <= ks < 8: return V(144 + 16*(ks - 4) + 4*n, 4)
    return A(16*(ks if ks < 4 else ks - 4) + 4*n, 4)
vWd = [V(226 + i) for i in range(4)]
vWr = [V(230 + i) for i in range(4)]

def spin(a, name, load, bad, first=True):
    a.wait(lg=0)
    a('s_mov_b32', sCnt, SPIN)
    if first: load()
    a.spin_head(name + '_spin')
    bad()
    a('s_cbranch_vccz', name + '_done')
    load()
    a('s_sub_u32', sCnt, sCnt, 1)
    a('s_cbranch_scc0', name + '_spin')
    a.wait(vm=0)
    a.label(name + '_done')

class Flags:
    def __init__(self, a, name, vval, vaddr, soff, off=0, tmp=None):
        self.a, self.name, self.vval, self.vaddr, self.soff, self.off, self.tmp = a, name, vval, vaddr, soff, off, tmp
    def load(self):
        mn = {1: 'buffer_load_dword', 2: 'buffer_load_dwordx2', 4: 'buffer_load_dwordx4'}[self.vval.n]
        self.tok = self.a(mn, self.vval, self.vaddr, RWS, self.soff, mods=f'offen offset:{self.off} sc1')
    def bad(self):
        a, v = self.a, self.vval
        if v.n == 1:
            a('v_cmp_ne_u32', 'vcc', sTag, v)
            return
        if v.n == 4: a('v_cmp_ne_u64', self.tmp, sTag2, v[2:4])
        a('v_cmp_ne_u64', 'vcc', sTag2, v[0:2])
        if v.n == 4: a('s_or_b64', 'vcc', 'vcc', self.tmp)
    def check(self):
        a = self.a
        a.wait_vm_tok(self.tok)
        self.bad()
        a('s_cbranch_vccz', self.name + '_ok')
        spin(a, self.name, self.load, self.bad)
        a.label(self.name + '_ok')
    def wait(self):
        spin(self.a, self.name, self.load, self.bad)

def publish(a, soff, off):
    return a('buffer_store_dword', vtg, 'off', RWS, soff, mods=f'offset:{off} sc1')

def publish_rep(a, name, base, stride, idx):
    a('s_cmp_lg_u32', sw, 0)
    a('s_cbranch_scc1', name)
    a('s_lshr_b32', st0, idx, 2)
    a('s_lshl_b32', st0, st0, 7)
    a('s_and_b32', st1, idx, 3)
    a('s_lshl_b32', st1, st1, 2)
    a('s_add_u32', st0, st0, st1)
    a('s_add_u32', st0, st0, hex(base))
    a('v_mul_u32_u24', t0, stride, lane)
    a('s_mov_b64', 'exec', 15)
    a('buffer_store_dword', vtg, t0, RWS, st0, mods='offen sc1')
    a('s_mov_b64', 'exec', -1)
    a.label(name)

def publish4(a, base, stride, idx):
    a('s_lshr_b32', st0, idx, 2)
    a('s_lshl_b32', st0, st0, 7)
    a('s_and_b32', st1, idx, 3)
    a('s_lshl_b32', st1, st1, 2)
    a('s_add_u32', st0, st0, st1)
    a('s_mul_i32', st1, sw, stride)
    a('s_add_u32', st0, st0, st1)
    a('s_add_u32', st0, st0, hex(base))
    a('s_mov_b64', 'exec', 1)
    a('buffer_store_dword', vtg, 'off', RWS, st0, mods='sc1')
    a('s_mov_b64', 'exec', -1)

NREP, WPL = E('NREP', 4), E('WPL', 2)
FLH2 = 0x1A00000
def publish_n(a, idx):
    a('s_lshr_b32', st0, idx, WPL)
    a('s_lshl_b32', st0, st0, 7)
    a('s_and_b32', st1, idx, (1 << WPL) - 1)
    a('s_lshl_b32', st1, st1, 2)
    a('s_add_u32', st0, st0, st1)
    a('s_mul_i32', st1, sw, HSTR*NREP//4)
    a('s_add_u32', st0, st0, st1)
    a('s_add_u32', st0, st0, hex(FLH2))
    a('v_min_u32', t0, NREP//4 - 1, lane)
    a('v_mul_u32_u24', t0, HSTR, t0)
    a('s_mov_b64', 'exec', (1 << NREP//4) - 1)
    a('buffer_store_dword', vtg, t0, RWS, st0, mods='offen sc1')
    a('s_mov_b64', 'exec', -1)

def rep_base(a, dst, base, stride):
    a('s_and_b32', dst, S(2), 3)
    a('s_mul_i32', dst, dst, stride)
    a('s_add_u32', dst, dst, hex(base))

def tag_setup(a):
    a('s_mul_i32', sTag, sEp, '0x9e3779b1')
    a('s_add_u32', sTag, sTag, '0x7f4a7c15')
    a('s_mov_b32', sTag2[1], sTag)
    a('v_mov_b32', vtg, sTag)

def code_prefetch(a, nm):
    a('s_getpc_b64', S(68, 2))
    a.label(nm)
    if E('PFALL', 0):
        a('v_lshlrev_b32', t0, 7, V(0))
        for i in range(2):
            if i: a('v_add_u32', t0, 32768, t0)
            a('v_min_u32', t1, f'CODE_END-{nm}-4', t0)
            a('global_load_dword', V(14 + i), t1, S(68, 2))
        return
    a('s_lshr_b32', st0, S(2), 3)
    a('s_lshl_b32', st0, st0, 11)
    a('v_lshrrev_b32', t0, 4, V(0))
    a('v_lshl_add_u32', t0, t0, 7, st0)
    a('v_min_u32', t1, f'CODE_END-{nm}-4', t0)
    a('global_load_dword', V(14), t1, S(68, 2))

def role_setup(a):
    a('s_bfe_u32', sB, S(2), (1 << 16) | 2)
    a('s_lshl_b32', sB, sB, 3)
    a('s_lshr_b32', st1, S(2), 5)
    a('s_add_u32', sB, sB, st1)
    a('s_and_b32', sC, S(2), 3)
    a('s_lshl_b32', sC, sC, 2)
    a('s_bfe_u32', st1, S(2), (2 << 16) | 3)
    a('s_add_u32', sC, sC, st1)
    a('s_mul_i32', sUb, sw, 13)
    a('s_add_u32', sUb, sUb, 3)
    a('s_lshr_b32', sUb, sUb, 2)
    a('s_lshr_b32', sU3, sw, 1)
    a('s_mul_i32', sU3, sU3, 10)
    a('s_add_u32', sU3, sU3, 3)

def w_srd(a):
    a('s_cmp_ge_u32', sw, 2)
    a('s_cselect_b32', RW1[0], P_WU[0], P_WG[0])
    a('s_cselect_b32', RW1[1], P_WU[1], P_WG[1])
    a('s_and_b32', RW1[1], RW1[1], '0xffff')
    a('s_mov_b32', RW1[2], hex(D_*F_*2))
    a('s_mov_b32', RW1[3], '0x20000')

def w_setup(a):
    odd = st2
    a('s_and_b32', odd, sC, 1)
    a('s_lshl_b32', odd, odd, 3)
    a('s_mul_i32', sWo, sC, 216)
    a('s_sub_u32', sWo, sWo, odd)
    a('s_lshr_b32', st0, sw, 1)
    a('s_mul_i32', sWl, st0, WUO)
    a('s_and_b32', st0, sw, 1)
    a('s_mul_i32', st1, st0, 3584)
    a('s_add_u32', sWl, sWl, st1)
    a('s_add_u32', sWl, sWl, WB)
    a('s_mul_i32', st0, st0, 16*WROW)
    a('v_mul_u32_u24', t0, 37, lane)
    a('v_lshrrev_b32', t0, 9, t0)
    a('v_mul_u32_u24', t0, WROW - 224, t0)
    a('v_add3_u32', vWd[0], t0, l16, st0)
    for k in range(1, 4):
        a('v_add_u32', vWd[k], (8*(k & 1) + 4*(k >> 1))*WROW - 896*k, vWd[0])
    a('v_lshrrev_b32', t0, 5, lane)
    a('v_bfe_u32', t1, lane, 2, 3)
    a('v_lshl_add_u32', t0, t0, 4, t1)
    a('v_mul_u32_u24', t0, 224, t0)
    a('s_add_u32', odd, odd, WB)
    a('v_add_u32', t0, odd, t0)
    a('s_lshl_b32', st0, sUb, 4)
    a('v_and_b32', t1, 3, lane)
    a('v_lshl_add_u32', t1, t1, 3, t0)
    a('v_add_u32', vWr[0], st0, t1)
    a('v_and_b32', t1, 1, lane)
    a('v_lshl_add_u32', t0, t1, 3, t0)
    a('v_bfe_u32', t2, lane, 1, 1)
    a('v_mul_u32_u24', vWr[3], WUO, t2)
    a('v_add_u32', t0, t0, vWr[3])
    a('s_add_u32', st0, st0, 32)
    a('v_add_u32', vWr[1], st0, t0)
    a('s_lshl_b32', st0, sU3, 4)
    a('v_add_u32', vWr[2], st0, t0)
    a('v_add_u32', vWr[3], 1792, vWr[2])
    a('v_lshlrev_b32', t2, 3, t2)
    a('v_add_u32', t2, WB + 7168, t2)
    a('s_lshr_b32', st0, sw, 1)
    a('v_and_b32', t1, st0, t1)
    a('v_cmp_ne_u32', 'vcc', 0, t1)
    a('v_cndmask_b32', vWr[2], vWr[2], t2, 'vcc')
    a('v_cndmask_b32', vWr[3], vWr[3], t2, 'vcc')

def w_holes(a, Q):
    a('v_mov_b32', Q[0], 0)
    a('v_mov_b32', Q[1], 0)
    a('v_mov_b32', Q[2], '0x3f803f80')
    a('v_mov_b32', Q[3], '0x3f803f80')
    a('v_min_u32', t0, 6, lane)
    a('v_mul_u32_u24', t0, WSS, t0)
    a('ds_write_b128', t0, Q, mods=f'offset:{WB + 7168}')

def w_dma(a, ks, slot, part, mask=True):
    if part == 0 or mask: a('s_add_u32', 'm0', sWl, slot*WSS)
    if part == 0: a('s_add_u32', sWs, sWo, ks*32*WROW)
    if mask: a('s_mov_b32', 'exec_hi', '0xffffff')
    for k in (2*part, 2*part + 1):
        t = a('buffer_load_dwordx4', vWd[k], RW1, sWs, mods=f'offen offset:{896*k}' + os.environ.get('WNT', '') + ' lds')
    if mask: a('s_mov_b32', 'exec_hi', -1)
    return t

def w_round(a, r, slot0=0, lo=0, hi=7):
    a('s_mov_b32', 'exec_hi', '0xffffff')
    for i, ks in list(enumerate(RND[r]))[lo:hi]:
        for part in range(2): t = w_dma(a, ks, slot0 + i, part, False)
    a('s_mov_b32', 'exec_hi', -1)
    return t

def w_round_x(a, r, slot0, nm, lo=0, hi=7, older=False):
    a('s_cmp_lg_u32', sw, 1)
    a('s_cbranch_scc1', nm)
    w_round(a, r, slot0, lo, hi)
    a('s_sub_u32', sWl, sWl, 3584)
    for k in range(4): a('v_subrev_u32', vWd[k], 16*WROW, vWd[k])
    w_round(a, r, slot0, lo, hi)
    a('s_add_u32', sWl, sWl, 3584)
    for k in range(4): a('v_add_u32', vWd[k], 16*WROW, vWd[k])
    if older: a.wait(vm=8*(hi - lo))
    a.label(nm)

def w_round_y(a, r, slot0, nm, lo=0, hi=7, older=False):
    a('s_cmp_lt_u32', sw, 2)
    a('s_cbranch_scc1', nm)
    w_round(a, r, slot0, lo, hi)
    if older: a.wait(vm=4*(hi - lo))
    a.label(nm)

def touch_lanes(a, vt):
    a('s_and_b32', st0, S(2), 3)
    a('s_mul_i32', st0, st0, 27)
    a('s_lshr_b32', st0, st0, 2)
    a('v_and_b32', t0, 7, lane)
    a('v_add_u32', t0, st0, t0)
    a('v_min_u32', t0, 26, t0)
    a('v_lshrrev_b32', t1, 3, lane)
    a('v_mul_u32_u24', t1, WROW, t1)
    a('v_lshl_add_u32', vt, t0, 7, t1)

def w_reads(ks, rel, R=vWr):
    L = []
    for n in range(4):
        for hf in range(2):
            ad = R[0] if n < 2 else (R[1] if n == 2 else R[2 + hf])
            off = rel*WSS + (WUO if n == 1 else 0) + (1792*hf if n < 3 else 0)
            L.append(('ds_read_b64_tr_b16', (W1(ks, n)[2*hf:2*hf+2], ad), f'offset:{off}'))
    return L

def w_shift(d, R=vWr, D=None):
    return [('v_add_u32', ((D or R)[i], hex((d*WSS) & 0xffffffff), R[i]), '') for i in range(4)]

def w_read_ops(r):
    L = []
    if r == 0:
        for i, ks in enumerate(RND[0]):
            if i == 4: L += w_shift(4)
            L += w_reads(ks, i & 3)
    else:
        for i in reversed(range(7)):
            if i == 3: L += w_shift(-4)
            L += w_reads(RND[1][i], i & 3)
    return L

def clr_setup_h(a, sh):
    a('s_lshl_b32', st0, sB, 3)
    a('s_lshl_b32', st1, sw, 1)
    a('s_add_u32', st1, st1, st0)
    a('s_mul_i32', sh, st1, TS)
    a('s_mul_i32', st1, sC, 14*256)
    a('s_add_u32', sh, sh, st1)
    a('s_add_u32', sh, sh, hex(HH))

def clr_setup_q(a, sq, vq):
    a('s_lshl_b32', st0, sB, 3)
    a('s_lshr_b32', st1, sC, 3)
    a('s_lshl_b32', st1, st1, 2)
    a('s_add_u32', st0, st0, st1)
    a('s_and_b32', st1, sC, 3)
    a('s_add_u32', st0, st0, st1)
    a('s_lshl_b32', sq, st0, 9)
    a('s_and_b32', st1, sC, 4)
    a('s_add_u32', st1, st1, sw)
    a('s_lshl_b32', st1, st1, 2)
    a('s_add_u32', sq, sq, st1)
    a('s_add_u32', sq, sq, hex(SQ))
    a('v_lshrrev_b32', t0, 4, lane)
    a('v_bfe_u32', t1, lane, 2, 2)
    a('v_cmp_eq_u32', 'vcc', t0, t1)
    a('v_and_b32', t0, 15, lane)
    a('v_lshlrev_b32', t0, 5, t0)
    a('v_mov_b32', t1, hex(OOB))
    a('v_cndmask_b32', vq, t1, t0, 'vcc')

def clr_ops(Q, sh):
    L = []
    for k in range(8):
        if k == 4: L.append(('s_add_u32', (sh, sh, TS), ''))
        if E('CLW', 0): L.append(('buffer_store_dword', (Q[0], l16, RWS, sh), f'offen offset:{(0, 1024, 2048, 2560)[k & 3]} sc1'))
        else: L.append(('buffer_store_dwordx4', (Q, l16, RWS, sh), f'offen offset:{(0, 1024, 2048, 2560)[k & 3]} sc1'))
    return L

def hh_clear(a, sh, Q):
    clr_setup_h(a, sh)
    for d in range(4): a('v_mov_b32', Q[d], -1)
    for mn, ops, mods in clr_ops(Q, sh): a(mn, *ops, mods=mods)

def p2_touch_setup(a, vt2, sT2):
    a('s_lshr_b32', st2, S(2), 3)
    a('s_lshl_b32', st2, st2, 2)
    a('s_add_u32', st2, st2, sw)
    a('s_mul_i32', sT2, st2, 70*128)
    a('s_bfe_u32', st1, S(2), (1 << 16) | 1)
    a('s_mul_i32', st1, st1, 20*TS)
    a('s_add_u32', sT2, sT2, st1)
    a('s_add_u32', sT2, sT2, hex(WP2 + 124))
    a('v_min_u32', vt2, 34, lane)
    a('v_lshlrev_b32', vt2, 8, vt2)

def p2_touch(a):
    p2_touch_setup(a, V(134), S(68))
    a('buffer_load_dwordx2', V(136, 2), V(134), RWS, S(68), mods='offen')

def pack_flag_addr(a, vaddr):
    a('v_min_u32', vaddr, 39, lane)
    a('v_lshrrev_b32', t0, 1, vaddr)
    a('v_and_b32', vaddr, 1, vaddr)
    a('v_lshlrev_b32', vaddr, 3, vaddr)
    a('v_lshl_add_u32', vaddr, t0, 7, vaddr)

def icls(mn):
    if mn.startswith('s_'): return 's'
    if mn.startswith(('ds_', 'buffer_', 'global_')): return 'm'
    if 'permlane' in mn or mn in TRANS: return 'p'
    return 'v'

class Sched:
    def __init__(self, a, nq=3):
        self.a = a; self.q = [[] for _ in range(nq)]; self.n = 0; self.mem = []; self.last = -100; self.step = 4
        self.over = 0; self.win = E('WIN', 24)
    def op(self, qi, at, mn, ops, mods='', tok=None): self.q[qi].append((at, 'i', [(mn, ops, mods, tok)]))
    def ops(self, qi, at, L): self.q[qi].append((at, 'i', [tuple(x) + ('', None)[len(x) - 2:] for x in L]))
    def call(self, qi, at, fn): self.q[qi].append((at, 'x', fn))
    def sca(self, qi, at, fn): self.q[qi].append((at, 'b', fn))
    def note(self, qi, at, fn): self.q[qi].append((at, 'n', fn))
    def gate(self, qi, at, fn): self.q[qi].append((at, 'g', fn))
    def load(self, avail, need, gen): self.mem.append((need, avail, gen))
    def left(self): return [len(q) for q in self.q] + [len(self.mem)]
    def sort(self):
        for q in self.q: q.sort(key=lambda e: e[0])
        self.mem.sort(key=lambda e: e[0])
    def emit(self, L):
        for mn, ops, mods, tok in L:
            t = self.a(mn, *ops, mods=mods)
            if tok: tok[0][tok[1]] = t
    def gap(self, fixed=(), nxt=(), room=2):
        a = self.a
        C = {'s': [], 'm': [], 'v': []}
        pre = []
        def put(L):
            for x in L: C['v' if icls(x[0]) == 'p' else icls(x[0])].append(x)
        def cost(L=()):
            allv = C['m'] + C['v'] + [x for x in L if icls(x[0]) != 's']
            ns = len(C['s']) + len(pre) + sum(icls(x[0]) == 's' for x in L)
            ns += a.prewait([x[:3] for x in allv] + list(nxt), dry=True)
            return max(0, ns - 1) + sum(2 if icls(x[0]) == 'p' else 1 for x in allv)
        put([tuple(x) + ('', None)[len(x) - 2:] for x in fixed])
        heavy = None
        state = [None]*len(self.q)
        def notes(q):
            while q and q[0][0] <= self.n and (q[0][1] == 'n' or (q[0][1] == 'g' and q[0][2]())): q.pop(0)[2]()
        for q in reversed(self.q):
            notes(q)
            if heavy is None and q and q[0][0] <= self.n and q[0][1] == 'x': heavy = q.pop(0)[2]
        if heavy is None:
            if self.n - self.last >= self.step:
                for k, e in enumerate(self.mem):
                    if e[1] <= self.n:
                        L = e[2](True)
                        if cost(L) <= room:
                            self.mem.pop(k); put(e[2](False)); self.last = self.n
                        break
            for want in ('b', 'm', 'v'):
                for qi in reversed(range(len(self.q))):
                    q = self.q[qi]
                    k = 0
                    rd, wr = set(), set()
                    while k < len(q) and k < self.win and q[k][0] <= self.n:
                        at, kind, pl = q[k]
                        if kind == 'n':
                            if k or state[qi] is not None: break
                            q.pop(0); pl(); continue
                        if kind in 'xg': break
                        if kind == 'b':
                            if k or want != 'b' or state[qi] is not None or pre or C['s']: break
                            pre.append(pl)
                            if cost() > room: pre.pop(); break
                            q.pop(0); state[qi] = 's'; continue
                        if want == 'b': break
                        I = [Inst(x[0], x[1], x[2]) for x in pl]
                        r_ = set().union(*[i.rd for i in I]); w_ = set().union(*[i.wr for i in I])
                        ks = [icls(x[0]) for x in pl]
                        top = 'v' if ('v' in ks or 'p' in ks) else ('m' if 'm' in ks else 's')
                        low = 's' if 's' in ks else ('m' if 'm' in ks else 'v')
                        ok = not (top == 'v' and want != 'v')
                        ok = ok and not (k and top != 'v')
                        ok = ok and not (r_ & wr or w_ & (rd | wr))
                        ok = ok and not (state[qi] is not None and 'smv'.index(low) < 'smv'.index(state[qi]))
                        ok = ok and not (any(x[1][0] == 'm0' for x in pl if icls(x[0]) == 's') and any('lds' in x[2] for x in C['m']))
                        if ok and cost(pl) <= room:
                            q.pop(k); put(pl); state[qi] = top
                            continue
                        if want != 'v': break
                        rd |= r_; wr |= w_
                        k += 1
        if cost() > room: self.over += 1
        for f in pre: f()
        a.prewait([x[:3] for x in C['m'] + C['v']] + list(nxt))
        self.emit(C['s']); self.emit(C['m']); self.emit(C['v'])
        if heavy: heavy()
        for q in self.q: notes(q)
    def drain(self, every=8, keep_mem=True):
        c = 0
        for q in reversed(self.q):
            while q:
                at, kind, pl = q.pop(0)
                if kind == 'i': self.emit(pl); c += len(pl)
                else: pl()
                if c >= every:
                    c = 0
                    for k, e in enumerate(self.mem):
                        if e[1] <= self.n:
                            self.mem.pop(k); self.emit(e[2](False)); break

class Ptr:
    def __init__(self, s): self.s, self.k = s, 0
    def at(self, i, dry):
        L = []
        if i >> 2 != self.k:
            L.append(('s_add_u32', (self.s, self.s, hex((4096*((i >> 2) - self.k)) & 0xffffffff)), '', None))
            if not dry: self.k = i >> 2
        return L, (i & 3)*1024

def conv_wg(a):
    RK, RV, RSK, RSS = S(44, 4), S(48, 4), S(52, 4), S(56, 4)
    sch, sbase, sk01, sD = S(7), S(8), S(9), S(10)
    selLO, selHI, srow = S(13), S(14), S(12)
    va = Alloc('v', 16, 207)
    a('s_lshr_b32', st0, S(2), 4)
    a('s_and_b32', srow, S(2), 15)
    a('s_lshl_b32', srow, srow, 7)
    a('s_lshl_b32', st2, sw, 5)
    a('s_add_u32', srow, srow, st2)
    g, c, vneg, vsk, b3, vok = [va.get() for _ in range(6)]
    voff = V(234)
    a('v_and_b32', c, 7, lane)
    a('v_bfe_u32', b3, lane, 3, 1)
    a('v_bfe_u32', t1, lane, 4, 1)
    a('v_lshl_or_b32', t2, b3, 1, t1)
    a('v_bfe_u32', t0, lane, 5, 1)
    a('v_lshl_or_b32', g, t0, 2, t2)
    a('v_lshl_add_u32', t2, g, 2, srow)
    a('v_mul_u32_u24', voff, 1280, t2)
    a('s_lshl_b32', st2, st0, 7)
    a('v_lshl_add_u32', t2, c, 4, st2)
    a('v_add_u32', voff, voff, t2)
    a('v_subrev_u32', vneg, 3840, voff)
    a('v_lshlrev_b32', vsk, 2, t2)
    if E('EST', 0) == 1: stamp(a, 10, True)
    srd(a, RK, P_K, S_*D_*2)
    if E('EST', 0): stamp(a, 11 if E('EST', 0) == 1 else 9, True)
    K = [va.get(4) for _ in range(7)]
    Vv = [va.get(4) for _ in range(4)]
    SK = va.get(16)
    for i in range(7):
        if i < 3: tk = a('buffer_load_dwordx4', K[i], vneg, RK, 0, mods=f'offen offset:{1280*i}' + NT_)
        else: tk = a('buffer_load_dwordx4', K[i], voff, RK, 0, mods=f'offen offset:{1280*(i-3)}' + NT_)
    if E('EST', 0) == 2: stamp(a, 10, True)
    srd(a, RSK, P_SK, D_*8)
    for i in range(4):
        a('buffer_load_dwordx4', SK.sub(4*i, 4), vsk, RSK, 0, mods=f'offen offset:{16*i}')
    if E('EST', 0) == 2: stamp(a, 11, True)
    srd(a, RV, P_V, S_*D_*2)
    for i in range(4):
        a('buffer_load_dwordx4', Vv[i], voff, RV, 0, mods=f'offen offset:{1280*i}' + NT_)
    if E('EST', 0): stamp(a, 12, True)
    w_srd(a)
    vt = V(243)
    def t1_touch():
        a('s_cmp_ge_u32', S(2), 64)
        a('s_cbranch_scc1', 'T1_skip')
        a('s_bitcmp1_b32', sw, 0)
        a('s_cbranch_scc1', 'T1_skip')
        a('s_lshr_b32', st1, S(2), 3)
        a('s_add_u32', st1, st1, 32)
        a('s_mul_i32', st1, st1, 8*WROW)
        a('buffer_load_dword', V(14), vt, RW1, st1, mods='offen')
        a.label('T1_skip')
    if E('T1POS', 2) == 0: t1_touch()
    a('v_bfe_u32', t1, lane, 4, 1)
    a('v_bfe_u32', t0, lane, 5, 1)
    a('s_lshr_b32', st0, S(2), 4)
    a('s_mov_b32', sEp, hex(EPOCH))
    a('s_load_dword', sEp, P_WS, sEp)
    a('s_lshl_b32', sch, S(2), 2)
    a('s_add_u32', sch, sch, sw)
    a('s_lshl_b32', st2, sch, 12)
    a('s_load_dword', sk01, P_SSMK, st2)
    a('s_lshl_b32', st1, sch, 1)
    a('s_and_b32', st1, st1, '0xfffc')
    a('s_load_dword', sD, P_SSMD, st1)
    srd(a, RWS, P_WS, WS_SIZE)
    if E('KT', 0):
        a('v_min_u32', V(245), E('KT', 0) - 1, lane)
        a('v_lshlrev_b32', V(245), 20, V(245))
        a('s_mov_b32', st2, hex(E('KT0', KV2)))
        a('buffer_load_dword', V(245), V(245), RWS, st2, mods='offen')
    srd(a, RSS, P_SSMK, D_*S_*2)
    a('s_mul_i32', sbase, sw, CONV_LDS)
    def ssm_load():
        a('s_lshl_b32', st2, sch, 12)
        a('s_add_u32', 'm0', sbase, 4160 + 32)
        for i in range(4):
            t = a('buffer_load_dwordx4', l16, RSS, st2, mods=f'offen offset:{1024*i}' + NT_ + ' lds')
        return t
    if E('SSPOS', 2) == 0: tssm = ssm_load()
    vkw, vkr, sKV = va.get(), va.get(), S(50)
    a('v_lshl_or_b32', t2, t0, 1, b3)
    a('s_lshl_b32', st2, sw, 2)
    a('s_sub_u32', st1, 15, st2)
    a('v_sub_u32', t2, st1, t2)
    a('v_lshlrev_b32', t0, 1, c)
    a('v_xor_b32', t2, t2, t0)
    a('v_lshlrev_b32', t2, 4, t2)
    a('v_lshl_add_u32', t2, t1, 10, t2)
    a('v_and_b32', t1, 1, c)
    a('v_lshl_add_u32', t2, t1, 11, t2)
    a('v_lshrrev_b32', t1, 1, c)
    a('v_mul_u32_u24', t1, CONV_LDS, t1)
    a('v_add_u32', vkw, t1, t2)
    a('v_lshrrev_b32', t0, 4, lane)
    a('v_and_b32', t1, 2, t0)
    a('v_or_b32', t1, st2, t1)
    a('v_and_b32', t2, 15, lane)
    a('v_xor_b32', t1, t1, t2)
    a('v_lshl_add_u32', t1, t1, 4, sbase)
    a('v_lshl_add_u32', vkr, t0, 10, t1)
    a('v_mul_u32_u24', t0, KVR, t0)
    a('v_lshl_add_u32', vok, t2, 4, t0)
    a('s_lshl_b32', st1, st0, 4)
    a('s_add_u32', st1, st1, st2)
    a('s_mul_i32', sKV, st1, KVR)
    a('s_andn2_b32', st2, 15, S(2))
    a('s_lshl_b32', st2, st2, 8)
    a('s_add_u32', sKV, sKV, st2)
    a('s_add_u32', sKV, sKV, hex(KV2))
    sKF = S(69)
    if not E('SPEC', 1):
        a('s_lshl_b32', sKF, st1, 9)
        a('s_bfe_u32', st1, S(2), (2 << 16) | 2)
        a('s_lshl_b32', st1, st1, 7)
        a('s_add_u32', sKF, sKF, st1)
        a('s_and_b32', st1, S(2), 3)
        a('s_lshl_b32', st1, st1, 2)
        a('s_add_u32', sKF, sKF, st1)
        a('s_add_u32', sKF, sKF, hex(FLG))
    a('s_mov_b32', selLO, '0x05040100')
    a('s_mov_b32', selHI, '0x07060302')
    FB = [[V(16 + 64*s + 4*i, 4) for i in range(8)] for s in range(2)]
    FA = [[V(48 + 64*s + 4*i, 4) for i in range(8)] for s in range(2)]
    CA = [V(176 + 4*t, 4) for t in range(8)]
    ABR = [V(144 + 4*t, 4) for t in range(8)]
    XR = [V(i, 2) for i in (208, 210, 224, 234, 240, 242, 250, 252)]
    AD, CQ = V(208, 4), V(236, 4)
    vA = [V(212 + i) for i in range(4)]
    vB, vx, vo, li, lh, l16a, l16b, vg1 = [V(216 + i) for i in range(8)]
    vfa, vu = V(244), V(246)
    z2 = AD[0:2]
    sPF, sGF = S(39), S(15)
    def setup_a():
        touch_lanes(a, vt)
        role_setup(a)
        w_setup(a)
        w_holes(a, CQ)
    def setup_b():
        a('v_and_b32', li, 15, lane)
        a('v_lshrrev_b32', lh, 4, lane)
        a('v_lshlrev_b32', vx, 5, li)
        a('v_lshl_add_u32', vx, lh, 3, vx)
        a('v_lshlrev_b32', vfl, 2, lane)
        if not E('SPEC', 1):
            a('v_lshrrev_b32', t0, 2, lane)
            a('v_lshlrev_b32', t0, 7, t0)
            a('v_and_b32', t1, 3, lane)
            a('v_lshl_add_u32', vfa, t1, 2, t0)
            a('s_lshl_b32', sGF, S(2), 9)
            a('s_add_u32', sGF, sGF, hex(FLG))
            a('v_lshlrev_b32', l16b, 9, lane)
        a('v_add_u32', t1, 4160 - 32, vfl)
        a('v_cmp_gt_u32', 'vcc', 8, lane)
        a('v_cndmask_b32', t1, t1, vfl, 'vcc')
        a('v_add_u32', t0, 8320 + 4096, vfl)
        a('v_cmp_gt_u32', 'vcc', 16, lane)
        a('v_cndmask_b32', t1, t0, t1, 'vcc')
        a('v_add_u32', l16a, sbase, t1)
        a('v_mov_b32', z2[0], 0)
        a('v_mov_b32', z2[1], 0)
        a('v_lshl_add_u32', t0, lane, 3, sbase)
        a('ds_write_b64', t0, z2, mods=f'offset:{8320+4096}')
        a('v_lshl_add_u32', t0, lh, 3, li)
        a('v_lshrrev_b32', t0, 1, t0)
        a('v_lshl_add_u32', t0, t0, 2, sbase)
        a('v_and_b32', t1, 1, li)
        a('v_mul_u32_u24', t1, 4164, t1)
        a('v_add_u32', vA[0], t0, t1)
        for p in range(1, 4):
            a('v_add_u32', vA[p], 1024*p, vA[0])
        a('v_lshlrev_b32', t0, 5, li)
        a('v_sub_u32', t0, 8320 + 480, t0)
        a('v_lshl_add_u32', t0, lh, 4, t0)
        a('v_add_u32', vB, sbase, t0)
        a('v_and_b32', t0, 1, lh)
        a('v_lshlrev_b32', t0, 9, t0)
        a('v_lshl_add_u32', t0, li, 5, t0)
        a('v_lshrrev_b32', t1, 1, lh)
        a('v_lshl_add_u32', vo, t1, 4, t0)
        a('v_add_u32', vu, sbase, l16)
        rep_base(a, sPF, FLP, PSTR)
        clr_setup_q(a, S(28), V(247))
        for d in range(4): a('v_mov_b32', CQ[d], -1)
    SA, SB = E('SA', 0), E('SB', 2)
    if SA == 0: setup_a()
    if E('CLPOS', 0) == 1: hh_clear(a, S(39), V(240, 4))
    if SB == 0: setup_b()
    stamp(a, 1)
    if E('SSPOS', 2) == 2:
        a.wait_vm_tok(tk)
        if E('EST', 0): stamp(a, 13, True)
        tssm = ssm_load()
    QK = [va.get(4) for _ in range(4)]
    P = [va.get(8, 2) for _ in range(8)]
    KSv = [va.get(4) for _ in range(8)]
    def kshift(chs):
        for ch in chs:
            d, hi = ch >> 1, ch & 1
            for t in range(1, 7):
                a('v_perm_b32', P[ch][t], K[t-1][d], K[t][d], selHI if hi else selLO)
        for ch in chs:
            for e in range(4):
                a('v_dot2_f32_bf16', KSv[ch][e], P[ch][e+3], SK[2*ch], 0)
            for e in range(4):
                a('v_dot2_f32_bf16', KSv[ch][e], P[ch][e+1], SK[2*ch+1], KSv[ch][e])
    KVO = E('KVO', 0)
    if KVO == 0: kshift(range(8))
    if KVO == 2: kshift((0, 4, 1, 5))
    stamp(a, 2)
    if SA == 1: setup_a()
    if SB == 1: setup_b()
    if E('EST', 0) == 2:
        a.wait(vm=4)
        stamp(a, 4, True)
    if E('T1POS', 2) == 1:
        a.wait(vm=4)
        t1_touch()
    for cp in range(4):
        if KVO == 1 or (KVO == 2 and cp >= 2): kshift((cp, cp + 4))
        for ch in (cp, cp + 4):
            d, hi = ch >> 1, ch & 1
            for e in range(4):
                if hi: a('v_and_b32', P[ch][e], '0xffff0000', Vv[e][d])
                else: a('v_lshlrev_b32', P[ch][e], 16, Vv[e][d])
        for ch in (cp, cp + 4):
            for h in range(2):
                a('v_pk_mul_f32', KSv[ch][2*h:2*h+2], KSv[ch][2*h:2*h+2], P[ch][2*h:2*h+2])
        q = QK[cp]
        for ch in (cp, cp + 4):
            o = 2 if ch < 4 else 0
            a('v_cvt_pk_bf16_f32', q[o], KSv[ch][3], KSv[ch][2])
            a('v_cvt_pk_bf16_f32', q[o+1], KSv[ch][1], KSv[ch][0])
        a('v_permlane16_swap_b32', q[2], q[0])
        a('v_permlane16_swap_b32', q[3], q[1])
        a('ds_write_b128', vkw, QK[cp], mods=f'offset:{8320 + 256*cp}')
    a.wait(lg=0)
    if E('EST', 0) == 2: stamp(a, 5, True)
    a('s_barrier')
    if E('EST', 0) == 2: stamp(a, 6, True)
    CK = P[0][0:4]
    for cp in range(4):
        a('ds_read_b128', QK[cp], vkr, mods=f'offset:{8320 + 256*cp}')
    tag_setup(a)
    for cp in range(4):
        q = QK[cp]
        a('v_add_u32', q[0], sTag, q[0])
        a('buffer_store_dwordx4', q, vok, RWS, sKV, mods='offen sc1')
        a('v_add3_u32', CK[cp], q[0], q[1], q[2])
        a('v_add3_u32', CK[cp], CK[cp], q[3], sTag)
        a('s_add_u32', sKV, sKV, 4096)
    a('buffer_store_dwordx4', CK, vok, RWS, sKV, mods='offen sc1')
    SPEC = E('SPEC', 1)
    if not SPEC:
        a('s_mov_b64', 'exec', 15)
        a('buffer_store_dword', vtg, l16b, RWS, sKF, mods='offen sc1')
        a('s_mov_b64', 'exec', -1)
    stamp(a, 3)
    if E('T1POS', 2) == 2: t1_touch()
    if E('KVBAR', 0): a('s_barrier')
    NA = E('R1A', 4)
    if SA == 2: setup_a()
    if SPEC: w_round(a, 0, 0, 0, E('R1S', 2))
    if SB == 2: setup_b()
    a.wait_vm_tok(tssm)
    if not SPEC: w_round_x(a, 0, 0, 'R1_x', 0, NA)
    def rdA(rho):
        s = rho & 1
        L = []
        for i in range(8):
            o = 128*(i & 1) + 16*rho
            L.append(('ds_read2_b32', (FA[s][i][0:2], vA[i >> 1]), f'offset0:{o} offset1:{o+1}'))
            L.append(('ds_read2_b32', (FA[s][i][2:4], vA[i >> 1]), f'offset0:{o+2} offset1:{o+3}'))
        return L
    def rdB(rho):
        return [('ds_read_b128', (FB[rho & 1][i], vB), f'offset:{3584 - 512*i + 64*rho}') for i in range(8)]
    def reads(rho):
        A_, B_ = rdA(rho), rdB(rho)
        L = []
        for i in range(8): L += [B_[i], A_[2*i], A_[2*i+1]]
        return L
    emit = lambda L: [a(mn, *ops, mods=mods) for mn, ops, mods in L]
    a('s_lshl_b32', st1, sk01, 16)
    a('v_mov_b32', t0, st1)
    a('v_cmp_eq_u32', 'vcc', 7, lane)
    a('v_cndmask_b32', t2, 0, t0, 'vcc')
    a('ds_write_b32', l16a, t2)
    a('s_bitcmp1_b32', sch, 0)
    a('s_cselect_b32', st1, 16, 0)
    a('s_lshr_b32', sD, sD, st1)
    a('s_and_b32', sD, sD, '0xffff')
    a('v_lshlrev_b32', t0, 3, lh)
    a('v_add_u32', t0, t0, li)
    a('v_sub_u32', t0, 15, t0)
    a('v_and_b32', t1, 1, t0)
    a('v_lshlrev_b32', t1, 4, t1)
    a('v_lshlrev_b32', t1, t1, sD)
    a('v_ashrrev_i32', t0, 1, t0)
    a.wait(lg=0)
    for d in range(4):
        a('v_cmp_eq_u32', 'vcc', d, t0)
        a('v_cndmask_b32', AD[d], 0, t1, 'vcc')
    if not SPEC: a('v_and_b32', l16a, '0x1ff', vfa)
    SH = [V(80 + 4*i, 4) for i in range(4)]
    SN = [V(96 + i) for i in range(4)]
    a.wait_vm_tok(tssm)
    for i in range(4):
        a('ds_read_b128', SH[i], vu, mods=f'offset:{4160 + 32 + 1024*i}')
        a('ds_read_b32', SN[i], vu, mods=f'offset:{4160 + 48 + 1024*i}')
    for i in range(4):
        for d in range(4):
            a('v_alignbit_b32', SH[i][d], SH[i][d+1] if d < 3 else SN[i], SH[i][d], 16)
        a('ds_write_b128', vu, SH[i], mods=f'offset:{32 + 1024*i}')
    a.wait(lg=0)
    emit(rdA(0))
    if SPEC: w_round(a, 0, 0, E('R1S', 2), NA)
    else: w_round_y(a, 0, 0, 'R1_y', 0, NA)
    sU = [S(44), S(45), S(46), S(47), S(51)]
    a('s_mul_i32', sU[0], S(2), KVR)
    a('s_lshl_b32', st0, sw, 10)
    a('s_add_u32', sU[0], sU[0], st0)
    a('s_add_u32', sU[0], sU[0], hex(KV2))
    for i in range(1, 5): a('s_add_u32', sU[i], sU[0], 4096*i)
    a('v_add_u32', vu, st0, l16)
    if not SPEC:
        a('s_cmp_lg_u32', sw, 0)
        a('s_cbranch_scc1', 'G1_skip')
        Flags(a, 'G1', vg1, l16a, sGF).wait()
        a.label('G1_skip')
        stamp(a, 4)
        a('s_barrier')
    U = [V(80 + 4*i, 4) for i in range(5)]
    US = [V(100 + i) for i in range(4)]
    def uload():
        for i in (4, 0, 1, 2, 3):
            a('buffer_load_dwordx4', U[i], l16, RWS, sU[i], mods='offen sc1')
    def ubad():
        for i in range(4):
            a('v_add3_u32', US[i], U[i][0], U[i][1], U[i][2])
            a('v_add3_u32', US[i], US[i], U[i][3], sTag)
            a('v_subrev_u32', U[i][0], sTag, U[i][0])
            a('ds_write_b128', vu, U[i], mods=f'offset:{8320 + CONV_LDS*i}')
            a('v_xor_b32', US[i], US[i], U[4][i])
        a('v_or3_b32', US[0], US[0], US[1], US[2])
        a('v_or_b32', US[0], US[0], US[3])
        a('v_cmp_ne_u32', 'vcc', 0, US[0])
        a.wait(lg=0)
    T = {}
    UP = E('UPOS', 3)
    if UP: T['r1b'] = w_round(a, 0, 0, NA, NA + UP)
    stamp(a, 5 if not SPEC else 4)
    uload()
    if NA + UP < 7: T['r1b'] = w_round(a, 0, 0, NA + UP, 7)
    a.wait(vm=5 + 4*(7 - NA))
    a('s_barrier')
    if SPEC: stamp(a, 5)
    for i in range(4): emit(w_reads(RND[0][i], i))
    a('s_lshl_b32', st0, sch, 12)
    sx, sht, pl, ph = S(12), S(13), S(50), S(52)
    sAB, ABL = S(56), WB + 7*WSS
    one = V(15)
    a('s_mov_b32', pl, selLO)
    a('s_add_u32', sht, st0, hex(HT))
    a('s_add_u32', sx, st0, hex(XT))
    a('s_mov_b32', ph, '0x05040302')
    a('v_mov_b32', one, '0x3f803f80')
    a('s_lshl_b32', S(57), sw, 11)
    a('s_add_u32', sAB, S(57), hex(AB))
    a('s_add_u32', S(57), S(57), ABL)
    a('v_mov_b32', t0, ABL)
    a('v_lshl_add_u32', l16a, vx, 1, t0)
    vt2, sT, sT2, sDF = V(248), S(53), S(54), S(58)
    a('v_min_u32', l16b, 15, lane)
    a('v_lshlrev_b32', l16b, 7, l16b)
    pack_flag_addr(a, vg1)
    a('s_add_u32', sDF, sPF, hex((FLD - FLP) & 0xffffffff))
    PRE, PRE2 = E('PRE', 0), E('PRE2', 0)
    if PRE:
        assert UP == 3 and PRE2 < 4
        a.wait(vm=5, lg=0)
        a('s_barrier')
        if PRE2: w_round(a, 1, 0, 0, PRE2)
        emit(w_shift(4))
        for i in range(4, 7): emit(w_reads(RND[0][i], i & 3))
    ubad()
    a('s_cbranch_vccz', 'U_ok')
    spin(a, 'U', uload, ubad)
    a.label('U_ok')
    a('s_barrier')
    stamp(a, 6)
    emit(rdB(0))
    sc = Sched(a)
    for i in range(4):
        sc.op(2, E('HC_AT', 88) + E('HC_STEP', 6)*i, 'buffer_store_dwordx4', (CQ, l16, RWS, sht), f'offen offset:{1024*i} sc1')
    sc.op(2, E('HC_AT', 88) + E('HC_STEP', 6)*4, 'buffer_store_dword', (CQ[0], V(247), RWS, S(28)), 'offen sc1', tok=(T, 'cl'))
    def dmas(r, slot0, lo, hi, at, step, key):
        for i, ks in list(enumerate(RND[r]))[lo:hi]:
            for part in range(2):
                sc.call(1, at, lambda i=i, ks=ks, part=part: T.__setitem__(key, w_dma(a, ks, slot0 + i, part)))
                at += step
        sc.note(1, at - step, lambda: T.__setitem__(key + '_ok', 1))
    def wbar(at, vkeys, lkey):
        def f():
            for vkey in vkeys:
                if vkey in ('r2a', 'r2b'): assert T[vkey + '_ok']
                a.wait_vm_tok(T[vkey])
            if lkey: assert T[lkey + '_ok']; a.wait_lg_tok(T[lkey])
            a('s_barrier')
            T['bar', at] = sc.n
            print('  barrier', at, 'at', sc.n, file=sys.stderr)
        sc.call(0, at, f)
    def rds(at, r, lo, hi, shift, key):
        L = w_shift(shift)
        for i in range(lo, hi): L += w_reads(RND[r][i], i & 3)
        for mn, ops, mods in L: sc.op(0, at, mn, ops, mods, tok=(T, key) if mn.startswith('ds') else None)
        sc.note(0, at, lambda: T.__setitem__(key + '_ok', 1))
    ws_ = E('W_STEP', 6)
    w3 = E('W3_STEP', 10)
    if PRE:
        X2, X3, XS, XP = E('X2', 60), E('X3', 100), E('XS', 130), E('X4', 170)
        r2 = E('R2_AT', 2)
        dmas(1, 0, PRE2, 4, r2, ws_, 'r2a')
        dmas(1, 0, 4, 7, r2 + 2*(4 - PRE2)*ws_, ws_, 'r2b')
        wbar(X2, ['r2a'], None)
        rds(X2, 1, 0, 4, -4, 'q2a')
        wbar(X3, ['r2b'], 'q2a')
        rds(X3, 1, 4, 7, 4, 'q2b')
        for mn, ops, mods in w_shift(-4): sc.op(0, X3, mn, ops, mods)
        sc.gate(1, X3, lambda: ('bar', X3) in T)
        dmas(2, 1, 0, 3, X3 + E('R3_OFF', 4), w3, 'r3a')
        wbar(XS, [], 'q2b')
        sc.gate(1, XS, lambda: ('bar', XS) in T)
        dmas(2, 1, 3, 6, max(XS + 1, X3 + E('R3_OFF', 4) + 6*w3), w3, 'r3b')
        wbar(XP, ['ab', 'cl'], None)
    else:
        X1, XA, X2, X3, X4 = E('X1', 25), E('XA', 50), E('X2', 85), E('X3', 130), E('X4', 170)
        dmas(1, 0, 0, 4, E('R2_AT', 2), ws_, 'r2a')
        wbar(X1, ['r1b'], None)
        rds(X1, 0, 4, 7, 4, 'q1b')
        wbar(XA, [], 'q1b')
        sc.gate(1, XA, lambda: ('bar', XA) in T)
        assert E('R2_AT', 2) + 7*ws_ <= XA and XA + 1 + 5*ws_ < X3
        dmas(1, 0, 4, 7, XA + 1, ws_, 'r2b')
        wbar(X2, ['r2a'], None)
        rds(X2, 1, 0, 4, -4, 'q2a')
        wbar(X3, ['r2b'], 'q2a')
        rds(X3, 1, 4, 7, 4, 'q2b')
        for mn, ops, mods in w_shift(-4): sc.op(0, X3, mn, ops, mods)
        sc.gate(1, X3, lambda: ('bar', X3) in T)
        dmas(2, 1, 0, 3, X3 + E('R3_OFF', 20), w3, 'r3a')
        wbar(X4, ['ab', 'cl'], 'q2b')
        if E('R3B', 1):
            sc.gate(1, X4, lambda: ('bar', X4) in T)
            dmas(2, 1, 3, 6, max(X4 + E('R3B_OFF', 6), X3 + E('R3_OFF', 20) + 6*w3), w3, 'r3b')
        XS, XP = X3, X4
    fl = E('FLAT', 45)
    def w0(nm, fn):
        def f():
            a('s_cmp_lg_u32', sw, 0)
            a('s_cbranch_scc1', nm)
            fn()
            a.label(nm)
        return f
    FS = Flags(a, 'GS', ABR[7], l16b, sPF, tmp=S(68, 2))
    sc.call(2, XS - fl, w0('GS_l', FS.load))
    sc.call(2, XS - 2, w0('GS_c', FS.check))
    FD_ = Flags(a, 'GD', V(244, 2), vg1, sDF)
    sc.call(2, E('GD_AT', 210), w0('GD_l', FD_.load))
    if E('PUB_AT', 232): sc.call(2, E('PUB_AT', 232), lambda: publish_n(a, S(2)))
    xs = E('XX_STEP', 6)
    PT = [V(i) for i in (6, 7, 8, 9, 10, 11, 13, 14)]
    sc.gate(2, XS, lambda: ('bar', XS) in T)
    sc.ops(2, XS + 1, [('s_mov_b32', ('m0', S(57))), ('buffer_load_dwordx4', (l16, RWS, sAB), 'offen' + LD + ' lds')])
    sc.ops(2, XS + 1, [('s_mov_b32', ('m0', S(57))), ('buffer_load_dwordx4', (l16, RWS, sAB), 'offen offset:1024' + LD + ' lds', (T, 'ab'))])
    for t in range(8):
        sc.op(2, XS + 4 + xs*t, 'buffer_load_dwordx2', (XR[t], vx, RWS, sx), f'offen offset:{512*t}' + LD1)
    sc.gate(2, XP, lambda: ('bar', XP) in T)
    ps = E('PREP_STEP', 8)
    for t in range(8):
        sc.op(2, XP + 1 + ps*t, 'ds_read_b128', (ABR[t], l16a), f'offset:{1024*t}')
        Pt = PT[4*(t & 1):4*(t & 1) + 4]
        at2 = XP + 9 + ps*t
        for h in range(2):
            sc.op(2, at2, 'v_perm_b32', (Pt[2*h], one, XR[t][h], pl))
            sc.op(2, at2, 'v_perm_b32', (Pt[2*h+1], one, XR[t][h], ph))
        for k in range(4):
            sc.op(2, at2, 'v_dot2_f32_bf16', (ABR[t][k], Pt[k], ABR[t][k], 0))
    sc.note(2, XP + 9 + 7*ps, lambda: (T.__setitem__('xn', sc.n), print('  prep done', sc.n, file=sys.stderr)))
    order = sorted([(aa, dl) for aa in range(8) for dl in range(8) if aa + dl <= 7], key=lambda p: (max(p), p[0] + p[1]))
    last = []
    done = {}
    for p in range(4):
        hi_ = [(aa, 2*p + 1 - aa) for aa in range(2*p + 2)]
        lo_ = [(aa, 2*p - aa) for aa in range(2*p + 1)]
        for k in range(2*p + 2):
            last.append(hi_[k])
            if k < 2*p + 1: last.append(lo_[k])
        done[p] = 44 + 36*6 + len(last)
    XF = [V(16 + 4*t, 4) for t in range(8)]
    sc.note(2, done[0] + 2, lambda: T['xn'])
    for p in range(4):
        e_at = done[p] + 3
        for t in (2*p, 2*p + 1):
            for h in range(2):
                sc.op(2, 44 + 36*6 + 3, 'v_lshlrev_b32', (XF[t][2*h], 16, XR[t][h]))
                sc.op(2, 44 + 36*6 + 3, 'v_and_b32', (XF[t][2*h+1], '0xffff0000', XR[t][h]))
        for t in (2*p, 2*p + 1):
            for k in range(4): sc.op(2, e_at, 'v_fmac_f32', (XF[t][k], ABR[t][k], CA[t][k]))
        q = ABR[2*p]
        for e in range(2):
            for h in range(2): sc.op(2, e_at, 'v_cvt_pk_bf16_f32', (q[2*e + h], XF[2*p + e][2*h], XF[2*p + e][2*h + 1]))
        sc.op(2, e_at, 'v_permlane16_swap_b32', (q[0], q[2]))
        sc.op(2, e_at, 'v_permlane16_swap_b32', (q[1], q[3]))
        sc.op(2, e_at, 'buffer_store_dwordx4', (q, vo, RWS, sht), f'offen offset:{1024*p} sc1', tok=(T, 'h'))
    sc.sort()
    allm = []
    for rho in range(8):
        s = rho & 1
        init = set()
        seq = []
        for (aa, dl) in (order if rho < 7 else last):
            t = aa + dl
            seq.append((CA[t], FA[s][aa], FB[s][dl], CA[t] if (rho or t in init) else 0))
            init.add(t)
        if rho == 0:
            seq += [(CA[t], AD, FB[s][t], CA[t]) for t in range(8)]
        nxt = reads(rho + 1) if rho < 7 else []
        k = 0
        for n, m in enumerate(seq):
            fx = []
            if n >= 4 and k < len(nxt) and (n % 3 != 2 or len(seq) - n <= len(nxt) - k):
                fx = [nxt[k]]; k += 1
            allm.append((m, fx))
        assert k == len(nxt)
    for x, (m, fx) in enumerate(allm):
        if x in CST: stamp(a, CID[CST.index(x)], True)
        a(MFMA, *m)
        sc.n += 1
        sc.gap(fx, [(MFMA, allm[x + 1][0], '')] if x + 1 < len(allm) else [])
    print('after conv:', sc.left(), 'over', sc.over, file=sys.stderr)
    stamp(a, 7)
    sc.n += 100
    sc.drain()
    w0('GD_c', FD_.check)()
    stamp(a, 8)
    return T['cl']

WDL0 = 0
def x_loads(a, n):
    RQ = S(44, 4)
    srd(a, RQ, P_Q, S_*D_*2)
    voff = V(16)
    a('s_lshl_b32', st0, n, 2)
    a('s_add_u32', st0, st0, sw)
    a('s_mul_i32', st0, st0, 8*1280)
    a('s_add_u32', st1, st0, 2560)
    a('v_lshrrev_b32', t0, 5, lane)
    a('v_mul_u32_u24', voff, 5120, t0)
    a('v_and_b32', t1, 31, lane)
    a('v_lshl_add_u32', voff, t1, 3, voff)
    X = [[V(48 + 10*r + 2*i, 2) for i in range(5)] for r in range(4)]
    s0, s1 = S(48), S(50)
    def loads():
        for r in range(4):
            for i in range(5):
                a('buffer_load_dwordx2', X[r][i], voff, RQ, s1 if r >= 2 else s0, mods=f'offen offset:{1280*(r & 1) + 256*i}' + NT_)
    a('s_mov_b32', s0, st0)
    a('s_mov_b32', s1, st1)
    if not E('QDEL', 0):
        loads()
        return lambda: X
    def late():
        a.wait(vm=0)
        loads()
        return X
    return late

XAB = WB + 7*WSS
def x_task(a, n, X, mid=None):
    ones, pl, ph = S(12), S(50), S(51)
    vw, vg, vr = V(17), V(19), V(20)
    a('s_mov_b32', pl, '0x05040100')
    a('s_mov_b32', ph, '0x07060302')
    a('v_lshrrev_b32', t0, 5, lane)
    a('v_and_b32', t2, 3, lane)
    a('v_xor_b32', t1, sw, t2)
    a('v_lshlrev_b32', t1, 4, t1)
    a('v_lshl_add_u32', t1, t0, 3, t1)
    a('v_and_b32', vw, 31, lane)
    a('v_lshl_add_u32', vw, vw, 8, t1)
    a('v_lshrrev_b32', t1, 2, lane)
    a('v_lshlrev_b32', vg, 12, t1)
    a('v_lshl_add_u32', vg, t2, 4, vg)
    a('v_lshrrev_b32', t0, 4, lane)
    a('v_xor_b32', t0, t0, t2)
    a('v_lshlrev_b32', t1, 6, t1)
    a('v_lshl_add_u32', vr, t0, 4, t1)
    a('v_add_u32', vr, 28672, vr)
    PC = [V(96 + 2*k, 2) for k in range(8)]
    for i in range(5):
        for e in range(4):
            q = PC[4*(i & 1) + e]
            for h in range(2):
                a('v_perm_b32', q[h], X[2*h + 1][i][e >> 1], X[2*h][i][e >> 1], ph if e & 1 else pl)
        for e in range(4):
            a('ds_write_b64', vw, PC[4*(i & 1) + e], mods=f'offset:{28672 + 8192*i + 64*e}')
    if mid: mid()
    a('s_mov_b32', ones, '0x3f803f80')
    a('s_lshl_b32', st2, n, 6)
    a('s_add_u32', st2, st2, hex(XT))
    a.wait(lg=0)
    a('s_barrier')
    s1 = [V(24 + r) for r in range(4)]
    s2 = [V(28 + r) for r in range(4)]
    L = []
    for i in range(5):
        for d in range(2):
            for r in range(4):
                first = i == 0 and d == 0
                L.append(('v_dot2_f32_bf16', s1[r], X[r][i][d], ones, 0 if first else s1[r]))
                L.append(('v_dot2_f32_bf16', s2[r], X[r][i][d], X[r][i][d], 0 if first else s2[r]))
    a('s_cmp_lg_u32', sw, 0)
    a('s_cbranch_scc1', 'X_nst')
    O = [V(112 + 4*j, 4) for j in range(20)]
    for j in range(20):
        a('ds_read_b128', O[j], vr, mods=f'offset:{1024*j}')
    for j in range(40):
        if j: a('s_add_u32', st2, st2, 65536)
        a('buffer_store_dwordx4', O[j % 20], vg, RWS, st2, mods='offen sc1')
        if 4 <= j < 24: a('ds_read_b128', O[j - 4], vr, mods=f'offset:{1024*(j + 16)}')
    a.label('X_nst')
    for x in L: a(*x)
    for s in (s1, s2):
        for r in (0, 2): a('v_permlane16_swap_b32', s[r], s[r + 1])
    for s in (s1, s2):
        for r in (0, 2): a('v_add_f32', s[r], s[r], s[r + 1])
    for sh in (8, 4, 2, 1):
        for x in (s1[0], s2[0], s1[2], s2[2]):
            a('v_add_f32', x, x, x, mods=f'row_ror:{sh} row_mask:0xf bank_mask:0xf')
    a('v_and_b32', t1, 1, lane)
    a('v_cmp_ne_u32', 'vcc', 0, t1)
    a('v_cndmask_b32', s1[0], s1[0], s1[2], 'vcc')
    a('v_cndmask_b32', s2[0], s2[0], s2[2], 'vcc')
    ln_stats(a, s1[0], s2[0], t2)
    a('v_rcp_f32', s2[0], s2[0])
    a('v_mul_f32', s1[0], s1[0].neg(), s2[0])
    a('v_cvt_pk_bf16_f32', s2[0], s2[0], s1[0])
    a('v_bfe_u32', t0, lane, 4, 1)
    a('v_lshl_or_b32', t1, t1, 1, t0)
    a('v_lshrrev_b32', t0, 5, lane)
    a('v_lshl_or_b32', t1, t0, 2, t1)
    a('s_lshl_b32', st0, sw, 5)
    a('s_add_u32', st0, st0, XAB)
    a('v_lshl_add_u32', t1, t1, 2, st0)
    a('ds_write_b32', t1, s2[0])
    a.wait(lg=0)
    a('s_barrier')

def x_finish(a, n):
    a('v_and_b32', t0, 31, lane)
    a('v_lshlrev_b32', t0, 2, t0)
    a('v_add_u32', t1, XAB, t0)
    a('ds_read_b32', t2, t1)
    a('s_lshl_b32', st0, n, 7)
    a('s_add_u32', st0, st0, hex(AB))
    a('buffer_store_dword', t2, t0, RWS, st0, mods='offen sc1')
    a.wait(vm=0)
    publish_rep(a, 'X_pub', FLP, PSTR, n)

def d_loads(a, n, extra=None):
    RW = S(52, 4)
    scb, scp, ssrc, sl = S(13), S(14), S(10), S(12)
    vsrc = [V(88), V(89)]
    a('v_lshrrev_b32', t0, 3, lane)
    a('v_mul_u32_u24', t0, 1280, t0)
    a('v_and_b32', t1, 1, lane)
    a('v_lshl_add_u32', t0, t1, 4, t0)
    a('v_bfe_u32', t1, lane, 1, 2)
    a('v_bfe_u32', t2, lane, 4, 1)
    a('v_xor_b32', t1, t1, t2)
    a('s_and_b32', st0, sw, 1)
    a('s_lshl_b32', st0, st0, 1)
    a('v_xor_b32', t1, st0, t1)
    a('v_lshl_add_u32', vsrc[0], t1, 5, t0)
    a('v_xor_b32', t1, 2, t1)
    a('v_lshl_add_u32', vsrc[1], t1, 5, t0)
    a('s_mul_i32', ssrc, scp, 216*1280)
    a('s_lshl_b32', st0, scb, 7)
    a('s_add_u32', ssrc, ssrc, st0)
    a('s_mul_i32', st0, sw, 56*1280)
    a('s_add_u32', ssrc, ssrc, st0)
    a('s_lshr_b32', st0, sw, 1)
    a('s_mul_i32', st0, st0, 4*1280)
    a('s_sub_u32', ssrc, ssrc, st0)
    a('s_mul_i32', sl, sw, 7*1024)
    def go():
        for g in range(7):
            a('s_add_u32', 'm0', sl, WDL0 + 1024*g)
            a('s_add_u32', st0, ssrc, 8*g*1280)
            td = a('buffer_load_dwordx4', vsrc[g & 1], RW, st0, mods='offen' + NT_ + ' lds')
        return td
    if extra:
        a('s_cmp_lg_u32', sw, 2)
        a('s_cbranch_scc1', extra)
        a('s_sub_u32', ssrc, ssrc, 108*1280)
        a('s_sub_u32', sl, sl, 14*1024)
        go()
        a('s_add_u32', ssrc, ssrc, 108*1280)
        a('s_add_u32', sl, sl, 14*1024)
        a.label(extra)
    return go()

def d_task(a):
    scb, scp, sdst, sl = S(13), S(14), S(10), S(12)
    vr = V(90)
    MK = [S(68, 2), S(50, 2)]
    a('v_lshrrev_b32', t0, 4, lane)
    a('v_bfe_u32', t1, lane, 2, 2)
    a('v_lshl_add_u32', t2, t0, 3, t1)
    a('v_lshlrev_b32', t2, 7, t2)
    a('v_and_b32', t0, 1, t0)
    a('v_lshrrev_b32', t1, 1, t1)
    a('v_lshl_or_b32', t0, t0, 1, t1)
    a('v_xor_b32', t0, sw, t0)
    a('v_lshl_add_u32', t2, t0, 5, t2)
    a('v_and_b32', t0, 3, lane)
    a('v_lshl_add_u32', t2, t0, 3, t2)
    a('v_add_u32', vr, WDL0, t2)
    a('s_lshl_b32', st0, scb, 2)
    a('s_add_u32', st0, st0, sw)
    a('s_mul_i32', sdst, st0, TS)
    a('s_mul_i32', st1, scp, 7*1024)
    a('s_add_u32', sdst, sdst, st1)
    a('s_add_u32', sdst, sdst, hex(WP2))
    a('s_add_u32', sl, sdst, 4096)
    a('s_mov_b32', MK[0][0], '0xffff0000')
    a('s_mov_b32', MK[0][1], 0)
    a('s_mov_b32', MK[1][0], 0)
    a('s_mov_b32', MK[1][1], '0xffff0000')
    FD = [V(176 + 4*i, 4) for i in range(7)]
    for ks in range(7):
        for hf in range(2):
            a('ds_read_b64_tr_b16', FD[ks][2*hf:2*hf+2], vr, mods=f'offset:{ks*4096 + 512*hf}')
    for ks in range(7):
        if ks in (3, 6):
            for d in (2, 3): a('v_cndmask_b32', FD[ks][d], FD[ks][d], 0, MK[ks == 6])
        tp = a('buffer_store_dwordx4', FD[ks], l16, RWS, sl if ks >= 4 else sdst, mods=f'offen offset:{1024*(ks & 3)} sc1')
    return tp

def helper_wg(a):
    n, nd, sj, sHR = S(7), S(9), S(15), S(8)
    vt = V(91)
    emit = lambda L: [a(mn, *ops, mods=mods) for mn, ops, mods in L]
    def common():
        srd(a, RWS, P_WS, WS_SIZE)
        a('s_mov_b32', sEp, hex(EPOCH))
        a('s_load_dword', sEp, P_WS, sEp)
        srd(a, S(52, 4), P_WD, D_*F_*2)
        role_setup(a)
        w_setup(a)
        tag_setup(a)
        a('s_sub_u32', nd, n, 16)
        a('s_lshr_b32', st0, n, 3)
        a('s_lshl_b32', st0, st0, 2)
        a('s_and_b32', st1, n, 3)
        a('s_add_u32', st0, st0, st1)
        a('s_cmp_lt_u32', n, 32)
        a('s_cselect_b32', nd, st0, nd)
        a('s_mul_i32', S(14), nd, 205)
        a('s_lshr_b32', S(14), S(14), 11)
        a('s_mul_i32', st0, S(14), 10)
        a('s_sub_u32', S(13), nd, st0)
        clr_setup_q(a, S(28), V(247))
    def touch_setup():
        w_srd(a)
        touch_lanes(a, vt)
        a('s_bfe_u32', sj, n, (3 << 16) | 3)
        a('s_lshl_b32', sj, sj, 1)
        a('s_and_b32', st0, sw, 1)
        a('s_add_u32', sj, sj, st0)
        a('s_mul_i32', sj, sj, 8*WROW)
    def sq_clear():
        a('v_mov_b32', V(93), -1)
        a('buffer_store_dword', V(93), V(247), RWS, S(28), mods='offen sc1')
    def touch3():
        a('s_lshr_b32', st0, n, 3)
        a('s_lshl_b32', st0, st0, 1)
        a('s_and_b32', st1, sw, 1)
        a('s_add_u32', st0, st0, st1)
        a('s_cmp_lt_u32', st0, 16)
        a('s_cselect_b32', st1, 16, 56)
        a('s_add_u32', st0, st0, st1)
        a('s_mul_i32', st0, st0, 8*WROW)
        a('buffer_load_dword', V(92), vt, RW1, st0, mods='offen')
    def touch(blk):
        a('s_add_u32', st0, sj, blk*8*WROW)
        a('buffer_load_dword', V(92), vt, RW1, st0, mods='offen')
    a('s_sub_u32', n, S(2), 160)
    a('s_cmp_ge_u32', n, 64)
    a('s_cbranch_scc1', 'H_nx1')
    XL = x_loads(a, n)
    touch_setup()
    common()
    DP = E('DPOS', 2)
    if DP == 0: d_loads(a, nd)
    X = XL()
    sq_clear()
    stamp(a, 1)
    x_task(a, n, X, (lambda: d_loads(a, nd)) if DP == 1 else None)
    stamp(a, 2)
    a('s_cmp_lg_u32', sw, 0)
    a('s_cbranch_scc1', 'H_w123')
    x_finish(a, n)
    stamp(a, 4)
    a('s_branch', 'H_xj')
    a.label('H_w123')
    HR = E('HR1', 4)
    def dl():
        a('s_cmp_eq_u32', sB, 5)
        a('s_cbranch_scc1', 'H_a')
        d_loads(a, nd, 'H_d0')
        a.label('H_a')
    if DP == 2 and E('DFIRST', 1): dl()
    touch(48)
    a('s_cmp_lg_u32', sw, 1)
    a('s_cbranch_scc1', 'H_t47')
    touch(47)
    a.label('H_t47')
    if DP == 2 and not E('DFIRST', 1): dl()
    w_holes(a, V(236, 4))
    if HR:
        w_round_x(a, 0, 0, 'H_rx', 0, HR, True)
        w_round_y(a, 0, 0, 'H_ry', 0, HR, True)
    else: a.wait(vm=1 if E('DFIRST', 1) else 0)
    a.label('H_xj')
    a('s_mov_b32', sHR, 1)
    a('s_cmp_lg_u32', sB, 5)
    a('s_cbranch_scc1', 'H_nx2')
    tr0 = w_round(a, 0, 0, HR, 7)
    touch3()
    a.wait(vm=13 if E('HPIPE', 1) else 1)
    a('s_branch', 'H_nd2')
    a.label('H_nx1')
    touch_setup()
    for blk in (0, 8, 40, 64): touch(blk)
    common()
    td = d_loads(a, nd)
    w_holes(a, V(236, 4))
    w_round(a, 0, 0, 0, 4)
    sq_clear()
    stamp(a, 1)
    a.wait_vm_tok(td)
    a('s_mov_b32', sHR, 0)
    stamp(a, 2)
    a.label('H_nx2')
    a('s_barrier')
    tp = d_task(a)
    stamp(a, 3)
    if HR < 4:
        a('s_cmp_eq_u32', sHR, 0)
        a('s_cbranch_scc1', 'H_hr')
        w_round(a, 0, 0, HR, 4)
        a.wait(vm=4*(4 - HR))
        a('s_barrier')
        publish4(a, FLD, PSTR, nd)
        w_round(a, 0, 0, 4, 7)
        touch3()
        a.wait(vm=14)
        a('s_branch', 'H_nd2')
        a.label('H_hr')
    tr = w_round(a, 0, 0, 4, 7)
    touch3()
    LP = E('LATEP', 0)
    if LP: a.wait(vm=20)
    else:
        a.wait_vm_tok(tp)
        a('s_barrier')
        publish4(a, FLD, PSTR, nd)
    if not E('HPIPE', 1): a.wait_vm_tok(tr)
    a.label('H_nd2')
    sDF, sT2, vt2, vg1 = S(58), S(54), V(93), V(96)
    FD_ = Flags(a, 'HD', V(94, 2), vg1, sDF)
    def bar():
        a.wait(lg=0)
        a('s_barrier')
    def rd(r, lo, hi):
        for i in range(lo, hi): emit(w_reads(RND[r][i], i & 3))
    bar()
    if E('HPIPE', 1):
        rd(0, 0, 4)
        bar()
        w_round(a, 1, 0, 0, 4)
        a.wait(vm=16)
        bar()
        if LP:
            a('s_cmp_eq_u32', sB, 5)
            a('s_cbranch_scc1', 'H_np')
            publish4(a, FLD, PSTR, nd)
            a.label('H_np')
        emit(w_shift(4))
        rd(0, 4, 7)
        bar()
        w_round(a, 1, 0, 4, 7)
        a.wait(vm=12)
        stamp(a, 5)
        bar()
        emit(w_shift(-4))
        rd(1, 0, 4)
        rep_base(a, sDF, FLD, PSTR)
        pack_flag_addr(a, vg1)
        bar()
        w_round(a, 2, 1, 0, 3)
        FD_.load()
        a.wait(vm=13)
        bar()
        emit(w_shift(4))
        rd(1, 4, 7)
        emit(w_shift(-4))
        bar()
        stamp(a, 6)
        tr = w_round(a, 2, 1, 3, 6)
    else:
        emit(w_read_ops(0))
        bar()
        tr = w_round(a, 1)
        a.wait_vm_tok(tr)
        stamp(a, 5)
        a('s_barrier')
        emit(w_read_ops(1))
        rep_base(a, sDF, FLD, PSTR)
        pack_flag_addr(a, vg1)
        FD_.load()
        bar()
        stamp(a, 6)
        tr = w_round(a, 2, 1)
    FD_.check()
    p2_touch(a)
    stamp(a, 7)
    a('s_cmp_lg_u32', sB, E('CSB', 5))
    a('s_cbranch_scc1', 'H_end')
    a.wait_vm_tok(tr)
    a('s_barrier')
    R = [V(16 + i) for i in range(4)]
    emit(w_shift(1, vWr, R))
    for i, ks in enumerate(RND[2]):
        if i == 4: emit(w_shift(4, R))
        emit(w_reads(ks, i & 3, R))
    ON = V(208, 4)
    CSA = [V(212 + 4*k, 4) for k in range(4)]
    CSA[3] = V(240, 4)
    for d in range(4): a('v_mov_b32', ON[d], '0x3f803f80')
    for ks in RND[0] + RND[1] + RND[2]:
        for k in range(4):
            a(MFMA, CSA[k], W1(ks, k), ON, CSA[k] if ks else 0)
    cs_bases(a)
    a('v_and_b32', t0, 15, lane)
    a('v_cmp_eq_u32', 'vcc', 0, t0)
    a('s_and_saveexec_b64', S(68, 2), 'vcc')
    for k in range(4):
        a('buffer_store_dwordx4', CSA[k], vq16, RWS, sCS3 if k == 3 else sCS0, mods=f'offen offset:{64*(k % 3)} sc1')
    a('s_mov_b64', 'exec', -1)
    a('s_lshl_b32', st0, sC, 7)
    a('s_lshl_b32', st1, sw, 2)
    a('s_add_u32', st0, st0, st1)
    a('s_add_u32', st0, st0, hex(FLC))
    a.wait(vm=0)
    publish(a, st0, 0)
    a.label('H_end')
    if E('CLPOS', 0) == 1: hh_clear(a, S(39), V(240, 4))
    stamp(a, 8)

def cs_bases(a):
    a('s_mul_i32', st0, sC, 14*64)
    a('s_add_u32', st0, st0, hex(CS))
    a('s_lshl_b32', sCS0, sUb, 6)
    a('s_add_u32', sCS0, sCS0, st0)
    a('s_lshl_b32', sCS3, sU3, 6)
    a('s_add_u32', sCS3, sCS3, st0)
```

```python
from mk8a import *

vdma2, RS2, vout = V(13), V(13), V(248)
ACC = [[V(16 + 32*n + 4*j, 4) for j in range(8)] for n in range(3)]
ACC.append({j: V(112 + 4*((j >> 2)*2 + (j & 1)), 4) for j in (0, 1, 4, 5)})
CSR = [V(128 + 4*n, 4) for n in range(4)]
BF = [V(208 + 4*i, 4) for i in range(8)]
VRD = [V(240 + i) for i in range(8)]
MEAN = V(176, 8)
vsr = [vst, V(184), V(185), V(186)]
vsw = [V(187), V(188)]
MT = [V(189), V(190)]
SQF = [V(128 + 4*i, 4) for i in range(3)]
SQA = V(204, 4)
vsq, vsqs, vpr = V(250), V(251), V(191)
vWg = [V(128 + i) for i in range(4)]
SQL = V(184, 8)
RES = [V(144, 2), V(146, 2), V(148, 2), V(150, 2), V(14, 2)]
ACC2 = [[V(208 + 4*nu, 4) for nu in range(5)], [V(228 + 4*nu, 4) for nu in range(5)],
        [V(176 + 4*nu, 4) for nu in range(5)], [V(196, 4), V(200, 4), V(204, 4), V(128, 4), V(132, 4)]]
MSK = [S(50, 2), S(52, 2), S(54, 2)]
WDL = [(W1(ks, n), ('p1', ks)) for ks in range(4) for n in range(4)]
WDL += [(V(152 + 4*f, 4), ('p1', 4 + (f >= 2))) for f in range(6)]
WDL += [(W1(ks, 3), (1, 0, ks)) for ks in range(KS, 20)]
WDL += [(W1(ks, n), (1, 2, ks)) for ks in range(KS, 20) for n in range(3)]
def WD(f): return WDL[f][0]
sMV, sDump, sPkT, sPark, sPkG = S(34, 2), S(12), S(49), S(7), S(10)
NPK, PK0 = E('NPK', 15), 2048
sHT0, sHTt, vchk, vtch = S(36), S(37), V(253), V(132)
CKT = [V(138 + 2*i, 2) for i in range(3)]
sCl, sFX, sFXw, GQ = S(39), S(40), S(41), V(132, 4)
HF0 = [ACC[n][j] for j in (0, 1) for n in range(4)] + [ACC[n][j] for j in (2, 3) for n in range(3)]
HF1 = [ACC[n][j] for j in (4, 5) for n in range(4)] + [ACC[n][j] for j in (6, 7) for n in range(3)]
HF = HF0 + HF1

def gemm_setup(a):
    srd(a, ROUT, P_OUT, S_*D_*2)
    cs_bases(a)
    a('s_lshl_b32', sHT, sw, 15)
    a('s_lshl_b32', st0, sB, 8)
    a('s_add_u32', sHT, sHT, st0)
    a('s_add_u32', sHT, sHT, hex(HT))
    a('s_lshl_b32', sLds, sw, 11)
    a('s_mov_b32', sHT0, sHT)
    a('s_lshl_b32', sFX, sB, 9)
    a('s_add_u32', sFX, sFX, hex(FL3))
    a('s_lshr_b32', st1, sC, 2)
    a('s_lshl_b32', st1, st1, 7)
    a('s_add_u32', sFXw, sFX, st1)
    a('s_and_b32', st1, sC, 3)
    a('s_lshl_b32', st1, st1, 2)
    a('s_add_u32', sFXw, sFXw, st1)
    a('s_and_b32', st1, sC, 3)
    a('s_lshl_b32', st1, st1, 2)
    a('s_add_u32', st1, st1, sw)
    a('s_lshl_b32', st1, st1, 17)
    a('s_add_u32', st1, st1, st0)
    a('s_add_u32', sHTt, st1, hex(HT + 4*131072))
    a('v_bfe_u32', t0, lane, 4, 2)
    a('v_lshl_add_u32', t0, t0, 2, l16)
    a('v_add_u32', vchk, sLds, t0)
    a('v_lshrrev_b32', t0, 1, lane)
    a('v_and_b32', t1, 1, lane)
    a('v_lshlrev_b32', t1, 7, t1)
    a('v_lshl_add_u32', vtch, t0, 12, t1)
    clr_setup_h(a, sCl)
    half, cbk, mu = S(13), S(14), S(15)
    a('s_bfe_u32', half, sC, (1 << 16) | 2)
    a('s_lshr_b32', cbk, sC, 3)
    a('s_lshl_b32', cbk, cbk, 2)
    a('s_and_b32', st0, sC, 3)
    a('s_add_u32', cbk, cbk, st0)
    a('s_and_b32', st0, sw, 1)
    a('s_lshl_b32', sRot, st0, 1)
    a('s_lshr_b32', st1, sw, 1)
    a('s_or_b32', sRot, sRot, st1)
    a('s_lshl_b32', mu, st1, 2)
    a('s_add_u32', mu, mu, st0)
    a('s_lshl_b32', st0, half, 1)
    a('s_add_u32', mu, mu, st0)
    a('s_mul_i32', st0, cbk, 5*TS)
    a('s_mul_i32', st1, sw, 14*1024)
    a('s_add_u32', st0, st0, st1)
    for nu in range(5):
        a('s_add_u32', sWn[nu], st0, hex(WP2 + nu*TS))
    a('s_lshl_b32', st0, sB, 3)
    a('s_lshl_b32', st2, half, 1)
    a('s_add_u32', st2, st2, st0)
    a('s_mul_i32', st2, st2, TS)
    a('s_add_u32', st2, st2, st1)
    for j in range(4):
        a('s_add_u32', sHH[j], st2, hex(HH + ((j & 1) + 4*(j >> 1))*TS))
    a('s_and_b32', st1, sRot, 2)
    a('s_mul_i32', st2, sC, 14*256)
    a('s_add_u32', st2, st2, hex(HH))
    for k in range(2):
        if k: a('s_xor_b32', st1, st1, 2)
        a('s_add_u32', sA[k], st0, st1)
        a('s_mul_i32', sA[k], sA[k], TS)
        a('s_add_u32', sA[k], sA[k], st2)
    a('s_add_u32', st1, st0, mu)
    a('s_mul_i32', sOut, st1, 16*1280)
    a('s_mul_i32', st2, cbk, 160)
    a('s_add_u32', sOut, sOut, st2)
    a('s_lshl_b32', sSQl, st1, 9)
    a('s_add_u32', sSQl, sSQl, hex(SQ))
    a('s_add_u32', st1, st0, cbk)
    a('s_lshl_b32', sSQs, st1, 9)
    a('s_lshl_b32', st1, half, 2)
    a('s_add_u32', st1, st1, sw)
    a('s_lshl_b32', st1, st1, 2)
    a('s_add_u32', sSQs, sSQs, st1)
    a('s_add_u32', sSQs, sSQs, hex(SQ))
    a('s_mov_b32', sStat, 0)
    a('s_lshl_b32', sC3, sC, 7)
    a('s_add_u32', sC3, sC3, hex(FLC))
    a('s_mov_b32', sPkG, sWn[0])
    a('s_mul_i32', sPark, sw, NPK*1024)
    a('s_add_u32', sPark, sPark, PK0)
    for mn, ops, mods in w_shift(1, vWr, vWg): a(mn, *ops)
    a('s_add_u32', sDump, sStat, 1024)
    a('s_cmp_ge_u32', sw, 2)
    a('s_cselect_b32', sMV[1], '0xffff0000', 0)
    a('s_mov_b32', sMV[0], 0)
    q, r, m, x = V(208), V(209), V(210), V(211)
    a('v_lshrrev_b32', q, 4, lane)
    a('v_bfe_u32', r, lane, 2, 2)
    a('v_and_b32', m, 15, lane)
    a('s_and_b32', st1, sw, 1)
    a('s_lshl_b32', st1, st1, 2)
    a('v_or_b32', t0, st1, q)
    a('v_bfe_u32', t1, lane, 1, 3)
    a('v_xor_b32', t0, t0, t1)
    a('v_lshlrev_b32', t0, 5, t0)
    a('v_and_b32', t1, 1, lane)
    a('v_lshl_add_u32', t0, t1, 4, t0)
    a('v_lshl_add_u32', vdma, q, 12, t0)
    a('v_add_u32', vdma2, 16384 - 1024, vdma)
    a('v_and_b32', t0, 1, q)
    a('v_lshl_or_b32', t0, t0, 2, r)
    a('v_lshl_add_u32', t1, q, 3, r)
    a('v_lshlrev_b32', t1, 8, t1)
    a('v_and_b32', t2, 3, lane)
    a('v_lshl_add_u32', t1, t2, 3, t1)
    a('v_xor_b32', x, cbk, t0)
    a('v_lshl_add_u32', vsq, x, 5, t1)
    a('s_lshl_b32', st0, sw, 14)
    a('s_add_u32', st0, st0, 11*8192)
    a('s_mul_i32', st1, sw, 3*8192)
    a('s_cmp_eq_u32', half, 0)
    a('s_cselect_b32', st0, st1, st0)
    a('v_add_u32', vsq, st0, vsq)
    a('v_xor_b32', t0, sRot, t0)
    for j in range(8):
        a('v_xor_b32', VRD[j], j, t0)
        a('v_lshl_add_u32', VRD[j], VRD[j], 5, t1)
    for i in range(3):
        a('v_cmp_eq_u32', MSK[i], i + 1, t2)
    a('v_lshlrev_b32', t0, 5, m)
    a('v_cmp_eq_u32', 'vcc', r, q)
    a('v_mov_b32', t1, hex(OOB))
    a('v_cndmask_b32', vsqs, t1, t0, 'vcc')
    a('v_lshrrev_b32', t0, 1, q)
    a('v_lshl_or_b32', t0, t0, 2, r)
    a('v_xor_b32', t0, mu, t0)
    a('v_lshlrev_b32', t0, 5, t0)
    a('v_lshl_add_u32', t0, t2, 3, t0)
    a('v_lshl_add_u32', t1, q, 2, r)
    a('v_lshl_add_u32', t0, t1, 8, t0)
    a('s_mul_i32', st2, cbk, 80*256)
    a('v_add_u32', vres, st2, t0)
    a('s_lshl_b32', st0, sRot, 2)
    a('s_add_u32', st0, st0, sStat)
    a('v_lshl_add_u32', vst, m, 5, st0)
    a('s_and_b32', st0, sRot, 1)
    a('v_and_b32', t0, 1, q)
    a('v_lshrrev_b32', t2, 1, q)
    a('v_xor_b32', x, st0, t0)
    a('v_mul_u32_u24', x, TS, x)
    a('v_lshl_add_u32', x, m, 4, x)
    a('v_add_u32', t1, sUb, t2)
    a('v_lshl_add_u32', vh01, t1, 8, x)
    a('s_add_u32', st1, sUb, 2)
    a('s_sub_u32', st2, sU3, st1)
    a('v_mul_lo_u32', t1, st2, t2)
    a('v_add_u32', t1, st1, t1)
    a('v_lshl_add_u32', vh23, t1, 8, x)
    a('v_xor_b32', x, st0, t2)
    a('v_mul_u32_u24', x, TS, x)
    a('v_lshl_add_u32', x, m, 4, x)
    a('v_lshl_add_u32', x, t0, 3, x)
    a('s_lshl_b32', st1, st1, 8)
    a('v_add_u32', vh2x, st1, x)
    a('v_mul_u32_u24', t1, 1280, m)
    a('v_lshl_add_u32', t1, t0, 5, t1)
    a('v_lshl_add_u32', vout, t2, 4, t1)
    a('v_and_b32', t1, 3, lane)
    a('v_lshlrev_b32', vfl, 2, t1)

def late_setup_ops():
    L = []
    for k in range(1, 4): L.append(('v_xor_b32', (vsr[k], 4*k, vst), ''))
    L.append(('v_lshl_add_u32', (MT[0], lane, 2, sDump), ''))
    L.append(('v_cndmask_b32', (vsw[0], MT[0], vst, sMV), ''))
    L.append(('v_cndmask_b32', (vsw[1], MT[0], vsr[1], sMV), ''))
    L.append(('v_add_u32', (vpr, sPark, l16), ''))
    return L

def pair_ops(X, Y, cX, cY, jX, jY, Q, pk, swap=True):
    L = []
    for Z, c, j in ((X, cX, jX), (Y, cY, jY)):
        if pk:
            s = j & 1
            for h in range(2):
                L.append((1, 'v_pk_fma_f32', (Z[2*h:2*h+2], c[2*h:2*h+2], MEAN[j-s:j-s+2], Z[2*h:2*h+2]), f'op_sel:[0,{s},0] op_sel_hi:[1,{s},1]'))
        else:
            for e in range(4): L.append((1, 'v_fmac_f32', (Z[e], c[e], MEAN[j]), ''))
    if swap:
        for e in range(4): L.append((2, 'v_permlane32_swap_b32', (X[e], Y[e]), ''))
    for e in range(4): L.append((1, 'v_max_f32', (X[e], 0, X[e]), ''))
    if pk:
        for h in range(2): L.append((1, 'v_pk_mul_f32', (X[2*h:2*h+2], X[2*h:2*h+2], Y[2*h:2*h+2]), ''))
    else:
        for e in range(4): L.append((1, 'v_mul_f32', (X[e], X[e], Y[e]), ''))
    for h in range(2): L.append((1, 'v_cvt_pk_bf16_f32', (Q[h], X[2*h], X[2*h+1]), ''))
    return L

def epi_ops(P, jb, pk=False):
    j0, j1 = 4*P + jb, 4*P + jb + 1
    L = []
    sbase = sA[jb >> 1]
    if P:
        L.append((1, 's_add_u32', (sbase, sbase, 4*TS), ''))
    groups = [(0, vh01)] + ([(2, vh23)] if jb == 0 else [])
    for n, va in groups:
        Q = ACC[n+1][j0]
        L += pair_ops(ACC[n][j0], ACC[n+1][j0], CSR[n], CSR[n+1], j0, j0, Q[0:2], pk, n > 0)
        L += pair_ops(ACC[n][j1], ACC[n+1][j1], CSR[n], CSR[n+1], j1, j1, Q[2:4], pk, n > 0)
        L.append((2, 'v_permlane16_swap_b32', (Q[0], Q[2]), ''))
        L.append((2, 'v_permlane16_swap_b32', (Q[1], Q[3]), ''))
        L.append((1, 'buffer_store_dwordx4', (Q, va, RWS, sbase), 'offen sc1'))
    if jb:
        Q = ACC[2][j1]
        L += pair_ops(ACC[2][j0], ACC[2][j1], CSR[2], CSR[2], j0, j1, Q[0:2], pk)
        L.append((1, 'buffer_store_dwordx2', (Q[0:2], vh2x, RWS, sbase), 'offen sc1'))
    return L

BFQ = [V(136, 4), V(140, 4)]
vck = V(252)

def gemms(a):
    T = {}
    dt = {}
    slow = []
    PW = [Ptr(s) for s in sWn]
    PH = [Ptr(s) for s in sHH]
    def wd_load(f, dry):
        i, nu = divmod(f, 5)
        L, o = PW[nu].at(i, dry)
        return L + [('buffer_load_dwordx4', (WD(f), l16, RWS, sWn[nu]), f'offen offset:{o}' + LD, None)]
    def hload(i, j, dry):
        L, o = PH[j].at(i, dry)
        return L + [('buffer_load_dwordx4', (HF[2*i + (j & 1)], l16, RWS, sHH[j]), f'offen offset:{o}' + LD, None)]
    def guarded(sc, qi, at, name, badops, reload):
        for mn, ops in badops: sc.op(qi, at, mn, ops)
        def bad():
            for mn, ops in badops: a(mn, *ops)
        def br():
            a('s_cbranch_vccnz', name + '_slow')
            a.label(name + '_back')
            slow.append((name, bad, reload()))
            T[name] = sc.n
        sc.sca(qi, at, br)
    def hcheck(sc, at, i, ph):
        F0, F1 = HF[2*i], HF[2*i + 1]
        ops = [('v_max3_u32', (vck, F0[0], F0[2], F1[0])), ('v_max_u32', (vck, vck, F1[2])), ('v_cmp_eq_u32', ('vcc', -1, vck))]
        def mk():
            ks_ = [PH[2*ph + jj].k for jj in range(2)]
            def reload():
                for jj in range(2):
                    a('s_add_u32', st0, sHH[2*ph + jj], hex((4096*((i >> 2) - ks_[jj])) & 0xffffffff))
                    a('buffer_load_dwordx4', HF[2*i + jj], l16, RWS, st0, mods=f'offen offset:{(i & 3)*1024} sc1')
            return reload
        guarded(sc, 2, at, f'HC{ph}_{i}', ops, mk)
    def dma_ops(ks):
        return [[('s_add_u32', ('m0', sLds, 8192*ks)), ('buffer_load_dwordx4', (vdma, RWS, sHT), 'offen' + LD + ' lds')],
                [('buffer_load_dwordx4', (vdma2, RWS, sHT), 'offen offset:1024' + LD + ' lds', (dt, ks))],
                [('s_add_u32', (sHT, sHT, 131072))]]
    sc = Sched(a, 4)
    sc.step = E('VSTEP', 5)
    NUP = E('NUP', 4)
    for ks in range(NUP):
        for L in dma_ops(ks): sc.ops(0, 0, L)
    sc.drain()
    if E('HTT', 1): a('buffer_load_dword', V(133), vtch, RWS, sHTt, mods='offen')
    a('s_cmp_lg_u32', S(2), 0)
    a('s_cbranch_scc1', 'EP_skip')
    a('s_add_u32', sEp, sEp, 1)
    a('v_mov_b32', t0, sEp)
    a('s_mov_b32', st0, hex(EPOCH))
    a('s_mov_b64', 'exec', 1)
    a('buffer_store_dword', t0, 'off', RWS, st0, mods='sc1')
    a('s_mov_b64', 'exec', -1)
    a.label('EP_skip')
    steps = [(ks, j) for ks in range(KS) for j in range(8)]
    ends = {}
    cnt = lambda L: sum(4 if (j & 3) < 2 else 3 for _, j in L)
    n1 = cnt(steps)
    when = {}
    for P in range(2):
        for jb in (0, 2):
            for ks in range(KS, 20):
                steps += [(ks, 4*P + jb), (ks, 4*P + jb + 1)]
                when[(P, jb, ks)] = cnt(steps)
            ends[(P, jb)] = cnt(steps)
    NM = cnt(steps)
    d0, ds_ = E('D_AT', 30), E('DSTEP', 9)
    for ks in range(NUP, 20):
        at = d0 + ds_*(ks - NUP)
        st_ = ds_
        if ks >= 11: st_ = E('DSTEP2', 7); at = E('D2_AT', 88) + st_*(ks - 11)
        for k, L in enumerate(dma_ops(ks)): sc.ops(2, at + (st_//2 if k else 0), L)
    bars = eval(os.environ.get('BARS', '{30: 3, 86: 6, 142: 11, 198: 19}'))
    lastbar = min(k for k, v in bars.items() if v == 19)
    cbase = [0]
    def hval(lo, hi, at):
        name = f'HV{lo}'
        rd = lambda ks: ('ds_read2st64_b32', (CKT[ks % 3], vchk), f'offset0:{32*(ks - lo)} offset1:{32*(ks - lo) + 4}')
        mx = lambda ks: ('v_max_u32', (vck, CKT[ks % 3][0], CKT[ks % 3][1])) if ks == lo else ('v_max3_u32', (vck, vck, CKT[ks % 3][0], CKT[ks % 3][1]))
        cmp_ = ('v_cmp_eq_u32', ('vcc', -1, vck))
        def reload():
            a('s_mov_b32', st1, 'm0')
            for ks in range(lo, hi + 1):
                a('s_add_u32', 'm0', sLds, 8192*ks)
                a('s_add_u32', st0, sHT0, 131072*ks)
                a('buffer_load_dwordx4', vdma, RWS, st0, mods='offen sc1 lds')
                a('buffer_load_dwordx4', vdma2, RWS, st0, mods='offen offset:1024 sc1 lds')
            a('s_mov_b32', 'm0', st1)
        def bad():
            for ks in range(lo, hi + 1):
                r = rd(ks); a(r[0], *r[1], mods=r[2])
                m = mx(ks); a(m[0], *m[1])
            a(cmp_[0], *cmp_[1])
        def br():
            a('s_cbranch_vccnz', name + '_slow')
            a.label(name + '_back')
            slow.append((name, bad, reload))
            T[name] = sc.n
        sh = [('v_add_u32', (vchk, 8192*(lo - cbase[0]), vchk))] if lo != cbase[0] else []
        cbase[0] = lo
        if at is None:
            a.wait_vm_tok(dt[hi])
            for ks in range(lo, hi + 1):
                r = rd(ks); a(r[0], *r[1], mods=r[2])
            return lambda: ([a(mx(ks)[0], *mx(ks)[1]) for ks in range(lo, hi + 1)], a(cmp_[0], *cmp_[1]), br())
        lat, st_ = E('HV_LAT', 7), 3
        for x in sh: sc.op(3, at - lat - 3 - st_*(hi - lo) - 2, *x)
        for ks in range(lo, hi + 1):
            t = at - lat - 3 - st_*(hi - ks)
            sc.sca(3, t, lambda ks=ks: a.wait_vm_tok(dt[ks]))
            sc.op(3, t, *rd(ks))
            sc.op(3, t + lat, *mx(ks))
        sc.op(3, at - 3, *cmp_)
        sc.sca(3, at - 3, br)
    HV = E('HV', 1)
    if HV:
        lo = 2
        for n_, hi in sorted(bars.items()):
            hval(lo, hi, n_); lo = hi + 1
        cbase[0] = 0
    hvn = {n_: f'HV{lo_ + 1}' for n_, lo_ in zip(sorted(bars), [1] + [v for k, v in sorted(bars.items())])}
    pbar = E('PBAR', 228)
    bars[pbar] = 19
    b0, b1 = sorted(bars)[:2]
    for i, ks in enumerate(RND[2]):
        at = 0 if i < 2 else b0
        if i == 4:
            for op in w_shift(4, vWg): sc.op(0, at, *op)
        for op in w_reads(ks, i & 3, vWg): sc.op(0, at, *op, tok=(T, 'w3a' if i < 2 else 'w3b'))
    sc.note(0, 0, lambda: T.__setitem__('w3a_ok', 1))
    sc.note(0, b0, lambda: T.__setitem__('w3b_ok', 1))
    assert d0 + ds_*(8 - NUP) >= b0 and E('D2_AT', 88) > b1
    cl_at = E('GCL_AT', 152)
    CLP = E('CLPOS', 0)
    for d in range(4*(CLP == 0)): sc.op(1, cl_at - 8, 'v_mov_b32', (GQ[d], -1))
    for k, (mn, ops, mods) in enumerate(clr_ops(GQ, sCl)):
        if (E('NOCL', 0) and k > 0) or CLP: continue
        sc.op(1, cl_at + E('GCL_STEP', 3)*k, mn, ops, mods, tok=(T, 'cl'))
    sc.note(1, cl_at + E('GCL_STEP', 3)*8, lambda: T.__setitem__('cl_ok', sc.n))
    fx_at = E('FX_AT', 520)
    FX = Flags(a, 'FX', vfv, vchk, sFX)
    sc.op(1, fx_at - 70, 'v_bfe_u32', (vchk, lane, 2, 2))
    sc.op(1, fx_at - 70, 'v_lshl_add_u32', (vchk, vchk, 7, vfl))
    sc.call(1, fx_at - 60, FX.load)
    sc.call(1, fx_at, lambda: (FX.check(), T.__setitem__('fx', 1)))
    if E('OT_AT', 0): sc.op(1, E('OT_AT', 0), 'buffer_load_dword', (vck, 'off', ROUT, sOut), '')
    fl_at = E('FL_AT', 240)
    FC = Flags(a, 'CF', vfv, vfl, sC3)
    fc_at = E('FC_AT', 152)
    sc.call(1, fc_at - 62, FC.load)
    sc.call(1, fc_at - 10, FC.check)
    for n in range(4):
        sc.op(1, fl_at, 'buffer_load_dwordx4', (CSR[n], vq16, RWS, sCS3 if n == 3 else sCS0), f'offen offset:{64*(n % 3)} sc1')
    sq_at = lastbar + 2
    if cl_at < sq_at: sc.note(0, sq_at, lambda: T['cl_ok'])
    else: assert cl_at - 8 >= pbar + 8
    for nu in range(5):
        sc.op(0, sq_at, 'ds_read_b64_tr_b16', (RES[nu], vres), f'offset:{4096*nu}')
    for op in late_setup_ops(): sc.op(0, sq_at, *op)
    for i in range(3):
        for hf in range(2):
            sc.op(0, sq_at, 'ds_read_b64_tr_b16', (SQF[i][2*hf:2*hf+2], vsq), f'offset:{8192*i + 1024*hf}', tok=(T, 'sqr'))
    def sq_mf():
        a(MFMA, SQA, SQF[1], SQF[1], 0)
        a(MFMA, SQA, SQF[2], SQF[2], SQA)
        a('s_bitcmp1_b32', sC, 2)
        a('s_cbranch_scc1', 'SQ_skip')
        a(MFMA, SQA, SQF[0], SQF[0], SQA)
        a.label('SQ_skip')
    sm = pbar + 4
    sc.call(0, sm, sq_mf)
    sc.op(0, sm + 4, 'v_cndmask_b32', (MT[0], SQA[0], SQA[1], MSK[0]))
    sc.op(0, sm + 4, 'v_cndmask_b32', (MT[0], MT[0], SQA[2], MSK[1]))
    sc.op(0, sm + 4, 'v_cndmask_b32', (MT[0], MT[0], SQA[3], MSK[2]))
    sc.op(0, sm + 4, 'buffer_store_dword', (MT[0], vsqs, RWS, sSQs), 'offen sc1')
    held = []
    def flush_ha():
        for e in [e for e in sc.mem if e[3:] == ('ha',)]:
            sc.mem.remove(e); sc.emit(e[2](False))
    for P in range(2):
        e0 = ends[(P, 0)]
        for k in range(2):
            sc.op(0, e0 + 3, 'v_mul_f32', (MT[k], '0xbacccccd', ACC[3][4*P + k][0]))
        for k in range(2):
            sc.op(0, e0 + 3, 'ds_write_b32', (vsw[k], MT[k]), f'offset:{16*P}', tok=(T, 'mw'))
        def mbar(P=P):
            a.wait_lg_tok(T['mw'])
            if P == 0 and not CLP: a.wait_vm_tok(T['cl'])
            a('s_barrier')
            if P == 0:
                a('s_cmp_lg_u32', sw, 0)
                a('s_cbranch_scc1', 'FX_pub')
                a('s_mov_b64', 'exec', 1)
                publish(a, sFXw, 0)
                a('s_mov_b64', 'exec', -1)
                a.label('FX_pub')
        sc.call(0, e0 + 10, mbar)
        for k in range(4):
            sc.op(0, e0 + 10, 'ds_read_b32', (MEAN[4*P + k], vsr[k]), f'offset:{16*P}')
        for c, mn, ops, mods in epi_ops(P, 0):
            if P and E('DEFER', 0) and 'store' in mn: held.append((mn, ops, mods))
            else: sc.op(0, e0 + 16, mn, ops, mods)
        for c, mn, ops, mods in epi_ops(P, 2, pk=(P == 1)):
            if P and E('DEFER', 0) >= 2 and 'store' in mn: held.append((mn, ops, mods))
            else: sc.op(0, ends[(P, 2)] + 3, mn, ops, mods)
        if P and held:
            if E('DEFER', 0) == 1:
                k = [i for i, e in enumerate(sc.q[0]) if e[0] == ends[(1, 2)] + 3 and e[1] == 'i' and 'store' in e[2][0][0]][0]
                for mn, ops, mods in reversed(held): sc.q[0].insert(k, (ends[(1, 2)] + 3, 'i', [(mn, ops, mods, None)]))
            else:
                sc.note(0, ends[(1, 2)] + 3, lambda: flush_ha())
                for mn, ops, mods in held: sc.op(0, ends[(1, 2)] + 3, mn, ops, mods)
        sc.note(0, ends[(P, 2)] + 3, lambda P=P: T.__setitem__(f'st{P}', sc.n))
    wd0 = E('WD_AT', 170)
    for f in range(70 - NPK):
        w = WDL[f][1]
        av = max(28*(w[1] + 1) + 1, wd0) if w[0] == 'p1' else when[w] + 1
        if not E('NOWD', 0): sc.load(av, 2*f + 1, lambda dry, f=f: wd_load(f, dry))
    for k in range(NPK):
        f = 70 - NPK + k
        i, nu = divmod(f, 5)
        def park(dry, k=k, i=i, nu=nu):
            return [('s_add_u32', ('m0', sPark, 1024*k), '', None),
                    ('s_add_u32', (sPkT, sPkG, nu*TS + 1024*i), '', None),
                    ('buffer_load_dwordx4', (l16, RWS, sPkT), 'offen' + LD + ' lds', (T, 'pk'))]
        if not E('NOWD', 0): sc.load(pbar + 1, 44 + k*0.01, park)
        def wpk():
            a.wait_vm_tok(T['pk'])
        if k == 0 and not E('NOWD', 0): sc.sca(1, when[WDL[f][1]] + 1, wpk)
        sc.op(1, when[WDL[f][1]] + 1, 'ds_read_b128', (WD(f), vpr), f'offset:{1024*k}')
    def hl(i, j, P, dry):
        assert f'st{P}' in T and 'fx' in T, (i, j, sc.n)
        return hload(i, j, dry)
    for i in range(7):
        for j in range(2):
            sc.load(E('HA_AT', 545), 10*i - 10 + j - E('HA_PRI', 100), lambda dry, i=i, j=j: hl(i, j, 0, dry))
            sc.mem[-1] += ('ha',)
    sc.sort()

    GST = eval(os.environ.get('GST', '[]'))
    print('n1', n1, 'ends', ends, 'NM', NM, file=sys.stderr)
    base = [0]*8
    cover = [1]
    def bread(s, hf):
        ks, j = steps[s]
        assert ks <= cover[0], (s, ks, cover)
        return ('ds_read_b64_tr_b16', (BF[s & 7][2*hf:2*hf+2], VRD[j]), f'offset:{(ks & 7)*8192 + 1024*hf}')
    def bfix(s):
        ks, j = steps[s]
        if base[j] == ks >> 3: return []
        d = (ks >> 3) - base[j]
        base[j] = ks >> 3
        return [('v_add_u32', (VRD[j], d*65536, VRD[j]))]
    if HV: hval(0, 1, None)()
    a.wait_vm_tok(dt[1])
    a('s_barrier')
    stamp(a, 10)
    if E('CLK', 0): a('s_memtime', S(72, 2)); a.wait(lg=0)
    for s in range(8):
        for hf in range(2):
            r = bread(s, hf); a(r[0], *r[1], mods=r[2])
    seen = set()
    seq = []
    for s, (ks, j) in enumerate(steps):
        nk = 4 if (j & 3) < 2 else 3
        for k in range(nk):
            acc = ACC[k][j]
            seq.append((s, k, nk, (MFMA, (acc, W1(ks, k), BF[s & 7], acc if acc.idx in seen else 0), '')))
            seen.add(acc.idx)
    for x, (s, k, nk, m) in enumerate(seq):
        if sc.n in bars:
            a.wait_vm_tok(dt[bars[sc.n]])
            if HV and sc.n in hvn: assert hvn[sc.n] in T, sc.n
            if sc.n == pbar: a.wait_lg_tok(T['sqr'])
            if sc.n == b0: assert T['w3a_ok']; a.wait_lg_tok(T['w3a'])
            if sc.n == b1: assert T['w3b_ok']; a.wait_lg_tok(T['w3b'])
            a('s_barrier')
            cover[0] = bars[sc.n]
        if sc.n == ends[(0, 2)]: stamp(a, 11)
        if sc.n in GST: stamp(a, 1 + GST.index(sc.n))
        a(m[0], *m[1])
        sc.n += 1
        fixed = []
        if 1 <= s and s + 7 < len(steps):
            if E('BB', 1) and sc.n > E('BB_AT', 320): fixed += [bread(s + 7, 0), bread(s + 7, 1)] if k == 0 else []
            elif k < 2: fixed.append(bread(s + 7, k))
        if k == 2 and s + 8 < len(steps): fixed += bfix(s + 8)
        sc.gap(fixed, [seq[x + 1][3]] if x + 1 < len(seq) else [])
    print('after gemm1:', sc.left(), 'first epilogue done at', T['st0'], 'over', sc.over, file=sys.stderr)
    stamp(a, 12)
    if E('CLK', 0):
        a('s_memtime', S(74, 2)); a.wait(lg=0)
        a('s_sub_u32', S(72), S(74), S(72))
        a('s_add_u32', S(72), S(72), S(70))
    a('s_lshl_b32', st0, S(15), 2)
    a('s_add_u32', st0, st0, sStat)
    a('v_and_b32', t0, 15, lane)
    a('v_lshl_add_u32', t1, t0, 5, st0)
    a('ds_read_b32', RS2, t1)
    a('v_lshlrev_b32', t0, 5, t0)
    sc.drain(E('BEV', 10))
    print('after burst:', sc.left(), file=sys.stderr)
    g0 = sc.n
    for i in range(7, 14):
        for j in range(2): sc.load(g0, 10*i - 10 + j, lambda dry, i=i, j=j: hl(i, j, 1, dry))
    for i in range(14):
        for j in (2, 3): sc.load(g0 + max(10*i + 5*(j - 1), E('HB_AT', 85), 140 + min(10*i, 140 - 10*E('NT', 4)) - E('HB_LEAD', 55)), 140 + 10*i - 10 + j, lambda dry, i=i, j=j: hl(i, j, 1, dry))
    EB = E('EBAR', 40)
    if EB:
        def ebar():
            a.wait(lg=0)
            a('s_barrier')
        sc.call(0, g0 + EB, ebar)
    sc.step = E('VSTEP2', 3)
    hcheck(sc, 0, 0, 0)
    while sc.q[2]:
        sc.gap()
    for i in range(1, 14): hcheck(sc, g0 + 10*i - E('CK', 5), i, 0)
    sc.sort()
    seq = [(i, (MFMA, (ACC2[j][nu], WD(5*i + nu), HF[2*i + j], ACC2[j][nu] if i else 0), '')) for i in range(14) for j in range(2) for nu in range(5)]
    for x, (i, m) in enumerate(seq):
        assert f'HC0_{i}' in T, i
        if 1000 + x in GST: stamp(a, 1 + GST.index(1000 + x))
        a(m[0], *m[1])
        sc.n += 1
        sc.gap([], [seq[x + 1][1]] if x + 1 < len(seq) and f'HC0_{seq[x + 1][0]}' in T else [])
    print('after gemm2a:', sc.left(), 'over', sc.over, file=sys.stderr)
    stamp(a, 13)
    def sqload():
        for k in range(2):
            a('buffer_load_dwordx4', BFQ[k], t0, RWS, sSQl, mods=f'offen offset:{16*k} sc1')
    sqload()
    if not EB:
        a.wait(lg=0)
        a('s_barrier')
    vw, vr = t1, t2
    a('s_mul_i32', st0, sw, 5120)
    a('v_add_u32', vw, st0, l16)
    a('s_mul_i32', st0, sw, 20480)
    a('v_add_u32', vr, st0, l16)
    vw2 = vsqs
    a('v_add_u32', vw2, 40960, vw)
    g1 = sc.n
    for j in range(2):
        for nu in range(5):
            sc.op(0, g1 + 2 + 5*(5*j + nu), 'ds_write_b128', (vw, ACC2[j][nu]), f'offset:{20480*j + 1024*nu}')
    sqbad = [('v_max3_u32', (vck, BFQ[0][0], BFQ[0][1], BFQ[0][2])), ('v_max3_u32', (vck, vck, BFQ[0][3], BFQ[1][0])),
             ('v_max3_u32', (vck, vck, BFQ[1][1], BFQ[1][2])), ('v_max_u32', (vck, vck, BFQ[1][3])), ('v_cmp_eq_u32', ('vcc', -1, vck))]
    rec = []
    r = lambda mn, *ops, mods='': rec.append((mn, ops, mods))
    for k in range(4): r('v_add_f32', BFQ[0][k], BFQ[0][k], BFQ[1][k])
    r('v_add_f32', BFQ[0][0], BFQ[0][0], BFQ[0][1])
    r('v_add_f32', BFQ[0][2], BFQ[0][2], BFQ[0][3])
    r('v_add_f32', BFQ[0][0], BFQ[0][0], BFQ[0][2])
    s2, tt = BFQ[0][0], BFQ[0][1]
    r('v_mul_f32', tt, RS2, RS2)
    r('v_mul_f32', s2, '0x3acccccd', s2)
    r('v_sub_f32', s2, s2, tt)
    r('v_max_f32', s2, 0, s2)
    rbf(r, s2)
    r('v_add_f32', s2, '0x3727c5ac', s2)
    rbf(r, s2)
    r('v_sqrt_f32', s2, s2)
    rbf(r, s2)
    r('v_rcp_f32', s2, s2)
    r('v_mul_f32', RS2, s2, s2)
    for mn, ops, mods in rec: sc.op(1, g1 + 72, mn, ops, mods)
    NT = E('NT', 4)
    seq = [(i, j, nu) for i in range(14 - NT) for j in (2, 3) for nu in range(5)]
    tail0 = len(seq)
    seq += [(i, j, nu) for j in (2, 3) for nu in range(5) for i in range(14 - NT, 14)]
    for k, (j, nu) in enumerate([(j, nu) for j in (2, 3) for nu in range(5)]):
        sc.op(0, g1 + tail0 + NT*(k + 1) + 2, 'ds_write_b128', (vw2, ACC2[j][nu]), f'offset:{20480*(j - 2) + 1024*nu}')
    issued = lambda i: not any(e[0] in (140 + 10*i - 10 + 2, 140 + 10*i - 10 + 3) for e in sc.mem)
    assert issued(0)
    hcheck(sc, 0, 0, 1)
    while sc.q[2]:
        sc.gap()
    for i in range(1, 14):
        at = g1 + ((10*i - E('CK', 5)) if i < 14 - NT else (tail0 - 5 - 3*(13 - i)))
        sc.note(2, at, lambda i=i: None if issued(i) else 1/0)
        hcheck(sc, at, i, 1)
        if i == 6: guarded(sc, 2, g1 + 60, 'SQC', sqbad, lambda: sqload)
    sc.sort()
    ms = [(i, (MFMA, (ACC2[j][nu], WD(5*i + nu), HF[2*i + (j & 1)], ACC2[j][nu] if i else 0), '')) for i, j, nu in seq]
    for x, (i, m) in enumerate(ms):
        assert f'HC1_{i}' in T, i
        if sc.n == g1 + 71: assert 'SQC' in T
        if 1140 + x in GST: stamp(a, 1 + GST.index(1140 + x))
        a(m[0], *m[1])
        sc.n += 1
        sc.gap([], [ms[x + 1][1]] if x + 1 < len(ms) and f'HC1_{ms[x + 1][0]}' in T else [])
    print('after gemm2b:', sc.left(), 'over', sc.over, file=sys.stderr)
    sc.n += 100
    sc.drain()
    if 1280 in GST: stamp(a, 1 + GST.index(1280))
    a.wait(lg=0)
    a('s_barrier')
    RD = [V(16 + 4*k, 4) for k in range(20)]
    for nu in range(5):
        for k in range(4):
            a('ds_read_b128', RD[4*nu + k], vr, mods=f'offset:{5120*k + 1024*nu}')
    X = V(96, 4)
    Q = [V(100, 4), V(104, 4), V(108, 2)]
    vo2 = V(110)
    a('v_and_b32', t0, 15, lane)
    a('v_mul_u32_u24', t0, 1280, t0)
    a('v_lshrrev_b32', t1, 1, vq16)
    a('v_add_u32', vo2, t0, t1)
    rp = V(12, 2)
    for nu in range(5):
        C, C2 = RD[4*nu], RD[4*nu + 2]
        for h in range(2):
            a('v_pk_add_f32', C[2*h:2*h+2], C[2*h:2*h+2], RD[4*nu + 1][2*h:2*h+2])
            a('v_pk_add_f32', C2[2*h:2*h+2], C2[2*h:2*h+2], RD[4*nu + 3][2*h:2*h+2])
        a('v_lshlrev_b32', X[0], 16, RES[nu][0])
        a('v_and_b32', X[1], '0xffff0000', RES[nu][0])
        a('v_lshlrev_b32', X[2], 16, RES[nu][1])
        a('v_and_b32', X[3], '0xffff0000', RES[nu][1])
        for h in range(2):
            a('v_pk_add_f32', C[2*h:2*h+2], C[2*h:2*h+2], C2[2*h:2*h+2])
        for h in range(2):
            a('v_pk_fma_f32', C[2*h:2*h+2], C[2*h:2*h+2], rp, X[2*h:2*h+2], mods='op_sel:[0,1,0] op_sel_hi:[1,1,1]')
        q = Q[nu >> 1]
        for h in range(2):
            a('v_cvt_pk_bf16_f32', q[2*(nu & 1) + h], C[2*h], C[2*h+1])
        if nu & 1:
            a('v_permlane16_swap_b32', q[0], q[2])
            a('v_permlane16_swap_b32', q[1], q[3])
            a('buffer_store_dwordx4', q, vout, ROUT, sOut, mods=f'offen offset:{64*(nu >> 1)}')
    a('buffer_store_dwordx2', Q[2], vo2, ROUT, sOut, mods='offen offset:128')
    return slow

def slow_paths(a, slow):
    for name, bad, reload in slow:
        a.label(name + '_slow')
        a.wait(lg=0)
        a('s_mov_b32', sCnt, SPIN)
        reload()
        a.spin_head(name + '_spin')
        bad()
        a('s_cbranch_vccz', name + '_back')
        reload()
        a('s_sub_u32', sCnt, sCnt, 1)
        a('s_cbranch_scc0', name + '_spin')
        a.wait(vm=0)
        a('s_branch', name + '_back')

def kernel(a):
    stamp(a, 0)
    if STAMP:
        for i in range(1, 15): a('s_mov_b32', S(70 + 2*i), S(70))
    a('s_cmp_lt_u32', S(2), 256)
    a('s_cbranch_scc1', 'K_go')
    a('s_endpgm')
    a.label('K_go')
    load_args(a)
    if E('PF0', 1): code_prefetch(a, 'PC0')
    wave_id(a, sw, t0)
    a('v_and_b32', lane, 63, V(0))
    a('v_lshlrev_b32', l16, 4, lane)
    a('v_and_b32', vq16, 48, lane)
    a('s_cmp_ge_u32', S(2), 160)
    a('s_cbranch_scc1', 'K_helper')
    tht = conv_wg(a)
    if E('PUBE', 0) == 0: gemm_setup(a)
    a.wait_vm_tok(tht)
    a.wait(lg=0)
    a('s_barrier')
    if not E('PUB_AT', 232): publish_n(a, S(2))
    if E('PUBE', 0) == 1: gemm_setup(a)
    if not E('R3B', 1):
        w_round(a, 2, 1, 3, 6)
    p2_touch(a)
    a('s_branch', 'K_gemm')
    a.label('K_helper')
    helper_wg(a)
    gemm_setup(a)
    a.label('K_gemm')
    a('s_cmp_lg_u32', sw, 0)
    a('s_cbranch_scc1', 'C2_clr' if E('CLPOS', 0) == 3 else 'C2_skip')
    a('s_and_b32', st2, S(2), NREP - 1)
    a('s_mul_i32', st2, st2, HSTR)
    a('s_add_u32', st2, st2, hex(FLH2))
    a('v_min_u32', t1, 39, lane)
    a('v_lshrrev_b32', t2, WPL - 2, t1)
    a('v_lshlrev_b32', t2, 7, t2)
    a('v_and_b32', t1, (1 << WPL - 2) - 1, t1)
    a('v_lshl_add_u32', t2, t1, 4, t2)
    Flags(a, 'C2', BF[2], t2, st2, tmp=S(68, 2)).wait()
    if E('CLPOS', 0) == 3:
        a('s_branch', 'C2_skip')
        a.label('C2_clr')
        for d in range(4): a('v_mov_b32', GQ[d], -1)
        for mn, ops, *mods in clr_ops(GQ, sCl): a(mn, *ops, mods=mods[0])
        a('s_cmp_lg_u32', sw, 1)
        a('s_cbranch_scc1', 'C2_skip')
        a('s_sub_u32', sCl, sCl, 3*TS)
        for mn, ops, *mods in clr_ops(GQ, sCl): a(mn, *ops, mods=mods[0])
    a.label('C2_skip')
    a.wait(lg=0)
    a('s_barrier')
    stamp(a, 9)
    slow = gemms(a)
    if STAMP: a.wait(vm=0)
    stamp_flush(a, 0, 15, sw, RWS)
    a('s_endpgm')
    slow_paths(a, slow)
    a.items.append('CODE_END:')

if __name__ == '__main__':
    txt = build([(NAME + '_kernel', kernel, 256, 163840, 512, 256)])
    txt = txt.replace(f'@launch kernel={NAME}_kernel grid', '@launch grid')
    open(sys.argv[1], 'w').write(txt)
```

```python
from gen import *

E = lambda k, d: int(os.environ.get(k, str(d)))
LD = os.environ.get('LDM', '')
LD1 = os.environ.get('LD1', ' sc1')
NT_ = os.environ.get('NTI', ' nt')
KS = 8
FL = 0x1800000
FLA, FLH, FLP, FLC, FL3, EPOCH = FL, FL + 0x8000, FL + 0x10000, FL + 0x14000, FL + 0x18000, FL + 0x20000
FLD, FLG = FL + 0x5000, 0x1900000
HSTR, PSTR = 64*128, 24*128
SQ, AB, KV2, KVR = ST, 0x7A0000, WP1, 20480
SPIN = 20000
WROW = F_*2
TS = 224*256
WB, WSS, WUO = 4*CONV_LDS, 14368, 7184
RND = [[0, 1, 2, 3, 8, 9, 10], list(range(11, 18)), [4, 5, 6, 7, 18, 19]]

sw = S(3)
st0, st1, st2 = S(4), S(5), S(6)
ROUT, RWS = S(56, 4), S(60, 4)
sB, sC, sUb, sHT, sLds, sStat, sOut, sC3 = [S(16 + i) for i in range(8)]
sHH = [S(24 + i) for i in range(4)]
sRot, sSQl, sSQs, sU3, sCS0, sCS3 = [S(28 + i) for i in range(6)]
sA = [S(8), S(9)]
sCnt, sWo, sEp, sWl, sWs, sTag, sTag2 = S(11), S(42), S(43), S(38), S(49), S(100), S(100, 2)
RW1 = S(64, 4)
sWn = [S(44 + i) for i in range(5)]

lane, t0, t1, t2 = V(1), V(2), V(3), V(4)
l16, vdma, vh01, vh23, vh2x, vst, vres, vq16 = [V(5 + i) for i in range(8)]
vfl, vfv, vtg = V(249), V(254), V(255)
def W1(ks, n):
    if 4 <= ks < 8: return V(144 + 16*(ks - 4) + 4*n, 4)
    return A(16*(ks if ks < 4 else ks - 4) + 4*n, 4)
vWd = [V(226 + i) for i in range(4)]
vWr = [V(230 + i) for i in range(4)]

def spin(a, name, load, bad, first=True):
    a.wait(lg=0)
    a('s_mov_b32', sCnt, SPIN)
    if first: load()
    a.spin_head(name + '_spin')
    bad()
    a('s_cbranch_vccz', name + '_done')
    load()
    a('s_sub_u32', sCnt, sCnt, 1)
    a('s_cbranch_scc0', name + '_spin')
    a.wait(vm=0)
    a.label(name + '_done')

class Flags:
    def __init__(self, a, name, vval, vaddr, soff, off=0, tmp=None):
        self.a, self.name, self.vval, self.vaddr, self.soff, self.off, self.tmp = a, name, vval, vaddr, soff, off, tmp
    def load(self):
        mn = {1: 'buffer_load_dword', 2: 'buffer_load_dwordx2', 4: 'buffer_load_dwordx4'}[self.vval.n]
        self.tok = self.a(mn, self.vval, self.vaddr, RWS, self.soff, mods=f'offen offset:{self.off} sc1')
    def bad(self):
        a, v = self.a, self.vval
        if v.n == 1:
            a('v_cmp_ne_u32', 'vcc', sTag, v)
            return
        if v.n == 4: a('v_cmp_ne_u64', self.tmp, sTag2, v[2:4])
        a('v_cmp_ne_u64', 'vcc', sTag2, v[0:2])
        if v.n == 4: a('s_or_b64', 'vcc', 'vcc', self.tmp)
    def check(self):
        a = self.a
        a.wait_vm_tok(self.tok)
        self.bad()
        a('s_cbranch_vccz', self.name + '_ok')
        spin(a, self.name, self.load, self.bad)
        a.label(self.name + '_ok')
    def wait(self):
        spin(self.a, self.name, self.load, self.bad)

def publish(a, soff, off):
    return a('buffer_store_dword', vtg, 'off', RWS, soff, mods=f'offset:{off} sc1')

def publish_rep(a, name, base, stride, idx):
    a('s_cmp_lg_u32', sw, 0)
    a('s_cbranch_scc1', name)
    a('s_lshr_b32', st0, idx, 2)
    a('s_lshl_b32', st0, st0, 7)
    a('s_and_b32', st1, idx, 3)
    a('s_lshl_b32', st1, st1, 2)
    a('s_add_u32', st0, st0, st1)
    a('s_add_u32', st0, st0, hex(base))
    a('v_mul_u32_u24', t0, stride, lane)
    a('s_mov_b64', 'exec', 15)
    a('buffer_store_dword', vtg, t0, RWS, st0, mods='offen sc1')
    a('s_mov_b64', 'exec', -1)
    a.label(name)

def publish4(a, base, stride, idx):
    a('s_lshr_b32', st0, idx, 2)
    a('s_lshl_b32', st0, st0, 7)
    a('s_and_b32', st1, idx, 3)
    a('s_lshl_b32', st1, st1, 2)
    a('s_add_u32', st0, st0, st1)
    a('s_mul_i32', st1, sw, stride)
    a('s_add_u32', st0, st0, st1)
    a('s_add_u32', st0, st0, hex(base))
    a('s_mov_b64', 'exec', 1)
    a('buffer_store_dword', vtg, 'off', RWS, st0, mods='sc1')
    a('s_mov_b64', 'exec', -1)

NREP, WPL = E('NREP', 4), E('WPL', 2)
FLH2 = E('FLH2', 0x1830000)
def publish_n(a, idx):
    a('s_lshr_b32', st0, idx, WPL)
    a('s_lshl_b32', st0, st0, 7)
    a('s_and_b32', st1, idx, (1 << WPL) - 1)
    a('s_lshl_b32', st1, st1, 2)
    a('s_add_u32', st0, st0, st1)
    a('s_mul_i32', st1, sw, HSTR*NREP//4)
    a('s_add_u32', st0, st0, st1)
    a('s_add_u32', st0, st0, hex(FLH2))
    a('v_min_u32', t0, NREP//4 - 1, lane)
    a('v_mul_u32_u24', t0, HSTR, t0)
    a('s_mov_b64', 'exec', (1 << NREP//4) - 1)
    a('buffer_store_dword', vtg, t0, RWS, st0, mods='offen sc1')
    a('s_mov_b64', 'exec', -1)

def rep_base(a, dst, base, stride):
    a('s_and_b32', dst, S(2), 3)
    a('s_mul_i32', dst, dst, stride)
    a('s_add_u32', dst, dst, hex(base))

def tag_setup(a):
    a('s_mul_i32', sTag, sEp, '0x9e3779b1')
    a('s_add_u32', sTag, sTag, '0x7f4a7c15')
    a('s_mov_b32', sTag2[1], sTag)
    a('v_mov_b32', vtg, sTag)

def code_prefetch(a, nm):
    a('s_getpc_b64', S(68, 2))
    a.label(nm)
    if E('PFALL', 0):
        a('v_lshlrev_b32', t0, 7, V(0))
        for i in range(2):
            if i: a('v_add_u32', t0, 32768, t0)
            a('v_min_u32', t1, f'CODE_END-{nm}-4', t0)
            a('global_load_dword', V(14 + i), t1, S(68, 2))
        return
    a('s_lshr_b32', st0, S(2), 3)
    a('s_lshl_b32', st0, st0, 11)
    a('v_lshrrev_b32', t0, 4, V(0))
    a('v_lshl_add_u32', t0, t0, 7, st0)
    a('v_min_u32', t1, f'CODE_END-{nm}-4', t0)
    a('global_load_dword', V(14), t1, S(68, 2))

def role_setup(a):
    a('s_bfe_u32', sB, S(2), (1 << 16) | 2)
    a('s_lshl_b32', sB, sB, 3)
    a('s_lshr_b32', st1, S(2), 5)
    a('s_add_u32', sB, sB, st1)
    a('s_and_b32', sC, S(2), 3)
    a('s_lshl_b32', sC, sC, 2)
    a('s_bfe_u32', st1, S(2), (2 << 16) | 3)
    a('s_add_u32', sC, sC, st1)
    a('s_mul_i32', sUb, sw, 13)
    a('s_add_u32', sUb, sUb, 3)
    a('s_lshr_b32', sUb, sUb, 2)
    a('s_lshr_b32', sU3, sw, 1)
    a('s_mul_i32', sU3, sU3, 10)
    a('s_add_u32', sU3, sU3, 3)

def w_srd(a):
    a('s_cmp_ge_u32', sw, 2)
    a('s_cselect_b32', RW1[0], P_WU[0], P_WG[0])
    a('s_cselect_b32', RW1[1], P_WU[1], P_WG[1])
    a('s_and_b32', RW1[1], RW1[1], '0xffff')
    a('s_mov_b32', RW1[2], hex(D_*F_*2))
    a('s_mov_b32', RW1[3], '0x20000')

def w_setup(a):
    odd = st2
    a('s_and_b32', odd, sC, 1)
    a('s_lshl_b32', odd, odd, 3)
    a('s_mul_i32', sWo, sC, 216)
    a('s_sub_u32', sWo, sWo, odd)
    a('s_lshr_b32', st0, sw, 1)
    a('s_mul_i32', sWl, st0, WUO)
    a('s_and_b32', st0, sw, 1)
    a('s_mul_i32', st1, st0, 3584)
    a('s_add_u32', sWl, sWl, st1)
    a('s_add_u32', sWl, sWl, WB)
    a('s_mul_i32', st0, st0, 16*WROW)
    a('v_mul_u32_u24', t0, 37, lane)
    a('v_lshrrev_b32', t0, 9, t0)
    a('v_mul_u32_u24', t0, WROW - 224, t0)
    a('v_add3_u32', vWd[0], t0, l16, st0)
    for k in range(1, 4):
        a('v_add_u32', vWd[k], (8*(k & 1) + 4*(k >> 1))*WROW - 896*k, vWd[0])
    a('v_lshrrev_b32', t0, 5, lane)
    a('v_bfe_u32', t1, lane, 2, 3)
    a('v_lshl_add_u32', t0, t0, 4, t1)
    a('v_mul_u32_u24', t0, 224, t0)
    a('s_add_u32', odd, odd, WB)
    a('v_add_u32', t0, odd, t0)
    a('s_lshl_b32', st0, sUb, 4)
    a('v_and_b32', t1, 3, lane)
    a('v_lshl_add_u32', t1, t1, 3, t0)
    a('v_add_u32', vWr[0], st0, t1)
    a('v_and_b32', t1, 1, lane)
    a('v_lshl_add_u32', t0, t1, 3, t0)
    a('v_bfe_u32', t2, lane, 1, 1)
    a('v_mul_u32_u24', vWr[3], WUO, t2)
    a('v_add_u32', t0, t0, vWr[3])
    a('s_add_u32', st0, st0, 32)
    a('v_add_u32', vWr[1], st0, t0)
    a('s_lshl_b32', st0, sU3, 4)
    a('v_add_u32', vWr[2], st0, t0)
    a('v_add_u32', vWr[3], 1792, vWr[2])
    a('v_lshlrev_b32', t2, 3, t2)
    a('v_add_u32', t2, WB + 7168, t2)
    a('s_lshr_b32', st0, sw, 1)
    a('v_and_b32', t1, st0, t1)
    a('v_cmp_ne_u32', 'vcc', 0, t1)
    a('v_cndmask_b32', vWr[2], vWr[2], t2, 'vcc')
    a('v_cndmask_b32', vWr[3], vWr[3], t2, 'vcc')

def w_holes(a, Q):
    a('v_mov_b32', Q[0], 0)
    a('v_mov_b32', Q[1], 0)
    a('v_mov_b32', Q[2], '0x3f803f80')
    a('v_mov_b32', Q[3], '0x3f803f80')
    a('v_min_u32', t0, 6, lane)
    a('v_mul_u32_u24', t0, WSS, t0)
    a('ds_write_b128', t0, Q, mods=f'offset:{WB + 7168}')

def w_dma(a, ks, slot, part, mask=True):
    if part == 0 or mask: a('s_add_u32', 'm0', sWl, slot*WSS)
    if part == 0: a('s_add_u32', sWs, sWo, ks*32*WROW)
    if mask: a('s_mov_b32', 'exec_hi', '0xffffff')
    for k in (2*part, 2*part + 1):
        t = a('buffer_load_dwordx4', vWd[k], RW1, sWs, mods=f'offen offset:{896*k}' + os.environ.get('WNT', '') + ' lds')
    if mask: a('s_mov_b32', 'exec_hi', -1)
    return t

def w_round(a, r, slot0=0, lo=0, hi=7):
    a('s_mov_b32', 'exec_hi', '0xffffff')
    for i, ks in list(enumerate(RND[r]))[lo:hi]:
        for part in range(2): t = w_dma(a, ks, slot0 + i, part, False)
    a('s_mov_b32', 'exec_hi', -1)
    return t

def w_round_x(a, r, slot0, nm, lo=0, hi=7, older=False):
    a('s_cmp_lg_u32', sw, 1)
    a('s_cbranch_scc1', nm)
    w_round(a, r, slot0, lo, hi)
    a('s_sub_u32', sWl, sWl, 3584)
    for k in range(4): a('v_subrev_u32', vWd[k], 16*WROW, vWd[k])
    w_round(a, r, slot0, lo, hi)
    a('s_add_u32', sWl, sWl, 3584)
    for k in range(4): a('v_add_u32', vWd[k], 16*WROW, vWd[k])
    if older: a.wait(vm=8*(hi - lo))
    a.label(nm)

def w_round_y(a, r, slot0, nm, lo=0, hi=7, older=False):
    a('s_cmp_lt_u32', sw, 2)
    a('s_cbranch_scc1', nm)
    w_round(a, r, slot0, lo, hi)
    if older: a.wait(vm=4*(hi - lo))
    a.label(nm)

def touch_lanes(a, vt):
    a('s_and_b32', st0, S(2), 3)
    a('s_mul_i32', st0, st0, 27)
    a('s_lshr_b32', st0, st0, 2)
    a('v_and_b32', t0, 7, lane)
    a('v_add_u32', t0, st0, t0)
    a('v_min_u32', t0, 26, t0)
    a('v_lshrrev_b32', t1, 3, lane)
    a('v_mul_u32_u24', t1, WROW, t1)
    a('v_lshl_add_u32', vt, t0, 7, t1)

def w_reads(ks, rel, R=vWr):
    L = []
    for n in range(4):
        for hf in range(2):
            ad = R[0] if n < 2 else (R[1] if n == 2 else R[2 + hf])
            off = rel*WSS + (WUO if n == 1 else 0) + (1792*hf if n < 3 else 0)
            L.append(('ds_read_b64_tr_b16', (W1(ks, n)[2*hf:2*hf+2], ad), f'offset:{off}'))
    return L

def w_shift(d, R=vWr, D=None):
    return [('v_add_u32', ((D or R)[i], hex((d*WSS) & 0xffffffff), R[i]), '') for i in range(4)]

def w_read_ops(r):
    L = []
    if r == 0:
        for i, ks in enumerate(RND[0]):
            if i == 4: L += w_shift(4)
            L += w_reads(ks, i & 3)
    else:
        for i in reversed(range(7)):
            if i == 3: L += w_shift(-4)
            L += w_reads(RND[1][i], i & 3)
    return L

def clr_setup_h(a, sh):
    a('s_lshl_b32', st0, sB, 3)
    a('s_lshl_b32', st1, sw, 1)
    a('s_add_u32', st1, st1, st0)
    a('s_mul_i32', sh, st1, TS)
    a('s_mul_i32', st1, sC, 14*256)
    a('s_add_u32', sh, sh, st1)
    a('s_add_u32', sh, sh, hex(HH))

def clr_setup_q(a, sq, vq):
    a('s_lshl_b32', st0, sB, 3)
    a('s_lshr_b32', st1, sC, 3)
    a('s_lshl_b32', st1, st1, 2)
    a('s_add_u32', st0, st0, st1)
    a('s_and_b32', st1, sC, 3)
    a('s_add_u32', st0, st0, st1)
    a('s_lshl_b32', sq, st0, 9)
    a('s_and_b32', st1, sC, 4)
    a('s_add_u32', st1, st1, sw)
    a('s_lshl_b32', st1, st1, 2)
    a('s_add_u32', sq, sq, st1)
    a('s_add_u32', sq, sq, hex(SQ))
    a('v_lshrrev_b32', t0, 4, lane)
    a('v_bfe_u32', t1, lane, 2, 2)
    a('v_cmp_eq_u32', 'vcc', t0, t1)
    a('v_and_b32', t0, 15, lane)
    a('v_lshlrev_b32', t0, 5, t0)
    a('v_mov_b32', t1, hex(OOB))
    a('v_cndmask_b32', vq, t1, t0, 'vcc')

def clr_ops(Q, sh):
    L = []
    for k in range(8):
        if k == 4: L.append(('s_add_u32', (sh, sh, TS), ''))
        if E('CLW', 0): L.append(('buffer_store_dword', (Q[0], l16, RWS, sh), f'offen offset:{(0, 1024, 2048, 2560)[k & 3]} sc1'))
        else: L.append(('buffer_store_dwordx4', (Q, l16, RWS, sh), f'offen offset:{(0, 1024, 2048, 2560)[k & 3]} sc1'))
    return L

def hh_clear(a, sh, Q):
    clr_setup_h(a, sh)
    for d in range(4): a('v_mov_b32', Q[d], -1)
    for mn, ops, mods in clr_ops(Q, sh): a(mn, *ops, mods=mods)

def p2_touch_setup(a, vt2, sT2):
    a('s_lshr_b32', st2, S(2), 3)
    a('s_lshl_b32', st2, st2, 2)
    a('s_add_u32', st2, st2, sw)
    a('s_mul_i32', sT2, st2, 70*128)
    a('s_bfe_u32', st1, S(2), (1 << 16) | 1)
    a('s_mul_i32', st1, st1, 20*TS)
    a('s_add_u32', sT2, sT2, st1)
    a('s_add_u32', sT2, sT2, hex(WP2 + 124))
    a('v_min_u32', vt2, 34, lane)
    a('v_lshlrev_b32', vt2, 8, vt2)

def p2_touch(a):
    p2_touch_setup(a, V(134), S(68))
    a('buffer_load_dwordx2', V(136, 2), V(134), RWS, S(68), mods='offen')

def pack_flag_addr(a, vaddr):
    a('v_min_u32', vaddr, 39, lane)
    a('v_lshrrev_b32', t0, 1, vaddr)
    a('v_and_b32', vaddr, 1, vaddr)
    a('v_lshlrev_b32', vaddr, 3, vaddr)
    a('v_lshl_add_u32', vaddr, t0, 7, vaddr)

def icls(mn):
    if mn.startswith('s_'): return 's'
    if mn.startswith(('ds_', 'buffer_', 'global_')): return 'm'
    if 'permlane' in mn or mn in TRANS: return 'p'
    return 'v'

class Sched:
    def __init__(self, a, nq=3):
        self.a = a; self.q = [[] for _ in range(nq)]; self.n = 0; self.mem = []; self.last = -100; self.step = 4
        self.over = 0; self.win = E('WIN', 24)
    def op(self, qi, at, mn, ops, mods='', tok=None): self.q[qi].append((at, 'i', [(mn, ops, mods, tok)]))
    def ops(self, qi, at, L): self.q[qi].append((at, 'i', [tuple(x) + ('', None)[len(x) - 2:] for x in L]))
    def call(self, qi, at, fn): self.q[qi].append((at, 'x', fn))
    def sca(self, qi, at, fn): self.q[qi].append((at, 'b', fn))
    def note(self, qi, at, fn): self.q[qi].append((at, 'n', fn))
    def gate(self, qi, at, fn): self.q[qi].append((at, 'g', fn))
    def load(self, avail, need, gen): self.mem.append((need, avail, gen))
    def left(self): return [len(q) for q in self.q] + [len(self.mem)]
    def sort(self):
        for q in self.q: q.sort(key=lambda e: e[0])
        self.mem.sort(key=lambda e: e[0])
    def emit(self, L):
        for mn, ops, mods, tok in L:
            t = self.a(mn, *ops, mods=mods)
            if tok: tok[0][tok[1]] = t
    def gap(self, fixed=(), nxt=(), room=2):
        a = self.a
        C = {'s': [], 'm': [], 'v': []}
        pre = []
        def put(L):
            for x in L: C['v' if icls(x[0]) == 'p' else icls(x[0])].append(x)
        def cost(L=()):
            allv = C['m'] + C['v'] + [x for x in L if icls(x[0]) != 's']
            ns = len(C['s']) + len(pre) + sum(icls(x[0]) == 's' for x in L)
            ns += a.prewait([x[:3] for x in allv] + list(nxt), dry=True)
            return max(0, ns - 1) + sum(2 if icls(x[0]) == 'p' else 1 for x in allv)
        put([tuple(x) + ('', None)[len(x) - 2:] for x in fixed])
        heavy = None
        state = [None]*len(self.q)
        def notes(q):
            while q and q[0][0] <= self.n and (q[0][1] == 'n' or (q[0][1] == 'g' and q[0][2]())): q.pop(0)[2]()
        for q in reversed(self.q):
            notes(q)
            if heavy is None and q and q[0][0] <= self.n and q[0][1] == 'x': heavy = q.pop(0)[2]
        if heavy is None:
            if self.n - self.last >= self.step:
                for k, e in enumerate(self.mem):
                    if e[1] <= self.n:
                        L = e[2](True)
                        if cost(L) <= room:
                            self.mem.pop(k); put(e[2](False)); self.last = self.n
                        break
            for want in ('b', 'm', 'v'):
                for qi in reversed(range(len(self.q))):
                    q = self.q[qi]
                    k = 0
                    rd, wr = set(), set()
                    while k < len(q) and k < self.win and q[k][0] <= self.n:
                        at, kind, pl = q[k]
                        if kind == 'n':
                            if k or state[qi] is not None: break
                            q.pop(0); pl(); continue
                        if kind in 'xg': break
                        if kind == 'b':
                            if k or want != 'b' or state[qi] is not None or pre or C['s']: break
                            pre.append(pl)
                            if cost() > room: pre.pop(); break
                            q.pop(0); state[qi] = 's'; continue
                        if want == 'b': break
                        I = [Inst(x[0], x[1], x[2]) for x in pl]
                        r_ = set().union(*[i.rd for i in I]); w_ = set().union(*[i.wr for i in I])
                        ks = [icls(x[0]) for x in pl]
                        top = 'v' if ('v' in ks or 'p' in ks) else ('m' if 'm' in ks else 's')
                        low = 's' if 's' in ks else ('m' if 'm' in ks else 'v')
                        ok = not (top == 'v' and want != 'v')
                        ok = ok and not (k and top != 'v')
                        ok = ok and not (r_ & wr or w_ & (rd | wr))
                        ok = ok and not (state[qi] is not None and 'smv'.index(low) < 'smv'.index(state[qi]))
                        ok = ok and not (any(x[1][0] == 'm0' for x in pl if icls(x[0]) == 's') and any('lds' in x[2] for x in C['m']))
                        if ok and cost(pl) <= room:
                            q.pop(k); put(pl); state[qi] = top
                            continue
                        if want != 'v': break
                        rd |= r_; wr |= w_
                        k += 1
        if cost() > room: self.over += 1
        for f in pre: f()
        a.prewait([x[:3] for x in C['m'] + C['v']] + list(nxt))
        self.emit(C['s']); self.emit(C['m']); self.emit(C['v'])
        if heavy: heavy()
        for q in self.q: notes(q)
    def drain(self, every=8, keep_mem=True):
        c = 0
        for q in reversed(self.q):
            while q:
                at, kind, pl = q.pop(0)
                if kind == 'i': self.emit(pl); c += len(pl)
                else: pl()
                if c >= every:
                    c = 0
                    for k, e in enumerate(self.mem):
                        if e[1] <= self.n:
                            self.mem.pop(k); self.emit(e[2](False)); break

class Ptr:
    def __init__(self, s): self.s, self.k = s, 0
    def at(self, i, dry):
        L = []
        if i >> 2 != self.k:
            L.append(('s_add_u32', (self.s, self.s, hex((4096*((i >> 2) - self.k)) & 0xffffffff)), '', None))
            if not dry: self.k = i >> 2
        return L, (i & 3)*1024

def conv_wg(a):
    RK, RV, RSK, RSS = S(44, 4), S(48, 4), S(52, 4), S(56, 4)
    sch, sbase, sk01, sD = S(7), S(8), S(9), S(10)
    selLO, selHI, srow = S(13), S(14), S(12)
    va = Alloc('v', 16, 207)
    a('s_lshr_b32', st0, S(2), 4)
    a('s_and_b32', srow, S(2), 15)
    a('s_lshl_b32', srow, srow, 7)
    a('s_lshl_b32', st2, sw, 5)
    a('s_add_u32', srow, srow, st2)
    g, c, vneg, vsk, b3, vok = [va.get() for _ in range(6)]
    voff = V(234)
    a('v_and_b32', c, 7, lane)
    a('v_bfe_u32', b3, lane, 3, 1)
    a('v_bfe_u32', t1, lane, 4, 1)
    a('v_lshl_or_b32', t2, b3, 1, t1)
    a('v_bfe_u32', t0, lane, 5, 1)
    a('v_lshl_or_b32', g, t0, 2, t2)
    a('v_lshl_add_u32', t2, g, 2, srow)
    a('v_mul_u32_u24', voff, 1280, t2)
    a('s_lshl_b32', st2, st0, 7)
    a('v_lshl_add_u32', t2, c, 4, st2)
    a('v_add_u32', voff, voff, t2)
    a('v_subrev_u32', vneg, 3840, voff)
    a('v_lshlrev_b32', vsk, 2, t2)
    if E('EST', 0) == 1: stamp(a, 10, True)
    srd(a, RK, P_K, S_*D_*2)
    if E('EST', 0): stamp(a, 11 if E('EST', 0) == 1 else 9, True)
    K = [va.get(4) for _ in range(7)]
    Vv = [va.get(4) for _ in range(4)]
    SK = va.get(16)
    for i in range(7):
        if i < 3: tk = a('buffer_load_dwordx4', K[i], vneg, RK, 0, mods=f'offen offset:{1280*i}' + NT_)
        else: tk = a('buffer_load_dwordx4', K[i], voff, RK, 0, mods=f'offen offset:{1280*(i-3)}' + NT_)
    if E('EST', 0) == 2: stamp(a, 10, True)
    srd(a, RSK, P_SK, D_*8)
    for i in range(4):
        a('buffer_load_dwordx4', SK.sub(4*i, 4), vsk, RSK, 0, mods=f'offen offset:{16*i}')
    if E('EST', 0) == 2: stamp(a, 11, True)
    srd(a, RV, P_V, S_*D_*2)
    for i in range(4):
        a('buffer_load_dwordx4', Vv[i], voff, RV, 0, mods=f'offen offset:{1280*i}' + NT_)
    if E('EST', 0): stamp(a, 12, True)
    w_srd(a)
    vt = V(243)
    def t1_touch():
        T1W = E('T1W', 0)
        a('s_cmp_ge_u32', S(2), 128 if T1W else 64)
        a('s_cbranch_scc1', 'T1_skip')
        a('s_bitcmp1_b32', sw, 0)
        a('s_cbranch_scc1', 'T1_skip')
        if T1W:
            a('s_lshr_b32', st1, S(2), 3)
            a('s_add_u32', st1, st1, 64)
            a('s_mul_i32', st1, st1, 4*WROW)
            a('v_lshrrev_b32', V(14), 5, lane)
            a('v_mul_u32_u24', V(14), 4*WROW, V(14))
            a('v_sub_u32', V(14), vt, V(14))
            a('buffer_load_dword', V(14), V(14), RW1, st1, mods='offen')
        else:
            a('s_lshr_b32', st1, S(2), 3)
            a('s_add_u32', st1, st1, 32)
            a('s_mul_i32', st1, st1, 8*WROW)
            a('buffer_load_dword', V(14), vt, RW1, st1, mods='offen')
        a.label('T1_skip')
    if E('T1POS', 2) == 0: t1_touch()
    a('v_bfe_u32', t1, lane, 4, 1)
    a('v_bfe_u32', t0, lane, 5, 1)
    a('s_lshr_b32', st0, S(2), 4)
    a('s_mov_b32', sEp, hex(EPOCH))
    a('s_load_dword', sEp, P_WS, sEp)
    a('s_lshl_b32', sch, S(2), 2)
    a('s_add_u32', sch, sch, sw)
    a('s_lshl_b32', st2, sch, 12)
    a('s_load_dword', sk01, P_SSMK, st2)
    a('s_lshl_b32', st1, sch, 1)
    a('s_and_b32', st1, st1, '0xfffc')
    a('s_load_dword', sD, P_SSMD, st1)
    srd(a, RWS, P_WS, WS_SIZE)
    if E('KT', 4):
        a('v_min_u32', V(245), E('KT', 4) - 1, lane)
        a('v_lshlrev_b32', V(245), 20, V(245))
        a('s_mov_b32', st2, hex(E('KT0', KV2)))
        a('buffer_load_dword', V(245), V(245), RWS, st2, mods='offen')
    srd(a, RSS, P_SSMK, D_*S_*2)
    a('s_mul_i32', sbase, sw, CONV_LDS)
    def ssm_load():
        a('s_lshl_b32', st2, sch, 12)
        a('s_add_u32', 'm0', sbase, 4160 + 32)
        for i in range(4):
            t = a('buffer_load_dwordx4', l16, RSS, st2, mods=f'offen offset:{1024*i}' + NT_ + ' lds')
        return t
    if E('SSPOS', 2) == 0: tssm = ssm_load()
    vkw, vkr, sKV = va.get(), va.get(), S(50)
    a('v_lshl_or_b32', t2, t0, 1, b3)
    a('s_lshl_b32', st2, sw, 2)
    a('s_sub_u32', st1, 15, st2)
    a('v_sub_u32', t2, st1, t2)
    a('v_lshlrev_b32', t0, 1, c)
    a('v_xor_b32', t2, t2, t0)
    a('v_lshlrev_b32', t2, 4, t2)
    a('v_lshl_add_u32', t2, t1, 10, t2)
    a('v_and_b32', t1, 1, c)
    a('v_lshl_add_u32', t2, t1, 11, t2)
    a('v_lshrrev_b32', t1, 1, c)
    a('v_mul_u32_u24', t1, CONV_LDS, t1)
    a('v_add_u32', vkw, t1, t2)
    a('v_lshrrev_b32', t0, 4, lane)
    a('v_and_b32', t1, 2, t0)
    a('v_or_b32', t1, st2, t1)
    a('v_and_b32', t2, 15, lane)
    a('v_xor_b32', t1, t1, t2)
    a('v_lshl_add_u32', t1, t1, 4, sbase)
    a('v_lshl_add_u32', vkr, t0, 10, t1)
    a('v_mul_u32_u24', t0, KVR, t0)
    a('v_lshl_add_u32', vok, t2, 4, t0)
    a('s_lshl_b32', st1, st0, 4)
    a('s_add_u32', st1, st1, st2)
    a('s_mul_i32', sKV, st1, KVR)
    a('s_andn2_b32', st2, 15, S(2))
    a('s_lshl_b32', st2, st2, 8)
    a('s_add_u32', sKV, sKV, st2)
    a('s_add_u32', sKV, sKV, hex(KV2))
    sKF = S(69)
    if not E('SPEC', 1):
        a('s_lshl_b32', sKF, st1, 9)
        a('s_bfe_u32', st1, S(2), (2 << 16) | 2)
        a('s_lshl_b32', st1, st1, 7)
        a('s_add_u32', sKF, sKF, st1)
        a('s_and_b32', st1, S(2), 3)
        a('s_lshl_b32', st1, st1, 2)
        a('s_add_u32', sKF, sKF, st1)
        a('s_add_u32', sKF, sKF, hex(FLG))
    a('s_mov_b32', selLO, '0x05040100')
    a('s_mov_b32', selHI, '0x07060302')
    FB = [[V(16 + 64*s + 4*i, 4) for i in range(8)] for s in range(2)]
    FA = [[V(48 + 64*s + 4*i, 4) for i in range(8)] for s in range(2)]
    CA = [V(176 + 4*t, 4) for t in range(8)]
    ABR = [V(144 + 4*t, 4) for t in range(8)]
    XR = [V(i, 2) for i in (208, 210, 224, 234, 240, 242, 250, 252)]
    AD, CQ = V(208, 4), V(236, 4)
    vA = [V(212 + i) for i in range(4)]
    vB, vx, vo, li, lh, l16a, l16b, vg1 = [V(216 + i) for i in range(8)]
    vfa, vu = V(244), V(246)
    z2 = AD[0:2]
    sPF, sGF = S(39), S(15)
    def setup_a():
        touch_lanes(a, vt)
        role_setup(a)
        w_setup(a)
        w_holes(a, CQ)
    def setup_b():
        a('v_and_b32', li, 15, lane)
        a('v_lshrrev_b32', lh, 4, lane)
        a('v_lshlrev_b32', vx, 5, li)
        a('v_lshl_add_u32', vx, lh, 3, vx)
        a('v_lshlrev_b32', vfl, 2, lane)
        if not E('SPEC', 1):
            a('v_lshrrev_b32', t0, 2, lane)
            a('v_lshlrev_b32', t0, 7, t0)
            a('v_and_b32', t1, 3, lane)
            a('v_lshl_add_u32', vfa, t1, 2, t0)
            a('s_lshl_b32', sGF, S(2), 9)
            a('s_add_u32', sGF, sGF, hex(FLG))
            a('v_lshlrev_b32', l16b, 9, lane)
        a('v_add_u32', t1, 4160 - 32, vfl)
        a('v_cmp_gt_u32', 'vcc', 8, lane)
        a('v_cndmask_b32', t1, t1, vfl, 'vcc')
        a('v_add_u32', t0, 8320 + 4096, vfl)
        a('v_cmp_gt_u32', 'vcc', 16, lane)
        a('v_cndmask_b32', t1, t0, t1, 'vcc')
        a('v_add_u32', l16a, sbase, t1)
        a('v_mov_b32', z2[0], 0)
        a('v_mov_b32', z2[1], 0)
        a('v_lshl_add_u32', t0, lane, 3, sbase)
        a('ds_write_b64', t0, z2, mods=f'offset:{8320+4096}')
        a('v_lshl_add_u32', t0, lh, 3, li)
        a('v_lshrrev_b32', t0, 1, t0)
        a('v_lshl_add_u32', t0, t0, 2, sbase)
        a('v_and_b32', t1, 1, li)
        a('v_mul_u32_u24', t1, 4164, t1)
        a('v_add_u32', vA[0], t0, t1)
        if E('AB64', 0):
            a('v_lshrrev_b32', t0, 2, li)
            a('v_lshl_add_u32', t0, lh, 1, t0)
            a('v_lshl_add_u32', t0, t0, 3, sbase)
            a('v_and_b32', t1, 3, li)
            a('v_mul_u32_u24', t1, E('AB64', 0), t1)
            a('v_add_u32', vA[0], t0, t1)
        for p in range(1, 4):
            a('v_add_u32', vA[p], 1024*p, vA[0])
        a('v_lshlrev_b32', t0, 5, li)
        a('v_sub_u32', t0, 8320 + 480, t0)
        a('v_lshl_add_u32', t0, lh, 4, t0)
        a('v_add_u32', vB, sbase, t0)
        a('v_and_b32', t0, 1, lh)
        a('v_lshlrev_b32', t0, 9, t0)
        a('v_lshl_add_u32', t0, li, 5, t0)
        a('v_lshrrev_b32', t1, 1, lh)
        a('v_lshl_add_u32', vo, t1, 4, t0)
        a('v_add_u32', vu, sbase, l16)
        rep_base(a, sPF, FLP, PSTR)
        clr_setup_q(a, S(28), V(247))
        for d in range(4): a('v_mov_b32', CQ[d], -1)
    SA, SB = E('SA', 0), E('SB', 2)
    if SA == 0: setup_a()
    R1E = E('R1E', 0)
    te = w_round(a, 0, 0, 0, R1E) if R1E else None
    def r1(lo, hi):
        lo = max(lo, R1E)
        return w_round(a, 0, 0, lo, hi) if lo < hi else te
    if E('CLPOS', 0) == 1: hh_clear(a, S(39), V(240, 4))
    if SB == 0: setup_b()
    stamp(a, 1)
    if E('SSPOS', 2) == 2:
        a.wait_vm_tok(tk)
        if E('EST', 0): stamp(a, 13, True)
        tssm = ssm_load()
    QK = [va.get(4) for _ in range(4)]
    P = [va.get(8, 2) for _ in range(8)]
    KSv = [va.get(4) for _ in range(8)]
    def kshift(chs):
        for ch in chs:
            d, hi = ch >> 1, ch & 1
            for t in range(1, 7):
                a('v_perm_b32', P[ch][t], K[t-1][d], K[t][d], selHI if hi else selLO)
        for ch in chs:
            for e in range(4):
                a('v_dot2_f32_bf16', KSv[ch][e], P[ch][e+3], SK[2*ch], 0)
            for e in range(4):
                a('v_dot2_f32_bf16', KSv[ch][e], P[ch][e+1], SK[2*ch+1], KSv[ch][e])
    KVO = E('KVO', 0)
    if KVO == 0: kshift(range(8))
    if KVO == 2: kshift((0, 4, 1, 5))
    stamp(a, 2)
    if SA == 1: setup_a()
    if SB == 1: setup_b()
    if E('EST', 0) == 2:
        a.wait(vm=4)
        stamp(a, 4, True)
    if E('T1POS', 2) == 1:
        a.wait(vm=4)
        t1_touch()
    for cp in range(4):
        if KVO == 1 or (KVO == 2 and cp >= 2): kshift((cp, cp + 4))
        for ch in (cp, cp + 4):
            d, hi = ch >> 1, ch & 1
            for e in range(4):
                if hi: a('v_and_b32', P[ch][e], '0xffff0000', Vv[e][d])
                else: a('v_lshlrev_b32', P[ch][e], 16, Vv[e][d])
        for ch in (cp, cp + 4):
            for h in range(2):
                a('v_pk_mul_f32', KSv[ch][2*h:2*h+2], KSv[ch][2*h:2*h+2], P[ch][2*h:2*h+2])
        q = QK[cp]
        for ch in (cp, cp + 4):
            o = 2 if ch < 4 else 0
            a('v_cvt_pk_bf16_f32', q[o], KSv[ch][3], KSv[ch][2])
            a('v_cvt_pk_bf16_f32', q[o+1], KSv[ch][1], KSv[ch][0])
        a('v_permlane16_swap_b32', q[2], q[0])
        a('v_permlane16_swap_b32', q[3], q[1])
        a('ds_write_b128', vkw, QK[cp], mods=f'offset:{8320 + 256*cp}')
    a.wait(lg=0)
    if E('EST', 0) == 2: stamp(a, 5, True)
    a('s_barrier')
    if E('EST', 0) == 2: stamp(a, 6, True)
    CK = P[0][0:4]
    for cp in range(4):
        a('ds_read_b128', QK[cp], vkr, mods=f'offset:{8320 + 256*cp}')
    tag_setup(a)
    for cp in range(4):
        q = QK[cp]
        a('v_add_u32', q[0], sTag, q[0])
        a('buffer_store_dwordx4', q, vok, RWS, sKV, mods='offen sc1')
        a('v_add3_u32', CK[cp], q[0], q[1], q[2])
        a('v_add3_u32', CK[cp], CK[cp], q[3], sTag)
        a('s_add_u32', sKV, sKV, 4096)
    a('buffer_store_dwordx4', CK, vok, RWS, sKV, mods='offen sc1')
    SPEC = E('SPEC', 1)
    if not SPEC:
        a('s_mov_b64', 'exec', 15)
        a('buffer_store_dword', vtg, l16b, RWS, sKF, mods='offen sc1')
        a('s_mov_b64', 'exec', -1)
    stamp(a, 3)
    if E('T1POS', 2) == 2: t1_touch()
    if E('KT2', 0):
        a('v_min_u32', V(254), E('KT2', 0) - 1, lane)
        a('v_lshlrev_b32', V(254), 20, V(254))
        a('buffer_load_dword', V(254), V(254), RWS, 0, mods='offen')
    if E('KVBAR', 0): a('s_barrier')
    NA = E('R1A', 4)
    if SA == 2: setup_a()
    if SPEC: r1(0, E('R1S', 2))
    if SB == 2: setup_b()
    a.wait_vm_tok(tssm)
    if not SPEC: w_round_x(a, 0, 0, 'R1_x', 0, NA)
    def rdA(rho):
        s = rho & 1
        L = []
        for i in range(8):
            o = 128*(i & 1) + 16*rho
            if E('AB64', 0):
                L.append(('ds_read_b64', (FA[s][i][0:2], vA[i >> 1]), f'offset:{4*o}'))
                L.append(('ds_read_b64', (FA[s][i][2:4], vA[i >> 1]), f'offset:{4*o+8}'))
                continue
            L.append(('ds_read2_b32', (FA[s][i][0:2], vA[i >> 1]), f'offset0:{o} offset1:{o+1}'))
            L.append(('ds_read2_b32', (FA[s][i][2:4], vA[i >> 1]), f'offset0:{o+2} offset1:{o+3}'))
        return L
    def rdB(rho):
        return [('ds_read_b128', (FB[rho & 1][i], vB), f'offset:{3584 - 512*i + 64*rho}') for i in range(8)]
    def reads(rho):
        A_, B_ = rdA(rho), rdB(rho)
        L = []
        for i in range(8): L += [B_[i], A_[2*i], A_[2*i+1]]
        return L
    emit = lambda L: [a(mn, *ops, mods=mods) for mn, ops, mods in L]
    a('s_lshl_b32', st1, sk01, 16)
    a('v_mov_b32', t0, st1)
    a('v_cmp_eq_u32', 'vcc', 7, lane)
    a('v_cndmask_b32', t2, 0, t0, 'vcc')
    a('ds_write_b32', l16a, t2)
    a('s_bitcmp1_b32', sch, 0)
    a('s_cselect_b32', st1, 16, 0)
    a('s_lshr_b32', sD, sD, st1)
    a('s_and_b32', sD, sD, '0xffff')
    a('v_lshlrev_b32', t0, 3, lh)
    a('v_add_u32', t0, t0, li)
    a('v_sub_u32', t0, 15, t0)
    a('v_and_b32', t1, 1, t0)
    a('v_lshlrev_b32', t1, 4, t1)
    a('v_lshlrev_b32', t1, t1, sD)
    a('v_ashrrev_i32', t0, 1, t0)
    a.wait(lg=0)
    for d in range(4):
        a('v_cmp_eq_u32', 'vcc', d, t0)
        a('v_cndmask_b32', AD[d], 0, t1, 'vcc')
    if not SPEC: a('v_and_b32', l16a, '0x1ff', vfa)
    SH = [V(80 + 4*i, 4) for i in range(4)]
    SN = [V(96 + i) for i in range(4)]
    a.wait_vm_tok(tssm)
    for i in range(4):
        a('ds_read_b128', SH[i], vu, mods=f'offset:{4160 + 32 + 1024*i}')
        a('ds_read_b32', SN[i], vu, mods=f'offset:{4160 + 48 + 1024*i}')
    for i in range(4):
        for d in range(4):
            a('v_alignbit_b32', SH[i][d], SH[i][d+1] if d < 3 else SN[i], SH[i][d], 16)
        a('ds_write_b128', vu, SH[i], mods=f'offset:{32 + 1024*i}')
    a.wait(lg=0)
    emit(rdA(0))
    if SPEC: r1(E('R1S', 2), NA)
    else: w_round_y(a, 0, 0, 'R1_y', 0, NA)
    sU = [S(44), S(45), S(46), S(47), S(51)]
    a('s_mul_i32', sU[0], S(2), KVR)
    a('s_lshl_b32', st0, sw, 10)
    a('s_add_u32', sU[0], sU[0], st0)
    a('s_add_u32', sU[0], sU[0], hex(KV2))
    for i in range(1, 5): a('s_add_u32', sU[i], sU[0], 4096*i)
    a('v_add_u32', vu, st0, l16)
    if not SPEC:
        a('s_cmp_lg_u32', sw, 0)
        a('s_cbranch_scc1', 'G1_skip')
        Flags(a, 'G1', vg1, l16a, sGF).wait()
        a.label('G1_skip')
        stamp(a, 4)
        a('s_barrier')
    U = [V(80 + 4*i, 4) for i in range(5)]
    US = [V(100 + i) for i in range(4)]
    def uload():
        for i in (4, 0, 1, 2, 3):
            a('buffer_load_dwordx4', U[i], l16, RWS, sU[i], mods='offen sc1')
    def ubad():
        for i in range(4):
            a('v_add3_u32', US[i], U[i][0], U[i][1], U[i][2])
            a('v_add3_u32', US[i], US[i], U[i][3], sTag)
            a('v_subrev_u32', U[i][0], sTag, U[i][0])
            a('ds_write_b128', vu, U[i], mods=f'offset:{8320 + CONV_LDS*i}')
            a('v_xor_b32', US[i], US[i], U[4][i])
        a('v_or3_b32', US[0], US[0], US[1], US[2])
        a('v_or_b32', US[0], US[0], US[3])
        a('v_cmp_ne_u32', 'vcc', 0, US[0])
        a.wait(lg=0)
    T = {}
    UP = E('UPOS', 3)
    if UP: T['r1b'] = r1(NA, NA + UP)
    stamp(a, 5 if not SPEC else 4)
    uload()
    if NA + UP < 7: T['r1b'] = w_round(a, 0, 0, NA + UP, 7)
    a.wait(vm=5 + 4*(7 - max(NA, R1E)))
    a('s_barrier')
    if SPEC: stamp(a, 5)
    for i in range(4): emit(w_reads(RND[0][i], i))
    a('s_lshl_b32', st0, sch, 12)
    sx, sht, pl, ph = S(12), S(13), S(50), S(52)
    sAB, ABL = S(56), WB + 7*WSS
    one = V(15)
    a('s_mov_b32', pl, selLO)
    a('s_add_u32', sht, st0, hex(HT))
    for i in range(E('HCE', 0)):
        a('buffer_store_dwordx4', CQ, l16, RWS, sht, mods=f'offen offset:{1024*i} sc1')
    a('s_add_u32', sx, st0, hex(XT))
    a('s_mov_b32', ph, '0x05040302')
    a('v_mov_b32', one, '0x3f803f80')
    a('s_lshl_b32', S(57), sw, 11)
    a('s_add_u32', sAB, S(57), hex(AB))
    a('s_add_u32', S(57), S(57), ABL)
    a('v_mov_b32', t0, ABL)
    a('v_lshl_add_u32', l16a, vx, 1, t0)
    vt2, sT, sT2, sDF = V(248), S(53), S(54), S(58)
    a('v_min_u32', l16b, 15, lane)
    a('v_lshlrev_b32', l16b, 7, l16b)
    pack_flag_addr(a, vg1)
    a('s_add_u32', sDF, sPF, hex((FLD - FLP) & 0xffffffff))
    PRE, PRE2 = E('PRE', 0), E('PRE2', 0)
    if PRE:
        assert UP == 3 and PRE2 < 4
        a.wait(vm=5, lg=0)
        a('s_barrier')
        if PRE2: w_round(a, 1, 0, 0, PRE2)
        emit(w_shift(4))
        for i in range(4, 7): emit(w_reads(RND[0][i], i & 3))
    ubad()
    a('s_cbranch_vccz', 'U_ok')
    spin(a, 'U', uload, ubad)
    a.label('U_ok')
    a('s_barrier')
    stamp(a, 6)
    emit(rdB(0))
    sc = Sched(a)
    for i in range(E('HCE', 0), 4 if not E('NOHC', 0) else 0):
        sc.op(2, E('HC_AT', 88) + E('HC_STEP', 6)*i, 'buffer_store_dwordx4', (CQ, l16, RWS, sht), f'offen offset:{1024*i} sc1')
    sc.op(2, E('HC_AT', 88) + E('HC_STEP', 6)*4, 'buffer_store_dword', (CQ[0], V(247), RWS, S(28)), 'offen sc1', tok=(T, 'cl'))
    def dmas(r, slot0, lo, hi, at, step, key):
        for i, ks in list(enumerate(RND[r]))[lo:hi]:
            for part in range(2):
                sc.call(1, at, lambda i=i, ks=ks, part=part: T.__setitem__(key, w_dma(a, ks, slot0 + i, part)))
                at += step
        sc.note(1, at - step, lambda: T.__setitem__(key + '_ok', 1))
    def wbar(at, vkeys, lkey):
        def f():
            for vkey in vkeys:
                if vkey in ('r2a', 'r2b'): assert T[vkey + '_ok']
                a.wait_vm_tok(T[vkey])
            if lkey: assert T[lkey + '_ok']; a.wait_lg_tok(T[lkey])
            a('s_barrier')
            T['bar', at] = sc.n
            print('  barrier', at, 'at', sc.n, file=sys.stderr)
        sc.call(0, at, f)
    def rds(at, r, lo, hi, shift, key):
        L = w_shift(shift)
        for i in range(lo, hi): L += w_reads(RND[r][i], i & 3)
        for mn, ops, mods in L: sc.op(0, at, mn, ops, mods, tok=(T, key) if mn.startswith('ds') else None)
        sc.note(0, at, lambda: T.__setitem__(key + '_ok', 1))
    ws_ = E('W_STEP', 6)
    w3 = E('W3_STEP', 10)
    if PRE:
        X2, X3, XS, XP = E('X2', 60), E('X3', 100), E('XS', 130), E('X4', 170)
        r2 = E('R2_AT', 2)
        dmas(1, 0, PRE2, 4, r2, ws_, 'r2a')
        dmas(1, 0, 4, 7, r2 + 2*(4 - PRE2)*ws_, ws_, 'r2b')
        wbar(X2, ['r2a'], None)
        rds(X2, 1, 0, 4, -4, 'q2a')
        wbar(X3, ['r2b'], 'q2a')
        rds(X3, 1, 4, 7, 4, 'q2b')
        for mn, ops, mods in w_shift(-4): sc.op(0, X3, mn, ops, mods)
        sc.gate(1, X3, lambda: ('bar', X3) in T)
        dmas(2, 1, 0, 3, X3 + E('R3_OFF', 4), w3, 'r3a')
        wbar(XS, [], 'q2b')
        sc.gate(1, XS, lambda: ('bar', XS) in T)
        dmas(2, 1, 3, 6, max(XS + 1, X3 + E('R3_OFF', 4) + 6*w3), w3, 'r3b')
        wbar(XP, ['ab', 'cl'], None)
    else:
        X1, XA, X2, X3, X4 = E('X1', 25), E('XA', 50), E('X2', 85), E('X3', 130), E('X4', 170)
        dmas(1, 0, 0, 4, E('R2_AT', 2), ws_, 'r2a')
        wbar(X1, ['r1b'], None)
        rds(X1, 0, 4, 7, 4, 'q1b')
        wbar(XA, [], 'q1b')
        sc.gate(1, XA, lambda: ('bar', XA) in T)
        assert E('R2_AT', 2) + 7*ws_ <= XA and XA + 1 + 5*ws_ < X3
        dmas(1, 0, 4, 7, XA + 1, ws_, 'r2b')
        wbar(X2, ['r2a'], None)
        rds(X2, 1, 0, 4, -4, 'q2a')
        wbar(X3, ['r2b'], 'q2a')
        rds(X3, 1, 4, 7, 4, 'q2b')
        for mn, ops, mods in w_shift(-4): sc.op(0, X3, mn, ops, mods)
        sc.gate(1, X3, lambda: ('bar', X3) in T)
        dmas(2, 1, 0, 3, X3 + E('R3_OFF', 20), w3, 'r3a')
        wbar(X4, ['ab', 'cl'], 'q2b')
        if E('R3B', 1):
            sc.gate(1, X4, lambda: ('bar', X4) in T)
            dmas(2, 1, 3, 6, max(X4 + E('R3B_OFF', 6), X3 + E('R3_OFF', 20) + 6*w3), w3, 'r3b')
        XS, XP = X3, X4
    fl = E('FLAT', 45)
    def w0(nm, fn):
        def f():
            a('s_cmp_lg_u32', sw, 0)
            a('s_cbranch_scc1', nm)
            fn()
            a.label(nm)
        return f
    FS = Flags(a, 'GS', ABR[7], l16b, sPF, tmp=S(68, 2))
    sc.call(2, XS - fl, w0('GS_l', FS.load))
    sc.call(2, XS - 2, w0('GS_c', FS.check))
    FD_ = Flags(a, 'GD', V(244, 2), vg1, sDF)
    sc.call(2, E('GD_AT', 210), w0('GD_l', FD_.load))
    if E('PUB_AT', 232): sc.call(2, E('PUB_AT', 232), lambda: publish_n(a, S(2)))
    xs = E('XX_STEP', 6)
    PT = [V(i) for i in (6, 7, 8, 9, 10, 11, 13, 14)]
    sc.gate(2, XS, lambda: ('bar', XS) in T)
    sc.ops(2, XS + 1, [('s_mov_b32', ('m0', S(57))), ('buffer_load_dwordx4', (l16, RWS, sAB), 'offen' + LD + ' lds')])
    sc.ops(2, XS + 1, [('s_mov_b32', ('m0', S(57))), ('buffer_load_dwordx4', (l16, RWS, sAB), 'offen offset:1024' + LD + ' lds', (T, 'ab'))])
    for t in range(8):
        sc.op(2, XS + 4 + xs*t, 'buffer_load_dwordx2', (XR[t], vx, RWS, sx), f'offen offset:{512*t}' + LD1)
    sc.gate(2, XP, lambda: ('bar', XP) in T)
    ps = E('PREP_STEP', 8)
    for t in range(8):
        sc.op(2, XP + 1 + ps*t, 'ds_read_b128', (ABR[t], l16a), f'offset:{1024*t}')
        Pt = PT[4*(t & 1):4*(t & 1) + 4]
        at2 = XP + 9 + ps*t
        for h in range(2):
            sc.op(2, at2, 'v_perm_b32', (Pt[2*h], one, XR[t][h], pl))
            sc.op(2, at2, 'v_perm_b32', (Pt[2*h+1], one, XR[t][h], ph))
        for k in range(4):
            sc.op(2, at2, 'v_dot2_f32_bf16', (ABR[t][k], Pt[k], ABR[t][k], 0))
    sc.note(2, XP + 9 + 7*ps, lambda: (T.__setitem__('xn', sc.n), print('  prep done', sc.n, file=sys.stderr)))
    order = sorted([(aa, dl) for aa in range(8) for dl in range(8) if aa + dl <= 7], key=lambda p: (max(p), p[0] + p[1]))
    last = []
    done = {}
    for p in range(4):
        hi_ = [(aa, 2*p + 1 - aa) for aa in range(2*p + 2)]
        lo_ = [(aa, 2*p - aa) for aa in range(2*p + 1)]
        for k in range(2*p + 2):
            last.append(hi_[k])
            if k < 2*p + 1: last.append(lo_[k])
        done[p] = 44 + 36*6 + len(last)
    XF = [V(16 + 4*t, 4) for t in range(8)]
    sc.note(2, done[0] + 2, lambda: T['xn'])
    for p in range(4):
        e_at = done[p] + 3
        for t in (2*p, 2*p + 1):
            for h in range(2):
                sc.op(2, 44 + 36*6 + 3, 'v_lshlrev_b32', (XF[t][2*h], 16, XR[t][h]))
                sc.op(2, 44 + 36*6 + 3, 'v_and_b32', (XF[t][2*h+1], '0xffff0000', XR[t][h]))
        for t in (2*p, 2*p + 1):
            for k in range(4): sc.op(2, e_at, 'v_fmac_f32', (XF[t][k], ABR[t][k], CA[t][k]))
        q = ABR[2*p]
        for e in range(2):
            for h in range(2): sc.op(2, e_at, 'v_cvt_pk_bf16_f32', (q[2*e + h], XF[2*p + e][2*h], XF[2*p + e][2*h + 1]))
        sc.op(2, e_at, 'v_permlane16_swap_b32', (q[0], q[2]))
        sc.op(2, e_at, 'v_permlane16_swap_b32', (q[1], q[3]))
        sc.op(2, e_at, 'buffer_store_dwordx4', (q, vo, RWS, sht), f'offen offset:{1024*p} sc1', tok=(T, 'h'))
    sc.sort()
    allm = []
    for rho in range(8):
        s = rho & 1
        init = set()
        seq = []
        for (aa, dl) in (order if rho < 7 else last):
            t = aa + dl
            seq.append((CA[t], FA[s][aa], FB[s][dl], CA[t] if (rho or t in init) else 0))
            init.add(t)
        if rho == 0:
            seq += [(CA[t], AD, FB[s][t], CA[t]) for t in range(8)]
        nxt = reads(rho + 1) if rho < 7 else []
        k = 0
        for n, m in enumerate(seq):
            fx = []
            if n >= 4 and k < len(nxt) and (n % 3 != 2 or len(seq) - n <= len(nxt) - k):
                fx = [nxt[k]]; k += 1
            allm.append((m, fx))
        assert k == len(nxt)
    for x, (m, fx) in enumerate(allm):
        if x in CST: stamp(a, CID[CST.index(x)], True)
        a(MFMA, *m)
        sc.n += 1
        sc.gap(fx, [(MFMA, allm[x + 1][0], '')] if x + 1 < len(allm) else [])
    print('after conv:', sc.left(), 'over', sc.over, file=sys.stderr)
    stamp(a, 7)
    sc.n += 100
    sc.drain()
    w0('GD_c', FD_.check)()
    stamp(a, 8)
    return T['cl']

WDL0 = 0
def x_loads(a, n):
    RQ = S(44, 4)
    srd(a, RQ, P_Q, S_*D_*2)
    voff = V(16)
    a('s_lshl_b32', st0, n, 2)
    a('s_add_u32', st0, st0, sw)
    a('s_mul_i32', st0, st0, 8*1280)
    a('s_add_u32', st1, st0, 2560)
    a('v_lshrrev_b32', t0, 5, lane)
    a('v_mul_u32_u24', voff, 5120, t0)
    a('v_and_b32', t1, 31, lane)
    a('v_lshl_add_u32', voff, t1, 3, voff)
    X = [[V(48 + 10*r + 2*i, 2) for i in range(5)] for r in range(4)]
    s0, s1 = S(48), S(50)
    def loads():
        for r in range(4):
            for i in range(5):
                a('buffer_load_dwordx2', X[r][i], voff, RQ, s1 if r >= 2 else s0, mods=f'offen offset:{1280*(r & 1) + 256*i}' + NT_)
    a('s_mov_b32', s0, st0)
    a('s_mov_b32', s1, st1)
    if not E('QDEL', 0):
        loads()
        return lambda: X
    def late():
        a.wait(vm=0)
        loads()
        return X
    return late

XAB = WB + 7*WSS
def x_task(a, n, X, mid=None):
    ones, pl, ph = S(12), S(50), S(51)
    vw, vg, vr = V(17), V(19), V(20)
    a('s_mov_b32', pl, '0x05040100')
    a('s_mov_b32', ph, '0x07060302')
    a('v_lshrrev_b32', t0, 5, lane)
    a('v_and_b32', t2, 3, lane)
    a('v_xor_b32', t1, sw, t2)
    a('v_lshlrev_b32', t1, 4, t1)
    a('v_lshl_add_u32', t1, t0, 3, t1)
    a('v_and_b32', vw, 31, lane)
    a('v_lshl_add_u32', vw, vw, 8, t1)
    a('v_lshrrev_b32', t1, 2, lane)
    a('v_lshlrev_b32', vg, 12, t1)
    a('v_lshl_add_u32', vg, t2, 4, vg)
    a('v_lshrrev_b32', t0, 4, lane)
    a('v_xor_b32', t0, t0, t2)
    a('v_lshlrev_b32', t1, 6, t1)
    a('v_lshl_add_u32', vr, t0, 4, t1)
    a('v_add_u32', vr, 28672, vr)
    PC = [V(96 + 2*k, 2) for k in range(8)]
    for i in range(5):
        for e in range(4):
            q = PC[4*(i & 1) + e]
            for h in range(2):
                a('v_perm_b32', q[h], X[2*h + 1][i][e >> 1], X[2*h][i][e >> 1], ph if e & 1 else pl)
        for e in range(4):
            a('ds_write_b64', vw, PC[4*(i & 1) + e], mods=f'offset:{28672 + 8192*i + 64*e}')
    if mid: mid()
    a('s_mov_b32', ones, '0x3f803f80')
    a('s_lshl_b32', st2, n, 6)
    a('s_add_u32', st2, st2, hex(XT))
    a.wait(lg=0)
    a('s_barrier')
    s1 = [V(24 + r) for r in range(4)]
    s2 = [V(28 + r) for r in range(4)]
    L = []
    for i in range(5):
        for d in range(2):
            for r in range(4):
                first = i == 0 and d == 0
                L.append(('v_dot2_f32_bf16', s1[r], X[r][i][d], ones, 0 if first else s1[r]))
                L.append(('v_dot2_f32_bf16', s2[r], X[r][i][d], X[r][i][d], 0 if first else s2[r]))
    a('s_cmp_lg_u32', sw, 0)
    a('s_cbranch_scc1', 'X_nst')
    O = [V(112 + 4*j, 4) for j in range(20)]
    for j in range(20):
        a('ds_read_b128', O[j], vr, mods=f'offset:{1024*j}')
    for j in range(40):
        if j: a('s_add_u32', st2, st2, 65536)
        a('buffer_store_dwordx4', O[j % 20], vg, RWS, st2, mods='offen sc1')
        if 4 <= j < 24: a('ds_read_b128', O[j - 4], vr, mods=f'offset:{1024*(j + 16)}')
    a.label('X_nst')
    for x in L: a(*x)
    for s in (s1, s2):
        for r in (0, 2): a('v_permlane16_swap_b32', s[r], s[r + 1])
    for s in (s1, s2):
        for r in (0, 2): a('v_add_f32', s[r], s[r], s[r + 1])
    for sh in (8, 4, 2, 1):
        for x in (s1[0], s2[0], s1[2], s2[2]):
            a('v_add_f32', x, x, x, mods=f'row_ror:{sh} row_mask:0xf bank_mask:0xf')
    a('v_and_b32', t1, 1, lane)
    a('v_cmp_ne_u32', 'vcc', 0, t1)
    a('v_cndmask_b32', s1[0], s1[0], s1[2], 'vcc')
    a('v_cndmask_b32', s2[0], s2[0], s2[2], 'vcc')
    ln_stats(a, s1[0], s2[0], t2)
    a('v_rcp_f32', s2[0], s2[0])
    a('v_mul_f32', s1[0], s1[0].neg(), s2[0])
    a('v_cvt_pk_bf16_f32', s2[0], s2[0], s1[0])
    a('v_bfe_u32', t0, lane, 4, 1)
    a('v_lshl_or_b32', t1, t1, 1, t0)
    a('v_lshrrev_b32', t0, 5, lane)
    a('v_lshl_or_b32', t1, t0, 2, t1)
    a('s_lshl_b32', st0, sw, 5)
    a('s_add_u32', st0, st0, XAB)
    a('v_lshl_add_u32', t1, t1, 2, st0)
    a('ds_write_b32', t1, s2[0])
    a.wait(lg=0)
    a('s_barrier')

def x_finish(a, n):
    a('v_and_b32', t0, 31, lane)
    a('v_lshlrev_b32', t0, 2, t0)
    a('v_add_u32', t1, XAB, t0)
    a('ds_read_b32', t2, t1)
    a('s_lshl_b32', st0, n, 7)
    a('s_add_u32', st0, st0, hex(AB))
    a('buffer_store_dword', t2, t0, RWS, st0, mods='offen sc1')
    a.wait(vm=0)
    publish_rep(a, 'X_pub', FLP, PSTR, n)

def d_loads(a, n, extra=None):
    RW = S(52, 4)
    scb, scp, ssrc, sl = S(13), S(14), S(10), S(12)
    vsrc = [V(88), V(89)]
    a('v_lshrrev_b32', t0, 3, lane)
    a('v_mul_u32_u24', t0, 1280, t0)
    a('v_and_b32', t1, 1, lane)
    a('v_lshl_add_u32', t0, t1, 4, t0)
    a('v_bfe_u32', t1, lane, 1, 2)
    a('v_bfe_u32', t2, lane, 4, 1)
    a('v_xor_b32', t1, t1, t2)
    a('s_and_b32', st0, sw, 1)
    a('s_lshl_b32', st0, st0, 1)
    a('v_xor_b32', t1, st0, t1)
    a('v_lshl_add_u32', vsrc[0], t1, 5, t0)
    a('v_xor_b32', t1, 2, t1)
    a('v_lshl_add_u32', vsrc[1], t1, 5, t0)
    a('s_mul_i32', ssrc, scp, 216*1280)
    a('s_lshl_b32', st0, scb, 7)
    a('s_add_u32', ssrc, ssrc, st0)
    a('s_mul_i32', st0, sw, 56*1280)
    a('s_add_u32', ssrc, ssrc, st0)
    a('s_lshr_b32', st0, sw, 1)
    a('s_mul_i32', st0, st0, 4*1280)
    a('s_sub_u32', ssrc, ssrc, st0)
    a('s_mul_i32', sl, sw, 7*1024)
    def go():
        for g in range(7):
            a('s_add_u32', 'm0', sl, WDL0 + 1024*g)
            a('s_add_u32', st0, ssrc, 8*g*1280)
            td = a('buffer_load_dwordx4', vsrc[g & 1], RW, st0, mods='offen' + NT_ + ' lds')
        return td
    if extra:
        a('s_cmp_lg_u32', sw, 2)
        a('s_cbranch_scc1', extra)
        a('s_sub_u32', ssrc, ssrc, 108*1280)
        a('s_sub_u32', sl, sl, 14*1024)
        go()
        a('s_add_u32', ssrc, ssrc, 108*1280)
        a('s_add_u32', sl, sl, 14*1024)
        a.label(extra)
    return go()

def d_task(a):
    scb, scp, sdst, sl = S(13), S(14), S(10), S(12)
    vr = V(90)
    MK = [S(68, 2), S(50, 2)]
    a('v_lshrrev_b32', t0, 4, lane)
    a('v_bfe_u32', t1, lane, 2, 2)
    a('v_lshl_add_u32', t2, t0, 3, t1)
    a('v_lshlrev_b32', t2, 7, t2)
    a('v_and_b32', t0, 1, t0)
    a('v_lshrrev_b32', t1, 1, t1)
    a('v_lshl_or_b32', t0, t0, 1, t1)
    a('v_xor_b32', t0, sw, t0)
    a('v_lshl_add_u32', t2, t0, 5, t2)
    a('v_and_b32', t0, 3, lane)
    a('v_lshl_add_u32', t2, t0, 3, t2)
    a('v_add_u32', vr, WDL0, t2)
    a('s_lshl_b32', st0, scb, 2)
    a('s_add_u32', st0, st0, sw)
    a('s_mul_i32', sdst, st0, TS)
    a('s_mul_i32', st1, scp, 7*1024)
    a('s_add_u32', sdst, sdst, st1)
    a('s_add_u32', sdst, sdst, hex(WP2))
    a('s_add_u32', sl, sdst, 4096)
    a('s_mov_b32', MK[0][0], '0xffff0000')
    a('s_mov_b32', MK[0][1], 0)
    a('s_mov_b32', MK[1][0], 0)
    a('s_mov_b32', MK[1][1], '0xffff0000')
    FD = [V(176 + 4*i, 4) for i in range(7)]
    for ks in range(7):
        for hf in range(2):
            a('ds_read_b64_tr_b16', FD[ks][2*hf:2*hf+2], vr, mods=f'offset:{ks*4096 + 512*hf}')
    for ks in range(7):
        if ks in (3, 6):
            for d in (2, 3): a('v_cndmask_b32', FD[ks][d], FD[ks][d], 0, MK[ks == 6])
        tp = a('buffer_store_dwordx4', FD[ks], l16, RWS, sl if ks >= 4 else sdst, mods=f'offen offset:{1024*(ks & 3)} sc1')
    return tp

def helper_wg(a, setup):
    n, nd, sj, sHR = S(7), S(9), S(15), S(8)
    vt = V(91)
    emit = lambda L: [a(mn, *ops, mods=mods) for mn, ops, mods in L]
    def common():
        srd(a, RWS, P_WS, WS_SIZE)
        a('s_mov_b32', sEp, hex(EPOCH))
        a('s_load_dword', sEp, P_WS, sEp)
        srd(a, S(52, 4), P_WD, D_*F_*2)
        role_setup(a)
        w_setup(a)
        tag_setup(a)
        a('s_sub_u32', nd, n, 16)
        a('s_lshr_b32', st0, n, 3)
        a('s_lshl_b32', st0, st0, 2)
        a('s_and_b32', st1, n, 3)
        a('s_add_u32', st0, st0, st1)
        a('s_cmp_lt_u32', n, 32)
        a('s_cselect_b32', nd, st0, nd)
        a('s_mul_i32', S(14), nd, 205)
        a('s_lshr_b32', S(14), S(14), 11)
        a('s_mul_i32', st0, S(14), 10)
        a('s_sub_u32', S(13), nd, st0)
        clr_setup_q(a, S(28), V(247))
    def touch_setup():
        w_srd(a)
        touch_lanes(a, vt)
        a('s_bfe_u32', sj, n, (3 << 16) | 3)
        a('s_lshl_b32', sj, sj, 1)
        a('s_and_b32', st0, sw, 1)
        a('s_add_u32', sj, sj, st0)
        a('s_mul_i32', sj, sj, 8*WROW)
    def sq_clear():
        a('v_mov_b32', V(93), -1)
        a('buffer_store_dword', V(93), V(247), RWS, S(28), mods='offen sc1')
    def touch3():
        a('s_lshr_b32', st0, n, 3)
        a('s_lshl_b32', st0, st0, 1)
        a('s_and_b32', st1, sw, 1)
        a('s_add_u32', st0, st0, st1)
        a('s_cmp_lt_u32', st0, 16)
        a('s_cselect_b32', st1, 16, 56)
        a('s_add_u32', st0, st0, st1)
        a('s_mul_i32', st0, st0, 8*WROW)
        a('buffer_load_dword', V(92), vt, RW1, st0, mods='offen')
    def touch(blk):
        a('s_add_u32', st0, sj, blk*8*WROW)
        a('buffer_load_dword', V(92), vt, RW1, st0, mods='offen')
    a('s_sub_u32', n, S(2), 160)
    a('s_cmp_ge_u32', n, 64)
    a('s_cbranch_scc1', 'H_nx1')
    XL = x_loads(a, n)
    touch_setup()
    common()
    DP = E('DPOS', 2)
    if DP == 0: d_loads(a, nd)
    X = XL()
    sq_clear()
    stamp(a, 1)
    x_task(a, n, X, (lambda: d_loads(a, nd)) if DP == 1 else None)
    stamp(a, 2)
    a('s_cmp_lg_u32', sw, 0)
    a('s_cbranch_scc1', 'H_w123')
    x_finish(a, n)
    stamp(a, 4)
    a('s_branch', 'H_xj')
    a.label('H_w123')
    HR = E('HR1', 4)
    def dl():
        a('s_cmp_eq_u32', sB, 5)
        a('s_cbranch_scc1', 'H_a')
        d_loads(a, nd, 'H_d0')
        a.label('H_a')
    if DP == 2 and E('DFIRST', 1): dl()
    touch(48)
    a('s_cmp_lg_u32', sw, 1)
    a('s_cbranch_scc1', 'H_t47')
    touch(47)
    a.label('H_t47')
    if DP == 2 and not E('DFIRST', 1): dl()
    w_holes(a, V(236, 4))
    if HR:
        w_round_x(a, 0, 0, 'H_rx', 0, HR, True)
        w_round_y(a, 0, 0, 'H_ry', 0, HR, True)
    else: a.wait(vm=1 if E('DFIRST', 1) else 0)
    a.label('H_xj')
    a('s_mov_b32', sHR, 1)
    a('s_cmp_lg_u32', sB, 5)
    a('s_cbranch_scc1', 'H_nx2')
    tr0 = w_round(a, 0, 0, HR, 7)
    touch3()
    a.wait(vm=13 if E('HPIPE', 1) else 1)
    a('s_branch', 'H_nd2')
    a.label('H_nx1')
    touch_setup()
    for blk in (0, 8, 40, 64): touch(blk)
    common()
    td = d_loads(a, nd)
    w_holes(a, V(236, 4))
    w_round(a, 0, 0, 0, 4)
    sq_clear()
    stamp(a, 1)
    a.wait_vm_tok(td)
    a('s_mov_b32', sHR, 0)
    stamp(a, 2)
    a.label('H_nx2')
    a('s_barrier')
    tp = d_task(a)
    stamp(a, 3)
    if HR < 4:
        a('s_cmp_eq_u32', sHR, 0)
        a('s_cbranch_scc1', 'H_hr')
        w_round(a, 0, 0, HR, 4)
        a.wait(vm=4*(4 - HR))
        a('s_barrier')
        publish4(a, FLD, PSTR, nd)
        w_round(a, 0, 0, 4, 7)
        touch3()
        a.wait(vm=14)
        a('s_branch', 'H_nd2')
        a.label('H_hr')
    tr = w_round(a, 0, 0, 4, 7)
    touch3()
    LP = E('LATEP', 0)
    if LP: a.wait(vm=20)
    else:
        a.wait_vm_tok(tp)
        a('s_barrier')
        publish4(a, FLD, PSTR, nd)
    if not E('HPIPE', 1): a.wait_vm_tok(tr)
    a.label('H_nd2')
    sDF, sT2, vt2, vg1 = S(58), S(54), V(93), V(96)
    FD_ = Flags(a, 'HD', V(94, 2), vg1, sDF)
    def bar():
        a.wait(lg=0)
        a('s_barrier')
    def rd(r, lo, hi):
        for i in range(lo, hi): emit(w_reads(RND[r][i], i & 3))
    bar()
    if E('HPIPE', 1):
        rd(0, 0, 4)
        bar()
        w_round(a, 1, 0, 0, 4)
        a.wait(vm=16)
        bar()
        if LP:
            a('s_cmp_eq_u32', sB, 5)
            a('s_cbranch_scc1', 'H_np')
            publish4(a, FLD, PSTR, nd)
            a.label('H_np')
        emit(w_shift(4))
        rd(0, 4, 7)
        bar()
        w_round(a, 1, 0, 4, 7)
        a.wait(vm=12)
        stamp(a, 5)
        bar()
        emit(w_shift(-4))
        rd(1, 0, 4)
        rep_base(a, sDF, FLD, PSTR)
        pack_flag_addr(a, vg1)
        bar()
        w_round(a, 2, 1, 0, 3)
        FD_.load()
        a.wait(vm=13)
        bar()
        emit(w_shift(4))
        rd(1, 4, 7)
        emit(w_shift(-4))
        bar()
        stamp(a, 6)
        tr = w_round(a, 2, 1, 3, 6)
    else:
        emit(w_read_ops(0))
        bar()
        tr = w_round(a, 1)
        a.wait_vm_tok(tr)
        stamp(a, 5)
        a('s_barrier')
        emit(w_read_ops(1))
        rep_base(a, sDF, FLD, PSTR)
        pack_flag_addr(a, vg1)
        FD_.load()
        bar()
        stamp(a, 6)
        tr = w_round(a, 2, 1)
    FD_.check()
    p2_touch(a)
    stamp(a, 7)
    if E('GSE', 0): setup(a)
    a('s_cmp_lg_u32', sB, E('CSB', 5))
    a('s_cbranch_scc1', 'H_end')
    ON = V(208, 4)
    CSA = [V(212 + 4*k, 4) for k in range(4)]
    CSA[3] = V(236, 4)
    def cs_mf(L):
        for ks in L:
            for k in range(4):
                a(MFMA, CSA[k], W1(ks, k), ON, CSA[k] if ks else 0)
    for d in range(4): a('v_mov_b32', ON[d], '0x3f803f80')
    CSE = E('CSE', 1)
    if CSE: cs_mf(RND[0] + RND[1])
    a.wait_vm_tok(tr)
    a('s_barrier')
    R = [V(16 + i) for i in range(4)]
    emit(w_shift(1, vWr, R))
    for i, ks in enumerate(RND[2]):
        if i == 4: emit(w_shift(4, R))
        emit(w_reads(ks, i & 3, R))
    cs_bases(a)
    cs_mf(RND[2] if CSE else RND[0] + RND[1] + RND[2])
    a('v_and_b32', t0, 15, lane)
    a('v_cmp_eq_u32', 'vcc', 0, t0)
    a('s_and_saveexec_b64', S(68, 2), 'vcc')
    for k in range(4):
        a('buffer_store_dwordx4', CSA[k], vq16, RWS, sCS3 if k == 3 else sCS0, mods=f'offen offset:{64*(k % 3)} sc1')
    a('s_mov_b64', 'exec', -1)
    if not E('CSD', 2): cs_publish(a)
    a.label('H_end')
    if E('CLPOS', 0) == 1: hh_clear(a, S(39), V(240, 4))
    stamp(a, 8)

def cs_publish(a):
    a('s_lshl_b32', st0, sC, 7)
    a('s_lshl_b32', st1, sw, 2)
    a('s_add_u32', st0, st0, st1)
    a('s_add_u32', st0, st0, hex(FLC))
    a.wait(vm=0)
    publish(a, st0, 0)

def cs_bases(a):
    a('s_mul_i32', st0, sC, 14*64)
    a('s_add_u32', st0, st0, hex(CS))
    a('s_lshl_b32', sCS0, sUb, 6)
    a('s_add_u32', sCS0, sCS0, st0)
    a('s_lshl_b32', sCS3, sU3, 6)
    a('s_add_u32', sCS3, sCS3, st0)
```

```python
from mk8a import *

vdma2, RS2, vout = V(13), V(13), V(248)
ACC = [[V(16 + 32*n + 4*j, 4) for j in range(8)] for n in range(3)]
ACC.append({j: V(112 + 4*((j >> 2)*2 + (j & 1)), 4) for j in (0, 1, 4, 5)})
CSR = [V(128 + 4*n, 4) for n in range(4)]
BF = [V(208 + 4*i, 4) for i in range(8)]
VRD = [V(240 + i) for i in range(8)]
MEAN = V(176, 8)
vsr = [vst, V(184), V(185), V(186)]
vsw = [V(187), V(188)]
MT = [V(189), V(190)]
SQF = [V(128 + 4*i, 4) for i in range(3)]
SQA = V(204, 4)
vsq, vsqs, vpr = V(250), V(251), V(191)
vWg = [V(128 + i) for i in range(4)]
SQL = V(184, 8)
RES = [V(144, 2), V(146, 2), V(148, 2), V(150, 2), V(14, 2)]
ACC2 = [[V(208 + 4*nu, 4) for nu in range(5)], [V(228 + 4*nu, 4) for nu in range(5)],
        [V(176 + 4*nu, 4) for nu in range(5)], [V(196, 4), V(200, 4), V(204, 4), V(128, 4), V(132, 4)]]
MSK = [S(50, 2), S(52, 2), S(54, 2)]
WDL = [(W1(ks, n), ('p1', ks)) for ks in range(4) for n in range(4)]
WDL += [(V(152 + 4*f, 4), ('p1', 4 + (f >= 2))) for f in range(6)]
WDL += [(W1(ks, 3), (1, 0, ks)) for ks in range(KS, 20)]
WDL += [(W1(ks, n), (1, 2, ks)) for ks in range(KS, 20) for n in range(3)]
def WD(f): return WDL[f][0]
sMV, sDump, sPkT, sPark, sPkG = S(34, 2), S(12), S(49), S(7), S(10)
NPK, PK0 = E('NPK', 15), 2048
sHT0, sHTt, vchk, vtch = S(36), S(37), V(253), V(132)
CKT = [V(138 + 2*i, 2) for i in range(3)]
sCl, sFX, sFXw, GQ = S(39), S(40), S(41), V(132, 4)
HF0 = [ACC[n][j] for j in (0, 1) for n in range(4)] + [ACC[n][j] for j in (2, 3) for n in range(3)]
HF1 = [ACC[n][j] for j in (4, 5) for n in range(4)] + [ACC[n][j] for j in (6, 7) for n in range(3)]
HF = HF0 + HF1

def gemm_setup(a):
    srd(a, ROUT, P_OUT, S_*D_*2)
    cs_bases(a)
    a('s_lshl_b32', sHT, sw, 15)
    a('s_lshl_b32', st0, sB, 8)
    a('s_add_u32', sHT, sHT, st0)
    a('s_add_u32', sHT, sHT, hex(HT))
    a('s_lshl_b32', sLds, sw, 11)
    a('s_mov_b32', sHT0, sHT)
    a('s_lshl_b32', sFX, sB, 9)
    a('s_add_u32', sFX, sFX, hex(FL3))
    a('s_lshr_b32', st1, sC, 2)
    a('s_lshl_b32', st1, st1, 7)
    a('s_add_u32', sFXw, sFX, st1)
    a('s_and_b32', st1, sC, 3)
    a('s_lshl_b32', st1, st1, 2)
    a('s_add_u32', sFXw, sFXw, st1)
    a('s_and_b32', st1, sC, 3)
    a('s_lshl_b32', st1, st1, 2)
    a('s_add_u32', st1, st1, sw)
    a('s_lshl_b32', st1, st1, 17)
    a('s_add_u32', st1, st1, st0)
    a('s_add_u32', sHTt, st1, hex(HT + 4*131072))
    a('v_bfe_u32', t0, lane, 4, 2)
    a('v_lshl_add_u32', t0, t0, 2, l16)
    a('v_add_u32', vchk, sLds, t0)
    a('v_lshrrev_b32', t0, 1, lane)
    a('v_and_b32', t1, 1, lane)
    a('v_lshlrev_b32', t1, 7, t1)
    a('v_lshl_add_u32', vtch, t0, 12, t1)
    clr_setup_h(a, sCl)
    half, cbk, mu = S(13), S(14), S(15)
    a('s_bfe_u32', half, sC, (1 << 16) | 2)
    a('s_lshr_b32', cbk, sC, 3)
    a('s_lshl_b32', cbk, cbk, 2)
    a('s_and_b32', st0, sC, 3)
    a('s_add_u32', cbk, cbk, st0)
    a('s_and_b32', st0, sw, 1)
    a('s_lshl_b32', sRot, st0, 1)
    a('s_lshr_b32', st1, sw, 1)
    a('s_or_b32', sRot, sRot, st1)
    a('s_lshl_b32', mu, st1, 2)
    a('s_add_u32', mu, mu, st0)
    a('s_lshl_b32', st0, half, 1)
    a('s_add_u32', mu, mu, st0)
    a('s_mul_i32', st0, cbk, 5*TS)
    a('s_mul_i32', st1, sw, 14*1024)
    a('s_add_u32', st0, st0, st1)
    for nu in range(5):
        a('s_add_u32', sWn[nu], st0, hex(WP2 + nu*TS))
    a('s_lshl_b32', st0, sB, 3)
    a('s_lshl_b32', st2, half, 1)
    a('s_add_u32', st2, st2, st0)
    a('s_mul_i32', st2, st2, TS)
    a('s_add_u32', st2, st2, st1)
    for j in range(4):
        a('s_add_u32', sHH[j], st2, hex(HH + ((j & 1) + 4*(j >> 1))*TS))
    a('s_and_b32', st1, sRot, 2)
    a('s_mul_i32', st2, sC, 14*256)
    a('s_add_u32', st2, st2, hex(HH))
    for k in range(2):
        if k: a('s_xor_b32', st1, st1, 2)
        a('s_add_u32', sA[k], st0, st1)
        a('s_mul_i32', sA[k], sA[k], TS)
        a('s_add_u32', sA[k], sA[k], st2)
    a('s_add_u32', st1, st0, mu)
    a('s_mul_i32', sOut, st1, 16*1280)
    a('s_mul_i32', st2, cbk, 160)
    a('s_add_u32', sOut, sOut, st2)
    a('s_lshl_b32', sSQl, st1, 9)
    a('s_add_u32', sSQl, sSQl, hex(SQ))
    a('s_add_u32', st1, st0, cbk)
    a('s_lshl_b32', sSQs, st1, 9)
    a('s_lshl_b32', st1, half, 2)
    a('s_add_u32', st1, st1, sw)
    a('s_lshl_b32', st1, st1, 2)
    a('s_add_u32', sSQs, sSQs, st1)
    a('s_add_u32', sSQs, sSQs, hex(SQ))
    a('s_mov_b32', sStat, 0)
    a('s_lshl_b32', sC3, sC, 7)
    a('s_add_u32', sC3, sC3, hex(FLC))
    a('s_mov_b32', sPkG, sWn[0])
    a('s_mul_i32', sPark, sw, NPK*1024)
    a('s_add_u32', sPark, sPark, PK0)
    for mn, ops, mods in w_shift(1, vWr, vWg): a(mn, *ops)
    a('s_add_u32', sDump, sStat, 1024)
    a('s_cmp_ge_u32', sw, 2)
    a('s_cselect_b32', sMV[1], '0xffff0000', 0)
    a('s_mov_b32', sMV[0], 0)
    q, r, m, x = V(208), V(209), V(210), V(211)
    a('v_lshrrev_b32', q, 4, lane)
    a('v_bfe_u32', r, lane, 2, 2)
    a('v_and_b32', m, 15, lane)
    a('s_and_b32', st1, sw, 1)
    a('s_lshl_b32', st1, st1, 2)
    a('v_or_b32', t0, st1, q)
    a('v_bfe_u32', t1, lane, 1, 3)
    a('v_xor_b32', t0, t0, t1)
    a('v_lshlrev_b32', t0, 5, t0)
    a('v_and_b32', t1, 1, lane)
    a('v_lshl_add_u32', t0, t1, 4, t0)
    a('v_lshl_add_u32', vdma, q, 12, t0)
    a('v_add_u32', vdma2, 16384 - 1024, vdma)
    a('v_and_b32', t0, 1, q)
    a('v_lshl_or_b32', t0, t0, 2, r)
    a('v_lshl_add_u32', t1, q, 3, r)
    a('v_lshlrev_b32', t1, 8, t1)
    a('v_and_b32', t2, 3, lane)
    a('v_lshl_add_u32', t1, t2, 3, t1)
    a('v_xor_b32', x, cbk, t0)
    a('v_lshl_add_u32', vsq, x, 5, t1)
    a('s_lshl_b32', st0, sw, 14)
    a('s_add_u32', st0, st0, 11*8192)
    a('s_mul_i32', st1, sw, 3*8192)
    a('s_cmp_eq_u32', half, 0)
    a('s_cselect_b32', st0, st1, st0)
    a('v_add_u32', vsq, st0, vsq)
    a('v_xor_b32', t0, sRot, t0)
    for j in range(8):
        a('v_xor_b32', VRD[j], j, t0)
        a('v_lshl_add_u32', VRD[j], VRD[j], 5, t1)
    for i in range(3):
        a('v_cmp_eq_u32', MSK[i], i + 1, t2)
    a('v_lshlrev_b32', t0, 5, m)
    a('v_cmp_eq_u32', 'vcc', r, q)
    a('v_mov_b32', t1, hex(OOB))
    a('v_cndmask_b32', vsqs, t1, t0, 'vcc')
    a('v_lshrrev_b32', t0, 1, q)
    a('v_lshl_or_b32', t0, t0, 2, r)
    a('v_xor_b32', t0, mu, t0)
    a('v_lshlrev_b32', t0, 5, t0)
    a('v_lshl_add_u32', t0, t2, 3, t0)
    a('v_lshl_add_u32', t1, q, 2, r)
    a('v_lshl_add_u32', t0, t1, 8, t0)
    a('s_mul_i32', st2, cbk, 80*256)
    a('v_add_u32', vres, st2, t0)
    a('s_lshl_b32', st0, sRot, 2)
    a('s_add_u32', st0, st0, sStat)
    a('v_lshl_add_u32', vst, m, 5, st0)
    a('s_and_b32', st0, sRot, 1)
    a('v_and_b32', t0, 1, q)
    a('v_lshrrev_b32', t2, 1, q)
    a('v_xor_b32', x, st0, t0)
    a('v_mul_u32_u24', x, TS, x)
    a('v_lshl_add_u32', x, m, 4, x)
    a('v_add_u32', t1, sUb, t2)
    a('v_lshl_add_u32', vh01, t1, 8, x)
    a('s_add_u32', st1, sUb, 2)
    a('s_sub_u32', st2, sU3, st1)
    a('v_mul_lo_u32', t1, st2, t2)
    a('v_add_u32', t1, st1, t1)
    a('v_lshl_add_u32', vh23, t1, 8, x)
    a('v_xor_b32', x, st0, t2)
    a('v_mul_u32_u24', x, TS, x)
    a('v_lshl_add_u32', x, m, 4, x)
    a('v_lshl_add_u32', x, t0, 3, x)
    a('s_lshl_b32', st1, st1, 8)
    a('v_add_u32', vh2x, st1, x)
    a('v_mul_u32_u24', t1, 1280, m)
    a('v_lshl_add_u32', t1, t0, 5, t1)
    a('v_lshl_add_u32', vout, t2, 4, t1)
    a('v_and_b32', t1, 3, lane)
    a('v_lshlrev_b32', vfl, 2, t1)

def late_setup_ops():
    L = []
    for k in range(1, 4): L.append(('v_xor_b32', (vsr[k], 4*k, vst), ''))
    L.append(('v_lshl_add_u32', (MT[0], lane, 2, sDump), ''))
    L.append(('v_cndmask_b32', (vsw[0], MT[0], vst, sMV), ''))
    L.append(('v_cndmask_b32', (vsw[1], MT[0], vsr[1], sMV), ''))
    L.append(('v_add_u32', (vpr, sPark, l16), ''))
    return L

def pair_ops(X, Y, cX, cY, jX, jY, Q, pk, swap=True):
    L = []
    for Z, c, j in ((X, cX, jX), (Y, cY, jY)):
        if pk:
            s = j & 1
            for h in range(2):
                L.append((1, 'v_pk_fma_f32', (Z[2*h:2*h+2], c[2*h:2*h+2], MEAN[j-s:j-s+2], Z[2*h:2*h+2]), f'op_sel:[0,{s},0] op_sel_hi:[1,{s},1]'))
        else:
            for e in range(4): L.append((1, 'v_fmac_f32', (Z[e], c[e], MEAN[j]), ''))
    if swap:
        for e in range(4): L.append((2, 'v_permlane32_swap_b32', (X[e], Y[e]), ''))
    for e in range(4): L.append((1, 'v_max_f32', (X[e], 0, X[e]), ''))
    if pk:
        for h in range(2): L.append((1, 'v_pk_mul_f32', (X[2*h:2*h+2], X[2*h:2*h+2], Y[2*h:2*h+2]), ''))
    else:
        for e in range(4): L.append((1, 'v_mul_f32', (X[e], X[e], Y[e]), ''))
    for h in range(2): L.append((1, 'v_cvt_pk_bf16_f32', (Q[h], X[2*h], X[2*h+1]), ''))
    return L

def epi_ops(P, jb, pk=False):
    j0, j1 = 4*P + jb, 4*P + jb + 1
    L = []
    sbase = sA[jb >> 1]
    if P:
        L.append((1, 's_add_u32', (sbase, sbase, 4*TS), ''))
    groups = [(0, vh01)] + ([(2, vh23)] if jb == 0 else [])
    for n, va in groups:
        Q = ACC[n+1][j0]
        L += pair_ops(ACC[n][j0], ACC[n+1][j0], CSR[n], CSR[n+1], j0, j0, Q[0:2], pk, n > 0)
        L += pair_ops(ACC[n][j1], ACC[n+1][j1], CSR[n], CSR[n+1], j1, j1, Q[2:4], pk, n > 0)
        L.append((2, 'v_permlane16_swap_b32', (Q[0], Q[2]), ''))
        L.append((2, 'v_permlane16_swap_b32', (Q[1], Q[3]), ''))
        L.append((1, 'buffer_store_dwordx4', (Q, va, RWS, sbase), 'offen sc1'))
    if jb:
        Q = ACC[2][j1]
        L += pair_ops(ACC[2][j0], ACC[2][j1], CSR[2], CSR[2], j0, j1, Q[0:2], pk)
        L.append((1, 'buffer_store_dwordx2', (Q[0:2], vh2x, RWS, sbase), 'offen sc1'))
    return L

BFQ = [V(136, 4), V(140, 4)]
vck = V(252)

def gemms(a):
    T = {}
    dt = {}
    slow = []
    PW = [Ptr(s) for s in sWn]
    PH = [Ptr(s) for s in sHH]
    def wd_load(f, dry):
        i, nu = divmod(f, 5)
        L, o = PW[nu].at(i, dry)
        return L + [('buffer_load_dwordx4', (WD(f), l16, RWS, sWn[nu]), f'offen offset:{o}' + LD, None)]
    def hload(i, j, dry):
        L, o = PH[j].at(i, dry)
        return L + [('buffer_load_dwordx4', (HF[2*i + (j & 1)], l16, RWS, sHH[j]), f'offen offset:{o}' + LD, None)]
    def guarded(sc, qi, at, name, badops, reload):
        for mn, ops in badops: sc.op(qi, at, mn, ops)
        def bad():
            for mn, ops in badops: a(mn, *ops)
        def br():
            a('s_cbranch_vccnz', name + '_slow')
            a.label(name + '_back')
            slow.append((name, bad, reload()))
            T[name] = sc.n
        sc.sca(qi, at, br)
    def hcheck(sc, at, i, ph):
        F0, F1 = HF[2*i], HF[2*i + 1]
        ops = [('v_max3_u32', (vck, F0[0], F0[2], F1[0])), ('v_max_u32', (vck, vck, F1[2])), ('v_cmp_eq_u32', ('vcc', -1, vck))]
        def mk():
            ks_ = [PH[2*ph + jj].k for jj in range(2)]
            def reload():
                for jj in range(2):
                    a('s_add_u32', st0, sHH[2*ph + jj], hex((4096*((i >> 2) - ks_[jj])) & 0xffffffff))
                    a('buffer_load_dwordx4', HF[2*i + jj], l16, RWS, st0, mods=f'offen offset:{(i & 3)*1024} sc1')
            return reload
        guarded(sc, 2, at, f'HC{ph}_{i}', ops, mk)
    def dma_ops(ks):
        return [[('s_add_u32', ('m0', sLds, 8192*ks)), ('buffer_load_dwordx4', (vdma, RWS, sHT), 'offen' + LD + ' lds')],
                [('buffer_load_dwordx4', (vdma2, RWS, sHT), 'offen offset:1024' + LD + ' lds', (dt, ks))],
                [('s_add_u32', (sHT, sHT, 131072))]]
    sc = Sched(a, 4)
    sc.step = E('VSTEP', 5)
    NUP = E('NUP', 4)
    for ks in range(NUP):
        for L in dma_ops(ks): sc.ops(0, 0, L)
    sc.drain()
    if E('HTT', 1): a('buffer_load_dword', V(133), vtch, RWS, sHTt, mods='offen')
    a('s_cmp_lg_u32', S(2), 0)
    a('s_cbranch_scc1', 'EP_skip')
    a('s_add_u32', sEp, sEp, 1)
    a('v_mov_b32', t0, sEp)
    a('s_mov_b32', st0, hex(EPOCH))
    a('s_mov_b64', 'exec', 1)
    a('buffer_store_dword', t0, 'off', RWS, st0, mods='sc1')
    a('s_mov_b64', 'exec', -1)
    a.label('EP_skip')
    steps = [(ks, j) for ks in range(KS) for j in range(8)]
    ends = {}
    cnt = lambda L: sum(4 if (j & 3) < 2 else 3 for _, j in L)
    n1 = cnt(steps)
    when = {}
    for P in range(2):
        mrg = KS + (E('MRG', 0) if P else 0)
        for ks in range(KS, mrg):
            for jb in (0, 2):
                steps += [(ks, 4*P + jb), (ks, 4*P + jb + 1)]
                when[(P, jb, ks)] = cnt(steps)
        for jb in (0, 2):
            for ks in range(mrg, 20):
                steps += [(ks, 4*P + jb), (ks, 4*P + jb + 1)]
                when[(P, jb, ks)] = cnt(steps)
            ends[(P, jb)] = cnt(steps)
    NM = cnt(steps)
    d0, ds_ = E('D_AT', 30), E('DSTEP', 9)
    for ks in range(NUP, 20):
        at = d0 + ds_*(ks - NUP)
        st_ = ds_
        if ks >= 11: st_ = E('DSTEP2', 7); at = E('D2_AT', 88) + st_*(ks - 11)
        for k, L in enumerate(dma_ops(ks)): sc.ops(2, at + (st_//2 if k else 0), L)
    bars = eval(os.environ.get('BARS', '{30: 3, 86: 6, 142: 11, 198: 19}'))
    lastbar = min(k for k, v in bars.items() if v == 19)
    cbase = [0]
    def hval(lo, hi, at):
        name = f'HV{lo}'
        rd = lambda ks: ('ds_read2st64_b32', (CKT[ks % 3], vchk), f'offset0:{32*(ks - lo)} offset1:{32*(ks - lo) + 4}')
        mx = lambda ks: ('v_max_u32', (vck, CKT[ks % 3][0], CKT[ks % 3][1])) if ks == lo else ('v_max3_u32', (vck, vck, CKT[ks % 3][0], CKT[ks % 3][1]))
        cmp_ = ('v_cmp_eq_u32', ('vcc', -1, vck))
        def reload():
            a('s_mov_b32', st1, 'm0')
            for ks in range(lo, hi + 1):
                a('s_add_u32', 'm0', sLds, 8192*ks)
                a('s_add_u32', st0, sHT0, 131072*ks)
                a('buffer_load_dwordx4', vdma, RWS, st0, mods='offen sc1 lds')
                a('buffer_load_dwordx4', vdma2, RWS, st0, mods='offen offset:1024 sc1 lds')
            a('s_mov_b32', 'm0', st1)
        def bad():
            for ks in range(lo, hi + 1):
                r = rd(ks); a(r[0], *r[1], mods=r[2])
                m = mx(ks); a(m[0], *m[1])
            a(cmp_[0], *cmp_[1])
        def br():
            a('s_cbranch_vccnz', name + '_slow')
            a.label(name + '_back')
            slow.append((name, bad, reload))
            T[name] = sc.n
        sh = [('v_add_u32', (vchk, 8192*(lo - cbase[0]), vchk))] if lo != cbase[0] else []
        cbase[0] = lo
        if at is None:
            a.wait_vm_tok(dt[hi])
            for ks in range(lo, hi + 1):
                r = rd(ks); a(r[0], *r[1], mods=r[2])
            return lambda: ([a(mx(ks)[0], *mx(ks)[1]) for ks in range(lo, hi + 1)], a(cmp_[0], *cmp_[1]), br())
        lat, st_ = E('HV_LAT', 7), 3
        for x in sh: sc.op(3, at - lat - 3 - st_*(hi - lo) - 2, *x)
        for ks in range(lo, hi + 1):
            t = at - lat - 3 - st_*(hi - ks)
            sc.sca(3, t, lambda ks=ks: a.wait_vm_tok(dt[ks]))
            sc.op(3, t, *rd(ks))
            sc.op(3, t + lat, *mx(ks))
        sc.op(3, at - 3, *cmp_)
        sc.sca(3, at - 3, br)
    HV = E('HV', 1)
    if HV:
        lo = 2
        for n_, hi in sorted(bars.items()):
            hval(lo, hi, n_); lo = hi + 1
        cbase[0] = 0
    hvn = {n_: f'HV{lo_ + 1}' for n_, lo_ in zip(sorted(bars), [1] + [v for k, v in sorted(bars.items())])}
    pbar = E('PBAR', 228)
    bars[pbar] = 19
    b0, b1 = sorted(bars)[:2]
    for i, ks in enumerate(RND[2]):
        at = 0 if i < 2 else b0
        if i == 4:
            for op in w_shift(4, vWg): sc.op(0, at, *op)
        for op in w_reads(ks, i & 3, vWg): sc.op(0, at, *op, tok=(T, 'w3a' if i < 2 else 'w3b'))
    sc.note(0, 0, lambda: T.__setitem__('w3a_ok', 1))
    sc.note(0, b0, lambda: T.__setitem__('w3b_ok', 1))
    assert d0 + ds_*(8 - NUP) >= b0 and E('D2_AT', 88) > b1
    cl_at = E('GCL_AT', 152)
    CLP = E('CLPOS', 0)
    for d in range(4*(CLP == 0)): sc.op(1, cl_at - 8, 'v_mov_b32', (GQ[d], -1))
    for k, (mn, ops, mods) in enumerate(clr_ops(GQ, sCl)):
        if (E('NOCL', 0) and k > 0) or CLP: continue
        sc.op(1, cl_at + E('GCL_STEP', 3)*k, mn, ops, mods, tok=(T, 'cl'))
    sc.note(1, cl_at + E('GCL_STEP', 3)*8, lambda: T.__setitem__('cl_ok', sc.n))
    fx_at = E('FX_AT', 520)
    FX = Flags(a, 'FX', vfv, vchk, sFX)
    sc.op(1, fx_at - 70, 'v_bfe_u32', (vchk, lane, 2, 2))
    sc.op(1, fx_at - 70, 'v_lshl_add_u32', (vchk, vchk, 7, vfl))
    sc.call(1, fx_at - 60, FX.load)
    sc.call(1, fx_at, lambda: (FX.check(), T.__setitem__('fx', 1)))
    if E('OT_AT', 0):
        sc.op(1, E('OT_AT', 0), 'v_min_u32', (vck, 2, lane))
        sc.op(1, E('OT_AT', 0), 'v_lshlrev_b32', (vck, 20, vck))
        sc.op(1, E('OT_AT', 0), 'buffer_load_dword', (vck, vck, ROUT, 0), 'offen')
    fl_at = E('FL_AT', 240)
    FC = Flags(a, 'CF', vfv, vfl, sC3)
    fc_at = E('FC_AT', 200)
    sc.call(1, fc_at - 62, FC.load)
    sc.call(1, fc_at - 10, FC.check)
    for n in range(4):
        sc.op(1, fl_at, 'buffer_load_dwordx4', (CSR[n], vq16, RWS, sCS3 if n == 3 else sCS0), f'offen offset:{64*(n % 3)} sc1')
    sq_at = lastbar + 2
    if cl_at < sq_at: sc.note(0, sq_at, lambda: T['cl_ok'])
    else: assert cl_at - 8 >= pbar + 8
    for nu in range(5):
        sc.op(0, sq_at, 'ds_read_b64_tr_b16', (RES[nu], vres), f'offset:{4096*nu}')
    for op in late_setup_ops(): sc.op(0, sq_at, *op)
    for i in range(3):
        for hf in range(2):
            sc.op(0, sq_at, 'ds_read_b64_tr_b16', (SQF[i][2*hf:2*hf+2], vsq), f'offset:{8192*i + 1024*hf}', tok=(T, 'sqr'))
    def sq_mf():
        a(MFMA, SQA, SQF[1], SQF[1], 0)
        a(MFMA, SQA, SQF[2], SQF[2], SQA)
        a('s_bitcmp1_b32', sC, 2)
        a('s_cbranch_scc1', 'SQ_skip')
        a(MFMA, SQA, SQF[0], SQF[0], SQA)
        a.label('SQ_skip')
    sm = pbar + 4
    sc.call(0, sm, sq_mf)
    sc.op(0, sm + 4, 'v_cndmask_b32', (MT[0], SQA[0], SQA[1], MSK[0]))
    sc.op(0, sm + 4, 'v_cndmask_b32', (MT[0], MT[0], SQA[2], MSK[1]))
    sc.op(0, sm + 4, 'v_cndmask_b32', (MT[0], MT[0], SQA[3], MSK[2]))
    sc.op(0, sm + 4, 'buffer_store_dword', (MT[0], vsqs, RWS, sSQs), 'offen sc1')
    held = []
    def flush_ha():
        for e in [e for e in sc.mem if e[3:] == ('ha',)]:
            sc.mem.remove(e); sc.emit(e[2](False))
    for P in range(2):
        e0 = ends[(P, 0)]
        for k in range(2):
            sc.op(0, e0 + 3, 'v_mul_f32', (MT[k], '0xbacccccd', ACC[3][4*P + k][0]))
        for k in range(2):
            sc.op(0, e0 + 3, 'ds_write_b32', (vsw[k], MT[k]), f'offset:{16*P}', tok=(T, 'mw'))
        def mbar(P=P):
            a.wait_lg_tok(T['mw'])
            if P == 0 and not CLP: a.wait_vm_tok(T['cl'])
            a('s_barrier')
            if P == 0:
                a('s_cmp_lg_u32', sw, 0)
                a('s_cbranch_scc1', 'FX_pub')
                a('s_mov_b64', 'exec', 1)
                publish(a, sFXw, 0)
                a('s_mov_b64', 'exec', -1)
                a.label('FX_pub')
        sc.call(0, e0 + 10, mbar)
        for k in range(4):
            sc.op(0, e0 + 10, 'ds_read_b32', (MEAN[4*P + k], vsr[k]), f'offset:{16*P}')
        for c, mn, ops, mods in epi_ops(P, 0):
            if P and E('DEFER', 0) and 'store' in mn: held.append((mn, ops, mods))
            else: sc.op(0, e0 + 16, mn, ops, mods)
        for c, mn, ops, mods in epi_ops(P, 2, pk=(P == 1)):
            if P and E('DEFER', 0) >= 2 and 'store' in mn: held.append((mn, ops, mods))
            else: sc.op(0, ends[(P, 2)] + 3, mn, ops, mods)
        if P and held:
            if E('DEFER', 0) == 1:
                k = [i for i, e in enumerate(sc.q[0]) if e[0] == ends[(1, 2)] + 3 and e[1] == 'i' and 'store' in e[2][0][0]][0]
                for mn, ops, mods in reversed(held): sc.q[0].insert(k, (ends[(1, 2)] + 3, 'i', [(mn, ops, mods, None)]))
            else:
                sc.note(0, ends[(1, 2)] + 3, lambda: flush_ha())
                for mn, ops, mods in held: sc.op(0, ends[(1, 2)] + 3, mn, ops, mods)
        sc.note(0, ends[(P, 2)] + 3, lambda P=P: T.__setitem__(f'st{P}', sc.n))
    wd0 = E('WD_AT', 170)
    for f in range(70 - NPK):
        w = WDL[f][1]
        av = max(28*(w[1] + 1) + 1, wd0) if w[0] == 'p1' else when[w] + 1
        if not E('NOWD', 0): sc.load(av, 2*f + 1, lambda dry, f=f: wd_load(f, dry))
    for k in range(NPK):
        f = 70 - NPK + k
        i, nu = divmod(f, 5)
        def park(dry, k=k, i=i, nu=nu):
            return [('s_add_u32', ('m0', sPark, 1024*k), '', None),
                    ('s_add_u32', (sPkT, sPkG, nu*TS + 1024*i), '', None),
                    ('buffer_load_dwordx4', (l16, RWS, sPkT), 'offen' + LD + ' lds', (T, 'pk'))]
        if not E('NOWD', 0): sc.load(pbar + 1, 44 + k*0.01, park)
        def wpk():
            a.wait_vm_tok(T['pk'])
        if k == 0 and not E('NOWD', 0): sc.sca(1, when[WDL[f][1]] + 1, wpk)
        sc.op(1, when[WDL[f][1]] + 1, 'ds_read_b128', (WD(f), vpr), f'offset:{1024*k}')
    def hl(i, j, P, dry):
        assert f'st{P}' in T and 'fx' in T, (i, j, sc.n)
        return hload(i, j, dry)
    for i in range(7):
        for j in range(2):
            sc.load(E('HA_AT', 545), 10*i - 10 + j - E('HA_PRI', 100), lambda dry, i=i, j=j: hl(i, j, 0, dry))
            sc.mem[-1] += ('ha',)
    sc.sort()

    GST = eval(os.environ.get('GST', '[]'))
    print('n1', n1, 'ends', ends, 'NM', NM, file=sys.stderr)
    base = [0]*8
    cover = [1]
    def bread(s, hf):
        ks, j = steps[s]
        assert ks <= cover[0], (s, ks, cover)
        return ('ds_read_b64_tr_b16', (BF[s & 7][2*hf:2*hf+2], VRD[j]), f'offset:{(ks & 7)*8192 + 1024*hf}')
    def bfix(s):
        ks, j = steps[s]
        if base[j] == ks >> 3: return []
        d = (ks >> 3) - base[j]
        base[j] = ks >> 3
        return [('v_add_u32', (VRD[j], d*65536, VRD[j]))]
    if HV: hval(0, 1, None)()
    a.wait_vm_tok(dt[1])
    a('s_barrier')
    stamp(a, 10)
    if E('CLK', 0): a('s_memtime', S(72, 2)); a.wait(lg=0)
    for s in range(8):
        for hf in range(2):
            r = bread(s, hf); a(r[0], *r[1], mods=r[2])
    seen = set()
    seq = []
    for s, (ks, j) in enumerate(steps):
        nk = 4 if (j & 3) < 2 else 3
        for k in range(nk):
            acc = ACC[k][j]
            seq.append((s, k, nk, (MFMA, (acc, W1(ks, k), BF[s & 7], acc if acc.idx in seen else 0), '')))
            seen.add(acc.idx)
    for x, (s, k, nk, m) in enumerate(seq):
        if sc.n in bars:
            a.wait_vm_tok(dt[bars[sc.n]])
            if HV and sc.n in hvn: assert hvn[sc.n] in T, sc.n
            if sc.n == pbar: a.wait_lg_tok(T['sqr'])
            if sc.n == b0: assert T['w3a_ok']; a.wait_lg_tok(T['w3a'])
            if sc.n == b1: assert T['w3b_ok']; a.wait_lg_tok(T['w3b'])
            a('s_barrier')
            cover[0] = bars[sc.n]
        if sc.n == ends[(0, 2)]: stamp(a, 11)
        if sc.n in GST: stamp(a, 1 + GST.index(sc.n))
        a(m[0], *m[1])
        sc.n += 1
        fixed = []
        if 1 <= s and s + 7 < len(steps):
            if E('BB', 1) and sc.n > E('BB_AT', 320): fixed += [bread(s + 7, 0), bread(s + 7, 1)] if k == 0 else []
            elif k < 2: fixed.append(bread(s + 7, k))
        if k == 2 and s + 8 < len(steps): fixed += bfix(s + 8)
        sc.gap(fixed, [seq[x + 1][3]] if x + 1 < len(seq) else [])
    print('after gemm1:', sc.left(), 'first epilogue done at', T['st0'], 'over', sc.over, file=sys.stderr)
    stamp(a, 12)
    if E('CLK', 0):
        a('s_memtime', S(74, 2)); a.wait(lg=0)
        a('s_sub_u32', S(72), S(74), S(72))
        a('s_add_u32', S(72), S(72), S(70))
    a('s_lshl_b32', st0, S(15), 2)
    a('s_add_u32', st0, st0, sStat)
    a('v_and_b32', t0, 15, lane)
    a('v_lshl_add_u32', t1, t0, 5, st0)
    a('ds_read_b32', RS2, t1)
    a('v_lshlrev_b32', t0, 5, t0)
    sc.drain(E('BEV', 10))
    print('after burst:', sc.left(), file=sys.stderr)
    g0 = sc.n
    for i in range(7, 14):
        for j in range(2): sc.load(g0, 10*i - 10 + j, lambda dry, i=i, j=j: hl(i, j, 1, dry))
    for i in range(14):
        for j in (2, 3): sc.load(g0 + max(10*i + 5*(j - 1), E('HB_AT', 85), 140 + min(10*i, 140 - 10*E('NT', 4)) - E('HB_LEAD', 55)), 140 + 10*i - 10 + j, lambda dry, i=i, j=j: hl(i, j, 1, dry))
    EB = E('EBAR', 40)
    if EB:
        def ebar():
            a.wait(lg=0)
            a('s_barrier')
        sc.call(0, g0 + EB, ebar)
    sc.step = E('VSTEP2', 3)
    hcheck(sc, 0, 0, 0)
    while sc.q[2]:
        sc.gap()
    for i in range(1, 14): hcheck(sc, g0 + 10*i - E('CK', 5), i, 0)
    sc.sort()
    seq = [(i, (MFMA, (ACC2[j][nu], WD(5*i + nu), HF[2*i + j], ACC2[j][nu] if i else 0), '')) for i in range(14) for j in range(2) for nu in range(5)]
    for x, (i, m) in enumerate(seq):
        assert f'HC0_{i}' in T, i
        if 1000 + x in GST: stamp(a, 1 + GST.index(1000 + x))
        a(m[0], *m[1])
        sc.n += 1
        sc.gap([], [seq[x + 1][1]] if x + 1 < len(seq) and f'HC0_{seq[x + 1][0]}' in T else [])
    print('after gemm2a:', sc.left(), 'over', sc.over, file=sys.stderr)
    stamp(a, 13)
    def sqload():
        for k in range(2):
            a('buffer_load_dwordx4', BFQ[k], t0, RWS, sSQl, mods=f'offen offset:{16*k} sc1')
    sqload()
    if not EB:
        a.wait(lg=0)
        a('s_barrier')
    vw, vr = t1, t2
    a('s_mul_i32', st0, sw, 5120)
    a('v_add_u32', vw, st0, l16)
    a('s_mul_i32', st0, sw, 20480)
    a('v_add_u32', vr, st0, l16)
    vw2 = vsqs
    a('v_add_u32', vw2, 40960, vw)
    g1 = sc.n
    for j in range(2):
        for nu in range(5):
            sc.op(0, g1 + 2 + 5*(5*j + nu), 'ds_write_b128', (vw, ACC2[j][nu]), f'offset:{20480*j + 1024*nu}')
    sqbad = [('v_max3_u32', (vck, BFQ[0][0], BFQ[0][1], BFQ[0][2])), ('v_max3_u32', (vck, vck, BFQ[0][3], BFQ[1][0])),
             ('v_max3_u32', (vck, vck, BFQ[1][1], BFQ[1][2])), ('v_max_u32', (vck, vck, BFQ[1][3])), ('v_cmp_eq_u32', ('vcc', -1, vck))]
    rec = []
    r = lambda mn, *ops, mods='': rec.append((mn, ops, mods))
    for k in range(4): r('v_add_f32', BFQ[0][k], BFQ[0][k], BFQ[1][k])
    r('v_add_f32', BFQ[0][0], BFQ[0][0], BFQ[0][1])
    r('v_add_f32', BFQ[0][2], BFQ[0][2], BFQ[0][3])
    r('v_add_f32', BFQ[0][0], BFQ[0][0], BFQ[0][2])
    s2, tt = BFQ[0][0], BFQ[0][1]
    r('v_mul_f32', tt, RS2, RS2)
    r('v_mul_f32', s2, '0x3acccccd', s2)
    r('v_sub_f32', s2, s2, tt)
    r('v_max_f32', s2, 0, s2)
    rbf(r, s2)
    r('v_add_f32', s2, '0x3727c5ac', s2)
    rbf(r, s2)
    r('v_sqrt_f32', s2, s2)
    rbf(r, s2)
    r('v_rcp_f32', s2, s2)
    r('v_mul_f32', RS2, s2, s2)
    for mn, ops, mods in rec: sc.op(1, g1 + 72, mn, ops, mods)
    NT = E('NT', 4)
    seq = [(i, j, nu) for i in range(14 - NT) for j in (2, 3) for nu in range(5)]
    tail0 = len(seq)
    seq += [(i, j, nu) for j in (2, 3) for nu in range(5) for i in range(14 - NT, 14)]
    for k, (j, nu) in enumerate([(j, nu) for j in (2, 3) for nu in range(5)]):
        sc.op(0, g1 + tail0 + NT*(k + 1) + 2, 'ds_write_b128', (vw2, ACC2[j][nu]), f'offset:{20480*(j - 2) + 1024*nu}')
    issued = lambda i: not any(e[0] in (140 + 10*i - 10 + 2, 140 + 10*i - 10 + 3) for e in sc.mem)
    assert issued(0)
    hcheck(sc, 0, 0, 1)
    while sc.q[2]:
        sc.gap()
    for i in range(1, 14):
        at = g1 + ((10*i - E('CK', 5)) if i < 14 - NT else (tail0 - 5 - 3*(13 - i)))
        sc.note(2, at, lambda i=i: None if issued(i) else 1/0)
        hcheck(sc, at, i, 1)
        if i == 6: guarded(sc, 2, g1 + 60, 'SQC', sqbad, lambda: sqload)
    sc.sort()
    ms = [(i, (MFMA, (ACC2[j][nu], WD(5*i + nu), HF[2*i + (j & 1)], ACC2[j][nu] if i else 0), '')) for i, j, nu in seq]
    for x, (i, m) in enumerate(ms):
        assert f'HC1_{i}' in T, i
        if sc.n == g1 + 71: assert 'SQC' in T
        if 1140 + x in GST: stamp(a, 1 + GST.index(1140 + x))
        a(m[0], *m[1])
        sc.n += 1
        sc.gap([], [ms[x + 1][1]] if x + 1 < len(ms) and f'HC1_{ms[x + 1][0]}' in T else [])
    print('after gemm2b:', sc.left(), 'over', sc.over, file=sys.stderr)
    sc.n += 100
    sc.drain()
    if 1280 in GST: stamp(a, 1 + GST.index(1280))
    a.wait(lg=0)
    a('s_barrier')
    RD = [V(16 + 4*k, 4) for k in range(20)]
    for nu in range(5):
        for k in range(4):
            a('ds_read_b128', RD[4*nu + k], vr, mods=f'offset:{5120*k + 1024*nu}')
    X = V(96, 4)
    Q = [V(100, 4), V(104, 4), V(108, 2)]
    vo2 = V(110)
    a('v_and_b32', t0, 15, lane)
    a('v_mul_u32_u24', t0, 1280, t0)
    a('v_lshrrev_b32', t1, 1, vq16)
    a('v_add_u32', vo2, t0, t1)
    rp = V(12, 2)
    for nu in range(5):
        C, C2 = RD[4*nu], RD[4*nu + 2]
        for h in range(2):
            a('v_pk_add_f32', C[2*h:2*h+2], C[2*h:2*h+2], RD[4*nu + 1][2*h:2*h+2])
            a('v_pk_add_f32', C2[2*h:2*h+2], C2[2*h:2*h+2], RD[4*nu + 3][2*h:2*h+2])
        a('v_lshlrev_b32', X[0], 16, RES[nu][0])
        a('v_and_b32', X[1], '0xffff0000', RES[nu][0])
        a('v_lshlrev_b32', X[2], 16, RES[nu][1])
        a('v_and_b32', X[3], '0xffff0000', RES[nu][1])
        for h in range(2):
            a('v_pk_add_f32', C[2*h:2*h+2], C[2*h:2*h+2], C2[2*h:2*h+2])
        for h in range(2):
            a('v_pk_fma_f32', C[2*h:2*h+2], C[2*h:2*h+2], rp, X[2*h:2*h+2], mods='op_sel:[0,1,0] op_sel_hi:[1,1,1]')
        q = Q[nu >> 1]
        for h in range(2):
            a('v_cvt_pk_bf16_f32', q[2*(nu & 1) + h], C[2*h], C[2*h+1])
        if nu & 1:
            a('v_permlane16_swap_b32', q[0], q[2])
            a('v_permlane16_swap_b32', q[1], q[3])
            a('buffer_store_dwordx4', q, vout, ROUT, sOut, mods=f'offen offset:{64*(nu >> 1)}')
    a('buffer_store_dwordx2', Q[2], vo2, ROUT, sOut, mods='offen offset:128')
    return slow

def slow_paths(a, slow):
    for name, bad, reload in slow:
        a.label(name + '_slow')
        a.wait(lg=0)
        a('s_mov_b32', sCnt, SPIN)
        reload()
        a.spin_head(name + '_spin')
        bad()
        a('s_cbranch_vccz', name + '_back')
        reload()
        a('s_sub_u32', sCnt, sCnt, 1)
        a('s_cbranch_scc0', name + '_spin')
        a.wait(vm=0)
        a('s_branch', name + '_back')

def kernel(a):
    stamp(a, 0)
    if STAMP:
        for i in range(1, 15): a('s_mov_b32', S(70 + 2*i), S(70))
    a('s_cmp_lt_u32', S(2), 256)
    a('s_cbranch_scc1', 'K_go')
    a('s_endpgm')
    a.label('K_go')
    load_args(a)
    if E('PF0', 1): code_prefetch(a, 'PC0')
    wave_id(a, sw, t0)
    a('v_and_b32', lane, 63, V(0))
    a('v_lshlrev_b32', l16, 4, lane)
    a('v_and_b32', vq16, 48, lane)
    a('s_cmp_ge_u32', S(2), 160)
    a('s_cbranch_scc1', 'K_helper')
    tht = conv_wg(a)
    if E('PUBE', 0) == 0: gemm_setup(a)
    a.wait_vm_tok(tht)
    a.wait(lg=0)
    a('s_barrier')
    if not E('PUB_AT', 232): publish_n(a, S(2))
    if E('PUBE', 0) == 1: gemm_setup(a)
    if not E('R3B', 1):
        w_round(a, 2, 1, 3, 6)
    p2_touch(a)
    a('s_branch', 'K_gemm')
    a.label('K_helper')
    helper_wg(a, gemm_setup)
    if not E('GSE', 0): gemm_setup(a)
    if E('CSD', 2) == 1:
        a('s_cmp_lg_u32', sB, E('CSB', 5))
        a('s_cbranch_scc1', 'K_gemm')
        cs_publish(a)
    a.label('K_gemm')
    a('s_cmp_lg_u32', sw, 0)
    a('s_cbranch_scc1', 'C2_clr' if E('CLPOS', 0) == 3 or E('OTW', 0) else 'C2_skip')
    a('s_and_b32', st2, S(2), NREP - 1)
    a('s_mul_i32', st2, st2, HSTR)
    a('s_add_u32', st2, st2, hex(FLH2))
    a('v_min_u32', t1, 39, lane)
    a('v_lshrrev_b32', t2, WPL - 2, t1)
    a('v_lshlrev_b32', t2, 7, t2)
    a('v_and_b32', t1, (1 << WPL - 2) - 1, t1)
    a('v_lshl_add_u32', t2, t1, 4, t2)
    Flags(a, 'C2', BF[2], t2, st2, tmp=S(68, 2)).wait()
    if E('OTW', 0):
        a('s_branch', 'C2_skip')
        a.label('C2_clr')
        a('v_min_u32', vck, 2, lane)
        a('v_lshlrev_b32', vck, 20, vck)
        a('buffer_load_dword', vck, vck, ROUT, 0, mods='offen')
    if E('CLPOS', 0) == 3:
        a('s_branch', 'C2_skip')
        a.label('C2_clr')
        for d in range(4): a('v_mov_b32', GQ[d], -1)
        for mn, ops, *mods in clr_ops(GQ, sCl): a(mn, *ops, mods=mods[0])
        a('s_cmp_lg_u32', sw, 1)
        a('s_cbranch_scc1', 'C2_skip')
        a('s_sub_u32', sCl, sCl, 3*TS)
        for mn, ops, *mods in clr_ops(GQ, sCl): a(mn, *ops, mods=mods[0])
    a.label('C2_skip')
    if E('CSD', 2) == 2:
        a('s_cmp_lg_u32', sB, E('CSB', 5))
        a('s_cbranch_scc1', 'CS_done')
        cs_publish(a)
        a.label('CS_done')
    a.wait(lg=0)
    a('s_barrier')
    stamp(a, 9)
    slow = gemms(a)
    if STAMP: a.wait(vm=0)
    stamp_flush(a, 0, 15, sw, RWS)
    a('s_endpgm')
    slow_paths(a, slow)
    a.items.append('CODE_END:')

if __name__ == '__main__':
    txt = build([(NAME + '_kernel', kernel, 256, 163840, 512, 256)])
    txt = txt.replace(f'@launch kernel={NAME}_kernel grid', '@launch grid')
    open(sys.argv[1], 'w').write(txt)
```

```python
from mk8a import *

vdma2, RS2, vout = V(13), V(13), V(248)
ACC = [[V(16 + 32*n + 4*j, 4) for j in range(8)] for n in range(3)]
ACC.append({j: V(112 + 4*((j >> 2)*2 + (j & 1)), 4) for j in (0, 1, 4, 5)})
CSR = [V(128 + 4*n, 4) for n in range(4)]
BF = [V(208 + 4*i, 4) for i in range(8)]
VRD = [V(240 + i) for i in range(8)]
MEAN = V(176, 8)
vsr = [vst, V(184), V(185), V(186)]
vsw = [V(187), V(188)]
MT = [V(189), V(190)]
SQF = [V(128 + 4*i, 4) for i in range(3)]
SQA = V(204, 4)
vsq, vsqs, vpr = V(250), V(251), V(191)
vWg = [V(128 + i) for i in range(4)]
SQL = V(184, 8)
RES = [V(144, 2), V(146, 2), V(148, 2), V(150, 2), V(14, 2)]
ACC2 = [[V(208 + 4*nu, 4) for nu in range(5)], [V(228 + 4*nu, 4) for nu in range(5)],
        [V(176 + 4*nu, 4) for nu in range(5)], [V(196, 4), V(200, 4), V(204, 4), V(128, 4), V(132, 4)]]
MSK = [S(50, 2), S(52, 2), S(54, 2)]
WDL = [(W1(ks, n), ('p1', ks)) for ks in range(4) for n in range(4)]
WDL += [(V(152 + 4*f, 4), ('p1', 4 + (f >= 2))) for f in range(6)]
WDL += [(W1(ks, 3), (1, 0, ks)) for ks in range(KS, 20)]
WDL += [(W1(ks, n), (1, 2, ks)) for ks in range(KS, 20) for n in range(3)]
def WD(f): return WDL[f][0]
sMV, sDump, sPkT, sPark, sPkG = S(34, 2), S(12), S(49), S(7), S(10)
NPK, PK0 = E('NPK', 15), 2048
sHT0, sHTt, vchk, vtch = S(36), S(37), V(253), V(132)
CKT = [V(138 + 2*i, 2) for i in range(3)]
sCl, sFX, sFXw, GQ = S(39), S(40), S(41), V(132, 4)
HF0 = [ACC[n][j] for j in (0, 1) for n in range(4)] + [ACC[n][j] for j in (2, 3) for n in range(3)]
HF1 = [ACC[n][j] for j in (4, 5) for n in range(4)] + [ACC[n][j] for j in (6, 7) for n in range(3)]
HF = HF0 + HF1

def gemm_setup(a):
    srd(a, ROUT, P_OUT, S_*D_*2)
    cs_bases(a)
    a('s_lshl_b32', sHT, sw, 15)
    a('s_lshl_b32', st0, sB, 8)
    a('s_add_u32', sHT, sHT, st0)
    a('s_add_u32', sHT, sHT, hex(HT))
    a('s_lshl_b32', sLds, sw, 11)
    a('s_mov_b32', sHT0, sHT)
    a('s_lshl_b32', sFX, sB, 9)
    a('s_add_u32', sFX, sFX, hex(FL3))
    a('s_lshr_b32', st1, sC, 2)
    a('s_lshl_b32', st1, st1, 7)
    a('s_add_u32', sFXw, sFX, st1)
    a('s_and_b32', st1, sC, 3)
    a('s_lshl_b32', st1, st1, 2)
    a('s_add_u32', sFXw, sFXw, st1)
    a('s_and_b32', st1, sC, 3)
    a('s_lshl_b32', st1, st1, 2)
    a('s_add_u32', st1, st1, sw)
    a('s_lshl_b32', st1, st1, 17)
    a('s_add_u32', st1, st1, st0)
    a('s_add_u32', sHTt, st1, hex(HT + 4*131072))
    a('v_bfe_u32', t0, lane, 4, 2)
    a('v_lshl_add_u32', t0, t0, 2, l16)
    a('v_add_u32', vchk, sLds, t0)
    a('v_lshrrev_b32', t0, 1, lane)
    a('v_and_b32', t1, 1, lane)
    a('v_lshlrev_b32', t1, 7, t1)
    a('v_lshl_add_u32', vtch, t0, 12, t1)
    clr_setup_h(a, sCl)
    half, cbk, mu = S(13), S(14), S(15)
    a('s_bfe_u32', half, sC, (1 << 16) | 2)
    a('s_lshr_b32', cbk, sC, 3)
    a('s_lshl_b32', cbk, cbk, 2)
    a('s_and_b32', st0, sC, 3)
    a('s_add_u32', cbk, cbk, st0)
    a('s_and_b32', st0, sw, 1)
    a('s_lshl_b32', sRot, st0, 1)
    a('s_lshr_b32', st1, sw, 1)
    a('s_or_b32', sRot, sRot, st1)
    a('s_lshl_b32', mu, st1, 2)
    a('s_add_u32', mu, mu, st0)
    a('s_lshl_b32', st0, half, 1)
    a('s_add_u32', mu, mu, st0)
    a('s_mul_i32', st0, cbk, 5*TS)
    a('s_mul_i32', st1, sw, 14*1024)
    a('s_add_u32', st0, st0, st1)
    for nu in range(5):
        a('s_add_u32', sWn[nu], st0, hex(WP2 + nu*TS))
    a('s_lshl_b32', st0, sB, 3)
    a('s_lshl_b32', st2, half, 1)
    a('s_add_u32', st2, st2, st0)
    a('s_mul_i32', st2, st2, TS)
    a('s_add_u32', st2, st2, st1)
    for j in range(4):
        a('s_add_u32', sHH[j], st2, hex(HH + ((j & 1) + 4*(j >> 1))*TS))
    a('s_and_b32', st1, sRot, 2)
    a('s_mul_i32', st2, sC, 14*256)
    a('s_add_u32', st2, st2, hex(HH))
    for k in range(2):
        if k: a('s_xor_b32', st1, st1, 2)
        a('s_add_u32', sA[k], st0, st1)
        a('s_mul_i32', sA[k], sA[k], TS)
        a('s_add_u32', sA[k], sA[k], st2)
    a('s_add_u32', st1, st0, mu)
    a('s_mul_i32', sOut, st1, 16*1280)
    a('s_mul_i32', st2, cbk, 160)
    a('s_add_u32', sOut, sOut, st2)
    a('s_lshl_b32', sSQl, st1, 9)
    a('s_add_u32', sSQl, sSQl, hex(SQ))
    a('s_add_u32', st1, st0, cbk)
    a('s_lshl_b32', sSQs, st1, 9)
    a('s_lshl_b32', st1, half, 2)
    a('s_add_u32', st1, st1, sw)
    a('s_lshl_b32', st1, st1, 2)
    a('s_add_u32', sSQs, sSQs, st1)
    a('s_add_u32', sSQs, sSQs, hex(SQ))
    a('s_mov_b32', sStat, 0)
    a('s_lshl_b32', sC3, sC, 7)
    a('s_add_u32', sC3, sC3, hex(FLC))
    a('s_mov_b32', sPkG, sWn[0])
    a('s_mul_i32', sPark, sw, NPK*1024)
    a('s_add_u32', sPark, sPark, PK0)
    for mn, ops, mods in w_shift(1, vWr, vWg): a(mn, *ops)
    a('s_add_u32', sDump, sStat, 1024)
    a('s_cmp_ge_u32', sw, 2)
    a('s_cselect_b32', sMV[1], '0xffff0000', 0)
    a('s_mov_b32', sMV[0], 0)
    q, r, m, x = V(208), V(209), V(210), V(211)
    a('v_lshrrev_b32', q, 4, lane)
    a('v_bfe_u32', r, lane, 2, 2)
    a('v_and_b32', m, 15, lane)
    a('s_and_b32', st1, sw, 1)
    a('s_lshl_b32', st1, st1, 2)
    a('v_or_b32', t0, st1, q)
    a('v_bfe_u32', t1, lane, 1, 3)
    a('v_xor_b32', t0, t0, t1)
    a('v_lshlrev_b32', t0, 5, t0)
    a('v_and_b32', t1, 1, lane)
    a('v_lshl_add_u32', t0, t1, 4, t0)
    a('v_lshl_add_u32', vdma, q, 12, t0)
    a('v_add_u32', vdma2, 16384 - 1024, vdma)
    a('v_and_b32', t0, 1, q)
    a('v_lshl_or_b32', t0, t0, 2, r)
    a('v_lshl_add_u32', t1, q, 3, r)
    a('v_lshlrev_b32', t1, 8, t1)
    a('v_and_b32', t2, 3, lane)
    a('v_lshl_add_u32', t1, t2, 3, t1)
    a('v_xor_b32', x, cbk, t0)
    a('v_lshl_add_u32', vsq, x, 5, t1)
    a('s_lshl_b32', st0, sw, 14)
    a('s_add_u32', st0, st0, 11*8192)
    a('s_mul_i32', st1, sw, 3*8192)
    a('s_cmp_eq_u32', half, 0)
    a('s_cselect_b32', st0, st1, st0)
    a('v_add_u32', vsq, st0, vsq)
    a('v_xor_b32', t0, sRot, t0)
    for j in range(8):
        a('v_xor_b32', VRD[j], j, t0)
        a('v_lshl_add_u32', VRD[j], VRD[j], 5, t1)
    for i in range(3):
        a('v_cmp_eq_u32', MSK[i], i + 1, t2)
    a('v_lshlrev_b32', t0, 5, m)
    a('v_cmp_eq_u32', 'vcc', r, q)
    a('v_mov_b32', t1, hex(OOB))
    a('v_cndmask_b32', vsqs, t1, t0, 'vcc')
    a('v_lshrrev_b32', t0, 1, q)
    a('v_lshl_or_b32', t0, t0, 2, r)
    a('v_xor_b32', t0, mu, t0)
    a('v_lshlrev_b32', t0, 5, t0)
    a('v_lshl_add_u32', t0, t2, 3, t0)
    a('v_lshl_add_u32', t1, q, 2, r)
    a('v_lshl_add_u32', t0, t1, 8, t0)
    a('s_mul_i32', st2, cbk, 80*256)
    a('v_add_u32', vres, st2, t0)
    a('s_lshl_b32', st0, sRot, 2)
    a('s_add_u32', st0, st0, sStat)
    a('v_lshl_add_u32', vst, m, 5, st0)
    a('s_and_b32', st0, sRot, 1)
    a('v_and_b32', t0, 1, q)
    a('v_lshrrev_b32', t2, 1, q)
    a('v_xor_b32', x, st0, t0)
    a('v_mul_u32_u24', x, TS, x)
    a('v_lshl_add_u32', x, m, 4, x)
    a('v_add_u32', t1, sUb, t2)
    a('v_lshl_add_u32', vh01, t1, 8, x)
    a('s_add_u32', st1, sUb, 2)
    a('s_sub_u32', st2, sU3, st1)
    a('v_mul_lo_u32', t1, st2, t2)
    a('v_add_u32', t1, st1, t1)
    a('v_lshl_add_u32', vh23, t1, 8, x)
    a('v_xor_b32', x, st0, t2)
    a('v_mul_u32_u24', x, TS, x)
    a('v_lshl_add_u32', x, m, 4, x)
    a('v_lshl_add_u32', x, t0, 3, x)
    a('s_lshl_b32', st1, st1, 8)
    a('v_add_u32', vh2x, st1, x)
    a('v_mul_u32_u24', t1, 1280, m)
    a('v_lshl_add_u32', t1, t0, 5, t1)
    a('v_lshl_add_u32', vout, t2, 4, t1)
    a('v_and_b32', t1, 3, lane)
    a('v_lshlrev_b32', vfl, 2, t1)

def late_setup_ops():
    L = []
    for k in range(1, 4): L.append(('v_xor_b32', (vsr[k], 4*k, vst), ''))
    L.append(('v_lshl_add_u32', (MT[0], lane, 2, sDump), ''))
    L.append(('v_cndmask_b32', (vsw[0], MT[0], vst, sMV), ''))
    L.append(('v_cndmask_b32', (vsw[1], MT[0], vsr[1], sMV), ''))
    L.append(('v_add_u32', (vpr, sPark, l16), ''))
    return L

def pair_ops(X, Y, cX, cY, jX, jY, Q, pk, swap=True):
    L = []
    for Z, c, j in ((X, cX, jX), (Y, cY, jY)):
        if pk:
            s = j & 1
            for h in range(2):
                L.append((1, 'v_pk_fma_f32', (Z[2*h:2*h+2], c[2*h:2*h+2], MEAN[j-s:j-s+2], Z[2*h:2*h+2]), f'op_sel:[0,{s},0] op_sel_hi:[1,{s},1]'))
        else:
            for e in range(4): L.append((1, 'v_fmac_f32', (Z[e], c[e], MEAN[j]), ''))
    if swap:
        for e in range(4): L.append((2, 'v_permlane32_swap_b32', (X[e], Y[e]), ''))
    for e in range(4): L.append((1, 'v_max_f32', (X[e], 0, X[e]), ''))
    if pk:
        for h in range(2): L.append((1, 'v_pk_mul_f32', (X[2*h:2*h+2], X[2*h:2*h+2], Y[2*h:2*h+2]), ''))
    else:
        for e in range(4): L.append((1, 'v_mul_f32', (X[e], X[e], Y[e]), ''))
    for h in range(2): L.append((1, 'v_cvt_pk_bf16_f32', (Q[h], X[2*h], X[2*h+1]), ''))
    return L

def epi_ops(P, jb, pk=False):
    j0, j1 = 4*P + jb, 4*P + jb + 1
    L = []
    sbase = sA[jb >> 1]
    if P:
        L.append((1, 's_add_u32', (sbase, sbase, 4*TS), ''))
    groups = [(0, vh01)] + ([(2, vh23)] if jb == 0 else [])
    for n, va in groups:
        Q = ACC[n+1][j0]
        L += pair_ops(ACC[n][j0], ACC[n+1][j0], CSR[n], CSR[n+1], j0, j0, Q[0:2], pk, n > 0)
        L += pair_ops(ACC[n][j1], ACC[n+1][j1], CSR[n], CSR[n+1], j1, j1, Q[2:4], pk, n > 0)
        L.append((2, 'v_permlane16_swap_b32', (Q[0], Q[2]), ''))
        L.append((2, 'v_permlane16_swap_b32', (Q[1], Q[3]), ''))
        L.append((1, 'buffer_store_dwordx4', (Q, va, RWS, sbase), 'offen sc1'))
    if jb:
        Q = ACC[2][j1]
        L += pair_ops(ACC[2][j0], ACC[2][j1], CSR[2], CSR[2], j0, j1, Q[0:2], pk)
        L.append((1, 'buffer_store_dwordx2', (Q[0:2], vh2x, RWS, sbase), 'offen sc1'))
    return L

BFQ = [V(136, 4), V(140, 4)]
vck = V(252)

def gemms(a):
    T = {}
    dt = {}
    slow = []
    PW = [Ptr(s) for s in sWn]
    PH = [Ptr(s) for s in sHH]
    def wd_load(f, dry):
        i, nu = divmod(f, 5)
        L, o = PW[nu].at(i, dry)
        return L + [('buffer_load_dwordx4', (WD(f), l16, RWS, sWn[nu]), f'offen offset:{o}' + LD, None)]
    def hload(i, j, dry):
        L, o = PH[j].at(i, dry)
        return L + [('buffer_load_dwordx4', (HF[2*i + (j & 1)], l16, RWS, sHH[j]), f'offen offset:{o}' + LD, None)]
    def guarded(sc, qi, at, name, badops, reload):
        for mn, ops in badops: sc.op(qi, at, mn, ops)
        def bad():
            for mn, ops in badops: a(mn, *ops)
        def br():
            a('s_cbranch_vccnz', name + '_slow')
            a.label(name + '_back')
            slow.append((name, bad, reload()))
            T[name] = sc.n
        sc.sca(qi, at, br)
    def hcheck(sc, at, i, ph):
        F0, F1 = HF[2*i], HF[2*i + 1]
        ops = [('v_max3_u32', (vck, F0[0], F0[2], F1[0])), ('v_max_u32', (vck, vck, F1[2])), ('v_cmp_eq_u32', ('vcc', -1, vck))]
        def mk():
            ks_ = [PH[2*ph + jj].k for jj in range(2)]
            def reload():
                for jj in range(2):
                    a('s_add_u32', st0, sHH[2*ph + jj], hex((4096*((i >> 2) - ks_[jj])) & 0xffffffff))
                    a('buffer_load_dwordx4', HF[2*i + jj], l16, RWS, st0, mods=f'offen offset:{(i & 3)*1024} sc1')
            return reload
        guarded(sc, 2, at, f'HC{ph}_{i}', ops, mk)
    def dma_ops(ks):
        return [[('s_add_u32', ('m0', sLds, 8192*ks)), ('buffer_load_dwordx4', (vdma, RWS, sHT), 'offen' + LD + ' lds')],
                [('buffer_load_dwordx4', (vdma2, RWS, sHT), 'offen offset:1024' + LD + ' lds', (dt, ks))],
                [('s_add_u32', (sHT, sHT, 131072))]]
    sc = Sched(a, 4)
    sc.step = E('VSTEP', 5)
    NUP = E('NUP', 4)
    for ks in range(NUP):
        for L in dma_ops(ks): sc.ops(0, 0, L)
    sc.drain()
    if E('HTT', 1): a('buffer_load_dword', V(133), vtch, RWS, sHTt, mods='offen')
    a('s_cmp_lg_u32', S(2), 0)
    a('s_cbranch_scc1', 'EP_skip')
    a('s_add_u32', sEp, sEp, 1)
    a('v_mov_b32', t0, sEp)
    a('s_mov_b32', st0, hex(EPOCH))
    a('s_mov_b64', 'exec', 1)
    a('buffer_store_dword', t0, 'off', RWS, st0, mods='sc1')
    a('s_mov_b64', 'exec', -1)
    a.label('EP_skip')
    steps = [(ks, j) for ks in range(KS) for j in range(8)]
    ends = {}
    cnt = lambda L: sum(4 if (j & 3) < 2 else 3 for _, j in L)
    n1 = cnt(steps)
    when = {}
    for P in range(2):
        mrg = KS + (E('MRG', 0) if P else 0)
        for ks in range(KS, mrg):
            for jb in (0, 2):
                steps += [(ks, 4*P + jb), (ks, 4*P + jb + 1)]
                when[(P, jb, ks)] = cnt(steps)
        for jb in (0, 2):
            for ks in range(mrg, 20):
                steps += [(ks, 4*P + jb), (ks, 4*P + jb + 1)]
                when[(P, jb, ks)] = cnt(steps)
            ends[(P, jb)] = cnt(steps)
    NM = cnt(steps)
    d0, ds_ = E('D_AT', 30), E('DSTEP', 9)
    for ks in range(NUP, 20):
        at = d0 + ds_*(ks - NUP)
        st_ = ds_
        if ks >= 11: st_ = E('DSTEP2', 7); at = E('D2_AT', 88) + st_*(ks - 11)
        for k, L in enumerate(dma_ops(ks)): sc.ops(2, at + (st_//2 if k else 0), L)
    bars = eval(os.environ.get('BARS', '{30: 3, 86: 6, 142: 11, 198: 19}'))
    lastbar = min(k for k, v in bars.items() if v == 19)
    cbase = [0]
    def hval(lo, hi, at):
        name = f'HV{lo}'
        rd = lambda ks: ('ds_read2st64_b32', (CKT[ks % 3], vchk), f'offset0:{32*(ks - lo)} offset1:{32*(ks - lo) + 4}')
        mx = lambda ks: ('v_max_u32', (vck, CKT[ks % 3][0], CKT[ks % 3][1])) if ks == lo else ('v_max3_u32', (vck, vck, CKT[ks % 3][0], CKT[ks % 3][1]))
        cmp_ = ('v_cmp_eq_u32', ('vcc', -1, vck))
        def reload():
            a('s_mov_b32', st1, 'm0')
            for ks in range(lo, hi + 1):
                a('s_add_u32', 'm0', sLds, 8192*ks)
                a('s_add_u32', st0, sHT0, 131072*ks)
                a('buffer_load_dwordx4', vdma, RWS, st0, mods='offen sc1 lds')
                a('buffer_load_dwordx4', vdma2, RWS, st0, mods='offen offset:1024 sc1 lds')
            a('s_mov_b32', 'm0', st1)
        def bad():
            for ks in range(lo, hi + 1):
                r = rd(ks); a(r[0], *r[1], mods=r[2])
                m = mx(ks); a(m[0], *m[1])
            a(cmp_[0], *cmp_[1])
        def br():
            a('s_cbranch_vccnz', name + '_slow')
            a.label(name + '_back')
            slow.append((name, bad, reload))
            T[name] = sc.n
        sh = [('v_add_u32', (vchk, 8192*(lo - cbase[0]), vchk))] if lo != cbase[0] else []
        cbase[0] = lo
        if at is None:
            a.wait_vm_tok(dt[hi])
            for ks in range(lo, hi + 1):
                r = rd(ks); a(r[0], *r[1], mods=r[2])
            return lambda: ([a(mx(ks)[0], *mx(ks)[1]) for ks in range(lo, hi + 1)], a(cmp_[0], *cmp_[1]), br())
        lat, st_ = E('HV_LAT', 7), 3
        for x in sh: sc.op(3, at - lat - 3 - st_*(hi - lo) - 2, *x)
        for ks in range(lo, hi + 1):
            t = at - lat - 3 - st_*(hi - ks)
            sc.sca(3, t, lambda ks=ks: a.wait_vm_tok(dt[ks]))
            sc.op(3, t, *rd(ks))
            sc.op(3, t + lat, *mx(ks))
        sc.op(3, at - 3, *cmp_)
        sc.sca(3, at - 3, br)
    HV = E('HV', 1)
    if HV:
        lo = 2
        for n_, hi in sorted(bars.items()):
            hval(lo, hi, n_); lo = hi + 1
        cbase[0] = 0
    hvn = {n_: f'HV{lo_ + 1}' for n_, lo_ in zip(sorted(bars), [1] + [v for k, v in sorted(bars.items())])}
    pbar = E('PBAR', 228)
    bars[pbar] = 19
    b0, b1 = sorted(bars)[:2]
    for i, ks in enumerate(RND[2]):
        at = 0 if i < 2 else b0
        if i == 4:
            for op in w_shift(4, vWg): sc.op(0, at, *op)
        for op in w_reads(ks, i & 3, vWg): sc.op(0, at, *op, tok=(T, 'w3a' if i < 2 else 'w3b'))
    sc.note(0, 0, lambda: T.__setitem__('w3a_ok', 1))
    sc.note(0, b0, lambda: T.__setitem__('w3b_ok', 1))
    assert d0 + ds_*(8 - NUP) >= b0 and E('D2_AT', 88) > b1
    cl_at = E('GCL_AT', 152)
    CLP = E('CLPOS', 0)
    for d in range(4*(CLP == 0)): sc.op(1, cl_at - 8, 'v_mov_b32', (GQ[d], -1))
    for k, (mn, ops, mods) in enumerate(clr_ops(GQ, sCl)):
        if (E('NOCL', 0) and k > 0) or CLP: continue
        sc.op(1, cl_at + E('GCL_STEP', 3)*k, mn, ops, mods, tok=(T, 'cl'))
    sc.note(1, cl_at + E('GCL_STEP', 3)*8, lambda: T.__setitem__('cl_ok', sc.n))
    fx_at = E('FX_AT', 520)
    FX = Flags(a, 'FX', vfv, vchk, sFX)
    sc.op(1, fx_at - 70, 'v_bfe_u32', (vchk, lane, 2, 2))
    sc.op(1, fx_at - 70, 'v_lshl_add_u32', (vchk, vchk, 7, vfl))
    sc.call(1, fx_at - 60, FX.load)
    sc.call(1, fx_at, lambda: (FX.check(), T.__setitem__('fx', 1)))
    if E('OT_AT', 0):
        sc.op(1, E('OT_AT', 0), 'v_min_u32', (vck, 2, lane))
        sc.op(1, E('OT_AT', 0), 'v_lshlrev_b32', (vck, 20, vck))
        sc.op(1, E('OT_AT', 0), 'buffer_load_dword', (vck, vck, ROUT, 0), 'offen')
    fl_at = E('FL_AT', 240)
    FC = Flags(a, 'CF', vfv, vfl, sC3)
    fc_at = E('FC_AT', 200)
    sc.call(1, fc_at - 62, FC.load)
    sc.call(1, fc_at - 10, FC.check)
    for n in range(4):
        sc.op(1, fl_at, 'buffer_load_dwordx4', (CSR[n], vq16, RWS, sCS3 if n == 3 else sCS0), f'offen offset:{64*(n % 3)} sc1')
    sq_at = lastbar + 2
    if cl_at < sq_at: sc.note(0, sq_at, lambda: T['cl_ok'])
    else: assert cl_at - 8 >= pbar + 8
    for nu in range(5):
        sc.op(0, sq_at, 'ds_read_b64_tr_b16', (RES[nu], vres), f'offset:{4096*nu}')
    for op in late_setup_ops(): sc.op(0, sq_at, *op)
    for i in range(3):
        for hf in range(2):
            sc.op(0, sq_at, 'ds_read_b64_tr_b16', (SQF[i][2*hf:2*hf+2], vsq), f'offset:{8192*i + 1024*hf}', tok=(T, 'sqr'))
    def sq_mf():
        a(MFMA, SQA, SQF[1], SQF[1], 0)
        a(MFMA, SQA, SQF[2], SQF[2], SQA)
        a('s_bitcmp1_b32', sC, 2)
        a('s_cbranch_scc1', 'SQ_skip')
        a(MFMA, SQA, SQF[0], SQF[0], SQA)
        a.label('SQ_skip')
    sm = pbar + 4
    sc.call(0, sm, sq_mf)
    sc.op(0, sm + 4, 'v_cndmask_b32', (MT[0], SQA[0], SQA[1], MSK[0]))
    sc.op(0, sm + 4, 'v_cndmask_b32', (MT[0], MT[0], SQA[2], MSK[1]))
    sc.op(0, sm + 4, 'v_cndmask_b32', (MT[0], MT[0], SQA[3], MSK[2]))
    sc.op(0, sm + 4, 'buffer_store_dword', (MT[0], vsqs, RWS, sSQs), 'offen sc1')
    held = []
    def flush_ha():
        for e in [e for e in sc.mem if e[3:] == ('ha',)]:
            sc.mem.remove(e); sc.emit(e[2](False))
    for P in range(2):
        e0 = ends[(P, 0)]
        for k in range(2):
            sc.op(0, e0 + 3, 'v_mul_f32', (MT[k], '0xbacccccd', ACC[3][4*P + k][0]))
        for k in range(2):
            sc.op(0, e0 + 3, 'ds_write_b32', (vsw[k], MT[k]), f'offset:{16*P}', tok=(T, 'mw'))
        def mbar(P=P):
            a.wait_lg_tok(T['mw'])
            if P == 0 and not CLP: a.wait_vm_tok(T['cl'])
            a('s_barrier')
            if P == 0:
                a('s_cmp_lg_u32', sw, 0)
                a('s_cbranch_scc1', 'FX_pub')
                a('s_mov_b64', 'exec', 1)
                publish(a, sFXw, 0)
                a('s_mov_b64', 'exec', -1)
                a.label('FX_pub')
        sc.call(0, e0 + 10, mbar)
        for k in range(4):
            sc.op(0, e0 + 10, 'ds_read_b32', (MEAN[4*P + k], vsr[k]), f'offset:{16*P}')
        for c, mn, ops, mods in epi_ops(P, 0):
            if P and E('DEFER', 0) and 'store' in mn: held.append((mn, ops, mods))
            else: sc.op(0, e0 + 16, mn, ops, mods)
        for c, mn, ops, mods in epi_ops(P, 2, pk=(P == 1)):
            if P and E('DEFER', 0) >= 2 and 'store' in mn: held.append((mn, ops, mods))
            else: sc.op(0, ends[(P, 2)] + 3, mn, ops, mods)
        if P and held:
            if E('DEFER', 0) == 1:
                k = [i for i, e in enumerate(sc.q[0]) if e[0] == ends[(1, 2)] + 3 and e[1] == 'i' and 'store' in e[2][0][0]][0]
                for mn, ops, mods in reversed(held): sc.q[0].insert(k, (ends[(1, 2)] + 3, 'i', [(mn, ops, mods, None)]))
            else:
                sc.note(0, ends[(1, 2)] + 3, lambda: flush_ha())
                for mn, ops, mods in held: sc.op(0, ends[(1, 2)] + 3, mn, ops, mods)
        sc.note(0, ends[(P, 2)] + 3, lambda P=P: T.__setitem__(f'st{P}', sc.n))
    wd0 = E('WD_AT', 170)
    for f in range(70 - NPK):
        w = WDL[f][1]
        av = max(28*(w[1] + 1) + 1, wd0) if w[0] == 'p1' else when[w] + 1
        if not E('NOWD', 0): sc.load(av, 2*f + 1, lambda dry, f=f: wd_load(f, dry))
    for k in range(NPK):
        f = 70 - NPK + k
        i, nu = divmod(f, 5)
        def park(dry, k=k, i=i, nu=nu):
            return [('s_add_u32', ('m0', sPark, 1024*k), '', None),
                    ('s_add_u32', (sPkT, sPkG, nu*TS + 1024*i), '', None),
                    ('buffer_load_dwordx4', (l16, RWS, sPkT), 'offen' + LD + ' lds', (T, 'pk'))]
        if not E('NOWD', 0): sc.load(pbar + 1, 44 + k*0.01, park)
        def wpk():
            a.wait_vm_tok(T['pk'])
        if k == 0 and not E('NOWD', 0): sc.sca(1, when[WDL[f][1]] + 1, wpk)
        sc.op(1, when[WDL[f][1]] + 1, 'ds_read_b128', (WD(f), vpr), f'offset:{1024*k}')
    def hl(i, j, P, dry):
        assert f'st{P}' in T and 'fx' in T, (i, j, sc.n)
        return hload(i, j, dry)
    for i in range(7):
        for j in range(2):
            sc.load(E('HA_AT', 545), 10*i - 10 + j - E('HA_PRI', 100), lambda dry, i=i, j=j: hl(i, j, 0, dry))
            sc.mem[-1] += ('ha',)
    sc.sort()

    GST = eval(os.environ.get('GST', '[]'))
    print('n1', n1, 'ends', ends, 'NM', NM, file=sys.stderr)
    base = [0]*8
    cover = [1]
    def bread(s, hf):
        ks, j = steps[s]
        assert ks <= cover[0], (s, ks, cover)
        return ('ds_read_b64_tr_b16', (BF[s & 7][2*hf:2*hf+2], VRD[j]), f'offset:{(ks & 7)*8192 + 1024*hf}')
    def bfix(s):
        ks, j = steps[s]
        if base[j] == ks >> 3: return []
        d = (ks >> 3) - base[j]
        base[j] = ks >> 3
        return [('v_add_u32', (VRD[j], d*65536, VRD[j]))]
    if HV: hval(0, 1, None)()
    a.wait_vm_tok(dt[1])
    a('s_barrier')
    stamp(a, 10)
    if E('CLK', 0): a('s_memtime', S(72, 2)); a.wait(lg=0)
    for s in range(8):
        for hf in range(2):
            r = bread(s, hf); a(r[0], *r[1], mods=r[2])
    seen = set()
    seq = []
    for s, (ks, j) in enumerate(steps):
        nk = 4 if (j & 3) < 2 else 3
        for k in range(nk):
            acc = ACC[k][j]
            seq.append((s, k, nk, (MFMA, (acc, W1(ks, k), BF[s & 7], acc if acc.idx in seen else 0), '')))
            seen.add(acc.idx)
    for x, (s, k, nk, m) in enumerate(seq):
        if sc.n in bars:
            a.wait_vm_tok(dt[bars[sc.n]])
            if HV and sc.n in hvn: assert hvn[sc.n] in T, sc.n
            if sc.n == pbar: a.wait_lg_tok(T['sqr'])
            if sc.n == b0: assert T['w3a_ok']; a.wait_lg_tok(T['w3a'])
            if sc.n == b1: assert T['w3b_ok']; a.wait_lg_tok(T['w3b'])
            a('s_barrier')
            cover[0] = bars[sc.n]
        if sc.n == ends[(0, 2)]: stamp(a, 11)
        if sc.n in GST: stamp(a, 1 + GST.index(sc.n))
        a(m[0], *m[1])
        sc.n += 1
        fixed = []
        if 1 <= s and s + 7 < len(steps):
            if E('BB', 1) and sc.n > E('BB_AT', 320): fixed += [bread(s + 7, 0), bread(s + 7, 1)] if k == 0 else []
            elif k < 2: fixed.append(bread(s + 7, k))
        if k == 2 and s + 8 < len(steps): fixed += bfix(s + 8)
        sc.gap(fixed, [seq[x + 1][3]] if x + 1 < len(seq) else [])
    print('after gemm1:', sc.left(), 'first epilogue done at', T['st0'], 'over', sc.over, file=sys.stderr)
    stamp(a, 12)
    if E('CLK', 0):
        a('s_memtime', S(74, 2)); a.wait(lg=0)
        a('s_sub_u32', S(72), S(74), S(72))
        a('s_add_u32', S(72), S(72), S(70))
    a('s_lshl_b32', st0, S(15), 2)
    a('s_add_u32', st0, st0, sStat)
    a('v_and_b32', t0, 15, lane)
    a('v_lshl_add_u32', t1, t0, 5, st0)
    a('ds_read_b32', RS2, t1)
    a('v_lshlrev_b32', t0, 5, t0)
    sc.drain(E('BEV', 10))
    print('after burst:', sc.left(), file=sys.stderr)
    g0 = sc.n
    for i in range(7, 14):
        for j in range(2): sc.load(g0, 10*i - 10 + j, lambda dry, i=i, j=j: hl(i, j, 1, dry))
    for i in range(14):
        for j in (2, 3): sc.load(g0 + max(10*i + 5*(j - 1), E('HB_AT', 85), 140 + min(10*i, 140 - 10*E('NT', 4)) - E('HB_LEAD', 55)), 140 + 10*i - 10 + j, lambda dry, i=i, j=j: hl(i, j, 1, dry))
    EB = E('EBAR', 40)
    if EB:
        def ebar():
            a.wait(lg=0)
            a('s_barrier')
        sc.call(0, g0 + EB, ebar)
    sc.step = E('VSTEP2', 3)
    hcheck(sc, 0, 0, 0)
    while sc.q[2]:
        sc.gap()
    for i in range(1, 14): hcheck(sc, g0 + 10*i - E('CK', 5), i, 0)
    sc.sort()
    seq = [(i, (MFMA, (ACC2[j][nu], WD(5*i + nu), HF[2*i + j], ACC2[j][nu] if i else 0), '')) for i in range(14) for j in range(2) for nu in range(5)]
    for x, (i, m) in enumerate(seq):
        assert f'HC0_{i}' in T, i
        if 1000 + x in GST: stamp(a, 1 + GST.index(1000 + x))
        a(m[0], *m[1])
        sc.n += 1
        sc.gap([], [seq[x + 1][1]] if x + 1 < len(seq) and f'HC0_{seq[x + 1][0]}' in T else [])
    print('after gemm2a:', sc.left(), 'over', sc.over, file=sys.stderr)
    stamp(a, 13)
    def sqload():
        for k in range(2):
            a('buffer_load_dwordx4', BFQ[k], t0, RWS, sSQl, mods=f'offen offset:{16*k} sc1')
    sqload()
    if not EB:
        a.wait(lg=0)
        a('s_barrier')
    vw, vr = t1, t2
    a('s_mul_i32', st0, sw, 5120)
    a('v_add_u32', vw, st0, l16)
    a('s_mul_i32', st0, sw, 20480)
    a('v_add_u32', vr, st0, l16)
    vw2 = vsqs
    a('v_add_u32', vw2, 40960, vw)
    g1 = sc.n
    for j in range(2):
        for nu in range(5):
            sc.op(0, g1 + 2 + 5*(5*j + nu), 'ds_write_b128', (vw, ACC2[j][nu]), f'offset:{20480*j + 1024*nu}')
    sqbad = [('v_max3_u32', (vck, BFQ[0][0], BFQ[0][1], BFQ[0][2])), ('v_max3_u32', (vck, vck, BFQ[0][3], BFQ[1][0])),
             ('v_max3_u32', (vck, vck, BFQ[1][1], BFQ[1][2])), ('v_max_u32', (vck, vck, BFQ[1][3])), ('v_cmp_eq_u32', ('vcc', -1, vck))]
    rec = []
    r = lambda mn, *ops, mods='': rec.append((mn, ops, mods))
    for k in range(4): r('v_add_f32', BFQ[0][k], BFQ[0][k], BFQ[1][k])
    r('v_add_f32', BFQ[0][0], BFQ[0][0], BFQ[0][1])
    r('v_add_f32', BFQ[0][2], BFQ[0][2], BFQ[0][3])
    r('v_add_f32', BFQ[0][0], BFQ[0][0], BFQ[0][2])
    s2, tt = BFQ[0][0], BFQ[0][1]
    r('v_mul_f32', tt, RS2, RS2)
    r('v_mul_f32', s2, '0x3acccccd', s2)
    r('v_sub_f32', s2, s2, tt)
    r('v_max_f32', s2, 0, s2)
    rbf(r, s2)
    r('v_add_f32', s2, '0x3727c5ac', s2)
    rbf(r, s2)
    r('v_sqrt_f32', s2, s2)
    rbf(r, s2)
    r('v_rcp_f32', s2, s2)
    r('v_mul_f32', RS2, s2, s2)
    for mn, ops, mods in rec: sc.op(1, g1 + 72, mn, ops, mods)
    NT = E('NT', 4)
    seq = [(i, j, nu) for i in range(14 - NT) for j in (2, 3) for nu in range(5)]
    tail0 = len(seq)
    seq += [(i, j, nu) for j in (2, 3) for nu in range(5) for i in range(14 - NT, 14)]
    for k, (j, nu) in enumerate([(j, nu) for j in (2, 3) for nu in range(5)]):
        sc.op(0, g1 + tail0 + NT*(k + 1) + 2, 'ds_write_b128', (vw2, ACC2[j][nu]), f'offset:{20480*(j - 2) + 1024*nu}')
    TP = E('TP', 6)
    RD = HF[:20] if TP else [V(16 + 4*k, 4) for k in range(20)]
    def rdp(nu):
        for k in range(4):
            a('ds_read_b128', RD[4*nu + k], vr, mods=f'offset:{5120*k + 1024*nu}')
    if TP:
        assert NT == 4
        sc.call(0, g1 + 56, lambda: (a.wait(lg=0), a('s_barrier')))
        def early(nu):
            a('s_cmp_ge_u32', sw, 2)
            a('s_cbranch_scc1', f'RD_e{nu}')
            rdp(nu)
            a.label(f'RD_e{nu}')
        for nu in range(5): sc.call(0, g1 + tail0 + 3 + TP*nu, lambda nu=nu: early(nu))
    issued = lambda i: not any(e[0] in (140 + 10*i - 10 + 2, 140 + 10*i - 10 + 3) for e in sc.mem)
    assert issued(0)
    hcheck(sc, 0, 0, 1)
    while sc.q[2]:
        sc.gap()
    for i in range(1, 14):
        at = g1 + ((10*i - E('CK', 5)) if i < 14 - NT else (tail0 - 5 - 3*(13 - i)))
        sc.note(2, at, lambda i=i: None if issued(i) else 1/0)
        hcheck(sc, at, i, 1)
        if i == 6: guarded(sc, 2, g1 + 60, 'SQC', sqbad, lambda: sqload)
    sc.sort()
    ms = [(i, (MFMA, (ACC2[j][nu], WD(5*i + nu), HF[2*i + (j & 1)], ACC2[j][nu] if i else 0), '')) for i, j, nu in seq]
    for x, (i, m) in enumerate(ms):
        assert f'HC1_{i}' in T, i
        if sc.n == g1 + 71: assert 'SQC' in T
        if 1140 + x in GST: stamp(a, 1 + GST.index(1140 + x))
        a(m[0], *m[1])
        sc.n += 1
        sc.gap([], [ms[x + 1][1]] if x + 1 < len(ms) and f'HC1_{ms[x + 1][0]}' in T else [])
    print('after gemm2b:', sc.left(), 'over', sc.over, file=sys.stderr)
    sc.n += 100
    sc.drain()
    if 1280 in GST: stamp(a, 1 + GST.index(1280))
    a.wait(lg=0)
    a('s_barrier')
    if TP:
        a('s_cmp_lt_u32', sw, 2)
        a('s_cbranch_scc1', 'RD_l')
    for nu in range(5): rdp(nu)
    if TP: a.label('RD_l')
    X = V(104, 4) if TP else V(96, 4)
    Q = [V(40, 4), V(44, 4), V(108, 2)] if TP else [V(100, 4), V(104, 4), V(108, 2)]
    vo2 = V(110)
    a('v_and_b32', t0, 15, lane)
    a('v_mul_u32_u24', t0, 1280, t0)
    a('v_lshrrev_b32', t1, 1, vq16)
    a('v_add_u32', vo2, t0, t1)
    rp = V(12, 2)
    for nu in range(5):
        C, C2 = RD[4*nu], RD[4*nu + 2]
        for h in range(2):
            a('v_pk_add_f32', C[2*h:2*h+2], C[2*h:2*h+2], RD[4*nu + 1][2*h:2*h+2])
            a('v_pk_add_f32', C2[2*h:2*h+2], C2[2*h:2*h+2], RD[4*nu + 3][2*h:2*h+2])
        a('v_lshlrev_b32', X[0], 16, RES[nu][0])
        a('v_and_b32', X[1], '0xffff0000', RES[nu][0])
        a('v_lshlrev_b32', X[2], 16, RES[nu][1])
        a('v_and_b32', X[3], '0xffff0000', RES[nu][1])
        for h in range(2):
            a('v_pk_add_f32', C[2*h:2*h+2], C[2*h:2*h+2], C2[2*h:2*h+2])
        for h in range(2):
            a('v_pk_fma_f32', C[2*h:2*h+2], C[2*h:2*h+2], rp, X[2*h:2*h+2], mods='op_sel:[0,1,0] op_sel_hi:[1,1,1]')
        q = Q[nu >> 1]
        for h in range(2):
            a('v_cvt_pk_bf16_f32', q[2*(nu & 1) + h], C[2*h], C[2*h+1])
        if nu & 1:
            a('v_permlane16_swap_b32', q[0], q[2])
            a('v_permlane16_swap_b32', q[1], q[3])
            a('buffer_store_dwordx4', q, vout, ROUT, sOut, mods=f'offen offset:{64*(nu >> 1)}')
    a('buffer_store_dwordx2', Q[2], vo2, ROUT, sOut, mods='offen offset:128')
    return slow

def slow_paths(a, slow):
    for name, bad, reload in slow:
        a.label(name + '_slow')
        a.wait(lg=0)
        a('s_mov_b32', sCnt, SPIN)
        reload()
        a.spin_head(name + '_spin')
        bad()
        a('s_cbranch_vccz', name + '_back')
        reload()
        a('s_sub_u32', sCnt, sCnt, 1)
        a('s_cbranch_scc0', name + '_spin')
        a.wait(vm=0)
        a('s_branch', name + '_back')

def kernel(a):
    stamp(a, 0)
    if STAMP:
        for i in range(1, 15): a('s_mov_b32', S(70 + 2*i), S(70))
    a('s_cmp_lt_u32', S(2), 256)
    a('s_cbranch_scc1', 'K_go')
    a('s_endpgm')
    a.label('K_go')
    load_args(a)
    if E('PF0', 1): code_prefetch(a, 'PC0')
    wave_id(a, sw, t0)
    a('v_and_b32', lane, 63, V(0))
    a('v_lshlrev_b32', l16, 4, lane)
    a('v_and_b32', vq16, 48, lane)
    a('s_cmp_ge_u32', S(2), 160)
    a('s_cbranch_scc1', 'K_helper')
    tht = conv_wg(a)
    if E('PUBE', 0) == 0: gemm_setup(a)
    a.wait_vm_tok(tht)
    a.wait(lg=0)
    a('s_barrier')
    if not E('PUB_AT', 232): publish_n(a, S(2))
    if E('PUBE', 0) == 1: gemm_setup(a)
    if not E('R3B', 1):
        w_round(a, 2, 1, 3, 6)
    p2_touch(a)
    a('s_branch', 'K_gemm')
    a.label('K_helper')
    helper_wg(a, gemm_setup)
    if not E('GSE', 0): gemm_setup(a)
    if E('CSD', 2) == 1:
        a('s_cmp_lg_u32', sB, E('CSB', 5))
        a('s_cbranch_scc1', 'K_gemm')
        cs_publish(a)
    a.label('K_gemm')
    a('s_cmp_lg_u32', sw, 0)
    a('s_cbranch_scc1', 'C2_clr' if E('CLPOS', 0) == 3 or E('OTW', 0) else 'C2_skip')
    a('s_and_b32', st2, S(2), NREP - 1)
    a('s_mul_i32', st2, st2, HSTR)
    a('s_add_u32', st2, st2, hex(FLH2))
    a('v_min_u32', t1, 39, lane)
    a('v_lshrrev_b32', t2, WPL - 2, t1)
    a('v_lshlrev_b32', t2, 7, t2)
    a('v_and_b32', t1, (1 << WPL - 2) - 1, t1)
    a('v_lshl_add_u32', t2, t1, 4, t2)
    Flags(a, 'C2', BF[2], t2, st2, tmp=S(68, 2)).wait()
    if E('OTW', 0):
        a('s_branch', 'C2_skip')
        a.label('C2_clr')
        a('v_min_u32', vck, 2, lane)
        a('v_lshlrev_b32', vck, 20, vck)
        a('buffer_load_dword', vck, vck, ROUT, 0, mods='offen')
    if E('CLPOS', 0) == 3:
        a('s_branch', 'C2_skip')
        a.label('C2_clr')
        for d in range(4): a('v_mov_b32', GQ[d], -1)
        for mn, ops, *mods in clr_ops(GQ, sCl): a(mn, *ops, mods=mods[0])
        a('s_cmp_lg_u32', sw, 1)
        a('s_cbranch_scc1', 'C2_skip')
        a('s_sub_u32', sCl, sCl, 3*TS)
        for mn, ops, *mods in clr_ops(GQ, sCl): a(mn, *ops, mods=mods[0])
    a.label('C2_skip')
    if E('CSD', 2) == 2:
        a('s_cmp_lg_u32', sB, E('CSB', 5))
        a('s_cbranch_scc1', 'CS_done')
        cs_publish(a)
        a.label('CS_done')
    a.wait(lg=0)
    a('s_barrier')
    stamp(a, 9)
    slow = gemms(a)
    if STAMP: a.wait(vm=0)
    stamp_flush(a, 0, 15, sw, RWS)
    a('s_endpgm')
    slow_paths(a, slow)
    a.items.append('CODE_END:')

if __name__ == '__main__':
    txt = build([(NAME + '_kernel', kernel, 256, 163840, 512, 256)])
    txt = txt.replace(f'@launch kernel={NAME}_kernel grid', '@launch grid')
    open(sys.argv[1], 'w').write(txt)
```
